```python
import torch

def _softmax(x, axis=-1):
    return torch.softmax(x, dim=axis)

def _gelu(x):
    return torch.nn.functional.gelu(x, approximate='tanh')

def _silu(x):
    return torch.nn.functional.silu(x)

def _sigmoid(x):
    return torch.sigmoid(x)

def _layernorm(x, axis=-1, eps=1e-05):
    m = x.mean(dim=axis, keepdim=True)
    v = x.var(dim=axis, keepdim=True, unbiased=False)
    return (x - m) / torch.sqrt(v + eps)

def _scatter_add(tgt, idx, src, axis=0):
    return tgt.clone().index_add_(axis, idx, src)

def _segment_sum(src, seg, n):
    out = torch.zeros((n,) + src.shape[1:], dtype=src.dtype)
    return out.index_add_(0, seg, src)

def _pad(x, pw):
    flat = tuple((v for pair in reversed(pw) for v in pair))
    return torch.nn.functional.pad(x, flat)
kernel_name = 'standalone__tensor_product_equiv_mace__graph'

def setup_inputs():

    _w = lambda a: (lambda t: t.to(torch.bfloat16) if t.is_floating_point() else t)(torch.as_tensor(a))
    N, deg = (25000, 32)
    Lmax, C, De = (1, 64, 16)
    M = (Lmax + 1) ** 2
    E = N * deg
    src = (lambda lo, hi, *s: torch.randint(lo, hi, s))(0, N, E).to(torch.int64)
    dst = (lambda lo, hi, *s: torch.randint(lo, hi, s))(0, N, E).to(torch.int64)
    r = (lambda *s: torch.randn(*s, dtype=torch.bfloat16) * 0.05)(E, 3).to(float)
    r = r / (torch.linalg.norm(r, dim=-1, keepdim=True).to(float) + 1e-06)
    rx, ry, rz = (r[:, 0].clone(), r[:, 1].clone(), r[:, 2].clone())
    x2, y2, z2 = (rx * rx, ry * ry, rz * rz)
    sh_list = [torch.ones_like(rx), rx, ry, rz, rx * ry, ry * rz, 2.0 * z2 - x2 - y2, rx * rz, x2 - y2, ry * (3.0 * x2 - y2), rx * ry * rz, ry * (4.0 * z2 - x2 - y2), rz * (2.0 * z2 - 3.0 * x2 - 3.0 * y2), rx * (4.0 * z2 - x2 - y2), rz * (x2 - y2), rx * (x2 - 3.0 * y2)]
    sh16 = torch.stack(sh_list, dim=-1).to(float)
    pad = max(0, M - 16)
    sh_full = torch.cat([sh16, torch.zeros((E, pad), dtype=float)], dim=-1)[:, :M]
    cg = ((lambda *s: torch.randn(*s, dtype=torch.bfloat16) * 0.05)(M, M, M) * (1.0 / float(M))).to(float)
    return {'x': _w(((lambda *s: torch.randn(*s, dtype=torch.bfloat16) * 0.05)(N, M, C) * 0.3).to(float)), 'src': _w(src), 'dst': _w(dst), 'sh': _w(sh_full.to(float)), 'edge_attr': _w(((lambda *s: torch.randn(*s, dtype=torch.bfloat16) * 0.05)(E, De) * 0.3).to(float)), 'cg': _w(cg), 'w_r': _w(((lambda *s: torch.randn(*s, dtype=torch.bfloat16) * 0.05)(De, C) * (1.0 / float(De) ** 0.5)).to(float)), 'w_out': _w(((lambda *s: torch.randn(*s, dtype=torch.bfloat16) * 0.05)(C, C) * (1.0 / float(C) ** 0.5)).to(float))}

def reference(x, src, dst, sh, edge_attr, cg, w_r, w_out):
    N = x.shape[0]
    M = x.shape[1]
    C = x.shape[2]
    h = x[src]
    tp = torch.einsum('uvw,euc,ev->ewc', cg, h, sh)
    rw = edge_attr @ w_r
    msg = tp * rw[:, None, :]
    msg2 = msg.reshape(-1, M * C)
    agg = _segment_sum(msg2, dst, N).reshape(N, M, C)
    out = torch.einsum('nmc,cd->nmd', agg, w_out)
    return out
```

```python
import sys
N, E = 25000, 800000
CH = 3136
NB = 98
W = 8
RCAP = 3456
CAPX = 3648
WS_XT = 0
WS_EA = 12845056
WS_MO = WS_EA + 256 * CH * 32
WS_OFF = WS_MO + 256 * CH * 12
WS_END = WS_OFF + 262144

class Opt:
    nt_k1 = True
    bar = 1
    ws_base = 0
    stamps = False
opt = Opt()
for a in sys.argv[2:]:
    k, v = a.split('=')
    setattr(opt, k, int(v))

out = []
def I(s): out.append('    ' + s)
def L(s): out.append(s + ':')
def C(s): out.append('    ; ' + s)
def vr(b, n): return f'v[{b}:{b+n-1}]' if n > 1 else f'v{b}'
def sr(b, n): return f's[{b}:{b+n-1}]' if n > 1 else f's{b}'

def srd(d, base, off_s=None, off_imm=0, size=None, size_s=None):
    if off_imm:
        I(f's_add_u32 s{d}, s{base}, 0x{off_imm:x}')
        I(f's_addc_u32 s{d+1}, s{base+1}, 0')
    else:
        I(f's_mov_b32 s{d}, s{base}')
        I(f's_mov_b32 s{d+1}, s{base+1}')
    if off_s is not None:
        I(f's_add_u32 s{d}, s{d}, s{off_s}')
        I(f's_addc_u32 s{d+1}, s{d+1}, 0')
    if size_s is not None:
        I(f's_mov_b32 s{d+2}, s{size_s}')
    else:
        I(f's_mov_b32 s{d+2}, 0x{size:x}')
    I(f's_mov_b32 s{d+3}, 0x20000')

def wave_scan(v):
    for sh in (1, 2, 4, 8):
        I('s_nop 1')
        I(f'v_add_u32_dpp v{v}, v{v}, v{v} row_shr:{sh} row_mask:0xf bank_mask:0xf')
    I('s_nop 1')
    I(f'v_add_u32_dpp v{v}, v{v}, v{v} row_bcast:15 row_mask:0xa bank_mask:0xf')
    I('s_nop 1')
    I(f'v_add_u32_dpp v{v}, v{v}, v{v} row_bcast:31 row_mask:0xc bank_mask:0xf')

K1_EAL = 0
K1_MOL = CH * 32
K1_POS = K1_MOL + CH * 12
K1_HIST = K1_POS + CH * 2
K1_START = K1_HIST + 1024
K1_LDS = K1_START + 1024

def gen_k1():
    nt = ' nt' if opt.nt_k1 else ''
    L('mace_part_kernel')
    I('s_cmp_ge_u32 s2, 0x100')
    I('s_cbranch_scc1 L1_end')
    I('s_load_dwordx8 s[4:11], s[0:1], 0')
    I('s_load_dwordx2 s[12:13], s[0:1], 32')
    I('s_load_dwordx2 s[14:15], s[0:1], 80')
    C('chunk = (wg&7)*32 + (wg>>3)')
    I('s_and_b32 s16, s2, 7')
    I('s_lshl_b32 s16, s16, 5')
    I('s_lshr_b32 s17, s2, 3')
    I('s_add_u32 s16, s16, s17')
    I(f's_mul_i32 s17, s16, {CH}')
    I(f's_sub_u32 s18, {E}, s17')
    I(f's_min_u32 s18, s18, {CH}')
    I(f's_mul_i32 s19, s16, {NB}')
    I(f's_sub_u32 s20, {N}, s19')
    I(f's_min_u32 s20, s20, {NB}')
    T = 0
    vO4, vO8, vO16, vXO = 1, 2, 3, 4
    vDST, vSRC, vSH, vEA, vX = 8, 12, 16, 24, 52
    vBK, vRK, vKEY = 68, 72, 76
    vT = 80
    I(f'v_lshlrev_b32 v{vO4}, 2, v0')
    I(f'v_lshlrev_b32 v{vO8}, 3, v0')
    I(f'v_lshlrev_b32 v{vO16}, 4, v0')
    I(f'v_lshrrev_b32 v{vXO}, 3, v0')
    I(f'v_lshlrev_b32 v{vXO}, 9, v{vXO}')
    I(f'v_and_b32 v5, 7, v0')
    I(f'v_lshl_add_u32 v{vXO}, v5, 4, v{vXO}')
    I('s_waitcnt lgkmcnt(0)')
    sDST, sSRC, sSH, sEA, sX, sXT, sEAO, sMO, sOFF = 24, 28, 32, 36, 40, 44, 48, 52, 56
    I('s_lshl_b32 s21, s17, 2'); I('s_lshl_b32 s22, s18, 2')
    srd(sDST, 8, off_s=21, size_s=22)
    srd(sSRC, 6, off_s=21, size_s=22)
    for m in range(4):
        if m: I(f'v_add_u32 v{vT+m}, {4096*m}, v{vO4}')
    for m in range(4):
        I(f'buffer_load_dword v{vDST+m}, v{vT+m if m else vO4}, {sr(sDST,4)}, 0 offen{nt}')
    for m in range(4):
        I(f'buffer_load_dword v{vSRC+m}, v{vT+m if m else vO4}, {sr(sSRC,4)}, 0 offen{nt}')
    I('s_lshl_b32 s21, s17, 3'); I('s_lshl_b32 s22, s18, 3')
    srd(sSH, 10, off_s=21, size_s=22)
    for m in range(4):
        if m: I(f'v_add_u32 v{vT+4+m}, {8192*m}, v{vO8}')
        I(f'buffer_load_dwordx2 {vr(vSH+2*m,2)}, v{vT+4+m if m else vO8}, {sr(sSH,4)}, 0 offen{nt}')
    I('s_lshl_b32 s21, s17, 5'); I('s_lshl_b32 s22, s18, 5')
    srd(sEA, 12, off_s=21, size_s=22)
    srd(sEAO, 14, off_s=21, off_imm=opt.ws_base + WS_EA, size_s=22)
    vQ = 112
    for m in range(7):
        if m: I(f'v_add_u32 v{vQ+m}, {16384*m}, v{vO16}')
        else: I(f'v_mov_b32 v{vQ}, v{vO16}')
        I(f'buffer_load_dwordx4 {vr(vEA+4*m,4)}, v{vQ+m}, {sr(sEA,4)}, 0 offen{nt}')
    I('s_lshl_b32 s21, s19, 9'); I('s_lshl_b32 s22, s20, 9')
    srd(sX, 4, off_s=21, size_s=22)
    srd(sXT, 14, off_s=21, off_imm=opt.ws_base + WS_XT, size_s=22)
    for u in range(4):
        I(f'buffer_load_dwordx4 {vr(vX+4*u,4)}, v{vXO}, {sr(sX,4)}, 0 offen offset:{128*u}{nt}')
    I('s_mul_i32 s21, s17, 12'); I('s_mul_i32 s22, s18, 12')
    srd(sMO, 14, off_s=21, off_imm=opt.ws_base + WS_MO, size_s=22)
    srd(sOFF, 14, off_imm=opt.ws_base + WS_OFF, size=262144)
    C('zero histogram')
    I(f'v_and_b32 v{vT+8}, 0x3fc, v{vO4}')
    I(f'v_add_u32 v{vT+8}, {K1_HIST}, v{vT+8}')
    I(f'v_mov_b32 v{vT+9}, 0')
    I(f'ds_write_b32 v{vT+8}, v{vT+9}')
    C('validity masks: s[60+2m] = (t+1024m < ne)')
    sVM = 60
    for m in range(4):
        I(f'v_add_u32 v{vT+10}, {1024*m}, v0')
        I(f'v_cmp_gt_u32 {sr(sVM+2*m,2)}, s18, v{vT+10}')
    sVQ = 68
    I('s_lshl_b32 s21, s18, 1')
    for m in range(7):
        I(f'v_add_u32 v{vT+10}, {1024*m}, v0')
        I(f'v_cmp_gt_u32 {sr(sVQ+2*m,2)}, s21, v{vT+10}')
    I('s_waitcnt lgkmcnt(0)')
    I('s_barrier')
    I('s_waitcnt vmcnt(15)')
    I(f'v_mov_b32 v{vT+9}, 1')
    for m in range(4):
        I(f'v_mul_u32_u24 v{vBK+m}, 42800, v{vDST+m}')
        I(f'v_lshrrev_b32 v{vBK+m}, 22, v{vBK+m}')
        I(f'v_mul_u32_u24 v{vT+10}, {NB}, v{vBK+m}')
        I(f'v_sub_u32 v{vT+10}, v{vDST+m}, v{vT+10}')
        I(f'v_and_b32 v{vT+11}, 7, v{vT+10}')
        I(f'v_lshlrev_b32 v{vT+11}, 24, v{vT+11}')
        I(f'v_lshrrev_b32 v{vT+10}, 3, v{vT+10}')
        I(f'v_lshl_add_u32 v{vT+11}, v{vT+10}, 2, v{vT+11}')
        I(f'v_lshl_add_u32 v{vKEY+m}, v{vSRC+m}, 9, v{vT+11}')
        I(f'v_lshlrev_b32 v{vBK+m}, 2, v{vBK+m}')
        I(f'v_add_u32 v{vBK+m}, {K1_HIST}, v{vBK+m}')
        I(f's_mov_b64 exec, {sr(sVM+2*m,2)}')
        I(f'ds_add_rtn_u32 v{vRK+m}, v{vBK+m}, v{vT+9}')
        I('s_mov_b64 exec, -1')
    I('s_waitcnt lgkmcnt(0)')
    I('s_barrier')
    C('every wave scans the histogram and writes the (identical) start table')
    I(f'v_and_b32 v{vT+8}, 63, v0')
    I(f'v_lshlrev_b32 v{vT+16}, 4, v{vT+8}')
    I(f'v_add_u32 v{vT+16}, {K1_HIST}, v{vT+16}')
    cnt = vT + 12
    I(f'ds_read_b128 {vr(cnt,4)}, v{vT+16}')
    st = vT + 20
    I('s_waitcnt lgkmcnt(0)')
    I(f'v_add_u32 v{st+1}, v{cnt}, v{cnt+1}')
    I(f'v_add_u32 v{st+2}, v{st+1}, v{cnt+2}')
    I(f'v_add_u32 v{vT+17}, v{st+2}, v{cnt+3}')
    I(f'v_mov_b32 v{vT+18}, v{vT+17}')
    wave_scan(vT + 18)
    I(f'v_sub_u32 v{st}, v{vT+18}, v{vT+17}')
    I(f'v_add_u32 v{st+3}, v{st}, v{st+2}')
    I(f'v_add_u32 v{st+2}, v{st}, v{st+1}')
    I(f'v_add_u32 v{st+1}, v{st}, v{cnt}')
    I(f'ds_write_b128 v{vT+16}, {vr(st,4)} offset:1024')
    C('wave 0 publishes (start | len<<16) to OFF[bucket][chunk]')
    I('v_readfirstlane_b32 s21, v0')
    I('s_cmp_lg_u32 s21, 0')
    I('s_cbranch_scc1 L1_nooff')
    I('s_lshl_b32 s22, s16, 2')
    I(f'v_lshlrev_b32 v{vT+17}, 12, v{vT+8}')
    I(f'v_add_u32 v{vT+17}, s22, v{vT+17}')
    for i in range(4):
        I(f'v_lshl_add_u32 v{vT+24+i}, v{cnt+i}, 16, v{st+i}')
        I(f'buffer_store_dword v{vT+24+i}, v{vT+17}, {sr(sOFF,4)}, 0 offen offset:{1024*i}')
    L('L1_nooff')
    I('s_waitcnt lgkmcnt(0)')
    for m in range(4):
        I(f'ds_read_b32 v{vT+12+m}, v{vBK+m} offset:1024')
    I(f'v_lshlrev_b32 v{vT+8}, 1, v0')
    I(f'v_add_u32 v{vT+8}, {K1_POS}, v{vT+8}')
    I('s_waitcnt vmcnt(11) lgkmcnt(0)')
    for m in range(4):
        I(f'v_add_u32 v{vRK+m}, v{vRK+m}, v{vT+12+m}')
        I(f'v_mul_u32_u24 v{vT+16+m}, 12, v{vRK+m}')
        I(f'v_add_u32 v{vT+16+m}, {K1_MOL}, v{vT+16+m}')
        I(f's_mov_b64 exec, {sr(sVM+2*m,2)}')
        I(f'ds_write_b16 v{vT+8}, v{vRK+m} offset:{2048*m}')
        I(f'ds_write2_b32 v{vT+16+m}, v{vKEY+m}, v{vSH+2*m} offset0:0 offset1:1')
        I(f'ds_write_b32 v{vT+16+m}, v{vSH+2*m+1} offset:8')
        I('s_mov_b64 exec, -1')
    I('s_waitcnt lgkmcnt(0)')
    I('s_barrier')
    C('ea pieces -> sorted LDS image')
    I(f'v_and_b32 v{vT+8}, 0x3fe, v0')
    I(f'v_add_u32 v{vT+8}, {K1_POS}, v{vT+8}')
    for m in range(7):
        I(f'ds_read_u16 v{vT+12+m}, v{vT+8} offset:{1024*m}')
    I(f'v_and_b32 v{vT+9}, 1, v0')
    I(f'v_lshlrev_b32 v{vT+9}, 4, v{vT+9}')
    I('s_waitcnt lgkmcnt(0)')
    for m in range(7):
        I(f'v_lshl_add_u32 v{vT+12+m}, v{vT+12+m}, 5, v{vT+9}')
        I(f's_waitcnt vmcnt({10-m})')
        I(f's_mov_b64 exec, {sr(sVQ+2*m,2)}')
        I(f'ds_write_b128 v{vT+12+m}, {vr(vEA+4*m,4)}')
        I('s_mov_b64 exec, -1')
    I('s_waitcnt lgkmcnt(0)')
    I('s_barrier')
    C('linear copy out')
    for m in range(7):
        I(f'ds_read_b128 {vr(vEA+4*m,4)}, v{vQ+m}')
    vM = 8
    I(f'v_add_u32 v{vT+8}, {K1_MOL}, v{vO16}')
    for m in range(3):
        I(f'ds_read_b128 {vr(vM+4*m,4)}, v{vT+8} offset:{16384*m}')
    for m in range(7):
        I(f's_waitcnt lgkmcnt({9-m})')
        I(f'buffer_store_dwordx4 {vr(vEA+4*m,4)}, v{vQ+m}, {sr(sEAO,4)}, 0 offen')
    for m in range(3):
        I(f's_waitcnt lgkmcnt({2-m})')
        I(f'buffer_store_dwordx4 {vr(vM+4*m,4)}, v{vQ+m}, {sr(sMO,4)}, 0 offen')
    C('x transpose: piece k of lane o = channels (8o+2k, 8o+2k+1), each u0..u3')
    I('s_mov_b32 s21, 0x05040100')
    I('s_mov_b32 s22, 0x07060302')
    I('s_waitcnt vmcnt(10)')
    for k in range(4):
        d = vT + 4 * k
        I(f'v_perm_b32 v{d}, v{vX+4+k}, v{vX+k}, s21')
        I(f'v_perm_b32 v{d+1}, v{vX+12+k}, v{vX+8+k}, s21')
        I(f'v_perm_b32 v{d+2}, v{vX+4+k}, v{vX+k}, s22')
        I(f'v_perm_b32 v{d+3}, v{vX+12+k}, v{vX+8+k}, s22')
        I(f'buffer_store_dwordx4 {vr(d,4)}, v{vXO}, {sr(sXT,4)}, 0 offen offset:{128*k}')
    L('L1_end')
    I('s_endpgm')

L_EA = 0
L_SH = CAPX * 32
L_KEY = L_SH + CAPX * 8
L_CNT = L_KEY + CAPX * 4
L_ST = L_CNT + 1024
K2_LDS = L_ST + 1024
NULLKEY = (0x7fff << 9) | (13 << 2)
TP = 144
L_T = 0
L_WO = 8 * 64 * TP

def gen_k2():
    L('mace_main_kernel')
    I('s_cmp_ge_u32 s2, 0x100')
    I('s_cbranch_scc1 L2_end')
    I('s_load_dwordx8 s[4:11], s[0:1], 40')
    I('s_load_dwordx2 s[14:15], s[0:1], 80')
    I('s_and_b32 s16, s2, 7')
    I('s_lshl_b32 s16, s16, 5')
    I('s_lshr_b32 s17, s2, 3')
    I('s_add_u32 s16, s16, s17')
    vACC = 8
    vBE, vBO = 64, 68
    vCG = 72
    vWO = 80
    vA1, vA2 = 84, 88
    vLANE, vLO = 1, 2
    vPRE, vLEN, vG0 = 3, 4, 5
    vX = 92
    vDT = 124
    vRW = 140
    vAE = 172
    vK = 176
    vSHR = 184
    vTT = 186
    vAD = 190
    vKA, vSA, vEAA = 192, 193, 194
    vME = 92
    vEAP = 120
    vRK = 176
    vCL = 184
    vT = 196
    sOFF, sMO, sEAO, sXT, sOUT, sCG, sWR, sWO = 20, 24, 28, 32, 36, 40, 44, 48
    sW, sTOT, sR0, sCNT, sNB, sNBM, sI = 17, 18, 19, 52, 53, 54, 55
    sM0, sM1 = 56, 58
    sMASK = 60
    sXSZ = 61
    sVM = 62
    sSL = 64
    I(f'v_and_b32 v{vLANE}, 63, v0')
    I(f'v_lshrrev_b32 v{vT}, 6, v0')
    I('s_nop 0')
    I(f'v_readfirstlane_b32 s{sW}, v{vT}')
    I(f'v_lshlrev_b32 v{vT+1}, 4, v{vLANE}')
    I('s_lshl_b32 s12, s16, 10')
    I(f'v_add_u32 v{vT+1}, s12, v{vT+1}')
    I('s_waitcnt lgkmcnt(0)')
    srd(sOFF, 14, off_imm=opt.ws_base + WS_OFF, size=262144)
    F = vT + 4
    I(f'buffer_load_dwordx4 {vr(F,4)}, v{vT+1}, {sr(sOFF,4)}, 0 offen')
    srd(sWR, 6, size=2048)
    srd(sCG, 4, size=128)
    srd(sWO, 8, size=8192)
    C('w_r: dword at row k=8*kg+t, channels 8*(j&7)+2*(j>>3) (+1)')
    I(f'v_and_b32 v{vT+2}, 7, v0')
    I(f'v_lshlrev_b32 v{vT+2}, 4, v{vT+2}')
    I(f'v_bfe_u32 v{vT+3}, v0, 3, 2')
    I(f'v_lshl_add_u32 v{vT+2}, v{vT+3}, 2, v{vT+2}')
    I(f'v_bfe_u32 v{vT+3}, v0, 5, 1')
    I(f'v_lshl_add_u32 v{vT+2}, v{vT+3}, 10, v{vT+2}')
    WRT = vT + 8
    for t in range(8):
        I(f'buffer_load_dword v{WRT+t}, v{vT+2}, {sr(sWR,4)}, 0 offen offset:{128*t}')
    C('cg[u][v][w], w = lane&3')
    I(f'v_and_b32 v{vT+3}, 3, v0')
    I(f'v_lshlrev_b32 v{vT+3}, 1, v{vT+3}')
    CGT = vT + 16
    for u in range(4):
        for v in range(4):
            I(f'buffer_load_ushort v{CGT+4*u+v}, v{vT+3}, {sr(sCG,4)}, 0 offen offset:{32*u+8*v}')
    I(f'v_lshlrev_b32 v{vT+3}, 4, v0')
    I(f'buffer_load_dwordx4 {vr(vWO,4)}, v{vT+3}, {sr(sWO,4)}, 0 offen')
    srd(sMO, 14, off_imm=opt.ws_base + WS_MO, size=E * 12)
    srd(sEAO, 14, off_imm=opt.ws_base + WS_EA, size=E * 32)
    srd(sXT, 14, off_imm=opt.ws_base + WS_XT, size=N * 512)
    srd(sOUT, 10, size=N * 512)
    I(f's_mov_b32 s{sXSZ}, 0x{N*512:x}')
    I(f's_mov_b32 s{sMASK}, 0x00fffe00')
    I(f's_mov_b32 s{sM0}, 0x0f0f0f0f'); I(f's_mov_b32 s{sM0+1}, 0x0f0f0f0f')
    I(f's_mov_b32 s{sM1}, 0xf0f0f0f0'); I(f's_mov_b32 s{sM1+1}, 0xf0f0f0f0')
    for r in range(56): I(f'v_mov_b32 v{vACC+r}, 0')
    for r in range(8): I(f'v_mov_b32 v{vA1+r}, 0')
    I(f'v_and_b32 v{vLO}, 31, v0')
    I(f'v_lshlrev_b32 v{vLO}, 4, v{vLO}')
    I('s_waitcnt vmcnt(25)')
    C('run lengths -> prefix')
    LN = vT + 32
    for i in range(4):
        I(f'v_lshrrev_b32 v{LN+i}, 16, v{F+i}')
    I(f'v_add_u32 v{vT+1}, v{LN}, v{LN+1}')
    I(f'v_add_u32 v{vT+2}, v{vT+1}, v{LN+2}')
    I(f'v_add_u32 v{vT+3}, v{vT+2}, v{LN+3}')
    I(f'v_mov_b32 v{vT}, v{vT+3}')
    wave_scan(vT)
    I(f'v_sub_u32 v{vPRE}, v{vT}, v{vT+3}')
    I(f'v_readlane_b32 s{sTOT}, v{vT}, 63')
    I(f's_and_b32 s12, s{sW}, 3')
    I(f'v_mov_b32 v{vLEN}, v{LN}')
    I(f'v_mov_b32 v{vG0}, v{F}')
    for i, p in ((1, LN), (2, vT + 1), (3, vT + 2)):
        I(f's_cmp_lg_u32 s12, {i}')
        I(f's_cbranch_scc1 L2_sel{i}')
        I(f'v_add_u32 v{vPRE}, v{vPRE}, v{p}')
        I(f'v_mov_b32 v{vLEN}, v{LN+i}')
        I(f'v_mov_b32 v{vG0}, v{F+i}')
        L(f'L2_sel{i}')
    I(f'v_and_b32 v{vG0}, 0xffff, v{vG0}')
    I(f'v_lshl_add_u32 v{vT}, v{vLANE}, 2, s12')
    I(f'v_mul_u32_u24 v{vT}, {CH}, v{vT}')
    I(f'v_add_u32 v{vG0}, v{vG0}, v{vT}')
    C('constant operands')
    I('s_waitcnt vmcnt(1)')
    I('s_mov_b32 s12, 0x05040100')
    I('s_mov_b32 s13, 0x07060302')
    for i in range(4):
        I(f'v_perm_b32 v{vBE+i}, v{WRT+2*i+1}, v{WRT+2*i}, s12')
        I(f'v_perm_b32 v{vBO+i}, v{WRT+2*i+1}, v{WRT+2*i}, s13')
    for u in range(4):
        I(f'v_lshl_or_b32 v{vCG+2*u}, v{CGT+4*u+1}, 16, v{CGT+4*u}')
        I(f'v_lshl_or_b32 v{vCG+2*u+1}, v{CGT+4*u+3}, 16, v{CGT+4*u+2}')
    I('s_waitcnt vmcnt(0)')
    I(f's_mov_b32 s{sR0}, 0')
    I(f's_cmp_eq_u32 s{sTOT}, 0')
    I('s_cbranch_scc1 L2_epi')
    L('L2_round')
    I(f's_sub_u32 s{sCNT}, s{sTOT}, s{sR0}')
    I(f's_min_u32 s{sCNT}, s{sCNT}, {RCAP}')
    C('prefill KEY with null keys, zero CNT')
    for i in range(4): I(f'v_mov_b32 v{vT+4+i}, 0x{NULLKEY:x}')
    I(f'v_lshlrev_b32 v{vT}, 4, v0')
    I(f'v_add_u32 v{vT}, {L_KEY}, v{vT}')
    I(f'ds_write_b128 v{vT}, {vr(vT+4,4)}')
    I(f'v_cmp_gt_u32 vcc, {(CAPX*4-8192)//16}, v0')
    I('s_and_saveexec_b64 s[12:13], vcc')
    I(f'ds_write_b128 v{vT}, {vr(vT+4,4)} offset:8192')
    I('s_mov_b64 exec, -1')
    I(f'v_and_b32 v{vT+1}, 0xff, v0')
    I(f'v_lshlrev_b32 v{vT+1}, 2, v{vT+1}')
    I(f'v_add_u32 v{vT+1}, {L_CNT}, v{vT+1}')
    I(f'v_mov_b32 v{vT+2}, 0')
    I(f'ds_write_b32 v{vT+1}, v{vT+2}')
    C('expand: GIDX[pre+k-r0] = g0+k for k in window, k parity = wave>>2')
    I(f'v_sub_u32 v{vT+1}, s{sR0}, v{vPRE}')
    I(f'v_max_i32 v{vT+2}, 0, v{vT+1}')
    I(f'v_add_u32 v{vT+3}, {RCAP}, v{vT+1}')
    I(f'v_min_i32 v{vT+3}, v{vT+3}, v{vLEN}')
    I(f's_lshr_b32 s12, s{sW}, 2')
    I(f'v_add_u32 v{vT+2}, s12, v{vT+2}')
    I(f'v_sub_u32 v{vT+4}, v{vT+2}, v{vT+1}')
    I(f'v_lshlrev_b32 v{vT+4}, 2, v{vT+4}')
    I(f'v_add_u32 v{vT+5}, v{vG0}, v{vT+2}')
    L('L2_exp')
    I(f'v_cmp_lt_i32 vcc, v{vT+2}, v{vT+3}')
    I('s_and_b64 exec, exec, vcc')
    I('s_cbranch_execz L2_exp_done')
    I(f'ds_write_b32 v{vT+4}, v{vT+5}')
    I(f'v_add_u32 v{vT+2}, 2, v{vT+2}')
    I(f'v_add_u32 v{vT+4}, 8, v{vT+4}')
    I(f'v_add_u32 v{vT+5}, 2, v{vT+5}')
    I('s_branch L2_exp')
    L('L2_exp_done')
    I('s_mov_b64 exec, -1')
    I('s_waitcnt lgkmcnt(0)')
    I('s_barrier')
    C('record loads')
    I(f'v_lshlrev_b32 v{vT}, 2, v0')
    for m in range(7):
        I(f'ds_read_b32 v{vT+8+m}, v{vT} offset:{2048*m}')
    for m in range(7):
        I(f'v_add_u32 v{vT+1}, {512*m}, v0')
        I(f'v_cmp_gt_u32 {sr(sVM+2*m,2)}, s{sCNT}, v{vT+1}')
    I(f'v_mov_b32 v{vT+2}, 0x1000000')
    I('s_waitcnt lgkmcnt(0)')
    for m in range(7):
        I(f'v_cndmask_b32 v{vT+8+m}, v{vT+2}, v{vT+8+m}, {sr(sVM+2*m,2)}')
        I(f'v_lshlrev_b32 v{vT+16+m}, 2, v{vT+8+m}')
        I(f'v_lshl_add_u32 v{vT+16+m}, v{vT+8+m}, 3, v{vT+16+m}')
        I(f'buffer_load_dwordx3 {vr(vME+4*m,3)}, v{vT+16+m}, {sr(sMO,4)}, 0 offen')
    for m in range(7):
        I(f'v_lshlrev_b32 v{vT+8+m}, 5, v{vT+8+m}')
        I(f'buffer_load_dwordx4 {vr(vEAP+8*m,4)}, v{vT+8+m}, {sr(sEAO,4)}, 0 offen')
        I(f'buffer_load_dwordx4 {vr(vEAP+8*m+4,4)}, v{vT+8+m}, {sr(sEAO,4)}, 0 offen offset:16')
    I(f'v_mov_b32 v{vT+2}, 1')
    for m in range(7):
        I(f's_waitcnt vmcnt({20-m})')
        I(f'v_lshrrev_b32 v{vCL+m}, 19, v{vME+4*m}')
        I(f'v_lshlrev_b32 v{vCL+m}, 2, v{vCL+m}')
        I(f'v_add_u32 v{vCL+m}, {L_CNT}, v{vCL+m}')
        I(f's_mov_b64 exec, {sr(sVM+2*m,2)}')
        I(f'ds_add_rtn_u32 v{vRK+m}, v{vCL+m}, v{vT+2}')
        I('s_mov_b64 exec, -1')
    I('s_waitcnt lgkmcnt(0)')
    I('s_barrier')
    C('cell scan (every wave), lists padded to 16')
    I(f'v_lshlrev_b32 v{vT}, 4, v{vLANE}')
    I(f'v_add_u32 v{vT}, {L_CNT}, v{vT}')
    cnt, st = vT + 4, vT + 8
    I(f'ds_read_b128 {vr(cnt,4)}, v{vT}')
    I('s_waitcnt lgkmcnt(0)')
    I(f'v_add_u32 v{st+1}, v{cnt}, v{cnt+1}')
    I(f'v_add_u32 v{st+2}, v{st+1}, v{cnt+2}')
    I(f'v_add_u32 v{vT+1}, v{st+2}, v{cnt+3}')
    I('s_nop 1')
    I(f'v_add_u32_dpp v{vT+2}, v{vT+1}, v{vT+1} quad_perm:[1,0,3,2] row_mask:0xf bank_mask:0xf')
    I('s_nop 1')
    I(f'v_add_u32_dpp v{vT+2}, v{vT+2}, v{vT+2} quad_perm:[2,3,0,1] row_mask:0xf bank_mask:0xf')
    I('s_nop 1')
    I(f'v_add_u32_dpp v{vT+2}, v{vT+2}, v{vT+2} row_half_mirror row_mask:0xf bank_mask:0xf')
    I(f'v_add_u32 v{vT+3}, 15, v{vT+2}')
    I(f'v_and_b32 v{vT+3}, -16, v{vT+3}')
    I(f'v_sub_u32 v{vT+2}, v{vT+3}, v{vT+2}')
    I(f'v_and_b32 v{vT+12}, 7, v0')
    I(f'v_cmp_eq_u32 s[12:13], 7, v{vT+12}')
    I('s_nop 1')
    I(f'v_cndmask_b32 v{vT+2}, 0, v{vT+2}, s[12:13]')
    I(f'v_add_u32 v{vT+1}, v{vT+1}, v{vT+2}')
    I(f'v_mov_b32 v{vT+2}, v{vT+1}')
    wave_scan(vT + 2)
    I(f'v_sub_u32 v{st}, v{vT+2}, v{vT+1}')
    I(f'v_add_u32 v{st+3}, v{st}, v{st+2}')
    I(f'v_add_u32 v{st+2}, v{st}, v{st+1}')
    I(f'v_add_u32 v{st+1}, v{st}, v{cnt}')
    I(f'ds_write_b128 v{vT}, {vr(st,4)} offset:1024')
    I(f's_lshl_b32 s12, s{sW}, 3')
    I(f'v_readlane_b32 s{sNB}, v{vT+3}, s12')
    I(f'v_readlane_b32 s{sI}, v{st}, s12')
    I(f'v_readlane_b32 s{sNBM}, v{vT+3}, 0')
    for g in range(1, 8):
        I(f'v_readlane_b32 s12, v{vT+3}, {8*g}')
        I(f's_max_u32 s{sNBM}, s{sNBM}, s12')
    I(f's_lshr_b32 s{sNB}, s{sNB}, 4')
    I(f's_lshr_b32 s{sNBM}, s{sNBM}, 4')
    I('s_waitcnt lgkmcnt(0)')
    for m in range(7):
        I(f'ds_read_b32 v{vT+12+m}, v{vCL+m} offset:1024')
    C('main-loop LDS addresses')
    I(f'v_lshrrev_b32 v{vT}, 5, v{vLANE}')
    I(f'v_lshl_add_u32 v{vKA}, v{vT}, 3, s{sI}')
    I(f'v_lshlrev_b32 v{vKA}, 2, v{vKA}')
    I(f'v_add_u32 v{vKA}, {L_KEY}, v{vKA}')
    I(f'v_lshrrev_b32 v{vSA}, 2, v{vLANE}')
    I(f'v_add_u32 v{vSA}, s{sI}, v{vSA}')
    I(f'v_lshlrev_b32 v{vSA}, 3, v{vSA}')
    I(f'v_add_u32 v{vSA}, {L_SH}, v{vSA}')
    I(f'v_bfe_u32 v{vT+1}, v0, 3, 2')
    I(f'v_and_b32 v{vT+2}, 3, v0')
    I(f'v_lshl_add_u32 v{vT+1}, v{vT+1}, 2, v{vT+2}')
    I(f'v_add_u32 v{vT+1}, s{sI}, v{vT+1}')
    I(f'v_lshlrev_b32 v{vT+1}, 5, v{vT+1}')
    I(f'v_lshl_add_u32 v{vEAA}, v{vT}, 4, v{vT+1}')
    I('s_waitcnt lgkmcnt(0)')
    for m in range(7):
        I(f'v_add_u32 v{vRK+m}, v{vRK+m}, v{vT+12+m}')
        I(f'v_lshlrev_b32 v{vT}, 2, v{vRK+m}')
        I(f'v_add_u32 v{vT}, {L_KEY}, v{vT}')
        I(f'v_lshlrev_b32 v{vT+1}, 3, v{vRK+m}')
        I(f'v_add_u32 v{vT+1}, {L_SH}, v{vT+1}')
        I(f'v_lshlrev_b32 v{vRK+m}, 5, v{vRK+m}')
        I(f's_mov_b64 exec, {sr(sVM+2*m,2)}')
        I(f'ds_write_b32 v{vT}, v{vME+4*m}')
        I(f'ds_write2_b32 v{vT+1}, v{vME+4*m+1}, v{vME+4*m+2} offset0:0 offset1:1')
        I('s_mov_b64 exec, -1')
    for m in range(7):
        I(f's_waitcnt vmcnt({12-2*m})')
        I(f's_mov_b64 exec, {sr(sVM+2*m,2)}')
        I(f'ds_write_b128 v{vRK+m}, {vr(vEAP+8*m,4)}')
        I(f'ds_write_b128 v{vRK+m}, {vr(vEAP+8*m+4,4)} offset:16')
        I('s_mov_b64 exec, -1')
    I('s_waitcnt lgkmcnt(0)')
    I('s_barrier')

    def payload_reads(boff):
        I(f'ds_read_b64 {vr(vSHR,2)}, v{vSA} offset:{128*boff}')
        I(f's_mov_b64 exec, {sr(sM0,2)}')
        I(f'ds_read_b128 {vr(vA1,4)}, v{vEAA} offset:{512*boff}')
        I(f's_mov_b64 exec, {sr(sM1,2)}')
        I(f'ds_read_b128 {vr(vA2,4)}, v{vEAA} offset:{512*boff}')
        I('s_mov_b64 exec, -1')
    def rw_mfma(p):
        I(f'v_mfma_f32_32x32x16_bf16 {vr(vRW+16*p,16)}, {vr(vA1,4)}, {vr(vBE,4)}, 0')
        I(f'v_mfma_f32_32x32x16_bf16 {vr(vRW+16*p,16)}, {vr(vA2,4)}, {vr(vBO,4)}, {vr(vRW+16*p,16)}')
    def ae_dots():
        for u in range(4):
            I(f'v_dot2_f32_bf16 v{vTT+u}, v{vSHR}, v{vCG+2*u}, 0')
        for u in range(4):
            I(f'v_dot2_f32_bf16 v{vTT+u}, v{vSHR+1}, v{vCG+2*u+1}, v{vTT+u}')
    def ae_cvt(p):
        I(f'v_cvt_pk_bf16_f32 v{vAE+2*p}, v{vTT}, v{vTT+1}')
        I(f'v_cvt_pk_bf16_f32 v{vAE+2*p+1}, v{vTT+2}, v{vTT+3}')
    def fmas(p, s):
        d = vDT + 8 * (s & 1)
        for h, e in ((0, s), (1, 8 + s)):
            sl = sSL + 16 * p + e
            I(f's_set_gpr_idx_on s{sl}, gpr_idx(SRC2,DST)' if h == 0 else f's_set_gpr_idx_idx s{sl}')
            r = vRW + 16 * p + (e & ~1)
            mod = 'op_sel:[0,1,0] op_sel_hi:[1,1,1]' if e & 1 else 'op_sel_hi:[1,0,1]'
            I(f'v_pk_fma_f32 {vr(vACC,2)}, {vr(d+4*h,2)}, {vr(r,2)}, {vr(vACC,2)} {mod}')
            I(f'v_pk_fma_f32 {vr(vACC+2,2)}, {vr(d+4*h+2,2)}, {vr(r,2)}, {vr(vACC+2,2)} {mod}')
        I('s_set_gpr_idx_off')

    C('---- main loop: fill')
    I(f's_mov_b32 s{sI}, 0')
    I(f's_cmp_eq_u32 s{sNB}, 0')
    I('s_cbranch_scc1 L2_drain')
    I(f'ds_read_b128 {vr(vK,4)}, v{vKA}')
    I(f'ds_read_b128 {vr(vK+4,4)}, v{vKA} offset:16')
    payload_reads(0)
    I(f's_mov_b32 s{sXT+2}, s{sXSZ}')
    I('s_waitcnt lgkmcnt(3)')
    for s in range(8):
        I(f'v_and_or_b32 v{vAD+(s&1)}, v{vK+s}, s{sMASK}, v{vLO}')
        I(f'v_readlane_b32 s{sSL+s}, v{vK+s}, 0')
        I(f'v_readlane_b32 s{sSL+8+s}, v{vK+s}, 32')
        I(f'buffer_load_dwordx4 {vr(vX+4*s,4)}, v{vAD+(s&1)}, {sr(sXT,4)}, 0 offen')
    I('s_waitcnt lgkmcnt(0)')
    I(f'ds_read_b128 {vr(vK,4)}, v{vKA} offset:64')
    I(f'ds_read_b128 {vr(vK+4,4)}, v{vKA} offset:80')
    rw_mfma(0)
    ae_dots()
    C('the first "previous step" FMAs go to the dummy slot')
    I(f's_mov_b32 s{sSL+16+7}, {13*4}')
    I(f's_mov_b32 s{sSL+16+15}, {13*4}')
    I('s_nop 1')
    ae_cvt(0)
    L('L2_loop')
    for p in range(2):
        C(f'batch parity {p}')
        I(f's_add_u32 s{sI}, s{sI}, 1')
        I(f's_cmp_lt_u32 s{sI}, s{sNB}')
        I(f's_cselect_b32 s{sXT+2}, s{sXSZ}, 0')
        I('s_waitcnt lgkmcnt(1)')
        payload_reads(1 + p)
        for s in range(8):
            x = vX + 4 * s
            d = vDT + 8 * (s & 1)
            I('s_waitcnt vmcnt(7)')
            I(f'v_permlane32_swap_b32 v{x}, v{x+2}')
            I(f'v_permlane32_swap_b32 v{x+1}, v{x+3}')
            I(f'v_and_or_b32 v{vAD}, v{vK+s}, s{sMASK}, v{vLO}')
            I(f'v_readlane_b32 s{sSL+16*(p^1)+s}, v{vK+s}, 0')
            I(f'v_mfma_f32_4x4x4_16b_bf16 {vr(d,4)}, {vr(vAE+2*p,2)}, {vr(x,2)}, 0 cbsz:4 abid:{s}')
            I(f'v_mfma_f32_4x4x4_16b_bf16 {vr(d+4,4)}, {vr(vAE+2*p,2)}, {vr(x+2,2)}, 0 cbsz:4 abid:{8+s}')
            I(f'v_readlane_b32 s{sSL+16*(p^1)+8+s}, v{vK+s}, 32')
            I(f'buffer_load_dwordx4 {vr(x,4)}, v{vAD}, {sr(sXT,4)}, 0 offen')
            if s == 0: fmas(p ^ 1, 7)
            else: fmas(p, s - 1)
            if s == 1:
                I('s_waitcnt lgkmcnt(0)')
                rw_mfma(p ^ 1)
            if s == 2: ae_dots()
            if s == 3:
                ae_cvt(p ^ 1)
                I(f'ds_read_b128 {vr(vK,4)}, v{vKA} offset:{128+64*p}')
            if s == 7:
                I(f'ds_read_b128 {vr(vK+4,4)}, v{vKA} offset:{128+64*p+16}')
        if p == 1:
            I(f'v_add_u32 v{vKA}, 128, v{vKA}')
            I(f'v_add_u32 v{vSA}, 256, v{vSA}')
            I(f'v_add_u32 v{vEAA}, 1024, v{vEAA}')
        if opt.bar: I('s_barrier')
        I(f's_cmp_lt_u32 s{sI}, s{sNB}')
        if p == 0: I('s_cbranch_scc0 L2_tail0')
        else: I('s_cbranch_scc1 L2_loop')
    fmas(1, 7)
    I('s_branch L2_drain')
    L('L2_tail0')
    fmas(0, 7)
    L('L2_drain')
    I('s_waitcnt vmcnt(0) lgkmcnt(0)')
    if opt.bar:
        L('L2_spin')
        I(f's_cmp_ge_u32 s{sI}, s{sNBM}')
        I('s_cbranch_scc1 L2_spun')
        I(f's_add_u32 s{sI}, s{sI}, 1')
        I('s_barrier')
        I('s_branch L2_spin')
        L('L2_spun')
    I('s_barrier')
    I(f's_add_u32 s{sR0}, s{sR0}, {RCAP}')
    I(f's_cmp_lt_u32 s{sR0}, s{sTOT}')
    I('s_cbranch_scc1 L2_round')

    L('L2_epi')
    C('---- epilogue: out = agg @ w_out')
    I(f'v_lshrrev_b32 v{vT}, 3, v0')
    I(f'v_mul_u32_u24 v{vT}, {TP}, v{vT}')
    I(f'v_and_b32 v{vT+1}, 7, v0')
    I(f'v_lshl_add_u32 v{vT}, v{vT+1}, 4, v{vT}')
    I(f'v_add_u32 v{vT}, {L_WO}, v{vT}')
    I(f'ds_write_b128 v{vT}, {vr(vWO,4)}')
    I(f'v_mul_u32_u24 v{vT+1}, {TP}, v0')
    vP = 92
    for i in range(7):
        for k in range(4):
            I(f'v_cvt_pk_bf16_f32 v{vP+4*i+k}, v{vACC+8*i+2*k}, v{vACC+8*i+2*k+1}')
        I(f'ds_write_b128 v{vT+1}, {vr(vP+4*i,4)} offset:{16*i}')
    C('tr-read addresses')
    vG, vR, vQ, vKG, vBA, vAA = vT + 2, vT + 3, vT + 4, vT + 5, vT + 6, vT + 7
    I(f'v_bfe_u32 v{vG}, v0, 4, 1')
    I(f'v_bfe_u32 v{vR}, v0, 2, 2')
    I(f'v_and_b32 v{vQ}, 3, v0')
    I(f'v_bfe_u32 v{vKG}, v0, 5, 1')
    I(f'v_lshl_add_u32 v{vBA}, v{vKG}, 3, v{vR}')
    I(f'v_mul_u32_u24 v{vBA}, {TP}, v{vBA}')
    I(f'v_lshl_add_u32 v{vBA}, v{vG}, 5, v{vBA}')
    I(f'v_lshl_add_u32 v{vBA}, v{vQ}, 3, v{vBA}')
    I(f's_mul_i32 s12, s{sW}, {64*TP}')
    I(f'v_add_u32 v{vBA}, s12, v{vBA}')
    I(f'v_lshlrev_b32 v{vAA}, 2, v{vR}')
    I(f'v_add_u32 v{vAA}, v{vAA}, v{vKG}')
    I(f'v_mul_u32_u24 v{vAA}, {2*TP}, v{vAA}')
    I(f'v_and_b32 v{vT+8}, 1, v0')
    I(f'v_lshl_add_u32 v{vAA}, v{vT+8}, 6, v{vAA}')
    I(f'v_lshl_add_u32 v{vAA}, v{vG}, 4, v{vAA}')
    I(f'v_bfe_u32 v{vT+8}, v0, 1, 1')
    I(f'v_lshl_add_u32 v{vAA}, v{vT+8}, 3, v{vAA}')
    I(f'v_add_u32 v{vAA}, {L_WO}, v{vAA}')
    I('s_waitcnt lgkmcnt(0)')
    I('s_barrier')
    vWA = 8
    vBB = 40
    vD = 92
    for tile in range(2):
        for s in range(4):
            for i in range(2):
                I(f'ds_read_b64_tr_b16 {vr(vWA+16*tile+4*s+2*i,2)}, v{vAA} offset:{(32*i+4*(s&1)+(s>>1))*TP+32*tile}')
    I('s_waitcnt lgkmcnt(0)')
    for ct in range(2):
        for s in range(4):
            for i in range(2):
                I(f'ds_read_b64_tr_b16 {vr(vBB+16*ct+4*s+2*i,2)}, v{vBA} offset:{(16*s+4*i)*TP+64*ct}')
        I('s_waitcnt lgkmcnt(0)')
    for ct in range(2):
        for tile in range(2):
            d = vD + 32 * ct + 16 * tile
            for s in range(4):
                I(f'v_mfma_f32_32x32x16_bf16 {vr(d,16)}, {vr(vWA+16*tile+4*s,4)}, {vr(vBB+16*ct+4*s,4)}, {vr(d,16) if s else 0}')
    C('output offsets')
    vO = vT + 8
    I(f's_mul_i32 s12, s16, {NB}')
    I(f'v_mov_b32 v{vT+12}, 0x80000000')
    for ct in range(2):
        I(f'v_bfe_u32 v{vT+10}, v0, 2, 3')
        I(f'v_add_u32 v{vT+10}, {8*ct}, v{vT+10}')
        I(f'v_lshl_add_u32 v{vT+10}, v{vT+10}, 3, s{sW}')
        I(f'v_cmp_gt_u32 vcc, {NB}, v{vT+10}')
        I(f'v_add_u32 v{vT+10}, s12, v{vT+10}')
        I(f'v_lshlrev_b32 v{vT+10}, 9, v{vT+10}')
        I(f'v_lshl_add_u32 v{vT+10}, v{vQ}, 7, v{vT+10}')
        I(f'v_lshl_add_u32 v{vT+10}, v{vKG}, 6, v{vT+10}')
        I(f'v_cndmask_b32 v{vO+ct}, v{vT+12}, v{vT+10}, vcc')
    I('s_nop 7')
    vPK = 160
    for ct in range(2):
        for k in range(16):
            I(f'v_cvt_pk_bf16_f32 v{vPK+16*ct+k}, v{vD+32*ct+2*k}, v{vD+32*ct+2*k+1}')
        for i in range(4):
            I(f'buffer_store_dwordx4 {vr(vPK+16*ct+4*i,4)}, v{vO+ct}, {sr(sOUT,4)}, 0 offen offset:{16*i}')
    L('L2_end')
    I('s_endpgm')

def desc(name, vg, sg):
    out.append(f'.amdhsa_kernel {name}')
    out.append(f'  .amdhsa_next_free_vgpr {vg}')
    out.append(f'  .amdhsa_next_free_sgpr {sg}')
    out.append(f'  .amdhsa_accum_offset {(vg+3)//4*4}')
    out.append('  .amdhsa_group_segment_fixed_size 0')
    out.append('  .amdhsa_kernarg_size 88')
    out.append('  .amdhsa_user_sgpr_count 2')
    out.append('  .amdhsa_user_sgpr_kernarg_segment_ptr 1')
    out.append('  .amdhsa_system_sgpr_workgroup_id_x 1')
    out.append('  .amdhsa_float_denorm_mode_32 3')
    out.append('.end_amdhsa_kernel')

hdr = open('standalone__tensor_product_equiv_mace__graph.s.ref').read().split('\n')
for l in hdr:
    if l.startswith('; Override') : break
    out.append(l)
out.append(f'; @launch kernel=mace_part_kernel grid=(256,1,1) block=(1024,1,1) lds={K1_LDS}')
out.append(f'; @launch kernel=mace_main_kernel grid=(256,1,1) block=(512,1,1) lds={K2_LDS}')
out.append('.amdgcn_target "amdgcn-amd-amdhsa--gfx950"')
out.append('.text')
for name, g in (('mace_part_kernel', gen_k1), ('mace_main_kernel', gen_k2)):
    out.append(f'.globl {name}')
    out.append('.p2align 8')
    out.append(f'.type {name},@function')
    g()
out.append('.section .rodata,"a"')
out.append('.p2align 6')
desc('mace_part_kernel', 128, 96)
out.append('.p2align 6')
desc('mace_main_kernel', 256, 102)
open(sys.argv[1], 'w').write('\n'.join(out) + '\n')
```

```python
import sys
N, E = 25000, 800000
out = []
class Opt: pass
opt = Opt()
def parse(defaults):
    for k, v in defaults.items(): setattr(opt, k, v)
    for a in sys.argv[2:]:
        k, v = a.split('=')
        assert k in defaults, k
        setattr(opt, k, int(v))
def I(s): out.append('    ' + s)
def L(s): out.append(s + ':')
def C(s): out.append('    ; ' + s)
def vr(b, n): return f'v[{b}:{b+n-1}]' if n > 1 else f'v{b}'
def sr(b, n): return f's[{b}:{b+n-1}]' if n > 1 else f's{b}'

def srd(d, base, off_s=None, off_imm=0, size=None, size_s=None):
    if off_imm:
        I(f's_add_u32 s{d}, s{base}, 0x{off_imm:x}')
        I(f's_addc_u32 s{d+1}, s{base+1}, 0')
        if off_s is not None:
            I(f's_add_u32 s{d}, s{d}, s{off_s}')
            I(f's_addc_u32 s{d+1}, s{d+1}, 0')
    elif off_s is not None:
        I(f's_add_u32 s{d}, s{base}, s{off_s}')
        I(f's_addc_u32 s{d+1}, s{base+1}, 0')
    else:
        I(f's_mov_b32 s{d}, s{base}')
        I(f's_mov_b32 s{d+1}, s{base+1}')
    if size_s is not None:
        I(f's_mov_b32 s{d+2}, s{size_s}')
    else:
        I(f's_mov_b32 s{d+2}, 0x{size:x}')
    I(f's_mov_b32 s{d+3}, 0x20000')

def wave_scan(v):
    for sh in (1, 2, 4, 8):
        I('s_nop 1')
        I(f'v_add_u32_dpp v{v}, v{v}, v{v} row_shr:{sh} row_mask:0xf bank_mask:0xf')
    I('s_nop 1')
    I(f'v_add_u32_dpp v{v}, v{v}, v{v} row_bcast:15 row_mask:0xa bank_mask:0xf')
    I('s_nop 1')
    I(f'v_add_u32_dpp v{v}, v{v}, v{v} row_bcast:31 row_mask:0xc bank_mask:0xf')

STAMP_OFF = 240 << 20
def stamp_init(kk, va, vtmp, wsreg=14):
    if not opt.stamps: return
    I(f'v_mov_b32 v{va}, 0'); I(f'v_mov_b32 v{va+1}, 0')
    I(f'v_lshrrev_b32 v{vtmp}, 6, v0')
    I('s_nop 0')
    I(f'v_readfirstlane_b32 s100, v{vtmp}')
    I('s_lshl_b32 s101, s2, 4')
    I('s_add_u32 s100, s100, s101')
    I('s_lshl_b32 s100, s100, 7')
    srd(96, wsreg, off_s=100, off_imm=STAMP_OFF + kk * 256 * 16 * 128, size=128)
def stamp(i, va):
    if not opt.stamps: return
    I('s_memrealtime s[100:101]')
    I('s_waitcnt lgkmcnt(0)')
    I(f'v_writelane_b32 v{va}, s100, {i}')
    I(f'v_writelane_b32 v{va+1}, s101, {i}')
def stamp_flush(va, vtmp):
    if not opt.stamps: return
    I(f'v_and_b32 v{vtmp}, 63, v0')
    I(f'v_lshlrev_b32 v{vtmp}, 3, v{vtmp}')
    I(f'buffer_store_dwordx2 v[{va}:{va+1}], v{vtmp}, s[96:99], 0 offen sc1')

def desc(name, vg, sg):
    out.append('.p2align 6')
    out.append(f'.amdhsa_kernel {name}')
    out.append(f'  .amdhsa_next_free_vgpr {vg}')
    out.append(f'  .amdhsa_next_free_sgpr {sg}')
    out.append(f'  .amdhsa_accum_offset {(vg+3)//4*4}')
    out.append('  .amdhsa_group_segment_fixed_size 0')
    out.append('  .amdhsa_kernarg_size 88')
    out.append('  .amdhsa_user_sgpr_count 2')
    out.append('  .amdhsa_user_sgpr_kernarg_segment_ptr 1')
    out.append('  .amdhsa_system_sgpr_workgroup_id_x 1')
    out.append('  .amdhsa_float_denorm_mode_32 3')
    out.append('.end_amdhsa_kernel')

def emit(kernels):
    hdr = open('standalone__tensor_product_equiv_mace__graph.s.ref').read().split('\n')
    for l in hdr:
        if l.startswith('; Override'): break
        out.append(l)
    for name, g, grid, block, lds, vg, sg in kernels:
        out.append(f'; @launch kernel={name} grid=({grid},1,1) block=({block},1,1) lds={lds}')
    out.append('.amdgcn_target "amdgcn-amd-amdhsa--gfx950"')
    out.append('.text')
    for name, g, grid, block, lds, vg, sg in kernels:
        out.append(f'.globl {name}')
        out.append('.p2align 8')
        out.append(f'.type {name},@function')
        L(name)
        g()
    out.append('.section .rodata,"a"')
    for name, g, grid, block, lds, vg, sg in kernels:
        desc(name, vg, sg)
    open(sys.argv[1], 'w').write('\n'.join(out) + '\n')
```

```python
from common import *
parse(dict(nt_k1=1, bar=0, stamps=0, sc1_k1=0, sc1_off=0, sc1_out=1, xpf=2, e0=1, e1=1, e2=1, e3=1, m0=1, m1=1, m2=2, binsh=10))
CH = 3136
NB = 98
RCAP = 3416
CAPX = 3536
WS_EA = 0
WS_MO = WS_EA + 256 * CH * 32
WS_OFF = WS_MO + 256 * CH * 12

K1_MOL = CH * 32
K1_POS = K1_MOL + CH * 12
K1_HIST = K1_POS + CH * 2
K1_LDS = K1_HIST + 2048

def gen_k1():
    nt = ' nt' if opt.nt_k1 else ''
    sc = ' sc1' if opt.sc1_k1 else ''
    I('s_cmp_ge_u32 s2, 0x100')
    I('s_cbranch_scc1 L1_end')
    I('s_load_dwordx8 s[4:11], s[0:1], 8')
    I('s_load_dwordx2 s[14:15], s[0:1], 80')
    vO4, vO8 = 1, 2
    vDST, vSRC, vSH, vEA = 8, 12, 16, 24
    vM = 52
    vBK, vRK, vKEY = 68, 72, 76
    vT = 80
    vQ = 112
    I(f'v_lshlrev_b32 v{vO4}, 2, v0')
    C('zero histogram')
    I(f'v_and_b32 v{vT+8}, 0x3fc, v{vO4}')
    I(f'v_add_u32 v{vT+8}, {K1_HIST}, v{vT+8}')
    I(f'v_mov_b32 v{vT+9}, 0')
    I(f'ds_write_b32 v{vT+8}, v{vT+9}')
    C('chunk = (wg&7)*32 + (wg>>3)')
    I('s_and_b32 s16, s2, 7')
    I('s_lshl_b32 s16, s16, 5')
    I('s_lshr_b32 s17, s2, 3')
    I('s_add_u32 s16, s16, s17')
    I(f's_mul_i32 s17, s16, {CH}')
    I(f's_sub_u32 s18, {E}, s17')
    I(f's_min_u32 s18, s18, {CH}')
    I(f'v_lshlrev_b32 v{vO8}, 3, v0')
    I(f'v_lshlrev_b32 v{vQ}, 4, v0')
    for m in range(1, 4): I(f'v_add_u32 v{vT+m}, {4096*m}, v{vO4}')
    for m in range(1, 4): I(f'v_add_u32 v{vT+4+m}, {8192*m}, v{vO8}')
    for m in range(1, 7): I(f'v_add_u32 v{vQ+m}, {16384*m}, v{vQ}')
    I('s_lshl_b32 s21, s17, 2'); I('s_lshl_b32 s22, s18, 2')
    I('s_waitcnt lgkmcnt(0)')
    stamp_init(0, 124, 126); stamp(0, 124)
    sDST, sSRC, sSH, sEA, sEAO, sMO, sOFF = 24, 28, 32, 36, 48, 52, 56
    srd(sDST, 6, off_s=21, size_s=22)
    for m in range(4):
        I(f'buffer_load_dword v{vDST+m}, v{vT+m if m else vO4}, {sr(sDST,4)}, 0 offen{nt}')
    srd(sSRC, 4, off_s=21, size_s=22)
    for m in range(4):
        I(f'buffer_load_dword v{vSRC+m}, v{vT+m if m else vO4}, {sr(sSRC,4)}, 0 offen{nt}')
    I('s_barrier')
    I('s_lshl_b32 s21, s17, 3'); I('s_lshl_b32 s22, s18, 3')
    srd(sSH, 8, off_s=21, size_s=22)
    for m in range(4):
        I(f'buffer_load_dwordx2 {vr(vSH+2*m,2)}, v{vT+4+m if m else vO8}, {sr(sSH,4)}, 0 offen{nt}')
    I('s_lshl_b32 s21, s17, 5'); I('s_lshl_b32 s22, s18, 5')
    srd(sEA, 10, off_s=21, size_s=22)
    nea = [0]
    def ea_loads(k):
        for _ in range(k):
            m = nea[0]
            if m >= 7: return
            I(f'buffer_load_dwordx4 {vr(vEA+4*m,4)}, v{vQ+m}, {sr(sEA,4)}, 0 offen{nt}')
            nea[0] += 1
    ea_loads(opt.e0)
    srd(sEAO, 14, off_s=21, off_imm=WS_EA, size_s=22)
    I('s_mul_i32 s21, s17, 12'); I('s_mul_i32 s22, s18, 12')
    srd(sMO, 14, off_s=21, off_imm=WS_MO, size_s=22)
    srd(sOFF, 14, off_imm=WS_OFF, size=262144)
    C('validity masks')
    sVM = 60
    for m in range(4):
        I(f'v_add_u32 v{vT+10}, {1024*m}, v0')
        I(f'v_cmp_gt_u32 {sr(sVM+2*m,2)}, s18, v{vT+10}')
    sVQ = 68
    I('s_lshl_b32 s21, s18, 1')
    for m in range(7):
        I(f'v_add_u32 v{vT+10}, {1024*m}, v0')
        I(f'v_cmp_gt_u32 {sr(sVQ+2*m,2)}, s21, v{vT+10}')
    I(f'v_mov_b32 v{vT+9}, 1')
    I(f's_waitcnt vmcnt({8+nea[0]})')
    for m in range(4):
        I(f'v_mul_u32_u24 v{vBK+m}, 42800, v{vDST+m}')
        I(f'v_lshrrev_b32 v{vBK+m}, 22, v{vBK+m}')
        I(f'v_mul_u32_u24 v{vT+10}, {NB}, v{vBK+m}')
        I(f'v_sub_u32 v{vDST+m}, v{vDST+m}, v{vT+10}')
        I(f'v_lshlrev_b32 v{vBK+m}, 2, v{vBK+m}')
        I(f'v_add_u32 v{vBK+m}, {K1_HIST}, v{vBK+m}')
        I(f's_mov_b64 exec, {sr(sVM+2*m,2)}')
        I(f'ds_add_rtn_u32 v{vRK+m}, v{vBK+m}, v{vT+9}')
        I('s_mov_b64 exec, -1')
    ea_loads(opt.e1)
    I(f'v_and_b32 v{vT+8}, 63, v0')
    I(f'v_lshlrev_b32 v{vT+16}, 4, v{vT+8}')
    I(f'v_add_u32 v{vT+16}, {K1_HIST}, v{vT+16}')
    I('s_waitcnt lgkmcnt(0)')
    I('s_barrier')
    stamp(1, 124)
    C('every wave scans the histogram and writes the (identical) start table')
    cnt = vT + 12
    I(f'ds_read_b128 {vr(cnt,4)}, v{vT+16}')
    st = vT + 20
    I('s_waitcnt lgkmcnt(0)')
    I(f'v_add_u32 v{st+1}, v{cnt}, v{cnt+1}')
    I(f'v_add_u32 v{st+2}, v{st+1}, v{cnt+2}')
    I(f'v_add_u32 v{vT+17}, v{st+2}, v{cnt+3}')
    I(f'v_mov_b32 v{vT+18}, v{vT+17}')
    wave_scan(vT + 18)
    I(f'v_sub_u32 v{st}, v{vT+18}, v{vT+17}')
    I(f'v_add_u32 v{st+3}, v{st}, v{st+2}')
    I(f'v_add_u32 v{st+2}, v{st}, v{st+1}')
    I(f'v_add_u32 v{st+1}, v{st}, v{cnt}')
    I(f'ds_write_b128 v{vT+16}, {vr(st,4)} offset:1024')
    for m in range(4):
        I(f'ds_read_b32 v{vT+28+m}, v{vBK+m} offset:1024')
    ea_loads(opt.e2)
    C('wave 15 publishes (start | len<<16) to OFF[bucket][chunk]')
    I('v_readfirstlane_b32 s21, v0')
    I('s_cmp_lg_u32 s21, 960')
    I('s_cbranch_scc1 L1_nooff')
    I('s_lshl_b32 s22, s16, 2')
    I(f'v_lshlrev_b32 v{vT+17}, 12, v{vT+8}')
    I(f'v_add_u32 v{vT+17}, s22, v{vT+17}')
    for i in range(4):
        I(f'v_lshl_add_u32 v{vT+24+i}, v{cnt+i}, 16, v{st+i}')
        I(f'buffer_store_dword v{vT+24+i}, v{vT+17}, {sr(sOFF,4)}, 0 offen offset:{1024*i}' + (' sc1' if opt.sc1_off else ''))
    L('L1_nooff')
    I(f'v_lshlrev_b32 v{vT+8}, 1, v0')
    I(f'v_add_u32 v{vT+8}, {K1_POS}, v{vT+8}')
    I(f's_waitcnt vmcnt({nea[0]}) lgkmcnt(0)')
    for m in range(4):
        I(f'v_add_u32 v{vRK+m}, v{vRK+m}, v{vT+28+m}')
        I(f'v_and_b32 v{vT+11}, 7, v{vDST+m}')
        I(f'v_lshlrev_b32 v{vT+11}, 24, v{vT+11}')
        I(f'v_lshrrev_b32 v{vT+10}, 3, v{vDST+m}')
        I(f'v_lshl_add_u32 v{vT+11}, v{vT+10}, 2, v{vT+11}')
        I(f'v_lshl_add_u32 v{vKEY+m}, v{vSRC+m}, 9, v{vT+11}')
        I(f'v_mul_u32_u24 v{vT+12+m}, 12, v{vRK+m}')
        I(f'v_add_u32 v{vT+12+m}, {K1_MOL}, v{vT+12+m}')
        I(f's_mov_b64 exec, {sr(sVM+2*m,2)}')
        I(f'ds_write_b16 v{vT+8}, v{vRK+m} offset:{2048*m}')
        I(f'ds_write2_b32 v{vT+12+m}, v{vKEY+m}, v{vSH+2*m} offset0:0 offset1:1')
        I(f'ds_write_b32 v{vT+12+m}, v{vSH+2*m+1} offset:8')
        I('s_mov_b64 exec, -1')
    ea_loads(opt.e3)
    I(f'v_and_b32 v{vT+8}, 0x3fe, v0')
    I(f'v_add_u32 v{vT+8}, {K1_POS}, v{vT+8}')
    I(f'v_and_b32 v{vT+9}, 1, v0')
    I(f'v_lshlrev_b32 v{vT+9}, 4, v{vT+9}')
    I(f'v_add_u32 v{vT+10}, {K1_MOL}, v{vQ}')
    I('s_waitcnt lgkmcnt(0)')
    I('s_barrier')
    stamp(2, 124)
    C('ea pieces -> sorted LDS image; meta image -> global')
    for m in range(7):
        I(f'ds_read_u16 v{vT+12+m}, v{vT+8} offset:{1024*m}')
    for m in range(3):
        I(f'ds_read_b128 {vr(vM+4*m,4)}, v{vT+10} offset:{16384*m}')
    ea_loads(7)
    I('s_waitcnt lgkmcnt(0)')
    for m in range(3):
        I(f'buffer_store_dwordx4 {vr(vM+4*m,4)}, v{vQ+m}, {sr(sMO,4)}, 0 offen{sc}')
    for m in range(7):
        I(f'v_lshl_add_u32 v{vT+12+m}, v{vT+12+m}, 5, v{vT+9}')
        I(f's_waitcnt vmcnt({9-m})')
        I(f's_mov_b64 exec, {sr(sVQ+2*m,2)}')
        I(f'ds_write_b128 v{vT+12+m}, {vr(vEA+4*m,4)}')
        I('s_mov_b64 exec, -1')
    I('s_waitcnt lgkmcnt(0)')
    I('s_barrier')
    stamp(3, 124)
    C('linear copy out')
    for m in range(7):
        I(f'ds_read_b128 {vr(vEA+4*m,4)}, v{vQ+m}')
    for m in range(7):
        I(f's_waitcnt lgkmcnt({6-m})')
        I(f'buffer_store_dwordx4 {vr(vEA+4*m,4)}, v{vQ+m}, {sr(sEAO,4)}, 0 offen{sc}')
    stamp(4, 124)
    if opt.stamps: I('s_waitcnt vmcnt(0)')
    stamp(5, 124); stamp_flush(124, 126)
    L('L1_end')
    I('s_endpgm')

L_RING = CAPX * 32
L_SH = L_RING
L_KEY = L_SH + CAPX * 8
L_SLOT = L_KEY + CAPX * 4
L_CNT = L_SLOT + 3584
K2_LDS = L_RING + 49152
assert K2_LDS <= 163840 and L_CNT + 2048 <= K2_LDS
NULLKEY = 0x7fff << 9
DUMMY = 13 * 4
RSMALL = 496
TP = 144
TC = 80
L_WO = 16384
L_WR = L_WO + 64 * TP
L_CG = L_WR + 16 * TP

def gen_k2():
    I('s_cmp_ge_u32 s2, 0x100')
    I('s_cbranch_scc1 L2_end')
    I('s_load_dwordx2 s[14:15], s[0:1], 80')
    I('s_load_dwordx8 s[4:11], s[0:1], 40')
    I('s_load_dwordx2 s[12:13], s[0:1], 0')
    I('s_and_b32 s16, s2, 7')
    I('s_lshl_b32 s16, s16, 5')
    I('s_lshr_b32 s17, s2, 3')
    I('s_add_u32 s16, s16, s17')
    vLANE, vLO, vPRE, vLEN, vG0, vLS, vRB0 = 1, 2, 3, 4, 5, 6, 7
    vACC = 8
    vBE, vBO, vCG, vA1, vA2, vWA = 64, 68, 72, 80, 84, 88
    vKQ, vSQ, vSL = 120, 136, 152
    vRD = 154
    vK, vAD, vEAA = 158, 159, 160
    vDT, vRW, vAE, vSHC, vSHR, vTT, vB = 164, 180, 212, 216, 218, 220, 224
    vME, vEAP, vRK, vCL, vT = 120, 164, 220, 148, 228
    sOFF, sMO, sEAO, sX, sOUT, sCG, sWR, sWO = 20, 24, 28, 32, 36, 40, 44, 48
    sW, sTOT, sR0, sCNT, sNB, sNBM, sI = 17, 18, 19, 52, 53, 54, 55
    sM0, sM1 = 56, 58
    sRC, sXSZ = 60, 61
    sVM = 62
    sSA0, sSA1, sSB0, sSB1 = 76, 77, 78, 79
    sRG = 80
    sLN, sKI, sSI = 84, 85, 86
    sA, sB = 0, 1
    I(f'v_and_b32 v{vLANE}, 63, v0')
    I(f'v_lshrrev_b32 v{vT}, 6, v0')
    I(f'v_lshlrev_b32 v{vT+1}, 4, v{vLANE}')
    I(f'v_readfirstlane_b32 s{sW}, v{vT}')
    I('s_lshl_b32 s3, s16, 10')
    I(f'v_add_u32 v{vT+1}, s3, v{vT+1}')
    I(f'v_lshlrev_b32 v{vT+2}, 4, v0')
    I(f's_mul_i32 s3, s16, {NB*512}')
    I(f'v_lshlrev_b32 v{vT+13}, 7, v0')
    I(f'v_add_u32 v{vT+13}, s3, v{vT+13}')
    I(f'v_mov_b32 v{vT+14}, 0x80000000')
    I(f'v_cmp_gt_u32 vcc, {NB*4}, v0')
    I('s_waitcnt lgkmcnt(0)')
    srd(sOFF, 14, off_imm=WS_OFF, size=262144)
    F = vT + 4
    I(f'buffer_load_dwordx4 {vr(F,4)}, v{vT+1}, {sr(sOFF,4)}, 0 offen')
    srd(sWO, 8, size=8192)
    I(f'buffer_load_dwordx4 {vr(vME,4)}, v{vT+2}, {sr(sWO,4)}, 0 offen')
    srd(sWR, 6, size=2048)
    I(f'buffer_load_dwordx4 {vr(vME+4,4)}, v{vT+2}, {sr(sWR,4)}, 0 offen')
    srd(sCG, 4, size=128)
    I(f'buffer_load_dwordx4 {vr(vME+8,4)}, v{vT+2}, {sr(sCG,4)}, 0 offen')
    srd(sX, 12, size=N * 512)
    I(f'v_cndmask_b32 v{vT+13}, v{vT+14}, v{vT+13}, vcc')
    def xpf():
        C('pull this workgroup\'s share of x towards the chip (one dword per line)')
        I(f'buffer_load_dword v{vT+21}, v{vT+13}, {sr(sX,4)}, 0 offen')
    npf = 0
    if opt.xpf == 2:
        I('s_barrier')
        xpf(); npf = 1
    stamp_init(1, 250, 252); stamp(0, 250)
    srd(sMO, 14, off_imm=WS_MO, size=E * 12)
    srd(sEAO, 14, off_imm=WS_EA, size=E * 32)
    srd(sOUT, 10, size=N * 512)
    I(f's_mov_b32 s{sXSZ}, 0x{N*512:x}')
    I(f's_mov_b32 s{sRC}, {RCAP}')
    I(f's_mov_b32 s{sM0}, 0x0f0f0f0f'); I(f's_mov_b32 s{sM0+1}, 0x0f0f0f0f')
    I(f's_mov_b32 s{sM1}, 0xf0f0f0f0'); I(f's_mov_b32 s{sM1+1}, 0xf0f0f0f0')
    for r in range(56): I(f'v_mov_b32 v{vACC+r}, 0')
    for r in range(8): I(f'v_mov_b32 v{vA1+r}, 0')
    I(f'v_and_b32 v{vLO}, 31, v0')
    I(f'v_lshlrev_b32 v{vLO}, 4, v{vLO}')
    C('swizzled lane offset inside a row, transposing-read address')
    I(f'v_bfe_u32 v{vT}, v0, 4, 1')
    I(f'v_lshlrev_b32 v{vT}, 6, v{vT}')
    I(f'v_xor_b32 v{vLS}, v{vT}, v{vLO}')
    I(f'v_bfe_u32 v{vT}, v0, 4, 2')
    I(f'v_and_b32 v{vT+3}, 3, v0')
    I(f'v_lshlrev_b32 v{vT+3}, 3, v{vT+3}')
    I(f'v_lshl_add_u32 v{vT}, v{vT}, 5, v{vT+3}')
    I(f'v_bfe_u32 v{vT+3}, v0, 3, 1')
    I(f'v_lshlrev_b32 v{vT+3}, 6, v{vT+3}')
    I(f'v_xor_b32 v{vT}, v{vT}, v{vT+3}')
    I(f'v_bfe_u32 v{vT+3}, v0, 2, 2')
    I(f'v_lshl_add_u32 v{vT}, v{vT+3}, 7, v{vT}')
    I(f's_mul_i32 s3, s{sW}, 6144')
    I(f's_add_u32 s3, s3, {L_RING}')
    I(f'v_add_u32 v{vRB0}, s3, v{vT}')
    C('constant staging address')
    I(f'v_lshrrev_b32 v{vT+12}, 3, v0')
    I(f'v_mul_u32_u24 v{vT+12}, {TP}, v{vT+12}')
    I(f'v_and_b32 v{vT+3}, 7, v0')
    I(f'v_lshl_add_u32 v{vT+12}, v{vT+3}, 4, v{vT+12}')
    I(f's_waitcnt vmcnt({3+npf})')
    C('run lengths -> prefix')
    LN = vT + 8
    for i in range(4):
        I(f'v_lshrrev_b32 v{LN+i}, 16, v{F+i}')
    I(f'v_add_u32 v{vT+1}, v{LN}, v{LN+1}')
    I(f'v_add_u32 v{vT+2}, v{vT+1}, v{LN+2}')
    I(f'v_add_u32 v{vT+3}, v{vT+2}, v{LN+3}')
    I(f'v_mov_b32 v{vT}, v{vT+3}')
    wave_scan(vT)
    I(f'v_sub_u32 v{vPRE}, v{vT}, v{vT+3}')
    I(f'v_readlane_b32 s{sTOT}, v{vT}, 63')
    I(f's_and_b32 s{sA}, s{sW}, 3')
    I(f'v_mov_b32 v{vLEN}, v{LN}')
    I(f'v_mov_b32 v{vG0}, v{F}')
    for i, p in ((1, LN), (2, vT + 1), (3, vT + 2)):
        I(f's_cmp_lg_u32 s{sA}, {i}')
        I(f's_cbranch_scc1 L2_sel{i}')
        I(f'v_add_u32 v{vPRE}, v{vPRE}, v{p}')
        I(f'v_mov_b32 v{vLEN}, v{LN+i}')
        I(f'v_mov_b32 v{vG0}, v{F+i}')
        L(f'L2_sel{i}')
    I(f'v_and_b32 v{vG0}, 0xffff, v{vG0}')
    I(f'v_lshl_add_u32 v{vT}, v{vLANE}, 2, s{sA}')
    I(f'v_mul_u32_u24 v{vT}, {CH}, v{vT}')
    I(f'v_add_u32 v{vG0}, v{vG0}, v{vT}')
    C('stage constants in LDS')
    I(f's_waitcnt vmcnt({npf})')
    if opt.xpf == 1: xpf()
    I(f'ds_write_b128 v{vT+12}, {vr(vME,4)} offset:{L_WO}')
    I('v_cmp_gt_u32 vcc, 0x80, v0')
    I('s_and_b64 exec, exec, vcc')
    I(f'ds_write_b128 v{vT+12}, {vr(vME+4,4)} offset:{L_WR}')
    I('v_cmp_gt_u32 vcc, 8, v0')
    I('s_and_b64 exec, exec, vcc')
    I(f'ds_write_b128 v{vT+12}, {vr(vME+8,4)} offset:{L_CG}')
    I('s_mov_b64 exec, -1')
    I(f's_mov_b32 s{sR0}, 0')
    L('L2_round')
    I(f's_sub_u32 s{sCNT}, s{sTOT}, s{sR0}')
    I(f's_min_u32 s{sCNT}, s{sCNT}, s{sRC}')
    C('expand: GIDX[pre+k-r0] = g0+k for k in window, k parity = wave>>2')
    I(f'v_sub_u32 v{vT+1}, s{sR0}, v{vPRE}')
    I(f'v_max_i32 v{vT+2}, 0, v{vT+1}')
    I(f'v_add_u32 v{vT+3}, s{sRC}, v{vT+1}')
    I(f'v_min_i32 v{vT+3}, v{vT+3}, v{vLEN}')
    I(f's_lshr_b32 s{sA}, s{sW}, 2')
    I(f'v_add_u32 v{vT+2}, s{sA}, v{vT+2}')
    I(f'v_sub_u32 v{vT+4}, v{vT+2}, v{vT+1}')
    I(f'v_lshlrev_b32 v{vT+4}, 2, v{vT+4}')
    I(f'v_add_u32 v{vT+5}, v{vG0}, v{vT+2}')
    I(f'v_add_u32 v{vT+3}, v{vG0}, v{vT+3}')
    L('L2_exp')
    for j in range(4):
        I(f'v_cmpx_lt_i32 vcc, v{vT+5}, v{vT+3}')
        I(f'ds_write_b32 v{vT+4}, v{vT+5} offset:{8*j}')
        I(f'v_add_u32 v{vT+5}, 2, v{vT+5}')
    I(f'v_add_u32 v{vT+4}, 32, v{vT+4}')
    I('s_cbranch_execnz L2_exp')
    I('s_mov_b64 exec, -1')
    C('prefill KEY with null keys, SLOT with the dummy slot, zero CNT')
    for i in range(4): I(f'v_mov_b32 v{vT+4+i}, 0x{NULLKEY:x}')
    I(f'v_lshlrev_b32 v{vT}, 4, v0')
    I(f'v_add_u32 v{vT}, {L_KEY}, v{vT}')
    I(f'ds_write_b128 v{vT}, {vr(vT+4,4)}')
    I(f'v_cmp_gt_u32 vcc, {(CAPX*4-8192)//16}, v0')
    I('s_and_b64 exec, exec, vcc')
    I(f'ds_write_b128 v{vT}, {vr(vT+4,4)} offset:8192')
    I('s_mov_b64 exec, -1')
    I(f'v_lshlrev_b32 v{vT+1}, 3, v0')
    I(f'v_add_u32 v{vT+1}, {L_SLOT}, v{vT+1}')
    I(f'v_mov_b32 v{vT+2}, 0x{DUMMY*0x01010101:x}')
    I(f'v_cmp_gt_u32 vcc, {3584//8}, v0')
    I('s_nop 1')
    I(f'v_cndmask_b32 v{vT+2}, 0, v{vT+2}, vcc')
    I(f'v_mov_b32 v{vT+3}, v{vT+2}')
    I(f'ds_write_b64 v{vT+1}, {vr(vT+2,2)}')
    I('s_andn2_b64 exec, exec, vcc')
    I(f'ds_write_b64 v{vT+1}, {vr(vT+2,2)} offset:512')
    I('s_mov_b64 exec, -1')
    for m in range(7):
        I(f'v_add_u32 v{vT+1}, {512*m}, v0')
        I(f'v_cmp_gt_u32 {sr(sVM+2*m,2)}, s{sCNT}, v{vT+1}')
    I(f'v_lshlrev_b32 v{vT}, 2, v0')
    I(f'v_mov_b32 v{vT+2}, 0x1000000')
    I('s_waitcnt lgkmcnt(0)')
    I('s_barrier')
    stamp(1, 250)
    C('record loads')
    G = vT + 6
    for m in range(7):
        I(f'ds_read_b32 v{G+m}, v{vT} offset:{2048*m}')
    for m in range(7):
        I(f's_waitcnt lgkmcnt({6-m})')
        I(f'v_cndmask_b32 v{G+m}, v{vT+2}, v{G+m}, {sr(sVM+2*m,2)}')
        I(f'v_lshlrev_b32 v{vT+1}, 2, v{G+m}')
        I(f'v_lshl_add_u32 v{vT+1}, v{G+m}, 3, v{vT+1}')
        I(f'buffer_load_dwordx3 {vr(vME+4*m,3)}, v{vT+1}, {sr(sMO,4)}, 0 offen')
        I(f'v_lshlrev_b32 v{G+m}, 5, v{G+m}')
    nea = [0]
    def ea_loads(k):
        for _ in range(k):
            m = nea[0]
            if m >= 7: return
            I(f'buffer_load_dwordx4 {vr(vEAP+8*m,4)}, v{G+m}, {sr(sEAO,4)}, 0 offen')
            I(f'buffer_load_dwordx4 {vr(vEAP+8*m+4,4)}, v{G+m}, {sr(sEAO,4)}, 0 offen offset:16')
            nea[0] += 1
    ea_loads(opt.m0)
    C('constant operands (first round only)')
    I(f's_cmp_lg_u32 s{sR0}, 0')
    I('s_cbranch_scc1 L2_noconst')
    I(f'v_bfe_u32 v{vT}, v0, 5, 1')
    I(f'v_bfe_u32 v{vT+1}, v0, 2, 2')
    I(f'v_lshl_add_u32 v{vT}, v{vT}, 3, v{vT+1}')
    I(f'v_mul_u32_u24 v{vT}, {TP}, v{vT}')
    I(f'v_bfe_u32 v{vT+2}, v0, 4, 1')
    I(f'v_and_b32 v{vT+3}, 3, v0')
    I(f'v_lshl_add_u32 v{vT+4}, v{vT+2}, 5, v{vT}')
    I(f'v_lshl_add_u32 v{vT+4}, v{vT+3}, 3, v{vT+4}')
    I(f'v_lshl_add_u32 v{vT+5}, v{vT+2}, 4, v{vT}')
    I(f'v_and_b32 v{vT+3}, 1, v0')
    I(f'v_lshl_add_u32 v{vT+5}, v{vT+3}, 6, v{vT+5}')
    I(f'v_bfe_u32 v{vT+3}, v0, 1, 1')
    I(f'v_lshl_add_u32 v{vT+5}, v{vT+3}, 3, v{vT+5}')
    I(f'v_lshlrev_b32 v{vT+1}, 3, v{vT+1}')
    for h in range(2):
        for i in range(2):
            I(f'ds_read_b64_tr_b16 {vr(vBE+4*h+2*i,2)}, v{vT+4} offset:{L_WR+4*i*TP+64*h}')
    for u in range(4):
        I(f'ds_read_b64_tr_b16 {vr(vCG+2*u,2)}, v{vT+1} offset:{L_CG+32*u}')
    for tile in range(2):
        I('s_waitcnt lgkmcnt(4)')
        for s in range(4):
            for i in range(2):
                I(f'ds_read_b64_tr_b16 {vr(vWA+16*tile+4*s+2*i,2)}, v{vT+5} offset:{L_WO+(16*s+4*i)*TP+32*tile}')
    I('s_waitcnt lgkmcnt(0)')
    L('L2_noconst')
    I(f'v_mov_b32 v{vT+2}, 1')
    for m in range(7):
        I(f's_waitcnt vmcnt({6-m+2*nea[0]})')
        I(f'v_lshrrev_b32 v{vCL+m}, {9+opt.binsh}, v{vME+4*m}')
        I(f'v_lshlrev_b32 v{vCL+m}, {opt.binsh-8}, v{vCL+m}')
        I(f'v_add_u32 v{vCL+m}, {L_CNT}, v{vCL+m}')
        I(f's_mov_b64 exec, {sr(sVM+2*m,2)}')
        I(f'ds_add_rtn_u32 v{vRK+m}, v{vCL+m}, v{vT+2}')
        I('s_mov_b64 exec, -1')
    ea_loads(opt.m1)
    I(f'v_lshlrev_b32 v{vT}, 4, v{vLANE}')
    I(f'v_add_u32 v{vT}, {L_CNT}, v{vT}')
    I('s_waitcnt lgkmcnt(0)')
    I('s_barrier')
    stamp(2, 250)
    C('cell scan (every wave), lists padded to 16')
    cnt, st = vT + 14, vT + 18
    I(f'ds_read_b128 {vr(cnt,4)}, v{vT}')
    I(f'v_and_b32 v{vT+4}, 7, v0')
    I(f'v_cmp_eq_u32 {sr(sA,2)}, 7, v{vT+4}')
    I('s_waitcnt lgkmcnt(0)')
    I(f'v_add_u32 v{st+1}, v{cnt}, v{cnt+1}')
    I(f'v_add_u32 v{st+2}, v{st+1}, v{cnt+2}')
    I(f'v_add_u32 v{vT+1}, v{st+2}, v{cnt+3}')
    I('s_nop 1')
    I(f'v_add_u32_dpp v{vT+2}, v{vT+1}, v{vT+1} quad_perm:[1,0,3,2] row_mask:0xf bank_mask:0xf')
    I('s_nop 1')
    I(f'v_add_u32_dpp v{vT+2}, v{vT+2}, v{vT+2} quad_perm:[2,3,0,1] row_mask:0xf bank_mask:0xf')
    I('s_nop 1')
    I(f'v_add_u32_dpp v{vT+2}, v{vT+2}, v{vT+2} row_half_mirror row_mask:0xf bank_mask:0xf')
    I(f'v_add_u32 v{vT+3}, 15, v{vT+2}')
    I(f'v_and_b32 v{vT+3}, -16, v{vT+3}')
    I(f'v_sub_u32 v{vT+2}, v{vT+3}, v{vT+2}')
    I(f'v_cndmask_b32 v{vT+2}, 0, v{vT+2}, {sr(sA,2)}')
    I(f'v_add_u32 v{vT+1}, v{vT+1}, v{vT+2}')
    I(f'v_mov_b32 v{vT+2}, v{vT+1}')
    wave_scan(vT + 2)
    I(f'v_sub_u32 v{st}, v{vT+2}, v{vT+1}')
    I(f'v_add_u32 v{st+3}, v{st}, v{st+2}')
    I(f'v_add_u32 v{st+2}, v{st}, v{st+1}')
    I(f'v_add_u32 v{st+1}, v{st}, v{cnt}')
    I(f'ds_write_b128 v{vT}, {vr(st,4)} offset:1024')
    for m in range(7):
        I(f'ds_read_b32 v{vCL+m}, v{vCL+m} offset:1024')
    I(f's_lshl_b32 s{sA}, s{sW}, 3')
    I(f'v_readlane_b32 s{sNB}, v{vT+3}, s{sA}')
    I(f'v_readlane_b32 s{sI}, v{st}, s{sA}')
    I(f'v_readlane_b32 s{sNBM}, v{vT+3}, 0')
    for g in range(1, 8):
        I(f'v_readlane_b32 s{sA}, v{vT+3}, {8*g}')
        I(f's_max_u32 s{sNBM}, s{sNBM}, s{sA}')
    I(f's_lshr_b32 s{sNB}, s{sNB}, 4')
    I(f's_lshr_b32 s{sNBM}, s{sNBM}, 4')
    C('a list longer than the register copies hold: redo this round with a small window')
    I(f's_cmp_le_u32 s{sNBM}, 32')
    I('s_cbranch_scc1 L2_fits')
    I(f's_mov_b32 s{sRC}, {RSMALL}')
    I('s_waitcnt vmcnt(0) lgkmcnt(0)')
    I('s_barrier')
    I('s_branch L2_round')
    L('L2_fits')
    ea_loads(opt.m2)
    I(f's_mov_b32 s{sA}, 0x00fffe00')
    I('s_waitcnt lgkmcnt(0)')
    for m in range(7):
        I(f'v_add_u32 v{vRK+m}, v{vRK+m}, v{vCL+m}')
        I(f'v_lshlrev_b32 v{vT}, 2, v{vRK+m}')
        I(f'v_add_u32 v{vT}, {L_KEY}, v{vT}')
        I(f'v_lshlrev_b32 v{vT+1}, 3, v{vRK+m}')
        I(f'v_add_u32 v{vT+1}, {L_SH}, v{vT+1}')
        I(f'v_add_u32 v{vT+2}, {L_SLOT}, v{vRK+m}')
        I(f'v_and_b32 v{vT+3}, s{sA}, v{vME+4*m}')
        I(f'v_lshlrev_b32 v{vRK+m}, 5, v{vRK+m}')
        I(f's_mov_b64 exec, {sr(sVM+2*m,2)}')
        I(f'ds_write_b32 v{vT}, v{vT+3}')
        I(f'ds_write_b8 v{vT+2}, v{vME+4*m}')
        I(f'ds_write2_b32 v{vT+1}, v{vME+4*m+1}, v{vME+4*m+2} offset0:0 offset1:1')
        I('s_mov_b64 exec, -1')
    C('read-back addresses')
    I(f'v_bfe_u32 v{vT}, v0, 3, 1')
    I(f'v_bfe_u32 v{vT+1}, v0, 5, 1')
    I(f'v_lshl_add_u32 v{vT}, v{vT}, 1, v{vT+1}')
    I(f'v_and_b32 v{vT+2}, 7, v0')
    I(f'v_lshl_add_u32 v{vT}, v{vT}, 3, v{vT+2}')
    I(f'v_add_u32 v{vT}, s{sI}, v{vT}')
    I(f'v_lshlrev_b32 v{vT}, 2, v{vT}')
    I(f'v_add_u32 v{vT}, {L_KEY}, v{vT}')
    I(f'v_and_b32 v{vT+2}, 3, v0')
    I(f'v_lshrrev_b32 v{vT+3}, 2, v{vLANE}')
    I(f'v_lshl_add_u32 v{vT+3}, v{vT+2}, 4, v{vT+3}')
    I(f'v_add_u32 v{vT+3}, s{sI}, v{vT+3}')
    I(f'v_lshlrev_b32 v{vT+3}, 3, v{vT+3}')
    I(f'v_add_u32 v{vT+3}, {L_SH}, v{vT+3}')
    I(f'v_lshl_add_u32 v{vT+4}, v{vLANE}, 3, s{sI}')
    I(f'v_add_u32 v{vT+4}, {L_SLOT}, v{vT+4}')
    I(f'v_bfe_u32 v{vT+5}, v0, 3, 2')
    I(f'v_lshl_add_u32 v{vT+5}, v{vT+5}, 2, v{vT+2}')
    I(f'v_add_u32 v{vT+5}, s{sI}, v{vT+5}')
    I(f'v_lshlrev_b32 v{vT+5}, 5, v{vT+5}')
    I(f'v_lshl_add_u32 v{vEAA}, v{vT+1}, 4, v{vT+5}')
    I('s_waitcnt lgkmcnt(0)')
    I('s_barrier')
    stamp(3, 250)
    for g in range(0, 16, 2):
        I(f'ds_read2_b32 {vr(vKQ+g,2)}, v{vT} offset0:{32*g%256} offset1:{32*(g+1)%256}')
        if g == 6: I(f'v_add_u32 v{vT}, 1024, v{vT}')
    I('s_waitcnt lgkmcnt(4)')
    for g in range(8):
        I(f'ds_read_b64 {vr(vSQ+2*g,2)}, v{vT+3} offset:{512*g}')
    I(f'ds_read_b64 {vr(vSL,2)}, v{vT+4}')
    ea_loads(7)
    for d in range(3):
        I(f's_add_u32 s{sRG+d}, s3, {2048*d}')
        I(f'v_add_u32 v{vRD+d}, {2048*d}, v{vRB0}')
    I(f's_cmp_lg_u32 s{sNB}, 0')
    I(f's_cselect_b32 s{sX+2}, s{sXSZ}, 0')
    I('s_waitcnt lgkmcnt(0)')
    I(f'v_mov_b32 v{vK}, v{vKQ}')
    I('s_barrier')
    stamp(4, 250)
    C('first row fetches go out while the edge features are still landing')
    def fetch(sig, lane):
        I(f'v_add_u32_dpp v{vAD}, v{vK}, v{vLS} row_newbcast:{lane} row_mask:0xf bank_mask:0xf')
    for sig in range(6):
        I(f's_add_u32 m0, s{sRG+(sig>>1)}, {1024*(sig&1)}')
        fetch(sig, sig)
        I(f'buffer_load_dwordx4 v{vAD}, {sr(sX,4)}, 0 offen lds')
    for m in range(7):
        I(f's_mov_b64 exec, {sr(sVM+2*m,2)}')
        I(f's_waitcnt vmcnt({12-2*m+6})')
        I(f'ds_write_b128 v{vRK+m}, {vr(vEAP+8*m,4)}')
        I(f'ds_write_b128 v{vRK+m}, {vr(vEAP+8*m+4,4)} offset:16')
    I('s_mov_b64 exec, -1')

    def ea_reads(boff):
        I(f's_mov_b64 exec, {sr(sM0,2)}')
        I(f'ds_read_b128 {vr(vA1,4)}, v{vEAA} offset:{512*boff}')
        I(f's_mov_b64 exec, {sr(sM1,2)}')
        I(f'ds_read_b128 {vr(vA2,4)}, v{vEAA} offset:{512*boff}')
        I('s_mov_b64 exec, -1')
    def rw_mfma(p):
        I(f'v_mfma_f32_32x32x16_bf16 {vr(vRW+16*p,16)}, {vr(vA1,4)}, {vr(vBE,4)}, 0')
        I(f'v_mfma_f32_32x32x16_bf16 {vr(vRW+16*p,16)}, {vr(vA2,4)}, {vr(vBO,4)}, {vr(vRW+16*p,16)}')
    def sh_bcast(i):
        for j in range(2):
            I(f'v_mov_b32_dpp v{vSHR+j}, v{vSHC+j} quad_perm:[{i},{i},{i},{i}] row_mask:0xf bank_mask:0xf')
    def ae_dots():
        for u in range(4):
            I(f'v_dot2_f32_bf16 v{vTT+u}, v{vSHR}, v{vCG+2*u}, 0')
        for u in range(4):
            I(f'v_dot2_f32_bf16 v{vTT+u}, v{vSHR+1}, v{vCG+2*u+1}, v{vTT+u}')
    def ae_cvt(p):
        I(f'v_cvt_pk_bf16_f32 v{vAE+2*p}, v{vTT}, v{vTT+1}')
        I(f'v_cvt_pk_bf16_f32 v{vAE+2*p+1}, v{vTT+2}, v{vTT+3}')
    def mfmas(p, s):
        d = vDT + 8 * (s & 1); b = vB + 4 * (s & 1)
        I(f'v_mfma_f32_4x4x4_16b_bf16 {vr(d,4)}, {vr(vAE+2*p,2)}, {vr(b,2)}, 0 cbsz:4 abid:{s}')
        I(f'v_mfma_f32_4x4x4_16b_bf16 {vr(d+4,4)}, {vr(vAE+2*p,2)}, {vr(b+2,2)}, 0 cbsz:4 abid:{8+s}')
    def fmas(p, s):
        d = vDT + 8 * (s & 1)
        for h, e in ((0, s), (1, 8 + s)):
            sl = (sSB0 if h else sSA0) + (s >> 2)
            I(f's_set_gpr_idx_on s{sl}, gpr_idx(SRC2,DST)' if h == 0 else f's_set_gpr_idx_idx s{sl}')
            r = vRW + 16 * p + (e & ~1)
            mod = 'op_sel:[0,1,0] op_sel_hi:[1,1,1]' if e & 1 else 'op_sel_hi:[1,0,1]'
            I(f'v_pk_fma_f32 {vr(vACC,2)}, {vr(d+4*h,2)}, {vr(r,2)}, {vr(vACC,2)} {mod}')
            if (s & 3) != 3: I(f's_lshr_b32 s{sl}, s{sl}, 8')
            I(f'v_pk_fma_f32 {vr(vACC+2,2)}, {vr(d+4*h+2,2)}, {vr(r,2)}, {vr(vACC+2,2)} {mod}')
        I('s_set_gpr_idx_off')

    I('s_waitcnt lgkmcnt(0)')
    C('operands of batch 0 that do not need the edge features')
    I(f'v_mov_b32 v{vSHC}, v{vSQ}')
    I(f'v_mov_b32 v{vSHC+1}, v{vSQ+1}')
    I(f'v_readlane_b32 s{sSA0}, v{vSL}, 0')
    I(f'v_readlane_b32 s{sSB0}, v{vSL}, 1')
    sh_bcast(0)
    ae_dots()
    I(f's_mov_b32 s{sSA1}, {DUMMY}')
    I(f's_mov_b32 s{sSB1}, {DUMMY}')
    I(f's_mov_b32 s{sI}, 0')
    I(f's_mov_b32 s{sLN}, 0')
    I(f's_mov_b32 s{sKI}, 0')
    I(f's_mov_b32 s{sSI}, 0')
    ae_cvt(0)
    I('s_barrier')
    stamp(5, 250)
    I(f's_cmp_eq_u32 s{sNB}, 0')
    I('s_cbranch_scc1 L2_drain')
    ea_reads(0)
    I('s_waitcnt lgkmcnt(0)')
    rw_mfma(0)
    L('L2_loop')
    for p in range(2):
        C(f'batch parity {p}')
        I(f's_add_u32 s{sI}, s{sI}, 1')
        for s in range(8):
            sig = 8 * p + s
            d = (sig >> 1) % 3
            so = 1024 * (sig & 1)
            if s == 2:
                I(f's_cmp_lt_u32 s{sI}, s{sNB}')
                I(f's_cselect_b32 s{sX+2}, s{sXSZ}, 0')
            I('s_waitcnt vmcnt(5)')
            I(f'ds_read_b64_tr_b16 {vr(vB+4*(s&1),2)}, v{vRD+d} offset:{so}')
            I(f'ds_read_b64_tr_b16 {vr(vB+4*(s&1)+2,2)}, v{vRD+d} offset:{so+512}')
            k = 0
            if s == 1:
                ea_reads(1 + p); k = 2
            fetch(sig, (sig + 6) % 16)
            if s == 0: fmas(p ^ 1, 7)
            else: fmas(p, s - 1)
            if s == 0:
                I(f's_add_u32 s{sA}, s{sLN}, 1')
                I(f'v_readlane_b32 s{sSA1}, v{vSL+1}, s{sLN}')
                I(f'v_readlane_b32 s{sSB1}, v{vSL+1}, s{sA}')
            if s == 5:
                I(f's_add_u32 s{sLN}, s{sLN}, 2')
                I(f's_add_u32 s{sA}, s{sLN}, 1')
                I(f'v_readlane_b32 s{sSA0}, v{vSL}, s{sLN}')
                I(f'v_readlane_b32 s{sSB0}, v{vSL}, s{sA}')
            if sig == 9:
                I(f's_add_u32 s{sKI}, s{sKI}, 1')
                I(f's_set_gpr_idx_on s{sKI}, gpr_idx(SRC0)')
                I(f'v_mov_b32 v{vK}, v{vKQ}')
                I('s_set_gpr_idx_off')
            if s == 2 and p == 1:
                I(f's_bitcmp1_b32 s{sI}, 1')
                I('s_cbranch_scc1 L2_shrot')
                I(f's_add_u32 s{sSI}, s{sSI}, 2')
                I(f's_set_gpr_idx_on s{sSI}, gpr_idx(SRC0)')
                I(f'v_mov_b32 v{vSHC}, v{vSQ}')
                I(f'v_mov_b32 v{vSHC+1}, v{vSQ+1}')
                I('s_set_gpr_idx_off')
                I('s_branch L2_shdone')
                L('L2_shrot')
                for j in range(2):
                    I(f'v_mov_b32_dpp v{vSHC+j}, v{vSHC+j} quad_perm:[2,3,0,1] row_mask:0xf bank_mask:0xf')
                L('L2_shdone')
            if s == 3: sh_bcast(p ^ 1)
            I(f's_add_u32 m0, s{sRG+d}, {so}')
            I(f's_waitcnt lgkmcnt({k})')
            I(f'buffer_load_dwordx4 v{vAD}, {sr(sX,4)}, 0 offen lds')
            mfmas(p, s)
            if s == 2: rw_mfma(p ^ 1)
            if s == 4: ae_dots()
            if s == 5: ae_cvt(p ^ 1)
        if p == 1:
            I(f'v_add_u32 v{vEAA}, 1024, v{vEAA}')
            I(f'v_mov_b32 v{vRD+3}, v{vRD+2}'); I(f'v_mov_b32 v{vRD+2}, v{vRD+1}'); I(f'v_mov_b32 v{vRD+1}, v{vRD}'); I(f'v_mov_b32 v{vRD}, v{vRD+3}')
            I(f's_mov_b32 s{sRG+3}, s{sRG+2}'); I(f's_mov_b32 s{sRG+2}, s{sRG+1}'); I(f's_mov_b32 s{sRG+1}, s{sRG}'); I(f's_mov_b32 s{sRG}, s{sRG+3}')
        if opt.bar: I('s_barrier')
        I(f's_cmp_lt_u32 s{sI}, s{sNB}')
        if p == 0: I('s_cbranch_scc0 L2_tail0')
        else: I('s_cbranch_scc1 L2_loop')
    for p in (1, 0):
        if p == 0: L('L2_tail0')
        I('s_nop 4')
        fmas(p, 7)
        if p == 1: I('s_branch L2_drain')
    L('L2_drain')
    I('s_waitcnt vmcnt(0) lgkmcnt(0)')
    stamp(6, 250)
    if opt.bar:
        L('L2_spin')
        I(f's_cmp_ge_u32 s{sI}, s{sNBM}')
        I('s_cbranch_scc1 L2_spun')
        I(f's_add_u32 s{sI}, s{sI}, 1')
        I('s_barrier')
        I('s_branch L2_spin')
        L('L2_spun')
    I(f's_add_u32 s{sR0}, s{sR0}, s{sRC}')
    I(f's_cmp_ge_u32 s{sR0}, s{sTOT}')
    I('s_cbranch_scc1 L2_epi')
    I('s_barrier')
    I('s_branch L2_round')

    L('L2_epi')
    C('---- epilogue: out = agg @ w_out, staged through this wave\'s own ring')
    vP = 120
    vBA, vOW, vOR, vO = vT + 2, vT + 3, vT + 4, vT + 8
    I(f'v_mul_u32_u24 v{vT+1}, {TC}, v{vLANE}')
    I(f'v_add_u32 v{vT+1}, s3, v{vT+1}')
    I(f'v_bfe_u32 v{vT+5}, v0, 5, 1')
    I(f'v_bfe_u32 v{vT+6}, v0, 2, 2')
    I(f'v_lshl_add_u32 v{vBA}, v{vT+5}, 3, v{vT+6}')
    I(f'v_mul_u32_u24 v{vBA}, {TC}, v{vBA}')
    I(f'v_bfe_u32 v{vT+6}, v0, 4, 1')
    I(f'v_lshl_add_u32 v{vBA}, v{vT+6}, 5, v{vBA}')
    I(f'v_and_b32 v{vT+6}, 3, v0')
    I(f'v_lshl_add_u32 v{vBA}, v{vT+6}, 3, v{vBA}')
    I(f'v_add_u32 v{vBA}, s3, v{vBA}')
    vBB = 152
    vD = 8
    for ct in range(2):
        for i in range(4 * ct, min(4 * ct + 4, 7)):
            for k in range(4):
                I(f'v_cvt_pk_bf16_f32 v{vP+4*i+k}, v{vACC+8*i+2*k}, v{vACC+8*i+2*k+1}')
            if ct and i == 4: I('s_waitcnt lgkmcnt(4)')
            I(f'ds_write_b128 v{vT+1}, {vr(vP+4*i,4)} offset:{16*(i&3)}')
        for s in range(4):
            for i in range(2):
                I(f'ds_read_b64_tr_b16 {vr(vBB+16*ct+4*s+2*i,2)}, v{vBA} offset:{(16*s+4*i)*TC}')
    C('restage addresses')
    I(f'v_and_b32 v{vOW}, 31, v0')
    I(f'v_mul_u32_u24 v{vOW}, {TP}, v{vOW}')
    I(f'v_lshl_add_u32 v{vOW}, v{vT+5}, 6, v{vOW}')
    I(f'v_add_u32 v{vOW}, s3, v{vOW}')
    I(f'v_lshrrev_b32 v{vOR}, 3, v{vLANE}')
    I(f'v_mul_u32_u24 v{vOR}, {TP}, v{vOR}')
    I(f'v_and_b32 v{vT+6}, 7, v0')
    I(f'v_lshl_add_u32 v{vOR}, v{vT+6}, 4, v{vOR}')
    I(f'v_add_u32 v{vOR}, s3, v{vOR}')
    for ct in range(2):
        I(f's_waitcnt lgkmcnt({11 if ct == 0 else 0})')
        for tile in range(2):
            d = vD + 32 * ct + 16 * tile
            for s in range(4):
                I(f'v_mfma_f32_32x32x16_bf16 {vr(d,16)}, {vr(vWA+16*tile+4*s,4)}, {vr(vBB+16*ct+4*s,4)}, {vr(d,16) if s else 0}')
    C('output offsets: store it covers slots 2it (lower lanes) and 2it+1 (upper lanes)')
    I(f's_mul_i32 s{sB}, s16, {NB}')
    I(f's_add_u32 s{sB}, s{sB}, s{sW}')
    I(f's_lshl_b32 s{sB}, s{sB}, 9')
    I(f'v_lshl_add_u32 v{vO}, v{vT+5}, 12, v{vLO}')
    I(f'v_add_u32 v{vO}, s{sB}, v{vO}')
    for it in range(1, 7):
        I(f'v_add_u32 v{vO+it}, {it*16*512}, v{vO}')
    C('slot 12 exists only for waves 0,1; slot 13 is the dummy')
    I(f'v_lshl_add_u32 v{vT+6}, v{vT+5}, 3, s{sW}')
    I(f'v_cmp_gt_u32 vcc, {NB-96}, v{vT+6}')
    I(f'v_mov_b32 v{vT+6}, 0x80000000')
    I('s_nop 0')
    I(f'v_cndmask_b32 v{vO+6}, v{vT+6}, v{vO+6}, vcc')
    vPK = 120
    vRB = 184
    sco = ' sc1' if opt.sc1_out else ''
    for ct in range(2):
        for k in range(16):
            I(f'v_cvt_pk_bf16_f32 v{vPK+16*ct+k}, v{vD+32*ct+2*k}, v{vD+32*ct+2*k+1}')
        for i in range(4):
            I(f'ds_write_b128 v{vOW}, {vr(vPK+16*ct+4*i,4)} offset:{16*i}')
        its = list(range(4 * ct, min(4 * ct + 4, 7)))
        for it in its:
            I(f'ds_read_b128 {vr(vRB+4*it,4)}, v{vOR} offset:{8*(it&3)*TP}')
        for it in its:
            I(f's_waitcnt lgkmcnt({its[-1]-it})')
            I(f'buffer_store_dwordx4 {vr(vRB+4*it,4)}, v{vO+it}, {sr(sOUT,4)}, 0 offen{sco}')
    stamp(7, 250)
    if opt.stamps: I('s_waitcnt vmcnt(0)')
    stamp(8, 250); stamp_flush(250, 252)
    L('L2_end')
    I('s_endpgm')

emit([('mace_part_kernel', gen_k1, 256, 1024, K1_LDS, 128, 102),
      ('mace_main_kernel', gen_k2, 256, 512, K2_LDS, 256, 102)])
```

```python
from common import *
parse(dict(nt_k1=1, bar=0, stamps=0, sc1_k1=1, sc1_mo=1, sc1_off=1, sc1_out=1, xpf=2, e0=1, e1=1, e2=1, e3=1, m0=0, m0b=2, m1=1, m2=2, m3=1, xb=1, k1x=0, molate=0, split=12, late=1, la=192, dyn=1, prio=0))
CH = 3136
NB = 98
RCAP = 3520
CAPX = 3640
WS_EA = 0
WS_MO = WS_EA + 256 * CH * 32
WS_OFF = WS_MO + 256 * CH * 12

K1_MOL = CH * 32
K1_POS = K1_MOL + CH * 12
K1_HIST = K1_POS + CH * 2
K1_LDS = K1_HIST + 4096
SPLIT = opt.split * 1024

def gen_k1():
    nt = ' nt' if opt.nt_k1 else ''
    sc = ' sc1' if opt.sc1_k1 else ''
    I('s_cmp_ge_u32 s2, 0x100')
    I('s_cbranch_scc1 L1_end')
    I('s_load_dwordx8 s[4:11], s[0:1], 8')
    I('s_load_dwordx2 s[14:15], s[0:1], 80')
    if opt.k1x: I('s_load_dwordx2 s[12:13], s[0:1], 0')
    vO4, vO8 = 1, 2
    vDST, vSRC, vSH, vEA = 8, 12, 16, 24
    vM = 52
    vBK, vRK, vKEY = 68, 72, 76
    vT = 80
    vQ = 112
    I(f'v_lshlrev_b32 v{vO4}, 2, v0')
    C('zero histogram')
    I(f'v_and_b32 v{vT+8}, 0x7fc, v{vO4}')
    I(f'v_add_u32 v{vT+8}, {K1_HIST}, v{vT+8}')
    I(f'v_mov_b32 v{vT+9}, 0')
    I(f'ds_write_b32 v{vT+8}, v{vT+9}')
    C('chunk = (wg&7)*32 + (wg>>3)')
    I('s_and_b32 s16, s2, 7')
    I('s_lshl_b32 s16, s16, 5')
    I('s_lshr_b32 s17, s2, 3')
    I('s_add_u32 s16, s16, s17')
    I(f's_mul_i32 s17, s16, {CH}')
    I(f's_sub_u32 s18, {E}, s17')
    I(f's_min_u32 s18, s18, {CH}')
    I(f'v_lshlrev_b32 v{vO8}, 3, v0')
    I(f'v_lshlrev_b32 v{vQ}, 4, v0')
    for m in range(1, 4): I(f'v_add_u32 v{vT+m}, {4096*m}, v{vO4}')
    for m in range(1, 4): I(f'v_add_u32 v{vT+4+m}, {8192*m}, v{vO8}')
    for m in range(1, 7): I(f'v_add_u32 v{vQ+m}, {16384*m}, v{vQ}')
    I('s_lshl_b32 s21, s17, 2'); I('s_lshl_b32 s22, s18, 2')
    I('s_waitcnt lgkmcnt(0)')
    stamp_init(0, 124, 126); stamp(0, 124)
    sDST, sSRC, sSH, sEA, sEAO, sMO, sOFF = 24, 28, 32, 36, 48, 52, 56
    srd(sDST, 6, off_s=21, size_s=22)
    for m in range(4):
        I(f'buffer_load_dword v{vDST+m}, v{vT+m if m else vO4}, {sr(sDST,4)}, 0 offen{nt}')
    srd(sSRC, 4, off_s=21, size_s=22)
    for m in range(4):
        I(f'buffer_load_dword v{vSRC+m}, v{vT+m if m else vO4}, {sr(sSRC,4)}, 0 offen{nt}')
    I('s_barrier')
    I('s_lshl_b32 s21, s17, 3'); I('s_lshl_b32 s22, s18, 3')
    srd(sSH, 8, off_s=21, size_s=22)
    for m in range(4):
        I(f'buffer_load_dwordx2 {vr(vSH+2*m,2)}, v{vT+4+m if m else vO8}, {sr(sSH,4)}, 0 offen{nt}')
    I('s_lshl_b32 s21, s17, 5'); I('s_lshl_b32 s22, s18, 5')
    srd(sEA, 10, off_s=21, size_s=22)
    nea = [0]
    def ea_loads(k):
        for _ in range(k):
            m = nea[0]
            if m >= 7: return
            I(f'buffer_load_dwordx4 {vr(vEA+4*m,4)}, v{vQ+m}, {sr(sEA,4)}, 0 offen{nt}')
            nea[0] += 1
    ea_loads(opt.e0)
    srd(sEAO, 14, off_s=21, off_imm=WS_EA, size_s=22)
    I('s_mul_i32 s21, s17, 12'); I('s_mul_i32 s22, s18, 12')
    srd(sMO, 14, off_s=21, off_imm=WS_MO, size_s=22)
    srd(sOFF, 14, off_imm=WS_OFF, size=524288)
    C('validity masks')
    sVM = 60
    for m in range(4):
        I(f'v_add_u32 v{vT+10}, {1024*m}, v0')
        I(f'v_cmp_gt_u32 {sr(sVM+2*m,2)}, s18, v{vT+10}')
    sVQ = 68
    I('s_lshl_b32 s21, s18, 1')
    for m in range(7):
        I(f'v_add_u32 v{vT+10}, {1024*m}, v0')
        I(f'v_cmp_gt_u32 {sr(sVQ+2*m,2)}, s21, v{vT+10}')
    I(f'v_mov_b32 v{vT+9}, 1')
    I(f's_mov_b32 s21, {SPLIT}')
    I(f'v_mov_b32 v{vT+12}, {K1_HIST}')
    I(f'v_mov_b32 v{vT+13}, {K1_HIST+1024}')
    I(f's_waitcnt vmcnt({4+nea[0]})')
    for m in range(4):
        I(f'v_cmp_le_u32 s[22:23], s21, v{vSRC+m}')
        I(f'v_mul_u32_u24 v{vBK+m}, 42800, v{vDST+m}')
        I(f'v_lshrrev_b32 v{vBK+m}, 22, v{vBK+m}')
        I(f'v_mul_u32_u24 v{vT+10}, {NB}, v{vBK+m}')
        I(f'v_sub_u32 v{vDST+m}, v{vDST+m}, v{vT+10}')
        I(f'v_cndmask_b32 v{vT+11}, v{vT+12}, v{vT+13}, s[22:23]')
        I(f'v_lshl_add_u32 v{vBK+m}, v{vBK+m}, 2, v{vT+11}')
        I(f's_mov_b64 exec, {sr(sVM+2*m,2)}')
        I(f'ds_add_rtn_u32 v{vRK+m}, v{vBK+m}, v{vT+9}')
        I('s_mov_b64 exec, -1')
    ea_loads(opt.e1)
    I(f'v_and_b32 v{vT+8}, 63, v0')
    I(f'v_lshlrev_b32 v{vT+16}, 4, v{vT+8}')
    I(f'v_add_u32 v{vT+16}, {K1_HIST}, v{vT+16}')
    I('s_waitcnt lgkmcnt(0)')
    I('s_barrier')
    stamp(1, 124)
    C('every wave scans the histogram and writes the (identical) start table')
    cnt = vM
    st = vT + 20
    I(f'ds_read_b128 {vr(cnt,4)}, v{vT+16}')
    I(f'ds_read_b128 {vr(cnt+4,4)}, v{vT+16} offset:1024')
    I('s_waitcnt lgkmcnt(0)')
    for h in range(2):
        I(f'v_add_u32 v{st+4*h+1}, v{cnt+4*h}, v{cnt+4*h+1}')
        I(f'v_add_u32 v{st+4*h+2}, v{st+4*h+1}, v{cnt+4*h+2}')
        I(f'v_add_u32 v{vT+12+h}, v{st+4*h+2}, v{cnt+4*h+3}')
    I(f'v_lshl_add_u32 v{vT+17}, v{vT+13}, 16, v{vT+12}')
    I(f'v_mov_b32 v{vT+18}, v{vT+17}')
    wave_scan(vT + 18)
    I(f'v_sub_u32 v{vT+17}, v{vT+18}, v{vT+17}')
    I(f'v_readlane_b32 s21, v{vT+18}, 63')
    I(f'v_and_b32 v{st}, 0xffff, v{vT+17}')
    I(f'v_lshrrev_b32 v{st+4}, 16, v{vT+17}')
    I('s_and_b32 s21, s21, 0xffff')
    I(f'v_add_u32 v{st+4}, s21, v{st+4}')
    for h in range(2):
        I(f'v_add_u32 v{st+4*h+3}, v{st+4*h}, v{st+4*h+2}')
        I(f'v_add_u32 v{st+4*h+2}, v{st+4*h}, v{st+4*h+1}')
        I(f'v_add_u32 v{st+4*h+1}, v{st+4*h}, v{cnt+4*h}')
        I(f'ds_write_b128 v{vT+16}, {vr(st+4*h,4)} offset:{2048+1024*h}')
    for m in range(4):
        I(f'ds_read_b32 v{vT+28+m}, v{vBK+m} offset:2048')
    ea_loads(opt.e2)
    C('wave 15 publishes (start | len<<16) to OFF[phase][bucket/4][chunk][bucket%4]')
    I('v_readfirstlane_b32 s21, v0')
    I('s_cmp_lg_u32 s21, 960')
    I('s_cbranch_scc1 L1_nooff')
    I('s_lshl_b32 s22, s16, 4')
    I(f'v_lshlrev_b32 v{vT+17}, 12, v{vT+8}')
    I(f'v_add_u32 v{vT+17}, s22, v{vT+17}')
    I(f'v_add_u32 v{vT+18}, 0x40000, v{vT+17}')
    for i in range(8):
        I(f'v_lshl_add_u32 v{cnt+i}, v{cnt+i}, 16, v{st+i}')
    for h in range(2):
        I(f'buffer_store_dwordx4 {vr(cnt+4*h,4)}, v{vT+17+h}, {sr(sOFF,4)}, 0 offen' + (' sc1' if opt.sc1_off else ''))
    L('L1_nooff')
    I(f'v_lshlrev_b32 v{vT+8}, 1, v0')
    I(f'v_add_u32 v{vT+8}, {K1_POS}, v{vT+8}')
    I(f's_waitcnt vmcnt({nea[0]}) lgkmcnt(0)')
    for m in range(4):
        I(f'v_add_u32 v{vRK+m}, v{vRK+m}, v{vT+28+m}')
        I(f'v_mul_u32_u24 v{vT+11}, 5350, v{vDST+m}')
        I(f'v_and_b32 v{vT+11}, 0x70000, v{vT+11}')
        I(f'v_lshlrev_b32 v{vT+11}, 8, v{vT+11}')
        I(f'v_lshl_add_u32 v{vT+11}, v{vDST+m}, 2, v{vT+11}')
        I(f'v_lshl_add_u32 v{vKEY+m}, v{vSRC+m}, 9, v{vT+11}')
        I(f'v_mul_u32_u24 v{vT+12+m}, 12, v{vRK+m}')
        I(f'v_add_u32 v{vT+12+m}, {K1_MOL}, v{vT+12+m}')
        I(f's_mov_b64 exec, {sr(sVM+2*m,2)}')
        I(f'ds_write_b16 v{vT+8}, v{vRK+m} offset:{2048*m}')
        I(f'ds_write2_b32 v{vT+12+m}, v{vKEY+m}, v{vSH+2*m} offset0:0 offset1:1')
        I(f'ds_write_b32 v{vT+12+m}, v{vSH+2*m+1} offset:8')
        I('s_mov_b64 exec, -1')
    ea_loads(opt.e3)
    I(f'v_and_b32 v{vT+8}, 0x3fe, v0')
    I(f'v_add_u32 v{vT+8}, {K1_POS}, v{vT+8}')
    I(f'v_and_b32 v{vT+9}, 1, v0')
    I(f'v_lshlrev_b32 v{vT+9}, 4, v{vT+9}')
    I(f'v_add_u32 v{vT+10}, {K1_MOL}, v{vQ}')
    I('s_waitcnt lgkmcnt(0)')
    I('s_barrier')
    stamp(2, 124)
    C('ea pieces -> sorted LDS image; meta image -> global')
    for m in range(7):
        I(f'ds_read_u16 v{vT+12+m}, v{vT+8} offset:{1024*m}')
    for m in range(3):
        I(f'ds_read_b128 {vr(vM+4*m,4)}, v{vT+10} offset:{16384*m}')
    ea_loads(7)
    I('s_waitcnt lgkmcnt(0)')
    def mo_stores():
        for m in range(3):
            I(f'buffer_store_dwordx4 {vr(vM+4*m,4)}, v{vQ+m}, {sr(sMO,4)}, 0 offen' + (' sc1' if opt.sc1_mo else ''))
    if opt.molate == 0: mo_stores()
    for m in range(7):
        I(f'v_lshl_add_u32 v{vT+12+m}, v{vT+12+m}, 5, v{vT+9}')
        I(f's_waitcnt vmcnt({(6 if opt.molate else 9)-m})')
        I(f's_mov_b64 exec, {sr(sVQ+2*m,2)}')
        I(f'ds_write_b128 v{vT+12+m}, {vr(vEA+4*m,4)}')
        I('s_mov_b64 exec, -1')
    if opt.molate == 1: mo_stores()
    I('s_waitcnt lgkmcnt(0)')
    I('s_barrier')
    stamp(3, 124)
    if opt.molate == 2: mo_stores()
    C('linear copy out')
    for m in range(7):
        I(f'ds_read_b128 {vr(vEA+4*m,4)}, v{vQ+m}')
    for m in range(7):
        I(f's_waitcnt lgkmcnt({6-m})')
        I(f'buffer_store_dwordx4 {vr(vEA+4*m,4)}, v{vQ+m}, {sr(sEAO,4)}, 0 offen{sc}')
    if opt.k1x:
        LB = 391 - opt.la
        C('pull a share of x towards the chip (one dword per line)')
        srd(40, 12, size=N * 512)
        I(f's_mul_i32 s21, s16, {LB*128}')
        I(f's_add_u32 s21, s21, {256*opt.la*128}')
        I(f'v_sub_u32 v{vT+1}, 1023, v0')
        I(f'v_mov_b32 v{vT+2}, 0x80000000')
        I(f'v_cmp_gt_u32 vcc, {LB}, v{vT+1}')
        I(f'v_lshlrev_b32 v{vT+1}, 7, v{vT+1}')
        I(f'v_add_u32 v{vT+1}, s21, v{vT+1}')
        I(f'v_cndmask_b32 v{vT+1}, v{vT+2}, v{vT+1}, vcc')
        I(f'buffer_load_dword v{vT+3}, v{vT+1}, s[40:43], 0 offen')
    stamp(4, 124)
    if opt.stamps: I('s_waitcnt vmcnt(0)')
    stamp(5, 124); stamp_flush(124, 126)
    L('L1_end')
    I('s_endpgm')

L_RING = RCAP * 32
L_SH = L_RING
L_KI = L_SH + CAPX * 8
L_SLOT = L_KI + CAPX * 4
L_CNT = L_SLOT + 3648
L_NC = L_CNT + 1024
L_ST = L_NC + 512
L_NS = L_ST + 1024
L_WT = L_NS + 640
K2_LDS = max(L_RING + 49152, L_WT + 32)
assert K2_LDS <= 163840
NULLKI = 0x7fff
DUMMY = 16 * 4
RSMALL = 496
TP = 144
TC = 80
L_GI = L_SH
L_WO = L_GI + 3584 * 4
L_WR = L_WO + 64 * TP
L_CG = L_WR + 16 * TP
assert L_CG + 128 <= L_KI

def gen_k2():
    I('s_cmp_ge_u32 s2, 0x100')
    I('s_cbranch_scc1 L2_end')
    I('s_load_dwordx2 s[14:15], s[0:1], 80')
    I('s_load_dwordx8 s[4:11], s[0:1], 40')
    I('s_load_dwordx2 s[12:13], s[0:1], 0')
    I('s_and_b32 s16, s2, 7')
    I('s_lshl_b32 s16, s16, 5')
    I('s_lshr_b32 s17, s2, 3')
    I('s_add_u32 s16, s16, s17')
    vPRE, vLEN, vG0, vLS, vKG11, vK, vIC = 1, 2, 3, 4, 5, 6, 7
    vACC = 8
    vBE, vBO, vCG, vA1, vA2, vWA = 76, 80, 84, 92, 96, 100
    vKQ, vSQ, vIQ, vSL = 132, 148, 164, 180
    vRD, vAD, vGT, vRB0 = 182, 185, 186, 187
    vEAA = vGT
    vDT, vRW, vAE, vSHC, vSHR, vTT, vB = 188, 196, 228, 232, 234, 236, 240
    vGA = 238
    vME, vCL, vRK, vT = 132, 160, 188, 196
    vLANE, vPF = 167, 168
    VST = 252
    sOFF, sMO, sEAO, sX, sOUT, sCG, sWR, sWO = 20, 24, 28, 32, 36, 40, 44, 48
    sW, sTOT, sR0, sCNT, sNB, sNBM, sI = 17, 18, 19, 52, 53, 54, 55
    sM0, sM1 = 56, 58
    sRC, sXSZ = 60, 61
    sVM = 62
    sSA0, sSA1, sSB0, sSB1 = 76, 77, 78, 79
    sRG = 80
    sLN, sKI, sSI = 84, 85, 86
    sT0, sPJ, sNP, sK0, sEB, sMG, sOF, sON = 87, 88, 89, 90, 91, 92, 93, 94
    sA, sB = 0, 1
    I(f'v_lshrrev_b32 v{vT}, 6, v0')
    I(f'v_and_b32 v{vT+1}, 0xff, v0')
    I(f'v_readfirstlane_b32 s{sW}, v{vT}')
    I('s_lshr_b32 s3, s16, 2')
    I('s_lshl_b32 s3, s3, 10')
    I('s_and_b32 s18, s16, 3')
    I('s_add_u32 s3, s3, s18')
    I('s_lshl_b32 s3, s3, 2')
    I(f'v_mul_u32_u24 v{vG0}, {CH}, v{vT+1}')
    I(f'v_lshl_add_u32 v{vT+1}, v{vT+1}, 4, s3')
    I(f'v_lshrrev_b32 v{vT+3}, 8, v0')
    I(f'v_lshl_add_u32 v{vT+1}, v{vT+3}, 18, v{vT+1}')
    I(f'v_lshlrev_b32 v{vT+2}, 4, v0')
    LA = opt.la; LB = 391 - LA
    I(f'v_mov_b32 v{vT+14}, 0x80000000')
    I(f's_mul_i32 s3, s16, {LB*128}')
    I(f's_add_u32 s3, s3, {256*LA*128}')
    I(f'v_cmp_gt_u32 vcc, {LB}, v0')
    I(f'v_lshlrev_b32 v{vT+13}, 7, v0')
    I(f'v_add_u32 v{vPF}, s3, v{vT+13}')
    I(f'v_cndmask_b32 v{vPF}, v{vT+14}, v{vPF}, vcc')
    I(f's_mul_i32 s3, s16, {LA*128}')
    I(f'v_add_u32 v{vT+13}, s3, v{vT+13}')
    I(f'v_cmp_gt_u32 vcc, {LA}, v0')
    I('s_waitcnt lgkmcnt(0)')
    srd(sOFF, 14, off_imm=WS_OFF, size=524288)
    F = vT + 16
    I(f'buffer_load_dword v{F}, v{vT+1}, {sr(sOFF,4)}, 0 offen')
    srd(sWO, 8, size=8192)
    I(f'buffer_load_dwordx4 {vr(vME,4)}, v{vT+2}, {sr(sWO,4)}, 0 offen')
    srd(sWR, 6, size=2048)
    I(f'buffer_load_dwordx4 {vr(vME+4,4)}, v{vT+2}, {sr(sWR,4)}, 0 offen')
    srd(sCG, 4, size=128)
    I(f'buffer_load_dwordx4 {vr(vME+8,4)}, v{vT+2}, {sr(sCG,4)}, 0 offen')
    srd(sX, 12, size=N * 512)
    I(f'v_cndmask_b32 v{vT+13}, v{vT+14}, v{vT+13}, vcc')
    npf = 0
    if opt.xpf:
        I('s_barrier')
        C('pull this workgroup\'s share of x towards the chip (one dword per line)')
        I(f'buffer_load_dword v255, v{vT+13}, {sr(sX,4)}, 0 offen')
        npf = 1
    stamp_init(1, VST, VST+2); stamp(0, VST)
    def prefill():
        C('prefill KI with null entries, SLOT with the dummy slot, zero CNT')
        for i in range(4): I(f'v_mov_b32 v{vT+4+i}, 0x{NULLKI:x}')
        I(f'v_lshlrev_b32 v{vT}, 4, v0')
        I(f'v_add_u32 v{vT}, {L_KI}, v{vT}')
        I(f'ds_write_b128 v{vT}, {vr(vT+4,4)}')
        I(f'v_cmp_gt_u32 vcc, {(CAPX*4-8192)//16}, v0')
        I('s_and_b64 exec, exec, vcc')
        I(f'ds_write_b128 v{vT}, {vr(vT+4,4)} offset:8192')
        I('s_mov_b64 exec, -1')
        I(f'v_mov_b32 v{vT+8}, 0x{DUMMY*0x01010101:x}')
        I(f'v_cmp_gt_u32 vcc, {3648//16}, v0')
        I(f'v_add_u32 v{vT}, {L_SLOT-L_KI}, v{vT}')
        I('s_nop 0')
        I(f'v_cndmask_b32 v{vT+8}, 0, v{vT+8}, vcc')
        for i in range(1, 4): I(f'v_mov_b32 v{vT+8+i}, v{vT+8}')
        I(f'v_cmp_gt_u32 vcc, {3648//16+96}, v0')
        I('s_and_b64 exec, exec, vcc')
        I(f'ds_write_b128 v{vT}, {vr(vT+8,4)}')
        I('s_mov_b64 exec, -1')
    prefill()
    srd(sMO, 14, off_imm=WS_MO, size=E * 12)
    srd(sEAO, 14, off_imm=WS_EA, size=E * 32)
    srd(sOUT, 10, size=N * 512)
    I(f's_mov_b32 s{sXSZ}, 0x{N*512:x}')
    I(f's_mov_b32 s{sRC}, {RCAP}')
    I(f's_mov_b32 s{sR0}, 0')
    I(f's_lshl_b32 s{sEB}, s{sW}, 10')
    I(f's_waitcnt vmcnt({3+npf})')
    C('run lengths -> prefix')
    I(f'v_lshrrev_b32 v{vLEN}, 16, v{F}')
    I(f'v_and_b32 v{F}, 0xffff, v{F}')
    I(f'v_mov_b32 v{vT}, v{vLEN}')
    I(f'v_add_u32 v{vG0}, v{vG0}, v{F}')
    wave_scan(vT)
    I(f's_lshl_b32 s{sA}, s{sW}, 2')
    I(f's_add_u32 s{sA}, s{sA}, {L_WT}')
    I(f'v_mov_b32 v{vT+1}, s{sA}')
    I(f'v_sub_u32 v{vPRE}, v{vT}, v{vLEN}')
    I('s_mov_b32 exec_lo, 0')
    I('s_brev_b32 exec_hi, 1')
    I(f'ds_write_b32 v{vT+1}, v{vT}')
    I('s_mov_b64 exec, -1')
    I(f'v_and_b32 v{vT+1}, 7, v0')
    I(f'v_lshlrev_b32 v{vT+1}, 2, v{vT+1}')
    I(f'v_add_u32 v{vT+1}, {L_WT}, v{vT+1}')
    I('s_waitcnt lgkmcnt(0)')
    I('s_barrier')
    I(f'ds_read_b32 v{vT+2}, v{vT+1}')
    C('constant staging address')
    I(f'v_lshrrev_b32 v{vT+12}, 3, v0')
    I(f'v_mul_u32_u24 v{vT+12}, {TP}, v{vT+12}')
    I(f'v_and_b32 v{vT+3}, 7, v0')
    I(f'v_lshl_add_u32 v{vT+12}, v{vT+3}, 4, v{vT+12}')
    I(f'v_add_u32 v{vT+12}, {L_WO}, v{vT+12}')
    I('s_waitcnt lgkmcnt(0)')
    I(f'v_mov_b32 v{vT+3}, v{vT+2}')
    for sh in (1, 2, 4):
        I('s_nop 1')
        I(f'v_add_u32_dpp v{vT+3}, v{vT+3}, v{vT+3} row_shr:{sh} row_mask:0xf bank_mask:0xf')
    I(f'v_sub_u32 v{vT+2}, v{vT+3}, v{vT+2}')
    I(f'v_readlane_b32 s{sTOT}, v{vT+3}, 7')
    I(f'v_readlane_b32 s{sA}, v{vT+2}, s{sW}')
    I(f'v_readlane_b32 s{sT0}, v{vT+3}, 3')
    I('s_nop 0')
    I(f'v_add_u32 v{vPRE}, s{sA}, v{vPRE}')
    L('L2_round')
    I(f's_sub_u32 s{sCNT}, s{sTOT}, s{sR0}')
    I(f's_min_u32 s{sCNT}, s{sCNT}, s{sRC}')
    I(f'v_and_b32 v{vLANE}, 63, v0')
    C('expand: GIDX[pre+k-r0] = g0+k for k in window')
    I(f'v_sub_u32 v{vT+1}, s{sR0}, v{vPRE}')
    I(f'v_max_i32 v{vT+2}, 0, v{vT+1}')
    I(f'v_add_u32 v{vT+3}, s{sRC}, v{vT+1}')
    I(f'v_min_i32 v{vT+3}, v{vT+3}, v{vLEN}')
    I(f'v_sub_u32 v{vT+4}, v{vT+2}, v{vT+1}')
    I(f'v_lshlrev_b32 v{vT+4}, 2, v{vT+4}')
    I(f'v_add_u32 v{vT+4}, {L_GI}, v{vT+4}')
    I(f'v_add_u32 v{vT+5}, v{vG0}, v{vT+2}')
    I(f'v_add_u32 v{vT+3}, v{vG0}, v{vT+3}')
    L('L2_exp')
    for j in range(4):
        I(f'v_cmpx_lt_i32 vcc, v{vT+5}, v{vT+3}')
        I(f'ds_write_b32 v{vT+4}, v{vT+5} offset:{4*j}')
        I(f'v_add_u32 v{vT+5}, 1, v{vT+5}')
    I(f'v_add_u32 v{vT+4}, 16, v{vT+4}')
    I('s_cbranch_execnz L2_exp')
    I('s_mov_b64 exec, -1')
    C('slots past the end of the window get an out-of-range record number')
    I(f'v_lshlrev_b32 v{vT}, 2, v0')
    I(f'v_add_u32 v{vT}, {L_GI}, v{vT}')
    I(f'v_mov_b32 v{vT+2}, 0x1000000')
    for m in range(7):
        I(f'v_add_u32 v{vT+1}, {512*m}, v0')
        I(f'v_cmp_gt_u32 {sr(sVM+2*m,2)}, s{sCNT}, v{vT+1}')
    for m in range(7):
        I(f's_not_b64 exec, {sr(sVM+2*m,2)}')
        I(f's_cbranch_scc0 L2_nomark{m}')
        I(f'ds_write_b32 v{vT}, v{vT+2} offset:{2048*m}')
        L(f'L2_nomark{m}')
    I('s_mov_b64 exec, -1')
    C('stage constants in LDS (first round only)')
    I(f's_cmp_lg_u32 s{sR0}, 0')
    I('s_cbranch_scc1 L2_nostage')
    I(f's_cmp_lg_u32 s{sRC}, {RCAP}')
    I('s_cbranch_scc1 L2_nostage')
    I(f's_waitcnt vmcnt({npf})')
    I(f'ds_write_b128 v{vT+12}, {vr(vME,4)}')
    I('v_cmp_gt_u32 vcc, 0x80, v0')
    I('s_and_b64 exec, exec, vcc')
    I(f'ds_write_b128 v{vT+12}, {vr(vME+4,4)} offset:{L_WR-L_WO}')
    I('v_cmp_gt_u32 vcc, 8, v0')
    I('s_and_b64 exec, exec, vcc')
    I(f'ds_write_b128 v{vT+12}, {vr(vME+8,4)} offset:{L_CG-L_WO}')
    I('s_mov_b64 exec, -1')
    L('L2_nostage')
    I(f'v_lshrrev_b32 v{vT+3}, 1, v0')
    I(f'v_lshlrev_b32 v{vT+3}, 2, v{vT+3}')
    I(f'v_add_u32 v{vT+3}, {L_GI}, v{vT+3}')
    I(f'v_and_b32 v{vT+4}, 1, v0')
    I(f'v_lshlrev_b32 v{vT+4}, 4, v{vT+4}')
    I('s_waitcnt lgkmcnt(0)')
    I('s_barrier')
    stamp(1, VST)
    C('record loads')
    G = vT + 6
    for m in range(7):
        I(f'ds_read_b32 v{G+m}, v{vT} offset:{2048*m}')
    for j in range(0, 14, 2):
        I(f'ds_read2st64_b32 {vr(vGA+j,2)}, v{vT+3} offset0:{4*j} offset1:{4*j+4}')
    for m in range(7):
        I(f's_waitcnt lgkmcnt({13-m})')
        I(f'v_lshlrev_b32 v{vT+1}, 2, v{G+m}')
        I(f'v_lshl_add_u32 v{vT+1}, v{G+m}, 3, v{vT+1}')
        I(f'buffer_load_dwordx3 {vr(vME+4*m,3)}, v{vT+1}, {sr(sMO,4)}, 0 offen')
    nx = 0
    def xpf_b(at):
        if opt.xpf and opt.xb == at:
            I(f'buffer_load_dword v255, v{vPF}, {sr(sX,4)}, 0 offen')
    I(f'v_mov_b32 v{vGT}, 0x80000000')
    I('s_waitcnt lgkmcnt(0)')
    for j in range(14):
        I(f'v_lshl_add_u32 v{vGA+j}, v{vGA+j}, 5, v{vT+4}')
    nea = [0]
    def ea_loads(k):
        for _ in range(k):
            j = nea[0]
            assert j < 13
            I(f's_add_u32 m0, s{sEB}, {8192*j}')
            I('s_nop 0')
            I(f'buffer_load_dwordx4 v{vGA+j}, {sr(sEAO,4)}, 0 offen lds')
            nea[0] += 1
    ea_loads(opt.m0)
    C('one-time setup and constant operands (first round only)')
    I(f's_cmp_lg_u32 s{sR0}, 0')
    I('s_cbranch_scc1 L2_noconst')
    I(f's_cmp_lg_u32 s{sRC}, {RCAP}')
    I('s_cbranch_scc1 L2_noconst')
    I(f'v_bfe_u32 v{vT}, v0, 5, 1')
    I(f'v_mul_u32_u24 v{vKG11}, 0x10001, v{vT}')
    I(f'v_bfe_u32 v{vT+1}, v0, 2, 2')
    I(f'v_lshl_add_u32 v{vT}, v{vT}, 3, v{vT+1}')
    I(f'v_mul_u32_u24 v{vT}, {TP}, v{vT}')
    I(f'v_add_u32 v{vT}, {L_WO}, v{vT}')
    I(f'v_bfe_u32 v{vT+2}, v0, 4, 1')
    I(f'v_and_b32 v{vT+3}, 3, v0')
    I(f'v_lshl_add_u32 v{vT+4}, v{vT+2}, 5, v{vT}')
    I(f'v_lshl_add_u32 v{vT+4}, v{vT+3}, 3, v{vT+4}')
    I(f'v_lshl_add_u32 v{vT+5}, v{vT+2}, 4, v{vT}')
    I(f'v_and_b32 v{vT+3}, 1, v0')
    I(f'v_lshl_add_u32 v{vT+5}, v{vT+3}, 6, v{vT+5}')
    I(f'v_bfe_u32 v{vT+3}, v0, 1, 1')
    I(f'v_lshl_add_u32 v{vT+5}, v{vT+3}, 3, v{vT+5}')
    I(f'v_lshlrev_b32 v{vT+1}, 3, v{vT+1}')
    I(f'v_add_u32 v{vT+1}, {L_CG}, v{vT+1}')
    for h in range(2):
        for i in range(2):
            I(f'ds_read_b64_tr_b16 {vr(vBE+4*h+2*i,2)}, v{vT+4} offset:{L_WR-L_WO+4*i*TP+64*h}')
    for u in range(4):
        I(f'ds_read_b64_tr_b16 {vr(vCG+2*u,2)}, v{vT+1} offset:{32*u}')
    for tile in range(2):
        I('s_waitcnt lgkmcnt(4)')
        for s in range(4):
            for i in range(2):
                I(f'ds_read_b64_tr_b16 {vr(vWA+16*tile+4*s+2*i,2)}, v{vT+5} offset:{(16*s+4*i)*TP+32*tile}')
    I(f's_mov_b32 s{sM0}, 0x0f0f0f0f'); I(f's_mov_b32 s{sM0+1}, 0x0f0f0f0f')
    I(f's_mov_b32 s{sM1}, 0xf0f0f0f0'); I(f's_mov_b32 s{sM1+1}, 0xf0f0f0f0')
    for r in range(68): I(f'v_mov_b32 v{vACC+r}, 0')
    for r in range(8): I(f'v_mov_b32 v{vA1+r}, 0')
    I(f'v_and_b32 v{vLS}, 31, v0')
    I(f'v_lshlrev_b32 v{vLS}, 4, v{vLS}')
    C('swizzled lane offset inside a row, transposing-read address')
    I(f'v_bfe_u32 v{vT}, v0, 4, 1')
    I(f'v_lshlrev_b32 v{vT}, 6, v{vT}')
    I(f'v_xor_b32 v{vLS}, v{vT}, v{vLS}')
    I(f'v_bfe_u32 v{vT}, v0, 4, 2')
    I(f'v_and_b32 v{vT+3}, 3, v0')
    I(f'v_lshlrev_b32 v{vT+3}, 3, v{vT+3}')
    I(f'v_lshl_add_u32 v{vT}, v{vT}, 5, v{vT+3}')
    I(f'v_bfe_u32 v{vT+3}, v0, 3, 1')
    I(f'v_lshlrev_b32 v{vT+3}, 6, v{vT+3}')
    I(f'v_xor_b32 v{vT}, v{vT}, v{vT+3}')
    I(f'v_bfe_u32 v{vT+3}, v0, 2, 2')
    I(f'v_lshl_add_u32 v{vT}, v{vT+3}, 7, v{vT}')
    I(f's_mul_i32 s3, s{sW}, 6144')
    I(f's_add_u32 s3, s3, {L_RING}')
    I(f'v_add_u32 v{vRB0}, s3, v{vT}')
    I('s_waitcnt lgkmcnt(0)')
    L('L2_noconst')
    C('even split of the window: wave(q) = q*M >> 20 with M = 2^23/(count+1), q = position in node order')
    I(f's_add_u32 s{sA}, s{sCNT}, 1')
    I(f'v_cvt_f32_u32 v{vT}, s{sA}')
    I(f'v_rcp_f32 v{vT}, v{vT}')
    I(f'v_mov_b32 v{vT+2}, 1')
    I(f'v_mul_f32 v{vT}, 0x4b000000, v{vT}')
    I(f'v_cvt_u32_f32 v{vT}, v{vT}')
    I(f'v_lshlrev_b32 v{vT+1}, 3, v{vLANE}')
    I(f'v_readfirstlane_b32 s{sMG}, v{vT}')
    I(f'v_add_u32 v{vT+1}, {L_NC}, v{vT+1}')
    C('rank inside the destination node')
    for m in range(7):
        I(f's_waitcnt vmcnt({6-m+nea[0]+nx})')
        I(f'v_and_b32 v{vCL+m}, 0x1fc, v{vME+4*m}')
        I(f'v_add_u32 v{vCL+m}, {L_NC}, v{vCL+m}')
        I(f's_mov_b64 exec, {sr(sVM+2*m,2)}')
        I(f'ds_add_rtn_u32 v{vRK+m}, v{vCL+m}, v{vT+2}')
        I('s_mov_b64 exec, -1')
    xpf_b(1)
    ea_loads(opt.m0b)
    I('s_waitcnt lgkmcnt(0)')
    I('s_barrier')
    stamp(9, VST)
    C('node scan (every wave)')
    c0, s0, sn, sf = vT + 4, vT + 6, vT + 8, vT + 10
    I(f'ds_read_b64 {vr(c0,2)}, v{vT+1}')
    I('s_waitcnt lgkmcnt(0)')
    I(f'v_add_u32 v{vT+3}, v{c0}, v{c0+1}')
    I(f'v_mov_b32 v{sn}, v{vT+3}')
    wave_scan(sn)
    I(f'v_sub_u32 v{s0}, v{sn}, v{vT+3}')
    I(f'v_add_u32 v{s0+1}, v{s0}, v{c0}')
    I(f'ds_write_b64 v{vT+1}, {vr(s0,2)} offset:{L_NS-L_NC}')
    for m in range(7):
        I(f'ds_read_b32 v{vCL+m}, v{vCL+m} offset:{L_NS-L_NC}')
    I(f'v_add_u32 v{vT+1}, {L_NS-L_NC}, v{vT+1}')
    I(f'ds_read2_b32 {vr(sf,2)}, v{vT+1} offset0:15 offset1:16')
    def wv(r):
        I(f'v_mul_u32_u24 v{r}, s{sMG}, v{r}')
        I(f'v_lshrrev_b32 v{r}, 20, v{r}')
    for r in (s0, s0 + 1, sn): wv(r)
    C('owned node range of this wave')
    I(f's_mov_b32 exec_hi, 0x1ffff')
    I(f'v_cmp_gt_u32 vcc, s{sW}, v{s0}')
    I(f's_bcnt1_i32_b64 s{sOF}, vcc')
    I(f'v_cmp_gt_u32 vcc, s{sW}, v{s0+1}')
    I(f's_bcnt1_i32_b64 s{sA}, vcc')
    I(f's_add_u32 s{sOF}, s{sOF}, s{sA}')
    I(f'v_cmp_ge_u32 vcc, s{sW}, v{s0}')
    I(f's_bcnt1_i32_b64 s{sON}, vcc')
    I(f'v_cmp_ge_u32 vcc, s{sW}, v{s0+1}')
    I(f's_bcnt1_i32_b64 s{sA}, vcc')
    I(f's_add_u32 s{sON}, s{sON}, s{sA}')
    C('the even split needs: one round, every wave owns 1..15 nodes')
    I(f'v_sub_u32 v{vT+3}, v{s0+1}, v{s0}')
    I(f'v_sub_u32 v{sn}, v{sn}, v{s0+1}')
    I(f'v_max_u32 v{vT+3}, v{vT+3}, v{sn}')
    I(f'v_cmp_lt_u32 {sr(sA,2)}, 1, v{vT+3}')
    I('s_mov_b64 exec, -1')
    I(f'v_readlane_b32 s{sNB}, v{s0+1}, 48')
    I('s_waitcnt lgkmcnt(0)')
    for r in (sf, sf + 1): wv(r)
    I(f's_mov_b32 exec_hi, 0x3ff')
    I(f'v_cmp_ge_u32 vcc, v{s0}, v{sf}')
    I(f's_or_b64 {sr(sA,2)}, {sr(sA,2)}, vcc')
    I(f's_mov_b32 exec_hi, 0x1ff')
    I(f'v_cmp_ge_u32 vcc, v{s0+1}, v{sf+1}')
    I(f's_or_b64 {sr(sA,2)}, {sr(sA,2)}, vcc')
    I('s_mov_b64 exec, -1')
    I('s_cbranch_scc1 L2_static')
    I(f's_cmp_lg_u32 s{sNB}, 7')
    I('s_cbranch_scc1 L2_static')
    I(f's_cmp_lg_u32 s{sCNT}, s{sTOT}')
    I('s_cbranch_scc1 L2_static')
    if not opt.dyn: I('s_branch L2_static')
    for m in range(7):
        I(f'v_add_u32 v{vRK+m}, v{vRK+m}, v{vCL+m}')
        I(f'v_mul_u32_u24 v{vRK+m}, s{sMG}, v{vRK+m}')
        I(f'v_lshrrev_b32 v{vRK+m}, 20, v{vRK+m}')
        I(f'v_bfe_u32 v{vCL+m}, v{vME+4*m}, 19, 5')
        I(f'v_lshl_add_u32 v{vCL+m}, v{vRK+m}, 5, v{vCL+m}')
    I('s_branch L2_cells')
    L('L2_static')
    I(f's_mul_i32 s{sOF}, s{sW}, {NB}')
    I(f's_add_u32 s{sON}, s{sOF}, {NB+7}')
    I(f's_add_u32 s{sOF}, s{sOF}, 7')
    I(f's_lshr_b32 s{sOF}, s{sOF}, 3')
    I(f's_lshr_b32 s{sON}, s{sON}, 3')
    for m in range(7):
        I(f'v_lshrrev_b32 v{vCL+m}, 19, v{vME+4*m}')
    L('L2_cells')
    for m in range(7):
        I(f'v_lshlrev_b32 v{vCL+m}, 2, v{vCL+m}')
        I(f'v_add_u32 v{vCL+m}, {L_CNT}, v{vCL+m}')
        I(f's_mov_b64 exec, {sr(sVM+2*m,2)}')
        I(f'ds_add_rtn_u32 v{vRK+m}, v{vCL+m}, v{vT+2}')
        I('s_mov_b64 exec, -1')
    xpf_b(2)
    ea_loads(opt.m1)
    I(f'v_lshlrev_b32 v{vT}, 4, v{vLANE}')
    I(f'v_add_u32 v{vT}, {L_CNT}, v{vT}')
    I('s_waitcnt lgkmcnt(0)')
    I('s_barrier')
    stamp(2, VST)
    C('cell scan (every wave), lists padded to 16')
    cnt, st = vT + 14, vT + 18
    I(f'ds_read_b128 {vr(cnt,4)}, v{vT}')
    I(f'v_and_b32 v{vT+4}, 7, v0')
    I(f'v_cmp_eq_u32 {sr(sA,2)}, 7, v{vT+4}')
    I('s_waitcnt lgkmcnt(0)')
    I(f'v_add_u32 v{st+1}, v{cnt}, v{cnt+1}')
    I(f'v_add_u32 v{st+2}, v{st+1}, v{cnt+2}')
    I(f'v_add_u32 v{vT+1}, v{st+2}, v{cnt+3}')
    I('s_nop 1')
    I(f'v_add_u32_dpp v{vT+2}, v{vT+1}, v{vT+1} quad_perm:[1,0,3,2] row_mask:0xf bank_mask:0xf')
    I('s_nop 1')
    I(f'v_add_u32_dpp v{vT+2}, v{vT+2}, v{vT+2} quad_perm:[2,3,0,1] row_mask:0xf bank_mask:0xf')
    I('s_nop 1')
    I(f'v_add_u32_dpp v{vT+2}, v{vT+2}, v{vT+2} row_half_mirror row_mask:0xf bank_mask:0xf')
    I(f'v_add_u32 v{vT+3}, 15, v{vT+2}')
    I(f'v_and_b32 v{vT+3}, -16, v{vT+3}')
    I(f'v_sub_u32 v{vT+2}, v{vT+3}, v{vT+2}')
    I(f'v_cndmask_b32 v{vT+2}, 0, v{vT+2}, {sr(sA,2)}')
    I(f'v_add_u32 v{vT+1}, v{vT+1}, v{vT+2}')
    I(f'v_mov_b32 v{vT+2}, v{vT+1}')
    wave_scan(vT + 2)
    I(f'v_sub_u32 v{st}, v{vT+2}, v{vT+1}')
    I(f'v_add_u32 v{st+3}, v{st}, v{st+2}')
    I(f'v_add_u32 v{st+2}, v{st}, v{st+1}')
    I(f'v_add_u32 v{st+1}, v{st}, v{cnt}')
    I(f'ds_write_b128 v{vT}, {vr(st,4)} offset:{L_ST-L_CNT}')
    for m in range(7):
        I(f'ds_read_b32 v{vCL+m}, v{vCL+m} offset:{L_ST-L_CNT}')
    C('early-phase length of every list: start of bin SPLIT minus list start (in lane 8*wave)')
    sl_lane, sl_reg = opt.split >> 2, opt.split & 3
    if sl_lane: I(f'v_sub_u32_dpp v{vT+5}, v{st+sl_reg}, v{st} row_shl:{sl_lane} row_mask:0xf bank_mask:0xf')
    else: I(f'v_sub_u32 v{vT+5}, v{st+sl_reg}, v{st}')
    I(f's_lshl_b32 s{sA}, s{sW}, 3')
    I(f'v_readlane_b32 s{sNB}, v{vT+3}, s{sA}')
    I(f'v_readlane_b32 s{sI}, v{st}, s{sA}')
    I(f'v_readlane_b32 s{sNBM}, v{vT+3}, 0')
    I(f'v_readlane_b32 s{sK0}, v{vT+5}, 0')
    for g in range(1, 8):
        I(f'v_readlane_b32 s{sA}, v{vT+3}, {8*g}')
        I(f'v_readlane_b32 s{sB}, v{vT+5}, {8*g}')
        I(f's_max_u32 s{sNBM}, s{sNBM}, s{sA}')
        I(f's_min_u32 s{sK0}, s{sK0}, s{sB}')
    I(f's_lshr_b32 s{sNB}, s{sNB}, 4')
    I(f's_lshr_b32 s{sNBM}, s{sNBM}, 4')
    C('a list longer than the register copies hold: redo this round with a small window')
    I(f's_cmp_le_u32 s{sNBM}, 32')
    I('s_cbranch_scc1 L2_fits')
    I(f's_mov_b32 s{sRC}, {RSMALL}')
    I('s_waitcnt vmcnt(0) lgkmcnt(0)')
    I('s_branch L2_again')
    L('L2_fits')
    ea_loads(opt.m2)
    I(f'v_lshlrev_b32 v{vT+4}, 17, v0')
    I('s_waitcnt lgkmcnt(0)')
    for m in range(7):
        I(f'v_add_u32 v{vRK+m}, v{vRK+m}, v{vCL+m}')
        I(f'v_lshlrev_b32 v{vT}, 2, v{vRK+m}')
        I(f'v_add_u32 v{vT}, {L_KI}, v{vT}')
        I(f'v_lshlrev_b32 v{vT+1}, 3, v{vRK+m}')
        I(f'v_add_u32 v{vT+1}, {L_SH}, v{vT+1}')
        I(f'v_add_u32 v{vT+2}, {L_SLOT}, v{vRK+m}')
        I(f'v_bfe_u32 v{vT+3}, v{vME+4*m}, 9, 15')
        I(f'v_or_b32 v{vT+3}, v{vT+3}, v{vT+4}')
        I(f'v_and_b32 v{vME+4*m}, 0x3c, v{vME+4*m}')
        I(f's_mov_b64 exec, {sr(sVM+2*m,2)}')
        I(f'ds_write_b32 v{vT}, v{vT+3}')
        I(f'ds_write_b8 v{vT+2}, v{vME+4*m}')
        I(f'ds_write2_b32 v{vT+1}, v{vME+4*m+1}, v{vME+4*m+2} offset0:0 offset1:1')
        I('s_mov_b64 exec, -1')
        if m < 6: I(f'v_add_u32 v{vT+4}, {512<<17}, v{vT+4}')
    ea_loads(opt.m3)
    xpf_b(3)
    U = nea[0]
    assert U >= 6
    C('which feature passes must land before the main loop')
    I(f's_sub_i32 s{sA}, s{sT0}, s{sR0}')
    I(f's_max_i32 s{sA}, s{sA}, 0')
    I(f's_add_u32 s{sA}, s{sA}, 255')
    I(f's_lshr_b32 s{sA}, s{sA}, 8')
    I(f's_max_u32 s{sA}, s{sA}, {U}')
    I(f's_add_u32 s{sB}, s{sCNT}, 255')
    I(f's_lshr_b32 s{sB}, s{sB}, 8')
    I(f's_lshr_b32 s{sK0}, s{sK0}, 4')
    I(f's_sub_i32 s{sK0}, s{sK0}, 1')
    I(f's_sub_i32 s{sB}, s{sB}, s{sA}')
    I(f's_cmp_le_i32 s{sB}, s{sK0}')
    I(f's_cselect_b32 s{sPJ}, s{sA}, 14')
    I(f's_cselect_b32 s{sK0}, s{sK0}, -1')
    I(f's_cmp_gt_i32 s{sB}, 0')
    I(f's_cselect_b32 s{sK0}, s{sK0}, -1')
    if not opt.late:
        I(f's_mov_b32 s{sPJ}, 14'); I(f's_mov_b32 s{sK0}, -1')
    I(f's_lshl_b32 s{sA}, s{sW}, 5')
    I(f's_sub_i32 s{sNP}, s{sCNT}, s{sA}')
    I(f's_add_i32 s{sNP}, s{sNP}, 255')
    I(f's_lshr_b32 s{sNP}, s{sNP}, 8')
    C('read-back addresses')
    I(f'v_bfe_u32 v{vT}, v0, 3, 1')
    I(f'v_bfe_u32 v{vT+1}, v0, 5, 1')
    I(f'v_lshl_add_u32 v{vT}, v{vT}, 1, v{vT+1}')
    I(f'v_and_b32 v{vT+2}, 7, v0')
    I(f'v_lshl_add_u32 v{vT}, v{vT}, 3, v{vT+2}')
    I(f'v_add_u32 v{vT}, s{sI}, v{vT}')
    I(f'v_lshlrev_b32 v{vT}, 2, v{vT}')
    I(f'v_add_u32 v{vT}, {L_KI}, v{vT}')
    I(f'v_and_b32 v{vT+2}, 3, v0')
    I(f'v_lshrrev_b32 v{vT+3}, 2, v{vLANE}')
    I(f'v_lshl_add_u32 v{vT+3}, v{vT+2}, 4, v{vT+3}')
    I(f'v_add_u32 v{vT+3}, s{sI}, v{vT+3}')
    I(f'v_lshlrev_b32 v{vT+3}, 3, v{vT+3}')
    I(f'v_add_u32 v{vT+3}, {L_SH}, v{vT+3}')
    I(f'v_lshl_add_u32 v{vT+4}, v{vLANE}, 3, s{sI}')
    I(f'v_add_u32 v{vT+4}, {L_SLOT}, v{vT+4}')
    I(f'v_bfe_u32 v{vT+5}, v0, 3, 2')
    I(f'v_lshl_add_u32 v{vT+5}, v{vT+5}, 2, v{vT+2}')
    I(f'v_add_u32 v{vT+5}, s{sI}, v{vT+5}')
    I(f'v_lshlrev_b32 v{vT+5}, 2, v{vT+5}')
    I(f'v_add_u32 v{vT+5}, {L_KI}, v{vT+5}')
    I(f'v_add_u32 v{vT+6}, 1024, v{vT}')
    I(f'v_add_u32 v{vT+7}, 1024, v{vT+5}')
    I('s_waitcnt lgkmcnt(0)')
    I('s_barrier')
    stamp(3, VST)
    IT = vT + 8
    for g in range(0, 16, 2):
        I(f'ds_read2_b32 {vr(vKQ+g,2)}, v{vT+(6 if g >= 8 else 0)} offset0:{32*g%256} offset1:{32*(g+1)%256}')
    I(f'ds_read_b64 {vr(vSL,2)}, v{vT+4}')
    for g in range(16):
        if g in (4, 10): I('s_waitcnt lgkmcnt(7)')
        I(f'ds_read2_b32 {vr(IT+2*g,2)}, v{vT+(7 if g >= 8 else 5)} offset0:{32*g%256} offset1:{32*g%256+16}')
    I('s_waitcnt lgkmcnt(6)')
    for g in range(8):
        I(f'ds_read_b64 {vr(vSQ+2*g,2)}, v{vT+3} offset:{512*g}')
    C('remaining early feature passes')
    I(f's_mov_b32 s{sA}, {U}')
    I(f's_min_u32 s{sB}, s{sPJ}, s{sNP}')
    L('L2_early')
    I(f's_cmp_ge_u32 s{sA}, s{sB}')
    I('s_cbranch_scc1 L2_early_done')
    I(f's_set_gpr_idx_on s{sA}, gpr_idx(SRC0)')
    I(f'v_mov_b32 v{vGT}, v{vGA}')
    I('s_set_gpr_idx_off')
    I(f's_lshl_b32 m0, s{sA}, 13')
    I(f's_add_u32 m0, m0, s{sEB}')
    I(f's_add_u32 s{sA}, s{sA}, 1')
    I(f'buffer_load_dwordx4 v{vGT}, {sr(sEAO,4)}, 0 offen lds')
    I('s_branch L2_early')
    L('L2_early_done')
    for g in range(16):
        I(f'v_lshlrev_b32_sdwa v{vKQ+g}, 9, v{vKQ+g} dst_sel:DWORD dst_unused:UNUSED_PAD src0_sel:DWORD src1_sel:WORD_0')
    for d in range(3):
        I(f's_add_u32 s{sRG+d}, s3, {2048*d}')
        I(f'v_add_u32 v{vRD+d}, {2048*d}, v{vRB0}')
    I(f's_cmp_lg_u32 s{sNB}, 0')
    I(f's_cselect_b32 s{sX+2}, s{sXSZ}, 0')
    I(f'v_mov_b32 v{vK}, v{vKQ}')
    I('s_waitcnt lgkmcnt(0)')
    I('s_barrier')
    stamp(4, VST)
    C('first row fetches go out while the edge features are still landing')
    def fetch(sig, lane):
        I(f'v_add_u32_dpp v{vAD}, v{vK}, v{vLS} row_newbcast:{lane} row_mask:0xf bank_mask:0xf')
    for sig in range(6):
        I(f's_add_u32 m0, s{sRG+(sig>>1)}, {1024*(sig&1)}')
        fetch(sig, sig)
        I(f'buffer_load_dwordx4 v{vAD}, {sr(sX,4)}, 0 offen lds')
    I(f's_mov_b32 s{sA}, 0x07060302')
    for g in range(16):
        I(f'v_perm_b32 v{vIQ+g}, v{IT+2*g+1}, v{IT+2*g}, s{sA}')

    def ea_reads(word):
        I(f'v_lshlrev_b32_sdwa v{vEAA}, 4, v{vIC} dst_sel:DWORD dst_unused:UNUSED_PAD src0_sel:DWORD src1_sel:WORD_{word}')
        I(f's_mov_b64 exec, {sr(sM0,2)}')
        I(f'ds_read_b128 {vr(vA1,4)}, v{vEAA}')
        I(f's_mov_b64 exec, {sr(sM1,2)}')
        I(f'ds_read_b128 {vr(vA2,4)}, v{vEAA}')
        I('s_mov_b64 exec, -1')
    def rw_mfma(p):
        I(f'v_mfma_f32_32x32x16_bf16 {vr(vRW+16*p,16)}, {vr(vA1,4)}, {vr(vBE,4)}, 0')
        I(f'v_mfma_f32_32x32x16_bf16 {vr(vRW+16*p,16)}, {vr(vA2,4)}, {vr(vBO,4)}, {vr(vRW+16*p,16)}')
    def sh_bcast(i):
        for j in range(2):
            I(f'v_mov_b32_dpp v{vSHR+j}, v{vSHC+j} quad_perm:[{i},{i},{i},{i}] row_mask:0xf bank_mask:0xf')
    def ae_dots():
        for u in range(4):
            I(f'v_dot2_f32_bf16 v{vTT+u}, v{vSHR}, v{vCG+2*u}, 0')
        for u in range(4):
            I(f'v_dot2_f32_bf16 v{vTT+u}, v{vSHR+1}, v{vCG+2*u+1}, v{vTT+u}')
    def ae_cvt(p):
        I(f'v_cvt_pk_bf16_f32 v{vAE+2*p}, v{vTT}, v{vTT+1}')
        I(f'v_cvt_pk_bf16_f32 v{vAE+2*p+1}, v{vTT+2}, v{vTT+3}')
    def mfmas(p, s):
        d = vDT; b = vB
        I(f'v_mfma_f32_4x4x4_16b_bf16 {vr(d,4)}, {vr(vAE+2*p,2)}, {vr(b,2)}, 0 cbsz:4 abid:{s}')
        I(f'v_mfma_f32_4x4x4_16b_bf16 {vr(d+4,4)}, {vr(vAE+2*p,2)}, {vr(b+2,2)}, 0 cbsz:4 abid:{8+s}')
    def fmas(p, s):
        d = vDT
        for h, e in ((0, s), (1, 8 + s)):
            sl = (sSB0 if h else sSA0) + (s >> 2)
            I(f's_set_gpr_idx_on s{sl}, gpr_idx(SRC2,DST)' if h == 0 else f's_set_gpr_idx_idx s{sl}')
            r = vRW + 16 * p + (e & ~1)
            mod = 'op_sel:[0,1,0] op_sel_hi:[1,1,1]' if e & 1 else 'op_sel_hi:[1,0,1]'
            I(f'v_pk_fma_f32 {vr(vACC,2)}, {vr(d+4*h,2)}, {vr(r,2)}, {vr(vACC,2)} {mod}')
            if (s & 3) != 3: I(f's_lshr_b32 s{sl}, s{sl}, 8')
            I(f'v_pk_fma_f32 {vr(vACC+2,2)}, {vr(d+4*h+2,2)}, {vr(r,2)}, {vr(vACC+2,2)} {mod}')
        I('s_set_gpr_idx_off')

    C('operands of batch 0 that do not need the edge features')
    I(f'v_or_b32 v{vIC}, v{vIQ}, v{vKG11}')
    I(f'v_mov_b32 v{vSHC}, v{vSQ}')
    I(f'v_mov_b32 v{vSHC+1}, v{vSQ+1}')
    I(f'v_readlane_b32 s{sSA0}, v{vSL}, 0')
    I(f'v_readlane_b32 s{sSB0}, v{vSL}, 1')
    sh_bcast(0)
    ae_dots()
    I(f's_mov_b32 s{sSA1}, {DUMMY}')
    I(f's_mov_b32 s{sSB1}, {DUMMY}')
    I(f's_mov_b32 s{sI}, 0')
    I(f's_mov_b32 s{sLN}, 0')
    I(f's_mov_b32 s{sKI}, 0')
    I(f's_mov_b32 s{sSI}, 0')
    ae_cvt(0)
    I('s_waitcnt vmcnt(6)')
    I('s_barrier')
    stamp(5, VST)
    I(f's_cmp_eq_u32 s{sNB}, 0')
    I('s_cbranch_scc1 L2_drain')
    ea_reads(0)
    I('s_waitcnt lgkmcnt(0)')
    rw_mfma(0)
    L('L2_loop')
    for p in range(2):
        C(f'batch parity {p}')
        if opt.prio and p == 0:
            I(f's_cmp_lt_u32 s{sW}, 4')
            I('s_cbranch_scc1 L2_prio')
            I('s_setprio 1')
            L('L2_prio')
        if opt.prio and p == 1: I('s_setprio 0')
        I(f's_add_u32 s{sI}, s{sI}, 1')
        for s in range(8):
            sig = 8 * p + s
            d = (sig >> 1) % 3
            so = 1024 * (sig & 1)
            if s == 2:
                I(f's_cmp_lt_u32 s{sI}, s{sNB}')
                I(f's_cselect_b32 s{sX+2}, s{sXSZ}, 0')
            I('s_waitcnt vmcnt(5)')
            I(f'ds_read_b64_tr_b16 {vr(vB,2)}, v{vRD+d} offset:{so}')
            I(f'ds_read_b64_tr_b16 {vr(vB+2,2)}, v{vRD+d} offset:{so+512}')
            k = 0
            if s == 2:
                ea_reads(p ^ 1); k = 2
            fetch(sig, (sig + 6) % 16)
            if s == 0: fmas(p ^ 1, 7)
            else: fmas(p, s - 1)
            if s == 0:
                I(f's_add_u32 s{sA}, s{sLN}, 1')
                I(f'v_readlane_b32 s{sSA1}, v{vSL+1}, s{sLN}')
                I(f'v_readlane_b32 s{sSB1}, v{vSL+1}, s{sA}')
            if s == 5:
                I(f's_add_u32 s{sLN}, s{sLN}, 2')
                I(f's_add_u32 s{sA}, s{sLN}, 1')
                I(f'v_readlane_b32 s{sSA0}, v{vSL}, s{sLN}')
                I(f'v_readlane_b32 s{sSB0}, v{vSL}, s{sA}')
            if sig == 9:
                I(f's_add_u32 s{sKI}, s{sKI}, 1')
                I(f's_set_gpr_idx_on s{sKI}, gpr_idx(SRC0)')
                I(f'v_mov_b32 v{vK}, v{vKQ}')
                I(f'v_or_b32 v{vIC}, v{vIQ}, v{vKG11}')
                I('s_set_gpr_idx_off')
            if s == 2 and p == 1:
                I(f's_bitcmp1_b32 s{sI}, 1')
                I('s_cbranch_scc1 L2_shrot')
                I(f's_add_u32 s{sSI}, s{sSI}, 2')
                I(f's_set_gpr_idx_on s{sSI}, gpr_idx(SRC0)')
                I(f'v_mov_b32 v{vSHC}, v{vSQ}')
                I(f'v_mov_b32 v{vSHC+1}, v{vSQ+1}')
                I('s_set_gpr_idx_off')
                I('s_branch L2_shdone')
                L('L2_shrot')
                for j in range(2):
                    I(f'v_mov_b32_dpp v{vSHC+j}, v{vSHC+j} quad_perm:[2,3,0,1] row_mask:0xf bank_mask:0xf')
                L('L2_shdone')
            if s == 3: sh_bcast(p ^ 1)
            I(f's_add_u32 m0, s{sRG+d}, {so}')
            I(f's_waitcnt lgkmcnt({k})')
            I(f'buffer_load_dwordx4 v{vAD}, {sr(sX,4)}, 0 offen lds')
            mfmas(p, s)
            if s == 0:
                C('one late feature pass per batch')
                I(f's_cmp_ge_u32 s{sPJ}, s{sNP}')
                I(f's_cbranch_scc1 L2_nolate{p}')
                I(f's_set_gpr_idx_on s{sPJ}, gpr_idx(SRC0)')
                I(f'v_mov_b32 v{vGT}, v{vGA}')
                I('s_set_gpr_idx_off')
                I(f's_lshl_b32 m0, s{sPJ}, 13')
                I(f's_add_u32 m0, m0, s{sEB}')
                I(f's_add_u32 s{sPJ}, s{sPJ}, 1')
                I(f'buffer_load_dwordx4 v{vGT}, {sr(sEAO,4)}, 0 offen lds')
                L(f'L2_nolate{p}')
            if s == 3: rw_mfma(p ^ 1)
            if s == 4: ae_dots()
            if s == 5: ae_cvt(p ^ 1)
        if p == 1:
            I(f'v_mov_b32 v{vGT}, v{vRD+2}'); I(f'v_mov_b32 v{vRD+2}, v{vRD+1}'); I(f'v_mov_b32 v{vRD+1}, v{vRD}'); I(f'v_mov_b32 v{vRD}, v{vGT}')
            I(f's_mov_b32 s{sRG+3}, s{sRG+2}'); I(f's_mov_b32 s{sRG+2}, s{sRG+1}'); I(f's_mov_b32 s{sRG+1}, s{sRG}'); I(f's_mov_b32 s{sRG}, s{sRG+3}')
        I(f's_cmp_lg_u32 s{sI}, s{sK0}')
        I(f's_cbranch_scc1 L2_nosync{p}')
        C('all late features have landed (every wave waited for its own passes above)')
        I('s_barrier')
        L(f'L2_nosync{p}')
        I(f's_cmp_lt_u32 s{sI}, s{sNB}')
        if p == 0: I('s_cbranch_scc0 L2_tail0')
        else: I('s_cbranch_scc1 L2_loop')
    for p in (1, 0):
        if p == 0: L('L2_tail0')
        I('s_nop 4')
        fmas(p, 7)
        if p == 1: I('s_branch L2_drain')
    L('L2_drain')
    I('s_waitcnt vmcnt(0) lgkmcnt(0)')
    stamp(6, VST)
    I(f's_add_u32 s{sR0}, s{sR0}, s{sRC}')
    I(f's_cmp_ge_u32 s{sR0}, s{sTOT}')
    I('s_cbranch_scc1 L2_epi')
    L('L2_again')
    I('s_barrier')
    prefill()
    I('s_branch L2_round')

    L('L2_epi')
    C('---- epilogue: hand the partial sums of a shared node to its owner (the previous wave)')
    vP = 132
    vT = 228
    vLANE, vLO = vT + 16, vT + 17
    vBA, vOW, vOR, vO = vT + 2, vT + 3, vT + 4, vT + 8
    I(f'v_and_b32 v{vLANE}, 63, v0')
    I(f's_sub_u32 s{sA}, s{sOF}, 1')
    I(f's_and_b32 s{sA}, s{sA}, 15')
    I(f's_lshl_b32 s{sA}, s{sA}, 2')
    I(f'v_lshl_add_u32 v{vT}, v{vLANE}, 4, s3')
    I(f's_set_gpr_idx_on s{sA}, gpr_idx(SRC0)')
    for k in range(4): I(f'v_mov_b32 v{vP+k}, v{vACC+k}')
    I('s_set_gpr_idx_off')
    I(f'ds_write_b128 v{vT}, {vr(vP,4)} offset:5120')
    I(f'v_mul_u32_u24 v{vT+1}, {TC}, v{vLANE}')
    I(f'v_add_u32 v{vT+1}, s3, v{vT+1}')
    I(f'v_bfe_u32 v{vT+5}, v0, 5, 1')
    I(f'v_bfe_u32 v{vT+6}, v0, 2, 2')
    I(f'v_lshl_add_u32 v{vBA}, v{vT+5}, 3, v{vT+6}')
    I(f'v_mul_u32_u24 v{vBA}, {TC}, v{vBA}')
    I(f'v_bfe_u32 v{vT+6}, v0, 4, 1')
    I(f'v_lshl_add_u32 v{vBA}, v{vT+6}, 5, v{vBA}')
    I(f'v_and_b32 v{vT+6}, 3, v0')
    I(f'v_lshl_add_u32 v{vBA}, v{vT+6}, 3, v{vBA}')
    I(f'v_add_u32 v{vBA}, s3, v{vBA}')
    C('restage addresses')
    I(f'v_and_b32 v{vLO}, 31, v0')
    I(f'v_mul_u32_u24 v{vOW}, {TP}, v{vLO}')
    I(f'v_lshl_add_u32 v{vOW}, v{vT+5}, 6, v{vOW}')
    I(f'v_add_u32 v{vOW}, s3, v{vOW}')
    I(f'v_lshrrev_b32 v{vOR}, 3, v{vLANE}')
    I(f'v_mul_u32_u24 v{vOR}, {TP}, v{vOR}')
    I(f'v_and_b32 v{vT+6}, 7, v0')
    I(f'v_lshl_add_u32 v{vOR}, v{vT+6}, 4, v{vOR}')
    I(f'v_add_u32 v{vOR}, s3, v{vOR}')
    C('output offsets: store it covers slots 2it (lower lanes) and 2it+1 (upper lanes)')
    I(f's_mul_i32 s{sB}, s16, {NB}')
    I(f's_add_u32 s{sB}, s{sB}, s{sOF}')
    I(f's_lshl_b32 s{sB}, s{sB}, 9')
    I(f'v_lshl_add_u32 v{vLO}, v{vLO}, 4, s{sB}')
    I(f's_sub_u32 s{sB}, s{sON}, s{sOF}')
    I(f'v_subrev_u32 v{vT+6}, s{sOF}, v{vT+5}')
    I(f'v_mov_b32 v{vT+7}, 0x80000000')
    for it in range(8):
        I(f'v_add_u32 v{vO+it}, {2*it}, v{vT+6}')
        I(f'v_and_b32 v{vO+it}, 15, v{vO+it}')
        I(f'v_cmp_gt_u32 {sr(sVM,2)}, s{sB}, v{vO+it}')
        I(f'v_lshl_add_u32 v{vO+it}, v{vO+it}, 9, v{vLO}')
        I('s_nop 0')
        I(f'v_cndmask_b32 v{vO+it}, v{vT+7}, v{vO+it}, {sr(sVM,2)}')
    I(f's_sub_u32 s{sA}, s{sON}, 1')
    I(f's_and_b32 s{sA}, s{sA}, 15')
    I(f's_lshl_b32 s{sA}, s{sA}, 2')
    I(f's_cmp_eq_u32 s{sW}, 7')
    I(f's_cselect_b32 s{sA}, {DUMMY}, s{sA}')
    I('s_waitcnt lgkmcnt(0)')
    I('s_barrier')
    I(f'ds_read_b128 {vr(vP,4)}, v{vT} offset:{6144+5120}')
    I('s_waitcnt lgkmcnt(0)')
    I(f's_set_gpr_idx_on s{sA}, gpr_idx(SRC0,DST)')
    for k in range(4): I(f'v_add_f32 v{vACC+k}, v{vACC+k}, v{vP+k}')
    I('s_set_gpr_idx_off')
    C('out = agg @ w_out, staged through this wave\'s own ring')
    vBB = 164
    vD = 8
    for ct in range(2):
        for i in range(4 * ct, 4 * ct + 4):
            for k in range(4):
                I(f'v_cvt_pk_bf16_f32 v{vP+4*i+k}, v{vACC+8*i+2*k}, v{vACC+8*i+2*k+1}')
            if ct and i == 4: I('s_waitcnt lgkmcnt(3)')
            I(f'ds_write_b128 v{vT+1}, {vr(vP+4*i,4)} offset:{16*(i&3)}')
        for s in range(4):
            for i in range(2):
                I(f'ds_read_b64_tr_b16 {vr(vBB+16*ct+4*s+2*i,2)}, v{vBA} offset:{(16*s+4*i)*TC}')
    for ct in range(2):
        I(f's_waitcnt lgkmcnt({12 if ct == 0 else 0})')
        for tile in range(2):
            d = vD + 32 * ct + 16 * tile
            for s in range(4):
                I(f'v_mfma_f32_32x32x16_bf16 {vr(d,16)}, {vr(vWA+16*tile+4*s,4)}, {vr(vBB+16*ct+4*s,4)}, {vr(d,16) if s else 0}')
    I('s_nop 3')
    vPK = 132
    vRB = 196
    sco = ' sc1' if opt.sc1_out else ''
    for ct in range(2):
        for k in range(16):
            I(f'v_cvt_pk_bf16_f32 v{vPK+16*ct+k}, v{vD+32*ct+2*k}, v{vD+32*ct+2*k+1}')
        for i in range(4):
            I(f'ds_write_b128 v{vOW}, {vr(vPK+16*ct+4*i,4)} offset:{16*i}')
        its = list(range(4 * ct, 4 * ct + 4))
        for it in its:
            I(f'ds_read_b128 {vr(vRB+4*it,4)}, v{vOR} offset:{8*(it&3)*TP}')
        for it in its:
            I(f's_waitcnt lgkmcnt({its[-1]-it})')
            I(f'buffer_store_dwordx4 {vr(vRB+4*it,4)}, v{vO+it}, {sr(sOUT,4)}, 0 offen{sco}')
    stamp(7, VST)
    if opt.stamps: I('s_waitcnt vmcnt(0)')
    stamp(8, VST); stamp_flush(VST, VST+2)
    L('L2_end')
    I('s_endpgm')

emit([('mace_part_kernel', gen_k1, 256, 1024, K1_LDS, 128, 102),
      ('mace_main_kernel', gen_k2, 256, 512, K2_LDS, 256, 102)])
```

```python
import sys
N, E = 25000, 800000
out = []
class Opt: pass
opt = Opt()
def parse(defaults):
    for k, v in defaults.items(): setattr(opt, k, v)
    for a in sys.argv[2:]:
        k, v = a.split('=')
        assert k in defaults, k
        setattr(opt, k, int(v))
def I(s): out.append('    ' + s)
def L(s): out.append(s + ':')
def C(s): out.append('    ; ' + s)
def vr(b, n): return f'v[{b}:{b+n-1}]' if n > 1 else f'v{b}'
def sr(b, n): return f's[{b}:{b+n-1}]' if n > 1 else f's{b}'

def srd(d, base, off_s=None, off_imm=0, size=None, size_s=None):
    if off_imm:
        I(f's_add_u32 s{d}, s{base}, 0x{off_imm:x}')
        I(f's_addc_u32 s{d+1}, s{base+1}, 0')
        if off_s is not None:
            I(f's_add_u32 s{d}, s{d}, s{off_s}')
            I(f's_addc_u32 s{d+1}, s{d+1}, 0')
    elif off_s is not None:
        I(f's_add_u32 s{d}, s{base}, s{off_s}')
        I(f's_addc_u32 s{d+1}, s{base+1}, 0')
    else:
        I(f's_mov_b32 s{d}, s{base}')
        I(f's_mov_b32 s{d+1}, s{base+1}')
    if size_s is not None:
        I(f's_mov_b32 s{d+2}, s{size_s}')
    else:
        I(f's_mov_b32 s{d+2}, 0x{size:x}')
    I(f's_mov_b32 s{d+3}, 0x20000')

def wave_scan(v):
    for sh in (1, 2, 4, 8):
        I('s_nop 1')
        I(f'v_add_u32_dpp v{v}, v{v}, v{v} row_shr:{sh} row_mask:0xf bank_mask:0xf')
    I('s_nop 1')
    I(f'v_add_u32_dpp v{v}, v{v}, v{v} row_bcast:15 row_mask:0xa bank_mask:0xf')
    I('s_nop 1')
    I(f'v_add_u32_dpp v{v}, v{v}, v{v} row_bcast:31 row_mask:0xc bank_mask:0xf')

STAMP_OFF = 240 << 20
def stamp_init(kk, va, vtmp, wsreg=14):
    if not opt.stamps: return
    I(f'v_mov_b32 v{va}, 0'); I(f'v_mov_b32 v{va+1}, 0')
    I(f'v_lshrrev_b32 v{vtmp}, 6, v0')
    I('s_nop 0')
    I(f'v_readfirstlane_b32 s100, v{vtmp}')
    I('s_lshl_b32 s101, s2, 4')
    I('s_add_u32 s100, s100, s101')
    I('s_lshl_b32 s100, s100, 7')
    srd(96, wsreg, off_s=100, off_imm=STAMP_OFF + kk * 256 * 16 * 128, size=128)
def stamp(i, va):
    if not opt.stamps: return
    if opt.stamps == 2 and i not in (0, 15): return
    I('s_memrealtime s[100:101]')
    I('s_waitcnt lgkmcnt(0)')
    I(f'v_writelane_b32 v{va}, s100, {i}')
    I(f'v_writelane_b32 v{va+1}, s101, {i}')
def stamp_flush(va, vtmp):
    if not opt.stamps: return
    I(f'v_and_b32 v{vtmp}, 63, v0')
    I(f'v_lshlrev_b32 v{vtmp}, 3, v{vtmp}')
    I(f'buffer_store_dwordx2 v[{va}:{va+1}], v{vtmp}, s[96:99], 0 offen sc1')

def desc(name, vg, sg):
    out.append('.p2align 6')
    out.append(f'.amdhsa_kernel {name}')
    out.append(f'  .amdhsa_next_free_vgpr {vg}')
    out.append(f'  .amdhsa_next_free_sgpr {sg}')
    out.append(f'  .amdhsa_accum_offset {(vg+3)//4*4}')
    out.append('  .amdhsa_group_segment_fixed_size 0')
    out.append('  .amdhsa_kernarg_size 88')
    out.append('  .amdhsa_user_sgpr_count 2')
    out.append('  .amdhsa_user_sgpr_kernarg_segment_ptr 1')
    out.append('  .amdhsa_system_sgpr_workgroup_id_x 1')
    out.append('  .amdhsa_float_denorm_mode_32 3')
    out.append('.end_amdhsa_kernel')

def emit(kernels):
    hdr = open('standalone__tensor_product_equiv_mace__graph.s.ref').read().split('\n')
    for l in hdr:
        if l.startswith('; Override'): break
        out.append(l)
    for name, g, grid, block, lds, vg, sg in kernels:
        out.append(f'; @launch kernel={name} grid=({grid},1,1) block=({block},1,1) lds={lds}')
    out.append('.amdgcn_target "amdgcn-amd-amdhsa--gfx950"')
    out.append('.text')
    for name, g, grid, block, lds, vg, sg in kernels:
        out.append(f'.globl {name}')
        out.append('.p2align 8')
        out.append(f'.type {name},@function')
        L(name)
        g()
    out.append('.section .rodata,"a"')
    for name, g, grid, block, lds, vg, sg in kernels:
        desc(name, vg, sg)
    open(sys.argv[1], 'w').write('\n'.join(out) + '\n')

def emit1(name, g, grid, block, lds, vg, sg):
    hdr = open('standalone__tensor_product_equiv_mace__graph.s.ref').read().split('\n')
    for l in hdr:
        if l.startswith('; Override'): break
        out.append(l)
    out.append(f'; @launch grid=({grid},1,1) block=({block},1,1) lds={lds}')
    out.append('.amdgcn_target "amdgcn-amd-amdhsa--gfx950"')
    out.append('.text')
    out.append(f'.globl {name}')
    out.append('.p2align 8')
    out.append(f'.type {name},@function')
    L(name)
    g()
    out.append('.section .rodata,"a"')
    desc(name, vg, sg)
    open(sys.argv[1], 'w').write('\n'.join(out) + '\n')
```

```python
from common import *
parse(dict(stamps=0, nt=1, a0=2, a1=2, a2=1, a3=1, a4=2, s1=4, s2=4, split=12, lpb=1, late=1, la=256, dyn=1, prio=1, xpf=1, s0=0, s0b=0, arb=10, x1=0, x2=10, pob=11, u=4, s0c=0, slp=4, dl=0))
NAME = 'standalone__tensor_product_equiv_mace__graph_kernel'
CH = 3136
NB = 98
RCAP = 3520
CAPX = 3640
WS_EA = 0
WS_MO = WS_EA + 256 * CH * 32
WS_OFF = WS_MO + 256 * CH * 12
WS_SYNC = WS_OFF + 524288
SPLIT = opt.split * 1024
SPIN = 1 << 20
L_RING = RCAP * 32
L_SH = L_RING
L_KI = L_SH + CAPX * 8
L_SLOT = L_KI + CAPX * 4
L_CNT = L_SLOT + 3648
L_NC = L_CNT + 1024
L_ST = L_NC + 512
L_NS = L_ST + 1024
L_WT = L_NS + 640
K2_LDS = max(L_RING + 49152, L_WT + 32)
assert K2_LDS <= 163840
NULLKI = 0x7fff
DUMMY = 16 * 4
RSMALL = 496
TP = 144
TC = 80
L_GI = L_SH
L_WO = L_GI + 3584 * 4
L_WR = L_WO + 64 * TP
L_CG = L_WR + 16 * TP
assert L_CG + 128 <= L_KI

L_MI = L_RING
L_INV = L_MI + CH * 12
L_HIST = L_INV + CH * 2
assert L_HIST + 4096 <= K2_LDS

def gen():
    nt = ' nt' if opt.nt else ''
    I('s_cmp_ge_u32 s2, 0x100')
    I('s_cbranch_scc1 L2_end')
    I('s_load_dwordx16 s[4:19], s[0:1], 0')
    I('s_load_dwordx4 s[20:23], s[0:1], 64')
    I('s_load_dwordx2 s[24:25], s[0:1], 80')
    vPRE, vLEN, vG0, vLS, vKG11, vK, vIC = 1, 2, 3, 4, 5, 6, 7
    vACC = 8
    vBE, vBO, vCG, vA1, vA2, vWA = 76, 80, 84, 92, 96, 100
    vKQ, vSQ, vIQ, vSL = 132, 148, 164, 180
    vRD, vAD, vGT, vNUL = 182, 185, 186, 187
    vEAA = vGT
    vDT, vRW, vAE, vSHC, vSHR, vTT, vB = 188, 196, 228, 232, 234, 236, 240
    vGA = 240
    vME, vCL, vRK, vT = 132, 160, 188, 196
    vLANE = 167
    VST = 254
    vDST, vSRC, vSH, vBK, vCON, vMO, vIA = 132, 139, 146, 160, 168, 8, 240
    vED, vSO, vPF2, vEO, vPF1, vOFA, vSY = 8, 60, 61, 62, 63, 64, 65
    Q0, Q1, Q2, Q3, Q4, Q5, Q6 = 28, 32, 36, 40, 44, 48, 52
    sMO, sEAO, sOUT, sX, sEAS, sOFF, sSYN = Q0, Q1, Q2, Q3, Q4, Q5, Q6
    sVM = 6
    sBK, sW = 26, 27
    sTOT, sR0, sCNT, sNB, sNBM, sI, sRC, sXSZ = 56, 57, 58, 59, 60, 61, 62, 63
    sM0, sM1 = 64, 66
    sSA0, sSA1, sSB0, sSB1 = 68, 69, 70, 71
    sRG = 72
    sLN, sKI, sSI = 76, 77, 78
    sT0, sPJ, sNP, sK0, sEB, sMG, sOF, sON = 79, 80, 81, 82, 83, 84, 85, 86
    sE0, sNE, sFIRST, sC, sD = 87, 88, 89, 90, 91
    sA, sB = 0, 1
    C('==== phase A: partition this workgroup\'s chunk of edges by (src phase, dst bucket)')
    I(f'v_lshlrev_b32 v{vT}, 2, v0')
    I(f'v_add_u32 v{vT+1}, {L_HIST}, v{vT}')
    I(f'v_mov_b32 v{vT+2}, 0')
    I(f'ds_write_b32 v{vT+1}, v{vT+2}')
    I(f'v_lshrrev_b32 v{vT+3}, 6, v0')
    I(f's_and_b32 s{sBK}, s2, 7')
    I(f's_lshl_b32 s{sBK}, s{sBK}, 5')
    I('s_lshr_b32 s3, s2, 3')
    I(f's_add_u32 s{sBK}, s{sBK}, s3')
    I(f'v_readfirstlane_b32 s{sW}, v{vT+3}')
    I(f's_mul_i32 s{sE0}, s{sBK}, {CH}')
    I(f's_sub_u32 s{sNE}, {E}, s{sE0}')
    I(f's_min_u32 s{sNE}, s{sNE}, {CH}')
    for i in range(1, 4): I(f'v_add_u32 v{vT+3+i}, {4096*i}, v{vT}')
    I(f'v_lshlrev_b32 v{vT+8}, 3, v0')
    I(f'v_lshlrev_b32 v{vEO}, 4, v0')
    I(f'v_and_b32 v{vLANE}, 63, v0')
    I(f's_lshl_b32 s{sC}, s{sE0}, 2'); I(f's_lshl_b32 s{sD}, s{sNE}, 2')
    I(f's_lshl_b32 s{sEB}, s{sW}, 10')
    I('s_waitcnt lgkmcnt(0)')
    srd(Q0, 8, off_s=sC, size_s=sD)
    for m in range(7):
        I(f'buffer_load_dword v{vDST+m}, v{vT+3+(m>>1) if m > 1 else vT}, {sr(Q0,4)}, 0 offen offset:{2048*(m&1)}{nt}')
    srd(Q1, 6, off_s=sC, size_s=sD)
    for m in range(7):
        I(f'buffer_load_dword v{vSRC+m}, v{vT+3+(m>>1) if m > 1 else vT}, {sr(Q1,4)}, 0 offen offset:{2048*(m&1)}{nt}')
    stamp_init(1, VST, vGT, 24); stamp(0, VST)
    srd(sSYN, 24, off_imm=WS_SYNC, size=8192)
    C('workgroup 0 clears the hand-off counters, then raises the flag in d_debug')
    I(f's_or_b32 s{sA}, s2, s{sW}')
    I('s_cbranch_scc1 L1_noinit')
    srd(Q2, 22, size=256)
    I(f'v_lshlrev_b32 v{vT+9}, 8, v0')
    I(f'buffer_store_dword v{vT+2}, v{vT+9}, {sr(sSYN,4)}, 0 offen sc1')
    I(f'v_mov_b32 v{vT+10}, 1')
    I('s_waitcnt vmcnt(0)')
    I(f'buffer_store_dword v{vT+10}, v{vT+9}, {sr(Q2,4)}, 0 offen sc1')
    L('L1_noinit')
    I('s_barrier')
    I(f's_lshl_b32 s{sC}, s{sE0}, 3'); I(f's_lshl_b32 s{sD}, s{sNE}, 3')
    srd(Q2, 10, off_s=sC, size_s=sD)
    for m in range(7):
        I(f'buffer_load_dwordx2 {vr(vSH+2*m,2)}, v{vT+8}, {sr(Q2,4)}, 0 offen{nt}')
        if m < 6: I(f'v_add_u32 v{vT+8}, 4096, v{vT+8}')
    srd(Q1, 18, size=8192)
    I(f'buffer_load_dwordx4 {vr(vCON,4)}, v{vEO}, {sr(Q1,4)}, 0 offen')
    srd(Q1, 16, size=2048)
    I(f'buffer_load_dwordx4 {vr(vCON+4,4)}, v{vEO}, {sr(Q1,4)}, 0 offen')
    srd(Q1, 14, size=128)
    I(f'buffer_load_dwordx4 {vr(vCON+8,4)}, v{vEO}, {sr(Q1,4)}, 0 offen')
    I(f's_lshl_b32 s{sC}, s{sE0}, 5'); I(f's_lshl_b32 s{sD}, s{sNE}, 5')
    srd(Q3, 12, off_s=sC, size_s=sD)
    nin = [0]
    def ea_in(k):
        for _ in range(k):
            j = nin[0]
            if j >= 13: return
            I(f's_add_u32 m0, s{sEB}, {8192*j}')
            if j: I(f'v_add_u32 v{vEO}, 8192, v{vEO}')
            else: I('s_nop 0')
            I(f'buffer_load_dwordx4 v{vEO}, {sr(Q3,4)}, 0 offen{nt} lds')
            nin[0] += 1
    ea_in(opt.a0)
    srd(sEAS, 24, off_s=sC, off_imm=WS_EA, size_s=sD)
    I(f's_mul_i32 s{sC}, s{sE0}, 12'); I(f's_mul_i32 s{sD}, s{sNE}, 12')
    srd(Q0, 24, off_s=sC, off_imm=WS_MO, size_s=sD)
    srd(sOFF, 24, off_imm=WS_OFF, size=524288)
    srd(Q2, 22, size=256)
    for m in range(7):
        I(f'v_add_u32 v{vT+10}, {512*m}, v0')
        I(f'v_cmp_gt_u32 {sr(sVM+2*m,2)}, s{sNE}, v{vT+10}')
    I(f'v_mov_b32 v{vT+9}, 1')
    I(f's_mov_b32 s{sC}, {SPLIT}')
    I(f'v_mov_b32 v{vT+12}, {L_HIST}')
    I(f'v_mov_b32 v{vT+13}, {L_HIST+1024}')
    I(f's_waitcnt vmcnt({10+nin[0]})')
    for m in range(7):
        I(f'v_cmp_le_u32 {sr(sA,2)}, s{sC}, v{vSRC+m}')
        I(f'v_mul_u32_u24 v{vBK+m}, 42800, v{vDST+m}')
        I(f'v_lshrrev_b32 v{vBK+m}, 22, v{vBK+m}')
        I(f'v_mul_u32_u24 v{vT+10}, {NB}, v{vBK+m}')
        I(f'v_sub_u32 v{vDST+m}, v{vDST+m}, v{vT+10}')
        I(f'v_cndmask_b32 v{vT+11}, v{vT+12}, v{vT+13}, {sr(sA,2)}')
        I(f'v_lshl_add_u32 v{vBK+m}, v{vBK+m}, 2, v{vT+11}')
        I(f's_mov_b64 exec, {sr(sVM+2*m,2)}')
        I(f'ds_add_rtn_u32 v{vRK+m}, v{vBK+m}, v{vT+9}')
        I('s_mov_b64 exec, -1')
    ea_in(opt.a1)
    C('key = static wave<<24 | src<<9 | dlocal<<2')
    for m in range(7):
        I(f'v_mul_u32_u24 v{vT+11}, 5350, v{vDST+m}')
        I(f'v_and_b32 v{vT+11}, 0x70000, v{vT+11}')
        I(f'v_lshlrev_b32 v{vT+11}, 8, v{vT+11}')
        I(f'v_lshl_add_u32 v{vT+11}, v{vDST+m}, 2, v{vT+11}')
        I(f'v_lshl_add_u32 v{vSRC+m}, v{vSRC+m}, 9, v{vT+11}')
    I(f'v_lshlrev_b32 v{vT+16}, 4, v{vLANE}')
    I(f'v_add_u32 v{vT+16}, {L_HIST}, v{vT+16}')
    I('s_waitcnt lgkmcnt(0)')
    I('s_barrier')
    stamp(1, VST)
    C('every wave scans the histogram and writes the (identical) start table')
    cnt, st = vT + 28, vT + 20
    I(f'ds_read_b128 {vr(cnt,4)}, v{vT+16}')
    I(f'ds_read_b128 {vr(cnt+4,4)}, v{vT+16} offset:1024')
    I('s_waitcnt lgkmcnt(0)')
    for h in range(2):
        I(f'v_add_u32 v{st+4*h+1}, v{cnt+4*h}, v{cnt+4*h+1}')
        I(f'v_add_u32 v{st+4*h+2}, v{st+4*h+1}, v{cnt+4*h+2}')
        I(f'v_add_u32 v{vT+12+h}, v{st+4*h+2}, v{cnt+4*h+3}')
    I(f'v_lshl_add_u32 v{vT+17}, v{vT+13}, 16, v{vT+12}')
    I(f'v_mov_b32 v{vT+18}, v{vT+17}')
    wave_scan(vT + 18)
    I(f'v_sub_u32 v{vT+17}, v{vT+18}, v{vT+17}')
    I(f'v_readlane_b32 s{sA}, v{vT+18}, 63')
    I(f'v_and_b32 v{st}, 0xffff, v{vT+17}')
    I(f'v_lshrrev_b32 v{st+4}, 16, v{vT+17}')
    I(f's_and_b32 s{sA}, s{sA}, 0xffff')
    I(f'v_add_u32 v{st+4}, s{sA}, v{st+4}')
    for h in range(2):
        I(f'v_add_u32 v{st+4*h+3}, v{st+4*h}, v{st+4*h+2}')
        I(f'v_add_u32 v{st+4*h+2}, v{st+4*h}, v{st+4*h+1}')
        I(f'v_add_u32 v{st+4*h+1}, v{st+4*h}, v{cnt+4*h}')
        I(f'ds_write_b128 v{vT+16}, {vr(st+4*h,4)} offset:{2048+1024*h}')
    for m in range(7):
        I(f'ds_read_b32 v{vBK+m}, v{vBK+m} offset:2048')
    ea_in(opt.a2)
    I(f's_mov_b32 s{sC}, {L_MI}')
    I(f's_mov_b32 s{sD}, {L_INV}')
    I(f's_waitcnt vmcnt({3+nin[0]}) lgkmcnt(0)')
    for m in range(7):
        I(f'v_add_u32 v{vRK+m}, v{vRK+m}, v{vBK+m}')
        I(f'v_mad_u32_u24 v{vBK+m}, v{vRK+m}, 12, s{sC}')
        I(f'v_lshl_add_u32 v{vRK+m}, v{vRK+m}, 1, s{sD}')
        I(f'v_add_u32 v{vDST+m}, {512*m}, v0')
    for m in range(7):
        I(f's_mov_b64 exec, {sr(sVM+2*m,2)}')
        I(f'ds_write_b16 v{vRK+m}, v{vDST+m}')
        I(f'ds_write2_b32 v{vBK+m}, v{vSRC+m}, v{vSH+2*m} offset0:0 offset1:1')
        I(f'ds_write_b32 v{vBK+m}, v{vSH+2*m+1} offset:8')
    I('s_mov_b64 exec, -1')
    ea_in(opt.a3)
    I(f'v_lshlrev_b32 v{vSO}, 4, v0')
    I(f'v_add_u32 v{vT+10}, {L_MI}, v{vSO}')
    I(f'v_and_b32 v{vT+8}, 0x1fe, v0')
    I(f'v_add_u32 v{vT+8}, {L_INV}, v{vT+8}')
    I('s_waitcnt lgkmcnt(0)')
    I('s_barrier')
    stamp(2, VST)
    C('meta image and run table -> global')
    for j in range(5):
        I(f'ds_read_b128 {vr(vMO+4*j,4)}, v{vT+10} offset:{8192*j}')
    for j in range(5):
        I(f's_waitcnt lgkmcnt({4-j})')
        I(f'buffer_store_dwordx4 {vr(vMO+4*j,4)}, v{vSO}, {sr(Q0,4)}, 0 offen sc1')
        if j < 4: I(f'v_add_u32 v{vSO}, 8192, v{vSO}')
    for j in range(13):
        I(f'ds_read_u16 v{vIA+j}, v{vT+8} offset:{512*j}')
    I(f's_cmp_lg_u32 s{sW}, 7')
    I('s_cbranch_scc1 L1_nooff')
    C('OFF[bucket/4][chunk][phase][bucket%4] = start | len<<16')
    I(f's_lshl_b32 s{sA}, s{sBK}, 5')
    I(f'v_lshlrev_b32 v{vT+17}, 13, v{vLANE}')
    I(f'v_add_u32 v{vT+17}, s{sA}, v{vT+17}')
    for i in range(8):
        I(f'v_lshl_add_u32 v{cnt+i}, v{cnt+i}, 16, v{st+i}')
    for h in range(2):
        I(f'buffer_store_dwordx4 {vr(cnt+4*h,4)}, v{vT+17}, {sr(sOFF,4)}, 0 offen offset:{16*h} sc1')
    L('L1_nooff')
    I(f'v_mov_b32 v{vT+2}, 0')
    I(f's_cmp_lg_u32 s{sW}, 0')
    I('s_cbranch_scc1 L1_noflag')
    I(f'buffer_load_dword v{vT+3}, v{vT+2}, {sr(Q2,4)}, 0 offen sc1')
    L('L1_noflag')
    n0 = nin[0]
    ea_in(opt.a4)
    n4 = nin[0] - n0
    I(f'v_and_b32 v{vT+9}, 1, v0')
    I(f'v_lshlrev_b32 v{vT+9}, 4, v{vT+9}')
    I('s_waitcnt lgkmcnt(0)')
    for j in range(13):
        I(f'v_lshl_add_u32 v{vIA+j}, v{vIA+j}, 5, v{vT+9}')
    I(f's_waitcnt vmcnt({n4})')
    I('s_barrier')
    stamp(3, VST)
    def arrive(tag, base):
        I(f's_and_b32 s{sA}, s2, 15')
        I(f's_lshl_b32 s{sA}, s{sA}, 8')
        I(f's_add_u32 s{sA}, s{sA}, {base}')
        I(f'v_mov_b32 v{vGT}, s{sA}')
        I(f'v_mov_b32 v{vAD}, 1')
        I('s_mov_b64 exec, 1')
        I(f'buffer_atomic_add v{vAD}, v{vGT}, {sr(sSYN,4)}, 0 offen sc1')
        I('s_mov_b64 exec, -1')
    def poll(tag, base):
        I(f'v_and_b32 v{vGT}, 15, v0')
        I(f'v_lshlrev_b32 v{vGT}, 8, v{vGT}')
        if base: I(f'v_add_u32 v{vGT}, {base}, v{vGT}')
        I(f's_mov_b32 s{sB}, 0')
        L(f'L_poll{tag}')
        I(f'buffer_load_dword v{vAD}, v{vGT}, {sr(sSYN,4)}, 0 offen sc1')
        I(f's_add_u32 s{sB}, s{sB}, 1')
        I('s_waitcnt vmcnt(0)')
        I(f'v_cmp_ne_u32 vcc, 16, v{vAD}')
        I('s_cmp_eq_u64 vcc, 0')
        I(f's_cbranch_scc1 L_polled{tag}')
        I(f's_sleep {opt.slp}')
        I(f's_cmp_lt_u32 s{sB}, {SPIN}')
        I(f's_cbranch_scc1 L_poll{tag}')
        L(f'L_polled{tag}')
    I(f's_cmp_lg_u32 s{sW}, 0')
    I('s_cbranch_scc1 L1_arrived')
    I(f's_mov_b32 s{sB}, 0')
    L('L1_flag')
    I(f'v_readfirstlane_b32 s{sA}, v{vT+3}')
    I(f's_cmp_eq_u32 s{sA}, 1')
    I('s_cbranch_scc1 L1_flagok')
    I(f'buffer_load_dword v{vT+3}, v{vT+2}, {sr(Q2,4)}, 0 offen sc1')
    I(f's_add_u32 s{sB}, s{sB}, 1')
    I('s_waitcnt vmcnt(0)')
    I(f's_cmp_lt_u32 s{sB}, {SPIN}')
    I('s_cbranch_scc1 L1_flag')
    L('L1_flagok')
    arrive('A', 0)
    L('L1_arrived')
    ea_in(13)
    def prefill():
        C('prefill KI with null entries, SLOT with the dummy slot, zero CNT')
        for i in range(4): I(f'v_mov_b32 v{vT+4+i}, 0x{NULLKI:x}')
        I(f'v_lshlrev_b32 v{vT}, 4, v0')
        I(f'v_add_u32 v{vT}, {L_KI}, v{vT}')
        I(f'ds_write_b128 v{vT}, {vr(vT+4,4)}')
        I(f'v_cmp_gt_u32 vcc, {(CAPX*4-8192)//16}, v0')
        I('s_and_b64 exec, exec, vcc')
        I(f'ds_write_b128 v{vT}, {vr(vT+4,4)} offset:8192')
        I('s_mov_b64 exec, -1')
        I(f'v_mov_b32 v{vT+8}, 0x{DUMMY*0x01010101:x}')
        I(f'v_cmp_gt_u32 vcc, {3648//16}, v0')
        I(f'v_add_u32 v{vT}, {L_SLOT-L_KI}, v{vT}')
        I('s_nop 0')
        I(f'v_cndmask_b32 v{vT+8}, 0, v{vT+8}, vcc')
        for i in range(1, 4): I(f'v_mov_b32 v{vT+8+i}, v{vT+8}')
        I(f'v_cmp_gt_u32 vcc, {3648//16+96}, v0')
        I('s_and_b64 exec, exec, vcc')
        I(f'ds_write_b128 v{vT}, {vr(vT+8,4)}')
        I('s_mov_b64 exec, -1')
    prefill()
    C('stage the constants')
    I(f'v_lshrrev_b32 v{vT+12}, 3, v0')
    I(f'v_mul_u32_u24 v{vT+12}, {TP}, v{vT+12}')
    I(f'v_and_b32 v{vT+3}, 7, v0')
    I(f'v_lshl_add_u32 v{vT+12}, v{vT+3}, 4, v{vT+12}')
    I(f'v_add_u32 v{vT+12}, {L_WO}, v{vT+12}')
    I(f'ds_write_b128 v{vT+12}, {vr(vCON,4)}')
    I('v_cmp_gt_u32 vcc, 0x80, v0')
    I('s_and_b64 exec, exec, vcc')
    I(f'ds_write_b128 v{vT+12}, {vr(vCON+4,4)} offset:{L_WR-L_WO}')
    I('v_cmp_gt_u32 vcc, 8, v0')
    I('s_and_b64 exec, exec, vcc')
    I(f'ds_write_b128 v{vT+12}, {vr(vCON+8,4)} offset:{L_CG-L_WO}')
    I('s_mov_b64 exec, -1')
    srd(sMO, 24, off_imm=WS_MO, size=E * 12)
    srd(sEAO, 24, off_imm=WS_EA, size=E * 32)
    srd(sOUT, 20, size=N * 512)
    srd(sX, 4, size=N * 512)
    I(f's_mov_b32 s{sXSZ}, 0x{N*512:x}')
    I(f's_mov_b32 s{sRC}, {RCAP}')
    I(f's_mov_b32 s{sR0}, 0')
    I(f's_mov_b32 s{sFIRST}, 1')
    C('run table address, x prefetch offsets')
    I(f'v_and_b32 v{vT+1}, 0xff, v0')
    I(f's_lshr_b32 s{sA}, s{sBK}, 2')
    I(f's_lshl_b32 s{sA}, s{sA}, 11')
    I(f's_and_b32 s{sB}, s{sBK}, 3')
    I(f's_add_u32 s{sA}, s{sA}, s{sB}')
    I(f's_lshl_b32 s{sA}, s{sA}, 2')
    I(f'v_mul_u32_u24 v{vG0}, {CH}, v{vT+1}')
    I(f'v_lshl_add_u32 v{vOFA}, v{vT+1}, 5, s{sA}')
    I(f'v_lshrrev_b32 v{vT+3}, 8, v0')
    I(f'v_lshl_add_u32 v{vOFA}, v{vT+3}, 4, v{vOFA}')
    LA = opt.la; LB = 391 - LA
    I(f'v_mov_b32 v{vT+14}, 0x80000000')
    I(f's_mul_i32 s{sA}, s{sBK}, {LB*128}')
    I(f's_add_u32 s{sA}, s{sA}, {256*LA*128}')
    I(f'v_sub_u32 v{vT+15}, 511, v0')
    I(f'v_cmp_gt_u32 vcc, {LB}, v{vT+15}')
    I(f'v_lshlrev_b32 v{vT+13}, 7, v{vT+15}')
    I(f'v_add_u32 v{vPF2}, s{sA}, v{vT+13}')
    I(f'v_cndmask_b32 v{vPF2}, v{vT+14}, v{vPF2}, vcc')
    I(f'v_cmp_gt_u32 vcc, {LA}, v{vT+15}')
    I(f's_mul_i32 s{sA}, s{sBK}, {LA*128}')
    I(f'v_add_u32 v{vPF1}, s{sA}, v{vT+13}')
    I(f'v_cndmask_b32 v{vPF1}, v{vT+14}, v{vPF1}, vcc')
    nst = [0]
    def ea_out(k, tag, lg=False):
        if k == 0: return
        if nst[0] >= 13: return
        I(f's_cmp_lg_u32 s{sFIRST}, 1')
        I(f's_cbranch_scc1 L2_noout{tag}')
        I(f'v_lshlrev_b32 v{vSO}, 4, v0')
        first = True
        for _ in range(k):
            j = nst[0]
            if j >= 13: break
            if j: I(f'v_add_u32 v{vSO}, {8192*j if first else 8192}, v{vSO}')
            first = False
            if lg: I(f's_waitcnt lgkmcnt({12-j})')
            I(f'buffer_store_dwordx4 {vr(vED+4*j,4)}, v{vSO}, {sr(sEAS,4)}, 0 offen sc1')
            nst[0] += 1
        L(f'L2_noout{tag}')
    def xpf(at):
        for reg, pos in ((vPF1, opt.x1), (vPF2, opt.x2)):
            if opt.xpf and pos == at:
                C('pull a share of x towards the chip (one dword per line)')
                I(f's_cmp_eq_u32 s{sFIRST}, 0')
                I(f's_cbranch_scc1 L2_nopf{reg}')
                I(f'buffer_load_dword v{vNUL}, v{reg}, {sr(sX,4)}, 0 offen')
                L(f'L2_nopf{reg}')
    def early_static():
        for j in range(opt.u):
            I(f's_add_u32 m0, s{sEB}, {8192*j}')
            I('s_nop 0')
            I(f'buffer_load_dwordx4 v{vGA+j}, {sr(sEAO,4)}, 0 offen sc1 lds')
    def bar_b(at):
        if opt.pob == at:
            assert opt.arb < at
            I(f's_cmp_eq_u32 s{sFIRST}, 0')
            I('s_cbranch_scc1 L_polledB')
            I(f's_cmp_lg_u32 s{sW}, 0')
            I('s_cbranch_scc1 L_polledB')
            poll('B', 4096)
        if opt.arb == at:
            assert nst[0] >= 13
            I(f's_waitcnt vmcnt({7 if at == 6 else 0}) lgkmcnt(0)')
        else:
            I('s_waitcnt lgkmcnt(0)')
        I('s_barrier')
        if at != 6: stamp(at, VST)
        if opt.pob == at and not (opt.dl and at == 9): early_static()
        if opt.arb == at:
            I(f's_cmp_lg_u32 s{sFIRST}, 1')
            I('s_cbranch_scc1 L2_arrivedB')
            I(f's_mov_b32 s{sFIRST}, 2')
            I(f's_cmp_lg_u32 s{sW}, 0')
            I('s_cbranch_scc1 L2_arrivedB')
            arrive('B', 4096)
            L('L2_arrivedB')
    xpf(99)
    I('s_waitcnt lgkmcnt(0)')
    I('s_barrier')
    C('constant operands and one-time setup')
    I(f'v_bfe_u32 v{vT}, v0, 5, 1')
    I(f'v_mul_u32_u24 v{vKG11}, 0x10001, v{vT}')
    I(f'v_bfe_u32 v{vT+1}, v0, 2, 2')
    I(f'v_lshl_add_u32 v{vT}, v{vT}, 3, v{vT+1}')
    I(f'v_mul_u32_u24 v{vT}, {TP}, v{vT}')
    I(f'v_add_u32 v{vT}, {L_WO}, v{vT}')
    I(f'v_bfe_u32 v{vT+2}, v0, 4, 1')
    I(f'v_and_b32 v{vT+3}, 3, v0')
    I(f'v_lshl_add_u32 v{vT+4}, v{vT+2}, 5, v{vT}')
    I(f'v_lshl_add_u32 v{vT+4}, v{vT+3}, 3, v{vT+4}')
    I(f'v_lshl_add_u32 v{vT+5}, v{vT+2}, 4, v{vT}')
    I(f'v_and_b32 v{vT+3}, 1, v0')
    I(f'v_lshl_add_u32 v{vT+5}, v{vT+3}, 6, v{vT+5}')
    I(f'v_bfe_u32 v{vT+3}, v0, 1, 1')
    I(f'v_lshl_add_u32 v{vT+5}, v{vT+3}, 3, v{vT+5}')
    I(f'v_lshlrev_b32 v{vT+1}, 3, v{vT+1}')
    I(f'v_add_u32 v{vT+1}, {L_CG}, v{vT+1}')
    for h in range(2):
        for i in range(2):
            I(f'ds_read_b64_tr_b16 {vr(vBE+4*h+2*i,2)}, v{vT+4} offset:{L_WR-L_WO+4*i*TP+64*h}')
    for u in range(4):
        I(f'ds_read_b64_tr_b16 {vr(vCG+2*u,2)}, v{vT+1} offset:{32*u}')
    for tile in range(2):
        I('s_waitcnt lgkmcnt(4)')
        for s in range(4):
            for i in range(2):
                I(f'ds_read_b64_tr_b16 {vr(vWA+16*tile+4*s+2*i,2)}, v{vT+5} offset:{(16*s+4*i)*TP+32*tile}')
    I(f's_mov_b32 s{sM0}, 0x0f0f0f0f'); I(f's_mov_b32 s{sM0+1}, 0x0f0f0f0f')
    I(f's_mov_b32 s{sM1}, 0xf0f0f0f0'); I(f's_mov_b32 s{sM1+1}, 0xf0f0f0f0')
    for r in range(8): I(f'v_mov_b32 v{vA1+r}, 0')
    I(f'v_and_b32 v{vLS}, 31, v0')
    I(f'v_lshlrev_b32 v{vLS}, 4, v{vLS}')
    C('swizzled lane offset inside a row, transposing-read address')
    I(f'v_bfe_u32 v{vT}, v0, 4, 1')
    I(f'v_lshlrev_b32 v{vT}, 6, v{vT}')
    I(f'v_xor_b32 v{vLS}, v{vT}, v{vLS}')
    I(f'v_bfe_u32 v{vT}, v0, 4, 2')
    I(f'v_and_b32 v{vT+3}, 3, v0')
    I(f'v_lshlrev_b32 v{vT+3}, 3, v{vT+3}')
    I(f'v_lshl_add_u32 v{vT}, v{vT}, 5, v{vT+3}')
    I(f'v_bfe_u32 v{vT+3}, v0, 3, 1')
    I(f'v_lshlrev_b32 v{vT+3}, 6, v{vT+3}')
    I(f'v_xor_b32 v{vT}, v{vT}, v{vT+3}')
    I(f'v_bfe_u32 v{vT+3}, v0, 2, 2')
    I(f'v_lshl_add_u32 v{vT}, v{vT+3}, 7, v{vT}')
    I(f's_mul_i32 s3, s{sW}, 6144')
    I(f's_add_u32 s3, s3, {L_RING}')
    for d in range(3):
        I(f's_add_u32 s{sRG+d}, s3, {2048*d}')
        I(f'v_add_u32 v{vRD+d}, s{sRG+d}, v{vT}')
    stamp(4, VST)
    I(f's_cmp_lg_u32 s{sW}, 0')
    I('s_cbranch_scc1 L_polledA')
    poll('A', 0)
    I(f's_waitcnt vmcnt({(opt.xpf and opt.x1 == 99)+(opt.xpf and opt.x2 == 99)}) lgkmcnt(0)')
    I('s_barrier')
    stamp(5, VST)
    C('==== phase B: every chunk has published its keys; this chunk\'s features are in LDS')
    F = vT + 16
    I(f'buffer_load_dword v{F}, v{vOFA}, {sr(sOFF,4)}, 0 offen sc1')
    for j in range(13):
        I(f'ds_read_b128 {vr(vED+4*j,4)}, v{vIA+j}')
    xpf(0)
    ea_out(opt.s0b, '0b', lg=True)
    I(f's_waitcnt vmcnt({nst[0]+(opt.xpf and opt.x1 == 0)+(opt.xpf and opt.x2 == 0)})')
    C('run lengths -> prefix')
    I(f'v_lshrrev_b32 v{vLEN}, 16, v{F}')
    I(f'v_and_b32 v{F}, 0xffff, v{F}')
    I(f'v_mov_b32 v{vT}, v{vLEN}')
    I(f'v_add_u32 v{vG0}, v{vG0}, v{F}')
    wave_scan(vT)
    I(f's_lshl_b32 s{sA}, s{sW}, 2')
    I(f's_add_u32 s{sA}, s{sA}, {L_WT}')
    I(f'v_mov_b32 v{vT+1}, s{sA}')
    I(f'v_sub_u32 v{vPRE}, v{vT}, v{vLEN}')
    I('s_mov_b32 exec_lo, 0')
    I('s_brev_b32 exec_hi, 1')
    I(f'ds_write_b32 v{vT+1}, v{vT}')
    I('s_mov_b64 exec, -1')
    I(f'v_and_b32 v{vT+1}, 7, v0')
    I(f'v_lshlrev_b32 v{vT+1}, 2, v{vT+1}')
    I(f'v_add_u32 v{vT+1}, {L_WT}, v{vT+1}')
    I('s_waitcnt lgkmcnt(0)')
    I('s_barrier')
    I(f'ds_read_b32 v{vT+2}, v{vT+1}')
    I('s_waitcnt lgkmcnt(0)')
    I(f'v_mov_b32 v{vT+3}, v{vT+2}')
    for sh in (1, 2, 4):
        I('s_nop 1')
        I(f'v_add_u32_dpp v{vT+3}, v{vT+3}, v{vT+3} row_shr:{sh} row_mask:0xf bank_mask:0xf')
    I(f'v_sub_u32 v{vT+2}, v{vT+3}, v{vT+2}')
    I(f'v_readlane_b32 s{sTOT}, v{vT+3}, 7')
    I(f'v_readlane_b32 s{sA}, v{vT+2}, s{sW}')
    I(f'v_readlane_b32 s{sT0}, v{vT+3}, 3')
    I('s_nop 0')
    I(f'v_add_u32 v{vPRE}, s{sA}, v{vPRE}')
    L('L2_round')
    I(f's_sub_u32 s{sCNT}, s{sTOT}, s{sR0}')
    I(f's_min_u32 s{sCNT}, s{sCNT}, s{sRC}')
    I(f'v_and_b32 v{vLANE}, 63, v0')
    C('expand: GIDX[pre+k-r0] = g0+k for k in window')
    I(f'v_sub_u32 v{vT+1}, s{sR0}, v{vPRE}')
    I(f'v_max_i32 v{vT+2}, 0, v{vT+1}')
    I(f'v_add_u32 v{vT+3}, s{sRC}, v{vT+1}')
    I(f'v_min_i32 v{vT+3}, v{vT+3}, v{vLEN}')
    I(f'v_sub_u32 v{vT+4}, v{vT+2}, v{vT+1}')
    I(f'v_lshlrev_b32 v{vT+4}, 2, v{vT+4}')
    I(f'v_add_u32 v{vT+4}, {L_GI}, v{vT+4}')
    I(f'v_add_u32 v{vT+5}, v{vG0}, v{vT+2}')
    I(f'v_add_u32 v{vT+3}, v{vG0}, v{vT+3}')
    L('L2_exp')
    for j in range(4):
        I(f'v_cmpx_lt_i32 vcc, v{vT+5}, v{vT+3}')
        I(f'ds_write_b32 v{vT+4}, v{vT+5} offset:{4*j}')
        I(f'v_add_u32 v{vT+5}, 1, v{vT+5}')
    I(f'v_add_u32 v{vT+4}, 16, v{vT+4}')
    I('s_cbranch_execnz L2_exp')
    I('s_mov_b64 exec, -1')
    C('slots past the end of the window get an out-of-range record number')
    I(f'v_lshlrev_b32 v{vT}, 2, v0')
    I(f'v_add_u32 v{vT}, {L_GI}, v{vT}')
    I(f'v_mov_b32 v{vT+2}, 0x1000000')
    for m in range(7):
        I(f'v_add_u32 v{vT+1}, {512*m}, v0')
        I(f'v_cmp_gt_u32 {sr(sVM+2*m,2)}, s{sCNT}, v{vT+1}')
    for m in range(7):
        I(f's_not_b64 exec, {sr(sVM+2*m,2)}')
        I(f's_cbranch_scc0 L2_nomark{m}')
        I(f'ds_write_b32 v{vT}, v{vT+2} offset:{2048*m}')
        L(f'L2_nomark{m}')
    I('s_mov_b64 exec, -1')
    I(f'v_lshrrev_b32 v{vT+3}, 1, v0')
    I(f'v_lshlrev_b32 v{vT+3}, 2, v{vT+3}')
    I(f'v_add_u32 v{vT+3}, {L_GI}, v{vT+3}')
    I(f'v_and_b32 v{vT+4}, 1, v0')
    I(f'v_lshlrev_b32 v{vT+4}, 4, v{vT+4}')
    I('s_waitcnt lgkmcnt(0)')
    I('s_barrier')
    stamp(6, VST)
    C('record loads')
    G = vT + 6
    for m in range(7):
        I(f'ds_read_b32 v{G+m}, v{vT} offset:{2048*m}')
    for j in range(0, 14, 2):
        I(f'ds_read2st64_b32 {vr(vGA+j,2)}, v{vT+3} offset0:{4*j} offset1:{4*j+4}')
    for m in range(7):
        I(f's_waitcnt lgkmcnt({13-m})')
        I(f'v_lshlrev_b32 v{vT+1}, 2, v{G+m}')
        I(f'v_lshl_add_u32 v{vT+1}, v{G+m}, 3, v{vT+1}')
        I(f'buffer_load_dwordx3 {vr(vME+4*m,3)}, v{vT+1}, {sr(sMO,4)}, 0 offen sc1')
    I('s_waitcnt lgkmcnt(0)')
    for j in range(14):
        I(f'v_lshl_add_u32 v{vGA+j}, v{vGA+j}, 5, v{vT+4}')
    n0 = nst[0]
    if opt.s0c:
        I(f's_cmp_eq_u32 s{sFIRST}, 1')
        I('s_cbranch_scc1 L2_more')
        I('s_waitcnt vmcnt(0)')
        L('L2_more')
        ea_out(opt.s0c, '0c')
    nc = nst[0] - n0
    if opt.arb == 6: bar_b(6)
    C('even split of the window: wave(q) = q*M >> 20 with M = 2^23/(count+1), q = position in node order')
    I(f's_add_u32 s{sA}, s{sCNT}, 1')
    I(f'v_cvt_f32_u32 v{vT}, s{sA}')
    I(f'v_rcp_f32 v{vT}, v{vT}')
    I(f'v_mov_b32 v{vT+2}, 1')
    I(f'v_mul_f32 v{vT}, 0x4b000000, v{vT}')
    I(f'v_cvt_u32_f32 v{vT}, v{vT}')
    I(f'v_lshlrev_b32 v{vT+1}, 3, v{vLANE}')
    I(f'v_readfirstlane_b32 s{sMG}, v{vT}')
    I(f'v_add_u32 v{vT+1}, {L_NC}, v{vT+1}')
    C('rank inside the destination node')
    for m in range(7):
        I(f's_waitcnt vmcnt({6-m+nc})')
        I(f'v_and_b32 v{vCL+m}, 0x1fc, v{vME+4*m}')
        I(f'v_add_u32 v{vCL+m}, {L_NC}, v{vCL+m}')
        I(f's_mov_b64 exec, {sr(sVM+2*m,2)}')
        I(f'ds_add_rtn_u32 v{vRK+m}, v{vCL+m}, v{vT+2}')
        I('s_mov_b64 exec, -1')
    ea_out(opt.s1, 1)
    bar_b(7)
    xpf(7)
    C('node scan (every wave)')
    c0, s0, sn, sf = vT + 4, vT + 6, vT + 8, vT + 10
    I(f'ds_read_b64 {vr(c0,2)}, v{vT+1}')
    I('s_waitcnt lgkmcnt(0)')
    I(f'v_add_u32 v{vT+3}, v{c0}, v{c0+1}')
    I(f'v_mov_b32 v{sn}, v{vT+3}')
    wave_scan(sn)
    I(f'v_sub_u32 v{s0}, v{sn}, v{vT+3}')
    I(f'v_add_u32 v{s0+1}, v{s0}, v{c0}')
    I(f'ds_write_b64 v{vT+1}, {vr(s0,2)} offset:{L_NS-L_NC}')
    for m in range(7):
        I(f'ds_read_b32 v{vCL+m}, v{vCL+m} offset:{L_NS-L_NC}')
    I(f'v_add_u32 v{vT+1}, {L_NS-L_NC}, v{vT+1}')
    I(f'ds_read2_b32 {vr(sf,2)}, v{vT+1} offset0:15 offset1:16')
    def wv(r):
        I(f'v_mul_u32_u24 v{r}, s{sMG}, v{r}')
        I(f'v_lshrrev_b32 v{r}, 20, v{r}')
    for r in (s0, s0 + 1, sn): wv(r)
    C('owned node range of this wave')
    I(f's_mov_b32 exec_hi, 0x1ffff')
    I(f'v_cmp_gt_u32 vcc, s{sW}, v{s0}')
    I(f's_bcnt1_i32_b64 s{sOF}, vcc')
    I(f'v_cmp_gt_u32 vcc, s{sW}, v{s0+1}')
    I(f's_bcnt1_i32_b64 s{sA}, vcc')
    I(f's_add_u32 s{sOF}, s{sOF}, s{sA}')
    I(f'v_cmp_ge_u32 vcc, s{sW}, v{s0}')
    I(f's_bcnt1_i32_b64 s{sON}, vcc')
    I(f'v_cmp_ge_u32 vcc, s{sW}, v{s0+1}')
    I(f's_bcnt1_i32_b64 s{sA}, vcc')
    I(f's_add_u32 s{sON}, s{sON}, s{sA}')
    C('the even split needs: one round, every wave owns 1..15 nodes')
    I(f'v_sub_u32 v{vT+3}, v{s0+1}, v{s0}')
    I(f'v_sub_u32 v{sn}, v{sn}, v{s0+1}')
    I(f'v_max_u32 v{vT+3}, v{vT+3}, v{sn}')
    I(f'v_cmp_lt_u32 {sr(sA,2)}, 1, v{vT+3}')
    I('s_mov_b64 exec, -1')
    I(f'v_readlane_b32 s{sNB}, v{s0+1}, 48')
    I('s_waitcnt lgkmcnt(0)')
    for r in (sf, sf + 1): wv(r)
    I(f's_mov_b32 exec_hi, 0x3ff')
    I(f'v_cmp_ge_u32 vcc, v{s0}, v{sf}')
    I(f's_or_b64 {sr(sA,2)}, {sr(sA,2)}, vcc')
    I(f's_mov_b32 exec_hi, 0x1ff')
    I(f'v_cmp_ge_u32 vcc, v{s0+1}, v{sf+1}')
    I(f's_or_b64 {sr(sA,2)}, {sr(sA,2)}, vcc')
    I('s_mov_b64 exec, -1')
    I('s_cbranch_scc1 L2_static')
    I(f's_cmp_lg_u32 s{sNB}, 7')
    I('s_cbranch_scc1 L2_static')
    I(f's_cmp_lg_u32 s{sCNT}, s{sTOT}')
    I('s_cbranch_scc1 L2_static')
    if not opt.dyn: I('s_branch L2_static')
    for m in range(7):
        I(f'v_add_u32 v{vRK+m}, v{vRK+m}, v{vCL+m}')
        I(f'v_mul_u32_u24 v{vRK+m}, s{sMG}, v{vRK+m}')
        I(f'v_lshrrev_b32 v{vRK+m}, 20, v{vRK+m}')
        I(f'v_bfe_u32 v{vCL+m}, v{vME+4*m}, 19, 5')
        I(f'v_lshl_add_u32 v{vCL+m}, v{vRK+m}, 5, v{vCL+m}')
    I('s_branch L2_cells')
    L('L2_static')
    I(f's_mul_i32 s{sOF}, s{sW}, {NB}')
    I(f's_add_u32 s{sON}, s{sOF}, {NB+7}')
    I(f's_add_u32 s{sOF}, s{sOF}, 7')
    I(f's_lshr_b32 s{sOF}, s{sOF}, 3')
    I(f's_lshr_b32 s{sON}, s{sON}, 3')
    for m in range(7):
        I(f'v_lshrrev_b32 v{vCL+m}, 19, v{vME+4*m}')
    L('L2_cells')
    for m in range(7):
        I(f'v_lshlrev_b32 v{vCL+m}, 2, v{vCL+m}')
        I(f'v_add_u32 v{vCL+m}, {L_CNT}, v{vCL+m}')
        I(f's_mov_b64 exec, {sr(sVM+2*m,2)}')
        I(f'ds_add_rtn_u32 v{vRK+m}, v{vCL+m}, v{vT+2}')
        I('s_mov_b64 exec, -1')
    ea_out(opt.s2, 2)
    I(f'v_lshlrev_b32 v{vT}, 4, v{vLANE}')
    I(f'v_add_u32 v{vT}, {L_CNT}, v{vT}')
    bar_b(8)
    xpf(8)
    C('cell scan (every wave), lists padded to 16')
    cnt, st = vT + 14, vT + 18
    I(f'ds_read_b128 {vr(cnt,4)}, v{vT}')
    I(f'v_and_b32 v{vT+4}, 7, v0')
    I(f'v_cmp_eq_u32 {sr(sA,2)}, 7, v{vT+4}')
    I('s_waitcnt lgkmcnt(0)')
    I(f'v_add_u32 v{st+1}, v{cnt}, v{cnt+1}')
    I(f'v_add_u32 v{st+2}, v{st+1}, v{cnt+2}')
    I(f'v_add_u32 v{vT+1}, v{st+2}, v{cnt+3}')
    I('s_nop 1')
    I(f'v_add_u32_dpp v{vT+2}, v{vT+1}, v{vT+1} quad_perm:[1,0,3,2] row_mask:0xf bank_mask:0xf')
    I('s_nop 1')
    I(f'v_add_u32_dpp v{vT+2}, v{vT+2}, v{vT+2} quad_perm:[2,3,0,1] row_mask:0xf bank_mask:0xf')
    I('s_nop 1')
    I(f'v_add_u32_dpp v{vT+2}, v{vT+2}, v{vT+2} row_half_mirror row_mask:0xf bank_mask:0xf')
    I(f'v_add_u32 v{vT+3}, 15, v{vT+2}')
    I(f'v_and_b32 v{vT+3}, -16, v{vT+3}')
    I(f'v_sub_u32 v{vT+2}, v{vT+3}, v{vT+2}')
    I(f'v_cndmask_b32 v{vT+2}, 0, v{vT+2}, {sr(sA,2)}')
    I(f'v_add_u32 v{vT+1}, v{vT+1}, v{vT+2}')
    I(f'v_mov_b32 v{vT+2}, v{vT+1}')
    wave_scan(vT + 2)
    I(f'v_sub_u32 v{st}, v{vT+2}, v{vT+1}')
    I(f'v_add_u32 v{st+3}, v{st}, v{st+2}')
    I(f'v_add_u32 v{st+2}, v{st}, v{st+1}')
    I(f'v_add_u32 v{st+1}, v{st}, v{cnt}')
    I(f'ds_write_b128 v{vT}, {vr(st,4)} offset:{L_ST-L_CNT}')
    for m in range(7):
        I(f'ds_read_b32 v{vCL+m}, v{vCL+m} offset:{L_ST-L_CNT}')
    C('early-phase length of every list: start of bin SPLIT minus list start (in lane 8*wave)')
    sl_lane, sl_reg = opt.split >> 2, opt.split & 3
    if sl_lane: I(f'v_sub_u32_dpp v{vT+5}, v{st+sl_reg}, v{st} row_shl:{sl_lane} row_mask:0xf bank_mask:0xf')
    else: I(f'v_sub_u32 v{vT+5}, v{st+sl_reg}, v{st}')
    I(f's_lshl_b32 s{sA}, s{sW}, 3')
    I(f'v_readlane_b32 s{sNB}, v{vT+3}, s{sA}')
    I(f'v_readlane_b32 s{sI}, v{st}, s{sA}')
    I(f'v_readlane_b32 s{sNBM}, v{vT+3}, 0')
    I(f'v_readlane_b32 s{sK0}, v{vT+5}, 0')
    for g in range(1, 8):
        I(f'v_readlane_b32 s{sA}, v{vT+3}, {8*g}')
        I(f'v_readlane_b32 s{sB}, v{vT+5}, {8*g}')
        I(f's_max_u32 s{sNBM}, s{sNBM}, s{sA}')
        I(f's_min_u32 s{sK0}, s{sK0}, s{sB}')
    I(f's_lshr_b32 s{sNB}, s{sNB}, 4')
    I(f's_lshr_b32 s{sNBM}, s{sNBM}, 4')
    C('a list longer than the register copies hold: redo this round with a small window')
    I(f's_cmp_le_u32 s{sNBM}, 32')
    I('s_cbranch_scc1 L2_fits')
    I(f's_mov_b32 s{sRC}, {RSMALL}')
    I('s_waitcnt vmcnt(0) lgkmcnt(0)')
    I('s_branch L2_again')
    L('L2_fits')
    I(f'v_lshlrev_b32 v{vT+4}, 17, v0')
    I('s_waitcnt lgkmcnt(0)')
    for m in range(7):
        I(f'v_add_u32 v{vRK+m}, v{vRK+m}, v{vCL+m}')
        I(f'v_lshlrev_b32 v{vT}, 2, v{vRK+m}')
        I(f'v_add_u32 v{vT}, {L_KI}, v{vT}')
        I(f'v_lshlrev_b32 v{vT+1}, 3, v{vRK+m}')
        I(f'v_add_u32 v{vT+1}, {L_SH}, v{vT+1}')
        I(f'v_add_u32 v{vT+2}, {L_SLOT}, v{vRK+m}')
        I(f'v_bfe_u32 v{vT+3}, v{vME+4*m}, 9, 15')
        I(f'v_or_b32 v{vT+3}, v{vT+3}, v{vT+4}')
        I(f'v_and_b32 v{vME+4*m}, 0x3c, v{vME+4*m}')
        I(f's_mov_b64 exec, {sr(sVM+2*m,2)}')
        I(f'ds_write_b32 v{vT}, v{vT+3}')
        I(f'ds_write_b8 v{vT+2}, v{vME+4*m}')
        I(f'ds_write2_b32 v{vT+1}, v{vME+4*m+1}, v{vME+4*m+2} offset0:0 offset1:1')
        I('s_mov_b64 exec, -1')
        if m < 6: I(f'v_add_u32 v{vT+4}, {512<<17}, v{vT+4}')
    ea_out(13, 3)
    U = opt.u
    assert 4 <= U <= 13
    C('which feature passes must land before the main loop')
    I(f's_sub_i32 s{sA}, s{sT0}, s{sR0}')
    I(f's_max_i32 s{sA}, s{sA}, 0')
    I(f's_add_u32 s{sA}, s{sA}, 255')
    I(f's_lshr_b32 s{sA}, s{sA}, 8')
    I(f's_max_u32 s{sA}, s{sA}, {U}')
    I(f's_add_u32 s{sB}, s{sCNT}, 255')
    I(f's_lshr_b32 s{sB}, s{sB}, 8')
    I(f's_lshr_b32 s{sK0}, s{sK0}, 4')
    I(f's_sub_i32 s{sK0}, s{sK0}, 1')
    I(f's_sub_i32 s{sB}, s{sB}, s{sA}')
    I(f's_mul_i32 s{sC}, s{sK0}, {opt.lpb}')
    I(f's_cmp_le_i32 s{sB}, s{sC}')
    I(f's_cselect_b32 s{sPJ}, s{sA}, 14')
    I(f's_cselect_b32 s{sK0}, s{sK0}, -1')
    I(f's_cmp_gt_i32 s{sB}, 0')
    I(f's_cselect_b32 s{sK0}, s{sK0}, -1')
    if not opt.late:
        I(f's_mov_b32 s{sPJ}, 14'); I(f's_mov_b32 s{sK0}, -1')
    I(f's_lshl_b32 s{sA}, s{sW}, 5')
    I(f's_sub_i32 s{sNP}, s{sCNT}, s{sA}')
    I(f's_add_i32 s{sNP}, s{sNP}, 255')
    I(f's_lshr_b32 s{sNP}, s{sNP}, 8')
    C('read-back addresses')
    I(f'v_bfe_u32 v{vT}, v0, 3, 1')
    I(f'v_bfe_u32 v{vT+1}, v0, 5, 1')
    I(f'v_lshl_add_u32 v{vT}, v{vT}, 1, v{vT+1}')
    I(f'v_and_b32 v{vT+2}, 7, v0')
    I(f'v_lshl_add_u32 v{vT}, v{vT}, 3, v{vT+2}')
    I(f'v_add_u32 v{vT}, s{sI}, v{vT}')
    I(f'v_lshlrev_b32 v{vT}, 2, v{vT}')
    I(f'v_add_u32 v{vT}, {L_KI}, v{vT}')
    I(f'v_and_b32 v{vT+2}, 3, v0')
    I(f'v_lshrrev_b32 v{vT+3}, 2, v{vLANE}')
    I(f'v_lshl_add_u32 v{vT+3}, v{vT+2}, 4, v{vT+3}')
    I(f'v_add_u32 v{vT+3}, s{sI}, v{vT+3}')
    I(f'v_lshlrev_b32 v{vT+3}, 3, v{vT+3}')
    I(f'v_add_u32 v{vT+3}, {L_SH}, v{vT+3}')
    I(f'v_lshl_add_u32 v{vT+4}, v{vLANE}, 3, s{sI}')
    I(f'v_add_u32 v{vT+4}, {L_SLOT}, v{vT+4}')
    I(f'v_bfe_u32 v{vT+5}, v0, 3, 2')
    I(f'v_lshl_add_u32 v{vT+5}, v{vT+5}, 2, v{vT+2}')
    I(f'v_add_u32 v{vT+5}, s{sI}, v{vT+5}')
    I(f'v_lshlrev_b32 v{vT+5}, 2, v{vT+5}')
    I(f'v_add_u32 v{vT+5}, {L_KI}, v{vT+5}')
    I(f'v_add_u32 v{vT+6}, 1024, v{vT}')
    I(f'v_add_u32 v{vT+7}, 1024, v{vT+5}')
    bar_b(9)
    xpf(9)
    IT = vT + 8
    for g in range(0, 16, 2):
        I(f'ds_read2_b32 {vr(vKQ+g,2)}, v{vT+(6 if g >= 8 else 0)} offset0:{32*g%256} offset1:{32*(g+1)%256}')
    I(f'ds_read_b64 {vr(vSL,2)}, v{vT+4}')
    for g in range(16):
        if g in (4, 10): I('s_waitcnt lgkmcnt(7)')
        I(f'ds_read2_b32 {vr(IT+2*g,2)}, v{vT+(7 if g >= 8 else 5)} offset0:{32*g%256} offset1:{32*g%256+16}')
    I('s_waitcnt lgkmcnt(6)')
    for g in range(8):
        I(f'ds_read_b64 {vr(vSQ+2*g,2)}, v{vT+3} offset:{512*g}')
    if opt.dl and opt.pob == 9: early_static()
    for g in range(16):
        I(f'v_lshlrev_b32_sdwa v{vKQ+g}, 9, v{vKQ+g} dst_sel:DWORD dst_unused:UNUSED_PAD src0_sel:DWORD src1_sel:WORD_0')
    I(f'v_mov_b32 v{vK}, v{vKQ}')
    bar_b(10)
    I(f's_mov_b32 s{sA}, 0x07060302')
    for g in range(16):
        I(f'v_perm_b32 v{vIQ+g}, v{IT+2*g+1}, v{IT+2*g}, s{sA}')
    def fetch(sig, lane):
        I(f'v_add_u32_dpp v{vAD}, v{vK}, v{vLS} row_newbcast:{lane} row_mask:0xf bank_mask:0xf')

    def ea_reads(word):
        I(f'v_lshlrev_b32_sdwa v{vEAA}, 4, v{vIC} dst_sel:DWORD dst_unused:UNUSED_PAD src0_sel:DWORD src1_sel:WORD_{word}')
        I(f's_mov_b64 exec, {sr(sM0,2)}')
        I(f'ds_read_b128 {vr(vA1,4)}, v{vEAA}')
        I(f's_mov_b64 exec, {sr(sM1,2)}')
        I(f'ds_read_b128 {vr(vA2,4)}, v{vEAA}')
        I('s_mov_b64 exec, -1')
    def rw_mfma(p):
        I(f'v_mfma_f32_32x32x16_bf16 {vr(vRW+16*p,16)}, {vr(vA1,4)}, {vr(vBE,4)}, 0')
        I(f'v_mfma_f32_32x32x16_bf16 {vr(vRW+16*p,16)}, {vr(vA2,4)}, {vr(vBO,4)}, {vr(vRW+16*p,16)}')
    def sh_bcast(i):
        for j in range(2):
            I(f'v_mov_b32_dpp v{vSHR+j}, v{vSHC+j} quad_perm:[{i},{i},{i},{i}] row_mask:0xf bank_mask:0xf')
    def ae_dots():
        for u in range(4):
            I(f'v_dot2_f32_bf16 v{vTT+u}, v{vSHR}, v{vCG+2*u}, 0')
        for u in range(4):
            I(f'v_dot2_f32_bf16 v{vTT+u}, v{vSHR+1}, v{vCG+2*u+1}, v{vTT+u}')
    def ae_cvt(p):
        I(f'v_cvt_pk_bf16_f32 v{vAE+2*p}, v{vTT}, v{vTT+1}')
        I(f'v_cvt_pk_bf16_f32 v{vAE+2*p+1}, v{vTT+2}, v{vTT+3}')
    def mfmas(p, s):
        d = vDT; b = vB
        I(f'v_mfma_f32_4x4x4_16b_bf16 {vr(d,4)}, {vr(vAE+2*p,2)}, {vr(b,2)}, 0 cbsz:4 abid:{s}')
        I(f'v_mfma_f32_4x4x4_16b_bf16 {vr(d+4,4)}, {vr(vAE+2*p,2)}, {vr(b+2,2)}, 0 cbsz:4 abid:{8+s}')
    def fmas(p, s):
        d = vDT
        for h, e in ((0, s), (1, 8 + s)):
            sl = (sSB0 if h else sSA0) + (s >> 2)
            I(f's_set_gpr_idx_on s{sl}, gpr_idx(SRC2,DST)' if h == 0 else f's_set_gpr_idx_idx s{sl}')
            r = vRW + 16 * p + (e & ~1)
            mod = 'op_sel:[0,1,0] op_sel_hi:[1,1,1]' if e & 1 else 'op_sel_hi:[1,0,1]'
            I(f'v_pk_fma_f32 {vr(vACC,2)}, {vr(d+4*h,2)}, {vr(r,2)}, {vr(vACC,2)} {mod}')
            if (s & 3) != 3: I(f's_lshr_b32 s{sl}, s{sl}, 8')
            I(f'v_pk_fma_f32 {vr(vACC+2,2)}, {vr(d+4*h+2,2)}, {vr(r,2)}, {vr(vACC+2,2)} {mod}')
        I('s_set_gpr_idx_off')

    C('operands of batch 0 that do not need the edge features')
    I(f'v_or_b32 v{vIC}, v{vIQ}, v{vKG11}')
    I(f'v_mov_b32 v{vSHC}, v{vSQ}')
    I(f'v_mov_b32 v{vSHC+1}, v{vSQ+1}')
    I(f'v_readlane_b32 s{sSA0}, v{vSL}, 0')
    I(f'v_readlane_b32 s{sSB0}, v{vSL}, 1')
    sh_bcast(0)
    ae_dots()
    I(f's_mov_b32 s{sSA1}, {DUMMY}')
    I(f's_mov_b32 s{sSB1}, {DUMMY}')
    I(f's_mov_b32 s{sI}, 0')
    I(f's_mov_b32 s{sLN}, 0')
    I(f's_mov_b32 s{sKI}, 0')
    I(f's_mov_b32 s{sSI}, 0')
    ae_cvt(0)
    I(f's_cmp_eq_u32 s{sFIRST}, 0')
    I('s_cbranch_scc1 L2_haveB')
    xpf(10)
    I(f's_mov_b32 s{sFIRST}, 0')
    for r in range(57): I(f'v_mov_b32 v{vACC+r}, 0')
    if opt.pob == 11:
        I(f's_cmp_lg_u32 s{sW}, 0')
        I('s_cbranch_scc1 L_polledB')
        poll('B', 4096)
    for r in range(57, 68): I(f'v_mov_b32 v{vACC+r}, 0')
    if opt.pob == 11: I('s_barrier')
    L('L2_haveB')
    stamp(11, VST)
    C('early feature passes, then the first row fetches')
    if opt.pob == 11: early_static()
    I(f's_mov_b32 s{sA}, {U}')
    I(f's_min_u32 s{sB}, s{sPJ}, s{sNP}')
    L('L2_early')
    I(f's_cmp_ge_u32 s{sA}, s{sB}')
    I('s_cbranch_scc1 L2_early_done')
    I(f's_set_gpr_idx_on s{sA}, gpr_idx(SRC0)')
    I(f'v_mov_b32 v{vGT}, v{vGA}')
    I('s_set_gpr_idx_off')
    I(f's_lshl_b32 m0, s{sA}, 13')
    I(f's_add_u32 m0, m0, s{sEB}')
    I(f's_add_u32 s{sA}, s{sA}, 1')
    I(f'buffer_load_dwordx4 v{vGT}, {sr(sEAO,4)}, 0 offen sc1 lds')
    I('s_branch L2_early')
    L('L2_early_done')
    I(f's_cmp_lg_u32 s{sNB}, 0')
    I(f's_cselect_b32 s{sX+2}, s{sXSZ}, 0')
    for sig in range(6):
        I(f's_add_u32 m0, s{sRG+(sig>>1)}, {1024*(sig&1)}')
        fetch(sig, sig)
        I(f'buffer_load_dwordx4 v{vAD}, {sr(sX,4)}, 0 offen lds')
    I('s_waitcnt vmcnt(6)')
    I('s_barrier')
    stamp(12, VST)
    I(f's_cmp_eq_u32 s{sNB}, 0')
    I('s_cbranch_scc1 L2_drain')
    ea_reads(0)
    I('s_waitcnt lgkmcnt(0)')
    rw_mfma(0)
    L('L2_loop')
    for p in range(2):
        C(f'batch parity {p}')
        if opt.prio and p == 0:
            I(f's_cmp_lt_u32 s{sW}, 4')
            I('s_cbranch_scc1 L2_prio')
            I('s_setprio 1')
            L('L2_prio')
        if opt.prio and p == 1: I('s_setprio 0')
        I(f's_add_u32 s{sI}, s{sI}, 1')
        for s in range(8):
            sig = 8 * p + s
            d = (sig >> 1) % 3
            so = 1024 * (sig & 1)
            if s == 2:
                I(f's_cmp_lt_u32 s{sI}, s{sNB}')
                I(f's_cselect_b32 s{sX+2}, s{sXSZ}, 0')
            I('s_waitcnt vmcnt(5)')
            I(f'ds_read_b64_tr_b16 {vr(vB,2)}, v{vRD+d} offset:{so}')
            I(f'ds_read_b64_tr_b16 {vr(vB+2,2)}, v{vRD+d} offset:{so+512}')
            k = 0
            if s == 2:
                ea_reads(p ^ 1); k = 2
            fetch(sig, (sig + 6) % 16)
            if s == 0: fmas(p ^ 1, 7)
            else: fmas(p, s - 1)
            if s == 0:
                I(f's_add_u32 s{sA}, s{sLN}, 1')
                I(f'v_readlane_b32 s{sSA1}, v{vSL+1}, s{sLN}')
                I(f'v_readlane_b32 s{sSB1}, v{vSL+1}, s{sA}')
            if s == 5:
                I(f's_add_u32 s{sLN}, s{sLN}, 2')
                I(f's_add_u32 s{sA}, s{sLN}, 1')
                I(f'v_readlane_b32 s{sSA0}, v{vSL}, s{sLN}')
                I(f'v_readlane_b32 s{sSB0}, v{vSL}, s{sA}')
            if sig == 9:
                I(f's_add_u32 s{sKI}, s{sKI}, 1')
                I(f's_set_gpr_idx_on s{sKI}, gpr_idx(SRC0)')
                I(f'v_mov_b32 v{vK}, v{vKQ}')
                I(f'v_or_b32 v{vIC}, v{vIQ}, v{vKG11}')
                I('s_set_gpr_idx_off')
            if s == 2 and p == 1:
                I(f's_bitcmp1_b32 s{sI}, 1')
                I('s_cbranch_scc1 L2_shrot')
                I(f's_add_u32 s{sSI}, s{sSI}, 2')
                I(f's_set_gpr_idx_on s{sSI}, gpr_idx(SRC0)')
                I(f'v_mov_b32 v{vSHC}, v{vSQ}')
                I(f'v_mov_b32 v{vSHC+1}, v{vSQ+1}')
                I('s_set_gpr_idx_off')
                I('s_branch L2_shdone')
                L('L2_shrot')
                for j in range(2):
                    I(f'v_mov_b32_dpp v{vSHC+j}, v{vSHC+j} quad_perm:[2,3,0,1] row_mask:0xf bank_mask:0xf')
                L('L2_shdone')
            if s == 3: sh_bcast(p ^ 1)
            I(f's_add_u32 m0, s{sRG+d}, {so}')
            I(f's_waitcnt lgkmcnt({k})')
            I(f'buffer_load_dwordx4 v{vAD}, {sr(sX,4)}, 0 offen lds')
            mfmas(p, s)
            if s < opt.lpb:
                C('late feature pass')
                I(f's_cmp_ge_u32 s{sPJ}, s{sNP}')
                I(f's_cbranch_scc1 L2_nolate{p}{s}')
                I(f's_set_gpr_idx_on s{sPJ}, gpr_idx(SRC0)')
                I(f'v_mov_b32 v{vGT}, v{vGA}')
                I('s_set_gpr_idx_off')
                I(f's_lshl_b32 m0, s{sPJ}, 13')
                I(f's_add_u32 m0, m0, s{sEB}')
                I(f's_add_u32 s{sPJ}, s{sPJ}, 1')
                I(f'buffer_load_dwordx4 v{vGT}, {sr(sEAO,4)}, 0 offen sc1 lds')
                L(f'L2_nolate{p}{s}')
            if s == 3: rw_mfma(p ^ 1)
            if s == 4: ae_dots()
            if s == 5: ae_cvt(p ^ 1)
        if p == 1:
            I(f'v_mov_b32 v{vGT}, v{vRD+2}'); I(f'v_mov_b32 v{vRD+2}, v{vRD+1}'); I(f'v_mov_b32 v{vRD+1}, v{vRD}'); I(f'v_mov_b32 v{vRD}, v{vGT}')
            I(f's_mov_b32 s{sRG+3}, s{sRG+2}'); I(f's_mov_b32 s{sRG+2}, s{sRG+1}'); I(f's_mov_b32 s{sRG+1}, s{sRG}'); I(f's_mov_b32 s{sRG}, s{sRG+3}')
        I(f's_cmp_lg_u32 s{sI}, s{sK0}')
        I(f's_cbranch_scc1 L2_nosync{p}')
        C('all late features have landed (every wave waited for its own passes above)')
        I('s_barrier')
        L(f'L2_nosync{p}')
        I(f's_cmp_lt_u32 s{sI}, s{sNB}')
        if p == 0: I('s_cbranch_scc0 L2_tail0')
        else: I('s_cbranch_scc1 L2_loop')
    for p in (1, 0):
        if p == 0: L('L2_tail0')
        I('s_nop 4')
        fmas(p, 7)
        if p == 1: I('s_branch L2_drain')
    L('L2_drain')
    I('s_waitcnt vmcnt(0) lgkmcnt(0)')
    stamp(13, VST)
    I(f's_add_u32 s{sR0}, s{sR0}, s{sRC}')
    I(f's_cmp_ge_u32 s{sR0}, s{sTOT}')
    I('s_cbranch_scc1 L2_epi')
    L('L2_again')
    I('s_barrier')
    prefill()
    I('s_branch L2_round')

    L('L2_epi')
    C('---- epilogue: hand the partial sums of a shared node to its owner (the previous wave)')
    vP = 132
    vT = 228
    vLANE, vLO = vT + 16, vT + 17
    vBA, vOW, vOR, vO = vT + 2, vT + 3, vT + 4, vT + 8
    I(f'v_and_b32 v{vLANE}, 63, v0')
    I(f's_sub_u32 s{sA}, s{sOF}, 1')
    I(f's_and_b32 s{sA}, s{sA}, 15')
    I(f's_lshl_b32 s{sA}, s{sA}, 2')
    I(f'v_lshl_add_u32 v{vT}, v{vLANE}, 4, s3')
    I(f's_set_gpr_idx_on s{sA}, gpr_idx(SRC0)')
    for k in range(4): I(f'v_mov_b32 v{vP+k}, v{vACC+k}')
    I('s_set_gpr_idx_off')
    I(f'ds_write_b128 v{vT}, {vr(vP,4)} offset:5120')
    I(f'v_mul_u32_u24 v{vT+1}, {TC}, v{vLANE}')
    I(f'v_add_u32 v{vT+1}, s3, v{vT+1}')
    I(f'v_bfe_u32 v{vT+5}, v0, 5, 1')
    I(f'v_bfe_u32 v{vT+6}, v0, 2, 2')
    I(f'v_lshl_add_u32 v{vBA}, v{vT+5}, 3, v{vT+6}')
    I(f'v_mul_u32_u24 v{vBA}, {TC}, v{vBA}')
    I(f'v_bfe_u32 v{vT+6}, v0, 4, 1')
    I(f'v_lshl_add_u32 v{vBA}, v{vT+6}, 5, v{vBA}')
    I(f'v_and_b32 v{vT+6}, 3, v0')
    I(f'v_lshl_add_u32 v{vBA}, v{vT+6}, 3, v{vBA}')
    I(f'v_add_u32 v{vBA}, s3, v{vBA}')
    C('restage addresses')
    I(f'v_and_b32 v{vLO}, 31, v0')
    I(f'v_mul_u32_u24 v{vOW}, {TP}, v{vLO}')
    I(f'v_lshl_add_u32 v{vOW}, v{vT+5}, 6, v{vOW}')
    I(f'v_add_u32 v{vOW}, s3, v{vOW}')
    I(f'v_lshrrev_b32 v{vOR}, 3, v{vLANE}')
    I(f'v_mul_u32_u24 v{vOR}, {TP}, v{vOR}')
    I(f'v_and_b32 v{vT+6}, 7, v0')
    I(f'v_lshl_add_u32 v{vOR}, v{vT+6}, 4, v{vOR}')
    I(f'v_add_u32 v{vOR}, s3, v{vOR}')
    C('output offsets: store it covers slots 2it (lower lanes) and 2it+1 (upper lanes)')
    I(f's_mul_i32 s{sB}, s{sBK}, {NB}')
    I(f's_add_u32 s{sB}, s{sB}, s{sOF}')
    I(f's_lshl_b32 s{sB}, s{sB}, 9')
    I(f'v_lshl_add_u32 v{vLO}, v{vLO}, 4, s{sB}')
    I(f's_sub_u32 s{sB}, s{sON}, s{sOF}')
    I(f'v_subrev_u32 v{vT+6}, s{sOF}, v{vT+5}')
    I(f'v_mov_b32 v{vT+7}, 0x80000000')
    for it in range(8):
        I(f'v_add_u32 v{vO+it}, {2*it}, v{vT+6}')
        I(f'v_and_b32 v{vO+it}, 15, v{vO+it}')
        I(f'v_cmp_gt_u32 {sr(sVM,2)}, s{sB}, v{vO+it}')
        I(f'v_lshl_add_u32 v{vO+it}, v{vO+it}, 9, v{vLO}')
        I('s_nop 0')
        I(f'v_cndmask_b32 v{vO+it}, v{vT+7}, v{vO+it}, {sr(sVM,2)}')
    I(f's_sub_u32 s{sA}, s{sON}, 1')
    I(f's_and_b32 s{sA}, s{sA}, 15')
    I(f's_lshl_b32 s{sA}, s{sA}, 2')
    I(f's_cmp_eq_u32 s{sW}, 7')
    I(f's_cselect_b32 s{sA}, {DUMMY}, s{sA}')
    I('s_waitcnt lgkmcnt(0)')
    I('s_barrier')
    I(f'ds_read_b128 {vr(vP,4)}, v{vT} offset:{6144+5120}')
    I('s_waitcnt lgkmcnt(0)')
    I(f's_set_gpr_idx_on s{sA}, gpr_idx(SRC0,DST)')
    for k in range(4): I(f'v_add_f32 v{vACC+k}, v{vACC+k}, v{vP+k}')
    I('s_set_gpr_idx_off')
    C('out = agg @ w_out, staged through this wave\'s own ring')
    vBB = 164
    vD = 8
    for ct in range(2):
        for i in range(4 * ct, 4 * ct + 4):
            for k in range(4):
                I(f'v_cvt_pk_bf16_f32 v{vP+4*i+k}, v{vACC+8*i+2*k}, v{vACC+8*i+2*k+1}')
            if ct and i == 4: I('s_waitcnt lgkmcnt(3)')
            I(f'ds_write_b128 v{vT+1}, {vr(vP+4*i,4)} offset:{16*(i&3)}')
        for s in range(4):
            for i in range(2):
                I(f'ds_read_b64_tr_b16 {vr(vBB+16*ct+4*s+2*i,2)}, v{vBA} offset:{(16*s+4*i)*TC}')
    for ct in range(2):
        I(f's_waitcnt lgkmcnt({12 if ct == 0 else 0})')
        for tile in range(2):
            d = vD + 32 * ct + 16 * tile
            for s in range(4):
                I(f'v_mfma_f32_32x32x16_bf16 {vr(d,16)}, {vr(vWA+16*tile+4*s,4)}, {vr(vBB+16*ct+4*s,4)}, {vr(d,16) if s else 0}')
    I('s_nop 3')
    vPK = 132
    vRB = 196
    sco = ' sc1'
    for ct in range(2):
        for k in range(16):
            I(f'v_cvt_pk_bf16_f32 v{vPK+16*ct+k}, v{vD+32*ct+2*k}, v{vD+32*ct+2*k+1}')
        for i in range(4):
            I(f'ds_write_b128 v{vOW}, {vr(vPK+16*ct+4*i,4)} offset:{16*i}')
        its = list(range(4 * ct, 4 * ct + 4))
        for it in its:
            I(f'ds_read_b128 {vr(vRB+4*it,4)}, v{vOR} offset:{8*(it&3)*TP}')
        for it in its:
            I(f's_waitcnt lgkmcnt({its[-1]-it})')
            I(f'buffer_store_dwordx4 {vr(vRB+4*it,4)}, v{vO+it}, {sr(sOUT,4)}, 0 offen{sco}')
    stamp(14, VST)
    if opt.stamps: I('s_waitcnt vmcnt(0)')
    stamp(15, VST); stamp_flush(VST, vGT)
    L('L2_end')
    I('s_endpgm')

emit1(NAME, gen, 256, 512, K2_LDS, 256, 102)
```

```python
from common import *
parse(dict(stamps=0, nt=1, a0=2, a1=1, a2=1, a3=1, a4=2, s1=0, s2=0, split=12, lpb=1, late=1, la=0, lb=392, dyn=1, prio=1, xpf=1, s0b=13, arb=6, x1=99, x2=7, pob=9, u=6, s0c=0, slp=4, dl=0, u2=0, u3=0, pace=0, sx=0, sy=0, sz=0, offl=0, rot=1))
NAME = 'standalone__tensor_product_equiv_mace__graph_kernel'
CH = 3136
NB = 98
RCAP = 3520
CAPX = 3640
WS_EA = 0
WS_MO = WS_EA + 256 * CH * 32
WS_OFF = WS_MO + 256 * CH * 12
WS_SYNC = WS_OFF + 524288
SPLIT = opt.split * 1024
SPIN = 1 << 20
L_RING = RCAP * 32
L_SH = L_RING
L_KI = L_SH + CAPX * 8
L_SLOT = L_KI + CAPX * 4
L_CNT = L_SLOT + 3648
L_NC = L_CNT + 1024
L_ST = L_NC + 512
L_NS = L_ST + 1024
L_WT = L_NS + 640
K2_LDS = max(L_RING + 49152, L_WT + 32)
assert K2_LDS <= 163840
NULLKI = 0x7fff
DUMMY = 16 * 4
RSMALL = 496
TP = 144
TC = 80
L_GI = L_SH
L_WO = L_GI + 3584 * 4
L_WR = L_WO + 64 * TP
L_CG = L_WR + 16 * TP
assert L_CG + 128 <= L_KI

L_MI = L_RING
L_INV = L_MI + CH * 12
L_HIST = L_INV + CH * 2
assert L_HIST + 4096 <= K2_LDS

def gen():
    nt = ' nt' if opt.nt else ''
    I('s_cmp_ge_u32 s2, 0x100')
    I('s_cbranch_scc1 L2_end')
    I('s_load_dwordx16 s[4:19], s[0:1], 0')
    I('s_load_dwordx4 s[20:23], s[0:1], 64')
    I('s_load_dwordx2 s[24:25], s[0:1], 80')
    vPRE, vLEN, vG0, vLS, vKG11, vK, vIC = 1, 2, 3, 4, 5, 6, 7
    vACC = 8
    vBE, vBO, vCG, vA1, vA2, vWA = 76, 80, 84, 92, 96, 100
    vKQ, vSQ, vIQ, vSL = 132, 148, 164, 180
    vRD, vAD, vGT, vNUL = 182, 185, 186, 187
    vEAA = vGT
    vDT, vRW, vAE, vSHC, vSHR, vTT, vB = 188, 196, 228, 232, 234, 236, 240
    vGA = 240
    vME, vCL, vRK, vT = 132, 160, 188, 196
    vLANE = 167
    VST = 254
    vDST, vSRC, vSH, vBK, vCON, vMO, vIA = 132, 139, 146, 160, 168, 8, 240
    vED, vSO, vPF2, vEO, vPF1, vOFA, vSY = 8, 60, 61, 62, 63, 64, 65
    Q0, Q1, Q2, Q3, Q4, Q5, Q6 = 28, 32, 36, 40, 44, 48, 52
    sMO, sEAO, sOUT, sX, sEAS, sOFF, sSYN = Q0, Q1, Q2, Q3, Q4, Q5, Q6
    sVM = 6
    sBK, sW = 26, 27
    sTOT, sR0, sCNT, sNB, sNBM, sI, sRC, sXSZ = 56, 57, 58, 59, 60, 61, 62, 63
    sM0, sM1 = 64, 66
    sSA0, sSA1, sSB0, sSB1 = 68, 69, 70, 71
    sRG = 72
    sLN, sKI, sSI = 76, 77, 78
    sT0, sPJ, sNP, sK0, sEB, sMG, sOF, sON = 79, 80, 81, 82, 83, 84, 85, 86
    sE0, sNE, sFIRST, sC, sD = 87, 88, 89, 90, 91
    sA, sB = 0, 1
    C('==== phase A: partition this workgroup\'s chunk of edges by (src phase, dst bucket)')
    I(f'v_lshlrev_b32 v{vT}, 2, v0')
    I(f'v_add_u32 v{vT+1}, {L_HIST}, v{vT}')
    I(f'v_mov_b32 v{vT+2}, 0')
    I(f'ds_write_b32 v{vT+1}, v{vT+2}')
    I(f'v_lshrrev_b32 v{vT+3}, 6, v0')
    I(f's_and_b32 s{sBK}, s2, 7')
    I(f's_lshl_b32 s{sBK}, s{sBK}, 5')
    I('s_lshr_b32 s3, s2, 3')
    I(f's_add_u32 s{sBK}, s{sBK}, s3')
    I(f'v_readfirstlane_b32 s{sW}, v{vT+3}')
    I(f's_mul_i32 s{sE0}, s{sBK}, {CH}')
    I(f's_sub_u32 s{sNE}, {E}, s{sE0}')
    I(f's_min_u32 s{sNE}, s{sNE}, {CH}')
    for i in range(1, 4): I(f'v_add_u32 v{vT+3+i}, {4096*i}, v{vT}')
    I(f'v_lshlrev_b32 v{vT+8}, 3, v0')
    I(f'v_lshlrev_b32 v{vEO}, 4, v0')
    I(f'v_and_b32 v{vLANE}, 63, v0')
    I(f's_lshl_b32 s{sC}, s{sE0}, 2'); I(f's_lshl_b32 s{sD}, s{sNE}, 2')
    I(f's_lshl_b32 s{sEB}, s{sW}, 10')
    I('s_waitcnt lgkmcnt(0)')
    srd(Q0, 8, off_s=sC, size_s=sD)
    for m in range(7):
        I(f'buffer_load_dword v{vDST+m}, v{vT+3+(m>>1) if m > 1 else vT}, {sr(Q0,4)}, 0 offen offset:{2048*(m&1)}{nt}')
    srd(Q1, 6, off_s=sC, size_s=sD)
    for m in range(7):
        I(f'buffer_load_dword v{vSRC+m}, v{vT+3+(m>>1) if m > 1 else vT}, {sr(Q1,4)}, 0 offen offset:{2048*(m&1)}{nt}')
    stamp_init(1, VST, vGT, 24); stamp(0, VST)
    srd(sSYN, 24, off_imm=WS_SYNC, size=8192)
    C('workgroup 0 clears the hand-off counters, then raises the flag in d_debug')
    I(f's_or_b32 s{sA}, s2, s{sW}')
    I('s_cbranch_scc1 L1_noinit')
    srd(Q2, 22, size=256)
    I(f'v_lshlrev_b32 v{vT+9}, 8, v0')
    I(f'buffer_store_dword v{vT+2}, v{vT+9}, {sr(sSYN,4)}, 0 offen sc1')
    I(f'v_mov_b32 v{vT+10}, 1')
    I('s_waitcnt vmcnt(0)')
    I(f'buffer_store_dword v{vT+10}, v{vT+9}, {sr(Q2,4)}, 0 offen sc1')
    L('L1_noinit')
    I('s_barrier')
    I(f's_lshl_b32 s{sC}, s{sE0}, 3'); I(f's_lshl_b32 s{sD}, s{sNE}, 3')
    srd(Q2, 10, off_s=sC, size_s=sD)
    for m in range(7):
        I(f'buffer_load_dwordx2 {vr(vSH+2*m,2)}, v{vT+8}, {sr(Q2,4)}, 0 offen{nt}')
        if m < 6: I(f'v_add_u32 v{vT+8}, 4096, v{vT+8}')
    srd(Q1, 18, size=8192)
    I(f'buffer_load_dwordx4 {vr(vCON,4)}, v{vEO}, {sr(Q1,4)}, 0 offen')
    srd(Q1, 16, size=2048)
    I(f'buffer_load_dwordx4 {vr(vCON+4,4)}, v{vEO}, {sr(Q1,4)}, 0 offen')
    srd(Q1, 14, size=128)
    I(f'buffer_load_dwordx4 {vr(vCON+8,4)}, v{vEO}, {sr(Q1,4)}, 0 offen')
    I(f's_lshl_b32 s{sC}, s{sE0}, 5'); I(f's_lshl_b32 s{sD}, s{sNE}, 5')
    srd(Q3, 12, off_s=sC, size_s=sD)
    nin = [0]
    def ea_in(k):
        for _ in range(k):
            j = nin[0]
            if j >= 13: return
            I(f's_add_u32 m0, s{sEB}, {8192*j}')
            if j: I(f'v_add_u32 v{vEO}, 8192, v{vEO}')
            else: I('s_nop 0')
            I(f'buffer_load_dwordx4 v{vEO}, {sr(Q3,4)}, 0 offen{nt} lds')
            nin[0] += 1
    ea_in(opt.a0)
    srd(sEAS, 24, off_s=sC, off_imm=WS_EA, size_s=sD)
    I(f's_mul_i32 s{sC}, s{sE0}, 12'); I(f's_mul_i32 s{sD}, s{sNE}, 12')
    srd(Q0, 24, off_s=sC, off_imm=WS_MO, size_s=sD)
    srd(sOFF, 24, off_imm=WS_OFF, size=524288)
    srd(Q2, 22, size=256)
    for m in range(7):
        I(f'v_add_u32 v{vT+10}, {512*m}, v0')
        I(f'v_cmp_gt_u32 {sr(sVM+2*m,2)}, s{sNE}, v{vT+10}')
    I(f'v_mov_b32 v{vT+9}, 1')
    I(f's_mov_b32 s{sC}, {SPLIT}')
    I(f's_mov_b32 s{sD}, {-32*NB if opt.rot else 0}')
    vBN = vT + 20
    I(f'v_mov_b32 v{vT+12}, {L_HIST}')
    I(f'v_mov_b32 v{vT+13}, {L_HIST+1024}')
    I(f's_waitcnt vmcnt({10+nin[0]})')
    for m in range(7):
        I(f'v_mul_u32_u24 v{vBK+m}, 42800, v{vDST+m}')
        I(f'v_lshrrev_b32 v{vT+10}, 27, v{vBK+m}')
        I(f'v_mad_i32_i24 v{vT+10}, v{vT+10}, s{sD}, v{vSRC+m}')
        I(f'v_add_u32 v{vT+11}, {N}, v{vT+10}')
        I(f'v_min_u32 v{vBN+m}, v{vT+10}, v{vT+11}')
        I(f'v_cmp_le_u32 {sr(sA,2)}, s{sC}, v{vBN+m}')
        I(f'v_lshrrev_b32 v{vBK+m}, 22, v{vBK+m}')
        I(f'v_mul_u32_u24 v{vT+10}, {NB}, v{vBK+m}')
        I(f'v_sub_u32 v{vDST+m}, v{vDST+m}, v{vT+10}')
        I(f'v_cndmask_b32 v{vT+11}, v{vT+12}, v{vT+13}, {sr(sA,2)}')
        I(f'v_lshl_add_u32 v{vBK+m}, v{vBK+m}, 2, v{vT+11}')
        I(f's_mov_b64 exec, {sr(sVM+2*m,2)}')
        I(f'ds_add_rtn_u32 v{vRK+m}, v{vBK+m}, v{vT+9}')
        I('s_mov_b64 exec, -1')
    ea_in(opt.a1)
    C('key = bin<<27 | static wave<<24 | src<<9 | dlocal<<2')
    for m in range(7):
        I(f'v_mul_u32_u24 v{vT+11}, 5350, v{vDST+m}')
        I(f'v_and_b32 v{vT+11}, 0x70000, v{vT+11}')
        I(f'v_lshrrev_b32 v{vBN+m}, 10, v{vBN+m}')
        I(f'v_lshl_or_b32 v{vT+11}, v{vBN+m}, 19, v{vT+11}')
        I(f'v_lshlrev_b32 v{vT+11}, 8, v{vT+11}')
        I(f'v_lshl_add_u32 v{vT+11}, v{vDST+m}, 2, v{vT+11}')
        I(f'v_lshl_add_u32 v{vSRC+m}, v{vSRC+m}, 9, v{vT+11}')
    I(f'v_lshlrev_b32 v{vT+16}, 4, v{vLANE}')
    I(f'v_add_u32 v{vT+16}, {L_HIST}, v{vT+16}')
    I('s_waitcnt lgkmcnt(0)')
    I('s_barrier')
    stamp(1, VST)
    C('every wave scans the histogram and writes the (identical) start table')
    cnt, st = vT + 28, vT + 20
    I(f'ds_read_b128 {vr(cnt,4)}, v{vT+16}')
    I(f'ds_read_b128 {vr(cnt+4,4)}, v{vT+16} offset:1024')
    I('s_waitcnt lgkmcnt(0)')
    for h in range(2):
        I(f'v_add_u32 v{st+4*h+1}, v{cnt+4*h}, v{cnt+4*h+1}')
        I(f'v_add_u32 v{st+4*h+2}, v{st+4*h+1}, v{cnt+4*h+2}')
        I(f'v_add_u32 v{vT+12+h}, v{st+4*h+2}, v{cnt+4*h+3}')
    I(f'v_lshl_add_u32 v{vT+17}, v{vT+13}, 16, v{vT+12}')
    I(f'v_mov_b32 v{vT+18}, v{vT+17}')
    wave_scan(vT + 18)
    I(f'v_sub_u32 v{vT+17}, v{vT+18}, v{vT+17}')
    I(f'v_readlane_b32 s{sA}, v{vT+18}, 63')
    I(f'v_and_b32 v{st}, 0xffff, v{vT+17}')
    I(f'v_lshrrev_b32 v{st+4}, 16, v{vT+17}')
    I(f's_and_b32 s{sA}, s{sA}, 0xffff')
    I(f'v_add_u32 v{st+4}, s{sA}, v{st+4}')
    for h in range(2):
        I(f'v_add_u32 v{st+4*h+3}, v{st+4*h}, v{st+4*h+2}')
        I(f'v_add_u32 v{st+4*h+2}, v{st+4*h}, v{st+4*h+1}')
        I(f'v_add_u32 v{st+4*h+1}, v{st+4*h}, v{cnt+4*h}')
        I(f'ds_write_b128 v{vT+16}, {vr(st+4*h,4)} offset:{2048+1024*h}')
    for m in range(7):
        I(f'ds_read_b32 v{vBK+m}, v{vBK+m} offset:2048')
    ea_in(opt.a2)
    I(f's_mov_b32 s{sC}, {L_MI}')
    I(f's_mov_b32 s{sD}, {L_INV}')
    I(f's_waitcnt vmcnt({3+nin[0]}) lgkmcnt(0)')
    for m in range(7):
        I(f'v_add_u32 v{vRK+m}, v{vRK+m}, v{vBK+m}')
        I(f'v_mad_u32_u24 v{vBK+m}, v{vRK+m}, 12, s{sC}')
        I(f'v_lshl_add_u32 v{vRK+m}, v{vRK+m}, 1, s{sD}')
        I(f'v_add_u32 v{vDST+m}, {512*m}, v0')
    for m in range(7):
        I(f's_mov_b64 exec, {sr(sVM+2*m,2)}')
        I(f'ds_write_b16 v{vRK+m}, v{vDST+m}')
        I(f'ds_write2_b32 v{vBK+m}, v{vSRC+m}, v{vSH+2*m} offset0:0 offset1:1')
        I(f'ds_write_b32 v{vBK+m}, v{vSH+2*m+1} offset:8')
    I('s_mov_b64 exec, -1')
    ea_in(opt.a3)
    I(f'v_lshlrev_b32 v{vSO}, 4, v0')
    I(f'v_add_u32 v{vT+10}, {L_MI}, v{vSO}')
    I(f'v_and_b32 v{vT+8}, 0x1fe, v0')
    I(f'v_add_u32 v{vT+8}, {L_INV}, v{vT+8}')
    I('s_waitcnt lgkmcnt(0)')
    I('s_barrier')
    stamp(2, VST)
    C('meta image and run table -> global')
    for j in range(5):
        I(f'ds_read_b128 {vr(vMO+4*j,4)}, v{vT+10} offset:{8192*j}')
    for j in range(5):
        I(f's_waitcnt lgkmcnt({4-j})')
        I(f'buffer_store_dwordx4 {vr(vMO+4*j,4)}, v{vSO}, {sr(Q0,4)}, 0 offen sc1')
        if j < 4: I(f'v_add_u32 v{vSO}, 8192, v{vSO}')
    for j in range(13):
        I(f'ds_read_u16 v{vIA+j}, v{vT+8} offset:{512*j}')
    I(f's_cmp_lg_u32 s{sW}, 7')
    I('s_cbranch_scc1 L1_nooff')
    C('OFF[bucket/4][chunk][phase][bucket%4] = start | len<<16')
    I(f's_lshl_b32 s{sA}, s{sBK}, {11 if opt.offl else 5}')
    I(f'v_lshlrev_b32 v{vT+17}, {4 if opt.offl else 13}, v{vLANE}')
    I(f'v_add_u32 v{vT+17}, s{sA}, v{vT+17}')
    for i in range(8):
        I(f'v_lshl_add_u32 v{cnt+i}, v{cnt+i}, 16, v{st+i}')
    for h in range(2):
        I(f'buffer_store_dwordx4 {vr(cnt+4*h,4)}, v{vT+17}, {sr(sOFF,4)}, 0 offen offset:{(1024 if opt.offl else 16)*h} sc1')
    L('L1_nooff')
    I(f'v_mov_b32 v{vT+2}, 0')
    I(f's_cmp_lg_u32 s{sW}, 0')
    I('s_cbranch_scc1 L1_noflag')
    I(f'buffer_load_dword v{vT+3}, v{vT+2}, {sr(Q2,4)}, 0 offen sc1')
    L('L1_noflag')
    n0 = nin[0]
    ea_in(opt.a4)
    n4 = nin[0] - n0
    I(f'v_and_b32 v{vT+9}, 1, v0')
    I(f'v_lshlrev_b32 v{vT+9}, 4, v{vT+9}')
    I('s_waitcnt lgkmcnt(0)')
    for j in range(13):
        I(f'v_lshl_add_u32 v{vIA+j}, v{vIA+j}, 5, v{vT+9}')
    I(f's_waitcnt vmcnt({n4})')
    I('s_barrier')
    stamp(3, VST)
    def arrive(tag, base):
        I(f's_and_b32 s{sA}, s2, 15')
        I(f's_lshl_b32 s{sA}, s{sA}, 8')
        I(f's_add_u32 s{sA}, s{sA}, {base}')
        I(f'v_mov_b32 v{vGT}, s{sA}')
        I(f'v_mov_b32 v{vAD}, 1')
        I('s_mov_b64 exec, 1')
        I(f'buffer_atomic_add v{vAD}, v{vGT}, {sr(sSYN,4)}, 0 offen sc1')
        I('s_mov_b64 exec, -1')
    def poll(tag, base):
        I(f'v_and_b32 v{vGT}, 15, v0')
        I(f'v_lshlrev_b32 v{vGT}, 8, v{vGT}')
        if base: I(f'v_add_u32 v{vGT}, {base}, v{vGT}')
        I(f's_mov_b32 s{sB}, 0')
        L(f'L_poll{tag}')
        I(f'buffer_load_dword v{vAD}, v{vGT}, {sr(sSYN,4)}, 0 offen sc1')
        I(f's_add_u32 s{sB}, s{sB}, 1')
        I('s_waitcnt vmcnt(0)')
        I(f'v_cmp_ne_u32 vcc, 16, v{vAD}')
        I('s_cmp_eq_u64 vcc, 0')
        I(f's_cbranch_scc1 L_polled{tag}')
        I(f's_sleep {opt.slp}')
        I(f's_cmp_lt_u32 s{sB}, {SPIN}')
        I(f's_cbranch_scc1 L_poll{tag}')
        L(f'L_polled{tag}')
    I(f's_cmp_lg_u32 s{sW}, 0')
    I('s_cbranch_scc1 L1_arrived')
    I(f's_mov_b32 s{sB}, 0')
    L('L1_flag')
    I(f'v_readfirstlane_b32 s{sA}, v{vT+3}')
    I(f's_cmp_eq_u32 s{sA}, 1')
    I('s_cbranch_scc1 L1_flagok')
    I(f'buffer_load_dword v{vT+3}, v{vT+2}, {sr(Q2,4)}, 0 offen sc1')
    I(f's_add_u32 s{sB}, s{sB}, 1')
    I('s_waitcnt vmcnt(0)')
    I(f's_cmp_lt_u32 s{sB}, {SPIN}')
    I('s_cbranch_scc1 L1_flag')
    L('L1_flagok')
    arrive('A', 0)
    L('L1_arrived')
    ea_in(13)
    def prefill():
        C('prefill KI with null entries, SLOT with the dummy slot, zero CNT')
        for i in range(4): I(f'v_mov_b32 v{vT+4+i}, 0x{NULLKI:x}')
        I(f'v_lshlrev_b32 v{vT}, 4, v0')
        I(f'v_add_u32 v{vT}, {L_KI}, v{vT}')
        I(f'ds_write_b128 v{vT}, {vr(vT+4,4)}')
        I(f'v_cmp_gt_u32 vcc, {(CAPX*4-8192)//16}, v0')
        I('s_and_b64 exec, exec, vcc')
        I(f'ds_write_b128 v{vT}, {vr(vT+4,4)} offset:8192')
        I('s_mov_b64 exec, -1')
        I(f'v_mov_b32 v{vT+8}, 0x{DUMMY*0x01010101:x}')
        I(f'v_cmp_gt_u32 vcc, {3648//16}, v0')
        I(f'v_add_u32 v{vT}, {L_SLOT-L_KI}, v{vT}')
        I('s_nop 0')
        I(f'v_cndmask_b32 v{vT+8}, 0, v{vT+8}, vcc')
        for i in range(1, 4): I(f'v_mov_b32 v{vT+8+i}, v{vT+8}')
        I(f'v_cmp_gt_u32 vcc, {3648//16+96}, v0')
        I('s_and_b64 exec, exec, vcc')
        I(f'ds_write_b128 v{vT}, {vr(vT+8,4)}')
        I('s_mov_b64 exec, -1')
    prefill()
    C('stage the constants')
    I(f'v_lshrrev_b32 v{vT+12}, 3, v0')
    I(f'v_mul_u32_u24 v{vT+12}, {TP}, v{vT+12}')
    I(f'v_and_b32 v{vT+3}, 7, v0')
    I(f'v_lshl_add_u32 v{vT+12}, v{vT+3}, 4, v{vT+12}')
    I(f'v_add_u32 v{vT+12}, {L_WO}, v{vT+12}')
    I(f'ds_write_b128 v{vT+12}, {vr(vCON,4)}')
    I('v_cmp_gt_u32 vcc, 0x80, v0')
    I('s_and_b64 exec, exec, vcc')
    I(f'ds_write_b128 v{vT+12}, {vr(vCON+4,4)} offset:{L_WR-L_WO}')
    I('v_cmp_gt_u32 vcc, 8, v0')
    I('s_and_b64 exec, exec, vcc')
    I(f'ds_write_b128 v{vT+12}, {vr(vCON+8,4)} offset:{L_CG-L_WO}')
    I('s_mov_b64 exec, -1')
    srd(sMO, 24, off_imm=WS_MO, size=E * 12)
    srd(sEAO, 24, off_imm=WS_EA, size=E * 32)
    srd(sOUT, 20, size=N * 512)
    srd(sX, 4, size=N * 512)
    I(f's_mov_b32 s{sXSZ}, 0x{N*512:x}')
    I(f's_mov_b32 s{sRC}, {RCAP}')
    I(f's_mov_b32 s{sR0}, 0')
    I(f's_mov_b32 s{sFIRST}, 1')
    C('run table address, x prefetch offsets')
    I(f'v_and_b32 v{vT+1}, 0xff, v0')
    I(f's_lshr_b32 s{sA}, s{sBK}, 2')
    I(f's_lshl_b32 s{sA}, s{sA}, 11')
    I(f's_and_b32 s{sB}, s{sBK}, 3')
    I(f's_add_u32 s{sA}, s{sA}, s{sB}')
    I(f's_lshl_b32 s{sA}, s{sA}, 2')
    I(f'v_mul_u32_u24 v{vG0}, {CH}, v{vT+1}')
    if opt.offl: I(f's_lshl_b32 s{sA}, s{sBK}, 2')
    I(f'v_lshl_add_u32 v{vOFA}, v{vT+1}, {11 if opt.offl else 5}, s{sA}')
    I(f'v_lshrrev_b32 v{vT+3}, 8, v0')
    I(f'v_lshl_add_u32 v{vOFA}, v{vT+3}, {10 if opt.offl else 4}, v{vOFA}')
    LA = opt.la; LB = opt.lb
    I(f'v_mov_b32 v{vT+14}, 0x80000000')
    if opt.rot:
        I(f's_lshr_b32 s{sC}, s{sBK}, 5')
        I(f's_mul_i32 s{sC}, s{sC}, {32*NB*512}')
        I(f's_and_b32 s{sD}, s{sBK}, 31')
        NG = 32
    else:
        I(f's_mov_b32 s{sC}, 0')
        I(f's_mov_b32 s{sD}, s{sBK}')
        NG = 256
    I(f's_mul_i32 s{sA}, s{sD}, {LB*128}')
    I(f's_add_u32 s{sA}, s{sA}, {NG*LA*128}')
    I(f's_add_u32 s{sA}, s{sA}, s{sC}')
    I(f'v_sub_u32 v{vT+15}, 511, v0')
    I(f'v_cmp_gt_u32 vcc, {LB}, v{vT+15}')
    I(f'v_lshlrev_b32 v{vT+13}, 7, v{vT+15}')
    I(f'v_add_u32 v{vPF2}, s{sA}, v{vT+13}')
    I(f'v_cndmask_b32 v{vPF2}, v{vT+14}, v{vPF2}, vcc')
    I(f'v_cmp_gt_u32 vcc, {LA}, v{vT+15}')
    I(f's_mul_i32 s{sA}, s{sD}, {LA*128}')
    I(f's_add_u32 s{sA}, s{sA}, s{sC}')
    I(f'v_add_u32 v{vPF1}, s{sA}, v{vT+13}')
    I(f'v_cndmask_b32 v{vPF1}, v{vT+14}, v{vPF1}, vcc')
    nst = [0]
    def ea_out(k, tag, lg=False):
        if k == 0: return
        if nst[0] >= 13: return
        I(f's_cmp_lg_u32 s{sFIRST}, 1')
        I(f's_cbranch_scc1 L2_noout{tag}')
        I(f'v_lshlrev_b32 v{vSO}, 4, v0')
        first = True
        for _ in range(k):
            j = nst[0]
            if j >= 13: break
            if j: I(f'v_add_u32 v{vSO}, {8192*j if first else 8192}, v{vSO}')
            first = False
            if lg: I(f's_waitcnt lgkmcnt({12-j})')
            if opt.pace and j >= opt.pace: I(f's_waitcnt vmcnt({opt.pace-1})')
            I(f'buffer_store_dwordx4 {vr(vED+4*j,4)}, v{vSO}, {sr(sEAS,4)}, 0 offen sc1')
            nst[0] += 1
        L(f'L2_noout{tag}')
    def xpf(at):
        for reg, pos in ((vPF1, opt.x1), (vPF2, opt.x2)):
            if opt.xpf and pos == at:
                C('pull a share of x towards the chip (one dword per line)')
                I(f's_cmp_eq_u32 s{sFIRST}, 0')
                I(f's_cbranch_scc1 L2_nopf{reg}')
                I(f'buffer_load_dword v{vNUL}, v{reg}, {sr(sX,4)}, 0 offen')
                L(f'L2_nopf{reg}')
    nea = [0]
    def early_static(k=None):
        for _ in range(opt.u if k is None else k):
            j = nea[0]; nea[0] += 1
            I(f's_add_u32 m0, s{sEB}, {8192*j}')
            I('s_nop 0')
            I(f'buffer_load_dwordx4 v{vGA+j}, {sr(sEAO,4)}, 0 offen sc1 lds')
    def bar_b(at):
        if opt.pob == at:
            assert opt.arb < at
            I(f's_cmp_eq_u32 s{sFIRST}, 0')
            I('s_cbranch_scc1 L_polledB')
            I(f's_cmp_lg_u32 s{sW}, 0')
            I('s_cbranch_scc1 L_polledB')
            poll('B', 4096)
        if opt.arb == at:
            assert nst[0] >= 13
            I(f's_waitcnt vmcnt({7 if at == 6 else 0}) lgkmcnt(0)')
        else:
            I('s_waitcnt lgkmcnt(0)')
        I('s_barrier')
        if at != 6: stamp(at, VST)
        if opt.pob == at and not (opt.dl and at == 9): early_static()
        if opt.arb == at:
            I(f's_cmp_lg_u32 s{sFIRST}, 1')
            I('s_cbranch_scc1 L2_arrivedB')
            I(f's_mov_b32 s{sFIRST}, 2')
            I(f's_cmp_lg_u32 s{sW}, 0')
            I('s_cbranch_scc1 L2_arrivedB')
            arrive('B', 4096)
            L('L2_arrivedB')
    xpf(99)
    I('s_waitcnt lgkmcnt(0)')
    I('s_barrier')
    C('constant operands and one-time setup')
    I(f'v_bfe_u32 v{vT}, v0, 5, 1')
    I(f'v_mul_u32_u24 v{vKG11}, 0x10001, v{vT}')
    I(f'v_bfe_u32 v{vT+1}, v0, 2, 2')
    I(f'v_lshl_add_u32 v{vT}, v{vT}, 3, v{vT+1}')
    I(f'v_mul_u32_u24 v{vT}, {TP}, v{vT}')
    I(f'v_add_u32 v{vT}, {L_WO}, v{vT}')
    I(f'v_bfe_u32 v{vT+2}, v0, 4, 1')
    I(f'v_and_b32 v{vT+3}, 3, v0')
    I(f'v_lshl_add_u32 v{vT+4}, v{vT+2}, 5, v{vT}')
    I(f'v_lshl_add_u32 v{vT+4}, v{vT+3}, 3, v{vT+4}')
    I(f'v_lshl_add_u32 v{vT+5}, v{vT+2}, 4, v{vT}')
    I(f'v_and_b32 v{vT+3}, 1, v0')
    I(f'v_lshl_add_u32 v{vT+5}, v{vT+3}, 6, v{vT+5}')
    I(f'v_bfe_u32 v{vT+3}, v0, 1, 1')
    I(f'v_lshl_add_u32 v{vT+5}, v{vT+3}, 3, v{vT+5}')
    I(f'v_lshlrev_b32 v{vT+1}, 3, v{vT+1}')
    I(f'v_add_u32 v{vT+1}, {L_CG}, v{vT+1}')
    for h in range(2):
        for i in range(2):
            I(f'ds_read_b64_tr_b16 {vr(vBE+4*h+2*i,2)}, v{vT+4} offset:{L_WR-L_WO+4*i*TP+64*h}')
    for u in range(4):
        I(f'ds_read_b64_tr_b16 {vr(vCG+2*u,2)}, v{vT+1} offset:{32*u}')
    for tile in range(2):
        I('s_waitcnt lgkmcnt(4)')
        for s in range(4):
            for i in range(2):
                I(f'ds_read_b64_tr_b16 {vr(vWA+16*tile+4*s+2*i,2)}, v{vT+5} offset:{(16*s+4*i)*TP+32*tile}')
    I(f's_mov_b32 s{sM0}, 0x0f0f0f0f'); I(f's_mov_b32 s{sM0+1}, 0x0f0f0f0f')
    I(f's_mov_b32 s{sM1}, 0xf0f0f0f0'); I(f's_mov_b32 s{sM1+1}, 0xf0f0f0f0')
    for r in range(8): I(f'v_mov_b32 v{vA1+r}, 0')
    I(f'v_and_b32 v{vLS}, 31, v0')
    I(f'v_lshlrev_b32 v{vLS}, 4, v{vLS}')
    C('swizzled lane offset inside a row, transposing-read address')
    I(f'v_bfe_u32 v{vT}, v0, 4, 1')
    I(f'v_lshlrev_b32 v{vT}, 6, v{vT}')
    I(f'v_xor_b32 v{vLS}, v{vT}, v{vLS}')
    I(f'v_bfe_u32 v{vT}, v0, 4, 2')
    I(f'v_and_b32 v{vT+3}, 3, v0')
    I(f'v_lshlrev_b32 v{vT+3}, 3, v{vT+3}')
    I(f'v_lshl_add_u32 v{vT}, v{vT}, 5, v{vT+3}')
    I(f'v_bfe_u32 v{vT+3}, v0, 3, 1')
    I(f'v_lshlrev_b32 v{vT+3}, 6, v{vT+3}')
    I(f'v_xor_b32 v{vT}, v{vT}, v{vT+3}')
    I(f'v_bfe_u32 v{vT+3}, v0, 2, 2')
    I(f'v_lshl_add_u32 v{vT}, v{vT+3}, 7, v{vT}')
    I(f's_mul_i32 s3, s{sW}, 6144')
    I(f's_add_u32 s3, s3, {L_RING}')
    for d in range(3):
        I(f's_add_u32 s{sRG+d}, s3, {2048*d}')
        I(f'v_add_u32 v{vRD+d}, s{sRG+d}, v{vT}')
    stamp(4, VST)
    I(f's_cmp_lg_u32 s{sW}, 0')
    I('s_cbranch_scc1 L_polledA')
    poll('A', 0)
    I(f's_waitcnt vmcnt({(opt.xpf and opt.x1 == 99)+(opt.xpf and opt.x2 == 99)}) lgkmcnt(0)')
    I('s_barrier')
    stamp(5, VST)
    C('==== phase B: every chunk has published its keys; this chunk\'s features are in LDS')
    F = vT + 16
    I(f'buffer_load_dword v{F}, v{vOFA}, {sr(sOFF,4)}, 0 offen sc1')
    for j in range(13):
        I(f'ds_read_b128 {vr(vED+4*j,4)}, v{vIA+j}')
    xpf(0)
    ea_out(opt.s0b, '0b', lg=True)
    I(f's_waitcnt vmcnt({nst[0]+(opt.xpf and opt.x1 == 0)+(opt.xpf and opt.x2 == 0)})')
    C('run lengths -> prefix')
    I(f'v_lshrrev_b32 v{vLEN}, 16, v{F}')
    I(f'v_and_b32 v{F}, 0xffff, v{F}')
    I(f'v_mov_b32 v{vT}, v{vLEN}')
    I(f'v_add_u32 v{vG0}, v{vG0}, v{F}')
    wave_scan(vT)
    I(f's_lshl_b32 s{sA}, s{sW}, 2')
    I(f's_add_u32 s{sA}, s{sA}, {L_WT}')
    I(f'v_mov_b32 v{vT+1}, s{sA}')
    I(f'v_sub_u32 v{vPRE}, v{vT}, v{vLEN}')
    I('s_mov_b32 exec_lo, 0')
    I('s_brev_b32 exec_hi, 1')
    I(f'ds_write_b32 v{vT+1}, v{vT}')
    I('s_mov_b64 exec, -1')
    I(f'v_and_b32 v{vT+1}, 7, v0')
    I(f'v_lshlrev_b32 v{vT+1}, 2, v{vT+1}')
    I(f'v_add_u32 v{vT+1}, {L_WT}, v{vT+1}')
    I('s_waitcnt lgkmcnt(0)')
    I('s_barrier')
    I(f'ds_read_b32 v{vT+2}, v{vT+1}')
    I('s_waitcnt lgkmcnt(0)')
    I(f'v_mov_b32 v{vT+3}, v{vT+2}')
    for sh in (1, 2, 4):
        I('s_nop 1')
        I(f'v_add_u32_dpp v{vT+3}, v{vT+3}, v{vT+3} row_shr:{sh} row_mask:0xf bank_mask:0xf')
    I(f'v_sub_u32 v{vT+2}, v{vT+3}, v{vT+2}')
    I(f'v_readlane_b32 s{sTOT}, v{vT+3}, 7')
    I(f'v_readlane_b32 s{sA}, v{vT+2}, s{sW}')
    I(f'v_readlane_b32 s{sT0}, v{vT+3}, 3')
    I('s_nop 0')
    I(f'v_add_u32 v{vPRE}, s{sA}, v{vPRE}')
    ea_out(opt.sx, 'x')
    L('L2_round')
    I(f's_sub_u32 s{sCNT}, s{sTOT}, s{sR0}')
    I(f's_min_u32 s{sCNT}, s{sCNT}, s{sRC}')
    I(f'v_and_b32 v{vLANE}, 63, v0')
    C('expand: GIDX[pre+k-r0] = g0+k for k in window')
    I(f'v_sub_u32 v{vT+1}, s{sR0}, v{vPRE}')
    I(f'v_max_i32 v{vT+2}, 0, v{vT+1}')
    I(f'v_add_u32 v{vT+3}, s{sRC}, v{vT+1}')
    I(f'v_min_i32 v{vT+3}, v{vT+3}, v{vLEN}')
    I(f'v_sub_u32 v{vT+4}, v{vT+2}, v{vT+1}')
    I(f'v_lshlrev_b32 v{vT+4}, 2, v{vT+4}')
    I(f'v_add_u32 v{vT+4}, {L_GI}, v{vT+4}')
    I(f'v_add_u32 v{vT+5}, v{vG0}, v{vT+2}')
    I(f'v_add_u32 v{vT+3}, v{vG0}, v{vT+3}')
    L('L2_exp')
    for j in range(4):
        I(f'v_cmpx_lt_i32 vcc, v{vT+5}, v{vT+3}')
        I(f'ds_write_b32 v{vT+4}, v{vT+5} offset:{4*j}')
        I(f'v_add_u32 v{vT+5}, 1, v{vT+5}')
    I(f'v_add_u32 v{vT+4}, 16, v{vT+4}')
    I('s_cbranch_execnz L2_exp')
    I('s_mov_b64 exec, -1')
    ea_out(opt.sy, 'y')
    C('slots past the end of the window get an out-of-range record number')
    I(f'v_lshlrev_b32 v{vT}, 2, v0')
    I(f'v_add_u32 v{vT}, {L_GI}, v{vT}')
    I(f'v_mov_b32 v{vT+2}, 0x1000000')
    for m in range(7):
        I(f'v_add_u32 v{vT+1}, {512*m}, v0')
        I(f'v_cmp_gt_u32 {sr(sVM+2*m,2)}, s{sCNT}, v{vT+1}')
    for m in range(7):
        I(f's_not_b64 exec, {sr(sVM+2*m,2)}')
        I(f's_cbranch_scc0 L2_nomark{m}')
        I(f'ds_write_b32 v{vT}, v{vT+2} offset:{2048*m}')
        L(f'L2_nomark{m}')
    I('s_mov_b64 exec, -1')
    I(f'v_lshrrev_b32 v{vT+3}, 1, v0')
    I(f'v_lshlrev_b32 v{vT+3}, 2, v{vT+3}')
    I(f'v_add_u32 v{vT+3}, {L_GI}, v{vT+3}')
    I(f'v_and_b32 v{vT+4}, 1, v0')
    I(f'v_lshlrev_b32 v{vT+4}, 4, v{vT+4}')
    I('s_waitcnt lgkmcnt(0)')
    I('s_barrier')
    stamp(6, VST)
    C('record loads')
    G = vT + 6
    for m in range(7):
        I(f'ds_read_b32 v{G+m}, v{vT} offset:{2048*m}')
    for j in range(0, 14, 2):
        I(f'ds_read2st64_b32 {vr(vGA+j,2)}, v{vT+3} offset0:{4*j} offset1:{4*j+4}')
    ea_out(opt.sz, 'z')
    for m in range(7):
        I(f's_waitcnt lgkmcnt({13-m})')
        I(f'v_lshlrev_b32 v{vT+1}, 2, v{G+m}')
        I(f'v_lshl_add_u32 v{vT+1}, v{G+m}, 3, v{vT+1}')
        I(f'buffer_load_dwordx3 {vr(vME+4*m,3)}, v{vT+1}, {sr(sMO,4)}, 0 offen sc1')
    I('s_waitcnt lgkmcnt(0)')
    for j in range(14):
        I(f'v_lshl_add_u32 v{vGA+j}, v{vGA+j}, 5, v{vT+4}')
    n0 = nst[0]
    if opt.s0c:
        I(f's_cmp_eq_u32 s{sFIRST}, 1')
        I('s_cbranch_scc1 L2_more')
        I('s_waitcnt vmcnt(0)')
        L('L2_more')
        ea_out(opt.s0c, '0c')
    nc = nst[0] - n0
    I(f'v_mov_b32 v{vGT}, 0x80000000')
    if opt.arb == 6: bar_b(6)
    for reg, pos in ((vPF1, opt.x1), (vPF2, opt.x2)):
        if opt.xpf and pos == 6:
            C('pull a share of x towards the chip (one dword per line; later rounds: a harmless range-checked read)')
            I(f'buffer_load_dword v{vNUL}, v{reg}, {sr(sX,4)}, 0 offen')
            nc += 1
    C('even split of the window: wave(q) = q*M >> 20 with M = 2^23/(count+1), q = position in node order')
    I(f's_add_u32 s{sA}, s{sCNT}, 1')
    I(f'v_cvt_f32_u32 v{vT}, s{sA}')
    I(f'v_rcp_f32 v{vT}, v{vT}')
    I(f'v_mov_b32 v{vT+2}, 1')
    I(f'v_mul_f32 v{vT}, 0x4b000000, v{vT}')
    I(f'v_cvt_u32_f32 v{vT}, v{vT}')
    I(f'v_lshlrev_b32 v{vT+1}, 3, v{vLANE}')
    I(f'v_readfirstlane_b32 s{sMG}, v{vT}')
    I(f'v_add_u32 v{vT+1}, {L_NC}, v{vT+1}')
    C('rank inside the destination node')
    for m in range(7):
        I(f's_waitcnt vmcnt({6-m+nc})')
        I(f'v_and_b32 v{vCL+m}, 0x1fc, v{vME+4*m}')
        I(f'v_add_u32 v{vCL+m}, {L_NC}, v{vCL+m}')
        I(f's_mov_b64 exec, {sr(sVM+2*m,2)}')
        I(f'ds_add_rtn_u32 v{vRK+m}, v{vCL+m}, v{vT+2}')
        I('s_mov_b64 exec, -1')
    ea_out(opt.s1, 1)
    bar_b(7)
    xpf(7)
    C('node scan (every wave)')
    c0, s0, sn, sf = vT + 4, vT + 6, vT + 8, vT + 10
    I(f'ds_read_b64 {vr(c0,2)}, v{vT+1}')
    I('s_waitcnt lgkmcnt(0)')
    I(f'v_add_u32 v{vT+3}, v{c0}, v{c0+1}')
    I(f'v_mov_b32 v{sn}, v{vT+3}')
    wave_scan(sn)
    I(f'v_sub_u32 v{s0}, v{sn}, v{vT+3}')
    I(f'v_add_u32 v{s0+1}, v{s0}, v{c0}')
    I(f'ds_write_b64 v{vT+1}, {vr(s0,2)} offset:{L_NS-L_NC}')
    for m in range(7):
        I(f'ds_read_b32 v{vCL+m}, v{vCL+m} offset:{L_NS-L_NC}')
    I(f'v_add_u32 v{vT+1}, {L_NS-L_NC}, v{vT+1}')
    I(f'ds_read2_b32 {vr(sf,2)}, v{vT+1} offset0:15 offset1:16')
    def wv(r):
        I(f'v_mul_u32_u24 v{r}, s{sMG}, v{r}')
        I(f'v_lshrrev_b32 v{r}, 20, v{r}')
    for r in (s0, s0 + 1, sn): wv(r)
    C('owned node range of this wave')
    I(f's_mov_b32 exec_hi, 0x1ffff')
    I(f'v_cmp_gt_u32 vcc, s{sW}, v{s0}')
    I(f's_bcnt1_i32_b64 s{sOF}, vcc')
    I(f'v_cmp_gt_u32 vcc, s{sW}, v{s0+1}')
    I(f's_bcnt1_i32_b64 s{sA}, vcc')
    I(f's_add_u32 s{sOF}, s{sOF}, s{sA}')
    I(f'v_cmp_ge_u32 vcc, s{sW}, v{s0}')
    I(f's_bcnt1_i32_b64 s{sON}, vcc')
    I(f'v_cmp_ge_u32 vcc, s{sW}, v{s0+1}')
    I(f's_bcnt1_i32_b64 s{sA}, vcc')
    I(f's_add_u32 s{sON}, s{sON}, s{sA}')
    C('the even split needs: one round, every wave owns 1..15 nodes')
    I(f'v_sub_u32 v{vT+3}, v{s0+1}, v{s0}')
    I(f'v_sub_u32 v{sn}, v{sn}, v{s0+1}')
    I(f'v_max_u32 v{vT+3}, v{vT+3}, v{sn}')
    I(f'v_cmp_lt_u32 {sr(sA,2)}, 1, v{vT+3}')
    I('s_mov_b64 exec, -1')
    I(f'v_readlane_b32 s{sNB}, v{s0+1}, 48')
    I('s_waitcnt lgkmcnt(0)')
    for r in (sf, sf + 1): wv(r)
    I(f's_mov_b32 exec_hi, 0x3ff')
    I(f'v_cmp_ge_u32 vcc, v{s0}, v{sf}')
    I(f's_or_b64 {sr(sA,2)}, {sr(sA,2)}, vcc')
    I(f's_mov_b32 exec_hi, 0x1ff')
    I(f'v_cmp_ge_u32 vcc, v{s0+1}, v{sf+1}')
    I(f's_or_b64 {sr(sA,2)}, {sr(sA,2)}, vcc')
    I('s_mov_b64 exec, -1')
    I('s_cbranch_scc1 L2_static')
    I(f's_cmp_lg_u32 s{sNB}, 7')
    I('s_cbranch_scc1 L2_static')
    I(f's_cmp_lg_u32 s{sCNT}, s{sTOT}')
    I('s_cbranch_scc1 L2_static')
    if not opt.dyn: I('s_branch L2_static')
    for m in range(7):
        I(f'v_add_u32 v{vRK+m}, v{vRK+m}, v{vCL+m}')
        I(f'v_mul_u32_u24 v{vRK+m}, s{sMG}, v{vRK+m}')
        I(f'v_lshrrev_b32 v{vRK+m}, 20, v{vRK+m}')
        I(f'v_lshrrev_b32 v{vCL+m}, 27, v{vME+4*m}')
        I(f'v_lshl_add_u32 v{vCL+m}, v{vRK+m}, 5, v{vCL+m}')
    I('s_branch L2_cells')
    L('L2_static')
    I(f's_mul_i32 s{sOF}, s{sW}, {NB}')
    I(f's_add_u32 s{sON}, s{sOF}, {NB+7}')
    I(f's_add_u32 s{sOF}, s{sOF}, 7')
    I(f's_lshr_b32 s{sOF}, s{sOF}, 3')
    I(f's_lshr_b32 s{sON}, s{sON}, 3')
    for m in range(7):
        I(f'v_bfe_u32 v{vRK+m}, v{vME+4*m}, 24, 3')
        I(f'v_lshrrev_b32 v{vCL+m}, 27, v{vME+4*m}')
        I(f'v_lshl_add_u32 v{vCL+m}, v{vRK+m}, 5, v{vCL+m}')
    L('L2_cells')
    for m in range(7):
        I(f'v_lshlrev_b32 v{vCL+m}, 2, v{vCL+m}')
        I(f'v_add_u32 v{vCL+m}, {L_CNT}, v{vCL+m}')
        I(f's_mov_b64 exec, {sr(sVM+2*m,2)}')
        I(f'ds_add_rtn_u32 v{vRK+m}, v{vCL+m}, v{vT+2}')
        I('s_mov_b64 exec, -1')
    ea_out(opt.s2, 2)
    I(f'v_lshlrev_b32 v{vT}, 4, v{vLANE}')
    I(f'v_add_u32 v{vT}, {L_CNT}, v{vT}')
    bar_b(8)
    xpf(8)
    C('cell scan (every wave), lists padded to 16')
    cnt, st = vT + 14, vT + 18
    I(f'ds_read_b128 {vr(cnt,4)}, v{vT}')
    I(f'v_and_b32 v{vT+4}, 7, v0')
    I(f'v_cmp_eq_u32 {sr(sA,2)}, 7, v{vT+4}')
    I('s_waitcnt lgkmcnt(0)')
    I(f'v_add_u32 v{st+1}, v{cnt}, v{cnt+1}')
    I(f'v_add_u32 v{st+2}, v{st+1}, v{cnt+2}')
    I(f'v_add_u32 v{vT+1}, v{st+2}, v{cnt+3}')
    I('s_nop 1')
    I(f'v_add_u32_dpp v{vT+2}, v{vT+1}, v{vT+1} quad_perm:[1,0,3,2] row_mask:0xf bank_mask:0xf')
    I('s_nop 1')
    I(f'v_add_u32_dpp v{vT+2}, v{vT+2}, v{vT+2} quad_perm:[2,3,0,1] row_mask:0xf bank_mask:0xf')
    I('s_nop 1')
    I(f'v_add_u32_dpp v{vT+2}, v{vT+2}, v{vT+2} row_half_mirror row_mask:0xf bank_mask:0xf')
    I(f'v_add_u32 v{vT+3}, 15, v{vT+2}')
    I(f'v_and_b32 v{vT+3}, -16, v{vT+3}')
    I(f'v_sub_u32 v{vT+2}, v{vT+3}, v{vT+2}')
    I(f'v_cndmask_b32 v{vT+2}, 0, v{vT+2}, {sr(sA,2)}')
    I(f'v_add_u32 v{vT+1}, v{vT+1}, v{vT+2}')
    I(f'v_mov_b32 v{vT+2}, v{vT+1}')
    wave_scan(vT + 2)
    I(f'v_sub_u32 v{st}, v{vT+2}, v{vT+1}')
    I(f'v_add_u32 v{st+3}, v{st}, v{st+2}')
    I(f'v_add_u32 v{st+2}, v{st}, v{st+1}')
    I(f'v_add_u32 v{st+1}, v{st}, v{cnt}')
    I(f'ds_write_b128 v{vT}, {vr(st,4)} offset:{L_ST-L_CNT}')
    for m in range(7):
        I(f'ds_read_b32 v{vCL+m}, v{vCL+m} offset:{L_ST-L_CNT}')
    C('early-phase length of every list: start of bin SPLIT minus list start (in lane 8*wave)')
    sl_lane, sl_reg = opt.split >> 2, opt.split & 3
    if sl_lane: I(f'v_sub_u32_dpp v{vT+5}, v{st+sl_reg}, v{st} row_shl:{sl_lane} row_mask:0xf bank_mask:0xf')
    else: I(f'v_sub_u32 v{vT+5}, v{st+sl_reg}, v{st}')
    I(f's_lshl_b32 s{sA}, s{sW}, 3')
    I(f'v_readlane_b32 s{sNB}, v{vT+3}, s{sA}')
    I(f'v_readlane_b32 s{sI}, v{st}, s{sA}')
    I(f'v_readlane_b32 s{sNBM}, v{vT+3}, 0')
    I(f'v_readlane_b32 s{sK0}, v{vT+5}, 0')
    for g in range(1, 8):
        I(f'v_readlane_b32 s{sA}, v{vT+3}, {8*g}')
        I(f'v_readlane_b32 s{sB}, v{vT+5}, {8*g}')
        I(f's_max_u32 s{sNBM}, s{sNBM}, s{sA}')
        I(f's_min_u32 s{sK0}, s{sK0}, s{sB}')
    I(f's_lshr_b32 s{sNB}, s{sNB}, 4')
    I(f's_lshr_b32 s{sNBM}, s{sNBM}, 4')
    C('a list longer than the register copies hold: redo this round with a small window')
    I(f's_cmp_le_u32 s{sNBM}, 32')
    I('s_cbranch_scc1 L2_fits')
    I(f's_mov_b32 s{sRC}, {RSMALL}')
    I('s_waitcnt vmcnt(0) lgkmcnt(0)')
    I('s_branch L2_again')
    L('L2_fits')
    early_static(opt.u2)
    I(f'v_lshlrev_b32 v{vT+4}, 17, v0')
    I('s_waitcnt lgkmcnt(0)')
    for m in range(7):
        I(f'v_add_u32 v{vRK+m}, v{vRK+m}, v{vCL+m}')
        I(f'v_lshlrev_b32 v{vT}, 2, v{vRK+m}')
        I(f'v_add_u32 v{vT}, {L_KI}, v{vT}')
        I(f'v_lshlrev_b32 v{vT+1}, 3, v{vRK+m}')
        I(f'v_add_u32 v{vT+1}, {L_SH}, v{vT+1}')
        I(f'v_add_u32 v{vT+2}, {L_SLOT}, v{vRK+m}')
        I(f'v_bfe_u32 v{vT+3}, v{vME+4*m}, 9, 15')
        I(f'v_or_b32 v{vT+3}, v{vT+3}, v{vT+4}')
        I(f'v_and_b32 v{vME+4*m}, 0x3c, v{vME+4*m}')
        I(f's_mov_b64 exec, {sr(sVM+2*m,2)}')
        I(f'ds_write_b32 v{vT}, v{vT+3}')
        I(f'ds_write_b8 v{vT+2}, v{vME+4*m}')
        I(f'ds_write2_b32 v{vT+1}, v{vME+4*m+1}, v{vME+4*m+2} offset0:0 offset1:1')
        I('s_mov_b64 exec, -1')
        if m < 6: I(f'v_add_u32 v{vT+4}, {512<<17}, v{vT+4}')
    ea_out(13, 3)
    early_static(opt.u3)
    U = opt.u + opt.u2 + opt.u3
    assert opt.pob <= 8 or opt.u2 + opt.u3 == 0
    assert 4 <= U <= 13
    C('which feature passes must land before the main loop')
    I(f's_sub_i32 s{sA}, s{sT0}, s{sR0}')
    I(f's_max_i32 s{sA}, s{sA}, 0')
    I(f's_add_u32 s{sA}, s{sA}, 255')
    I(f's_lshr_b32 s{sA}, s{sA}, 8')
    I(f's_max_u32 s{sA}, s{sA}, {U}')
    I(f's_add_u32 s{sB}, s{sCNT}, 255')
    I(f's_lshr_b32 s{sB}, s{sB}, 8')
    I(f's_lshr_b32 s{sK0}, s{sK0}, 4')
    I(f's_sub_i32 s{sK0}, s{sK0}, 1')
    I(f's_sub_i32 s{sB}, s{sB}, s{sA}')
    I(f's_mul_i32 s{sC}, s{sK0}, {opt.lpb}')
    I(f's_cmp_le_i32 s{sB}, s{sC}')
    I(f's_cselect_b32 s{sPJ}, s{sA}, 14')
    I(f's_cselect_b32 s{sK0}, s{sK0}, -1')
    I(f's_cmp_gt_i32 s{sB}, 0')
    I(f's_cselect_b32 s{sK0}, s{sK0}, -1')
    if not opt.late:
        I(f's_mov_b32 s{sPJ}, 14'); I(f's_mov_b32 s{sK0}, -1')
    I(f's_lshl_b32 s{sA}, s{sW}, 5')
    I(f's_sub_i32 s{sNP}, s{sCNT}, s{sA}')
    I(f's_add_i32 s{sNP}, s{sNP}, 255')
    I(f's_lshr_b32 s{sNP}, s{sNP}, 8')
    C('read-back addresses')
    I(f'v_bfe_u32 v{vT}, v0, 3, 1')
    I(f'v_bfe_u32 v{vT+1}, v0, 5, 1')
    I(f'v_lshl_add_u32 v{vT}, v{vT}, 1, v{vT+1}')
    I(f'v_and_b32 v{vT+2}, 7, v0')
    I(f'v_lshl_add_u32 v{vT}, v{vT}, 3, v{vT+2}')
    I(f'v_add_u32 v{vT}, s{sI}, v{vT}')
    I(f'v_lshlrev_b32 v{vT}, 2, v{vT}')
    I(f'v_add_u32 v{vT}, {L_KI}, v{vT}')
    I(f'v_and_b32 v{vT+2}, 3, v0')
    I(f'v_lshrrev_b32 v{vT+3}, 2, v{vLANE}')
    I(f'v_lshl_add_u32 v{vT+3}, v{vT+2}, 4, v{vT+3}')
    I(f'v_add_u32 v{vT+3}, s{sI}, v{vT+3}')
    I(f'v_lshlrev_b32 v{vT+3}, 3, v{vT+3}')
    I(f'v_add_u32 v{vT+3}, {L_SH}, v{vT+3}')
    I(f'v_lshl_add_u32 v{vT+4}, v{vLANE}, 3, s{sI}')
    I(f'v_add_u32 v{vT+4}, {L_SLOT}, v{vT+4}')
    I(f'v_bfe_u32 v{vT+5}, v0, 3, 2')
    I(f'v_lshl_add_u32 v{vT+5}, v{vT+5}, 2, v{vT+2}')
    I(f'v_add_u32 v{vT+5}, s{sI}, v{vT+5}')
    I(f'v_lshlrev_b32 v{vT+5}, 2, v{vT+5}')
    I(f'v_add_u32 v{vT+5}, {L_KI}, v{vT+5}')
    I(f'v_add_u32 v{vT+6}, 1024, v{vT}')
    I(f'v_add_u32 v{vT+7}, 1024, v{vT+5}')
    bar_b(9)
    xpf(9)
    IT = vT + 8
    for g in range(0, 16, 2):
        I(f'ds_read2_b32 {vr(vKQ+g,2)}, v{vT+(6 if g >= 8 else 0)} offset0:{32*g%256} offset1:{32*(g+1)%256}')
    I(f'ds_read_b64 {vr(vSL,2)}, v{vT+4}')
    for g in range(16):
        if g in (4, 10): I('s_waitcnt lgkmcnt(7)')
        I(f'ds_read2_b32 {vr(IT+2*g,2)}, v{vT+(7 if g >= 8 else 5)} offset0:{32*g%256} offset1:{32*g%256+16}')
    I('s_waitcnt lgkmcnt(6)')
    for g in range(8):
        I(f'ds_read_b64 {vr(vSQ+2*g,2)}, v{vT+3} offset:{512*g}')
    if opt.dl and opt.pob == 9: early_static()
    assert opt.pob <= 9 and opt.x1 != 10 and opt.x2 != 10
    I(f's_mov_b32 s{sA}, {U}')
    I(f's_min_u32 s{sB}, s{sPJ}, s{sNP}')
    L('L2_early')
    I(f's_cmp_ge_u32 s{sA}, s{sB}')
    I('s_cbranch_scc1 L2_early_done')
    I(f's_set_gpr_idx_on s{sA}, gpr_idx(SRC0)')
    I(f'v_mov_b32 v{vGT}, v{vGA}')
    I('s_set_gpr_idx_off')
    I(f's_lshl_b32 m0, s{sA}, 13')
    I(f's_add_u32 m0, m0, s{sEB}')
    I(f's_add_u32 s{sA}, s{sA}, 1')
    I(f'buffer_load_dwordx4 v{vGT}, {sr(sEAO,4)}, 0 offen sc1 lds')
    I('s_branch L2_early')
    L('L2_early_done')
    for g in range(16):
        I(f'v_lshlrev_b32_sdwa v{vKQ+g}, 9, v{vKQ+g} dst_sel:DWORD dst_unused:UNUSED_PAD src0_sel:DWORD src1_sel:WORD_0')
    I(f'v_mov_b32 v{vK}, v{vKQ}')
    def fetch(sig, lane):
        I(f'v_add_u32_dpp v{vAD}, v{vK}, v{vLS} row_newbcast:{lane} row_mask:0xf bank_mask:0xf')

    bar_b(10)
    I(f's_cmp_lg_u32 s{sNB}, 0')
    I(f's_cselect_b32 s{sX+2}, s{sXSZ}, 0')
    for sig in range(6):
        I(f's_add_u32 m0, s{sRG+(sig>>1)}, {1024*(sig&1)}')
        fetch(sig, sig)
        I(f'buffer_load_dwordx4 v{vAD}, {sr(sX,4)}, 0 offen lds')
    I(f's_mov_b32 s{sA}, 0x07060302')
    for g in range(16):
        I(f'v_perm_b32 v{vIQ+g}, v{IT+2*g+1}, v{IT+2*g}, s{sA}')
    def ea_reads(word):
        I(f'v_lshlrev_b32_sdwa v{vEAA}, 4, v{vIC} dst_sel:DWORD dst_unused:UNUSED_PAD src0_sel:DWORD src1_sel:WORD_{word}')
        I(f's_mov_b64 exec, {sr(sM0,2)}')
        I(f'ds_read_b128 {vr(vA1,4)}, v{vEAA}')
        I(f's_mov_b64 exec, {sr(sM1,2)}')
        I(f'ds_read_b128 {vr(vA2,4)}, v{vEAA}')
        I('s_mov_b64 exec, -1')
    def rw_mfma(p):
        I(f'v_mfma_f32_32x32x16_bf16 {vr(vRW+16*p,16)}, {vr(vA1,4)}, {vr(vBE,4)}, 0')
        I(f'v_mfma_f32_32x32x16_bf16 {vr(vRW+16*p,16)}, {vr(vA2,4)}, {vr(vBO,4)}, {vr(vRW+16*p,16)}')
    def sh_bcast(i):
        for j in range(2):
            I(f'v_mov_b32_dpp v{vSHR+j}, v{vSHC+j} quad_perm:[{i},{i},{i},{i}] row_mask:0xf bank_mask:0xf')
    def ae_dots():
        for u in range(4):
            I(f'v_dot2_f32_bf16 v{vTT+u}, v{vSHR}, v{vCG+2*u}, 0')
        for u in range(4):
            I(f'v_dot2_f32_bf16 v{vTT+u}, v{vSHR+1}, v{vCG+2*u+1}, v{vTT+u}')
    def ae_cvt(p):
        I(f'v_cvt_pk_bf16_f32 v{vAE+2*p}, v{vTT}, v{vTT+1}')
        I(f'v_cvt_pk_bf16_f32 v{vAE+2*p+1}, v{vTT+2}, v{vTT+3}')
    def mfmas(p, s):
        d = vDT; b = vB
        I(f'v_mfma_f32_4x4x4_16b_bf16 {vr(d,4)}, {vr(vAE+2*p,2)}, {vr(b,2)}, 0 cbsz:4 abid:{s}')
        I(f'v_mfma_f32_4x4x4_16b_bf16 {vr(d+4,4)}, {vr(vAE+2*p,2)}, {vr(b+2,2)}, 0 cbsz:4 abid:{8+s}')
    def fmas(p, s):
        d = vDT
        for h, e in ((0, s), (1, 8 + s)):
            sl = (sSB0 if h else sSA0) + (s >> 2)
            I(f's_set_gpr_idx_on s{sl}, gpr_idx(SRC2,DST)' if h == 0 else f's_set_gpr_idx_idx s{sl}')
            r = vRW + 16 * p + (e & ~1)
            mod = 'op_sel:[0,1,0] op_sel_hi:[1,1,1]' if e & 1 else 'op_sel_hi:[1,0,1]'
            I(f'v_pk_fma_f32 {vr(vACC,2)}, {vr(d+4*h,2)}, {vr(r,2)}, {vr(vACC,2)} {mod}')
            if (s & 3) != 3: I(f's_lshr_b32 s{sl}, s{sl}, 8')
            I(f'v_pk_fma_f32 {vr(vACC+2,2)}, {vr(d+4*h+2,2)}, {vr(r,2)}, {vr(vACC+2,2)} {mod}')
        I('s_set_gpr_idx_off')

    C('operands of batch 0 that do not need the edge features')
    I(f'v_or_b32 v{vIC}, v{vIQ}, v{vKG11}')
    I(f'v_mov_b32 v{vSHC}, v{vSQ}')
    I(f'v_mov_b32 v{vSHC+1}, v{vSQ+1}')
    I(f'v_readlane_b32 s{sSA0}, v{vSL}, 0')
    I(f'v_readlane_b32 s{sSB0}, v{vSL}, 1')
    sh_bcast(0)
    ae_dots()
    I(f's_mov_b32 s{sSA1}, {DUMMY}')
    I(f's_mov_b32 s{sSB1}, {DUMMY}')
    I(f's_mov_b32 s{sI}, 0')
    I(f's_mov_b32 s{sLN}, 0')
    I(f's_mov_b32 s{sKI}, 0')
    I(f's_mov_b32 s{sSI}, 0')
    ae_cvt(0)
    I(f's_cmp_eq_u32 s{sFIRST}, 0')
    I('s_cbranch_scc1 L2_haveB')
    xpf(10)
    I(f's_mov_b32 s{sFIRST}, 0')
    for r in range(57): I(f'v_mov_b32 v{vACC+r}, 0')
    if opt.pob == 11:
        I(f's_cmp_lg_u32 s{sW}, 0')
        I('s_cbranch_scc1 L_polledB')
        poll('B', 4096)
    for r in range(57, 68): I(f'v_mov_b32 v{vACC+r}, 0')
    if opt.pob == 11: I('s_barrier')
    L('L2_haveB')
    stamp(11, VST)
    C('early feature passes, then the first row fetches')
    if opt.pob == 11: early_static()
    I('s_waitcnt vmcnt(6)')
    I('s_barrier')
    stamp(12, VST)
    I(f's_cmp_eq_u32 s{sNB}, 0')
    I('s_cbranch_scc1 L2_drain')
    ea_reads(0)
    I('s_waitcnt lgkmcnt(0)')
    rw_mfma(0)
    L('L2_loop')
    for p in range(2):
        C(f'batch parity {p}')
        if opt.prio and p == 0:
            I(f's_cmp_lt_u32 s{sW}, 4')
            I('s_cbranch_scc1 L2_prio')
            I('s_setprio 1')
            L('L2_prio')
        if opt.prio and p == 1: I('s_setprio 0')
        I(f's_add_u32 s{sI}, s{sI}, 1')
        for s in range(8):
            sig = 8 * p + s
            d = (sig >> 1) % 3
            so = 1024 * (sig & 1)
            if s == 2:
                I(f's_cmp_lt_u32 s{sI}, s{sNB}')
                I(f's_cselect_b32 s{sX+2}, s{sXSZ}, 0')
            I('s_waitcnt vmcnt(5)')
            I(f'ds_read_b64_tr_b16 {vr(vB,2)}, v{vRD+d} offset:{so}')
            I(f'ds_read_b64_tr_b16 {vr(vB+2,2)}, v{vRD+d} offset:{so+512}')
            k = 0
            if s == 2:
                ea_reads(p ^ 1); k = 2
            fetch(sig, (sig + 6) % 16)
            if s == 0: fmas(p ^ 1, 7)
            else: fmas(p, s - 1)
            if s == 0:
                I(f's_add_u32 s{sA}, s{sLN}, 1')
                I(f'v_readlane_b32 s{sSA1}, v{vSL+1}, s{sLN}')
                I(f'v_readlane_b32 s{sSB1}, v{vSL+1}, s{sA}')
            if s == 5:
                I(f's_add_u32 s{sLN}, s{sLN}, 2')
                I(f's_add_u32 s{sA}, s{sLN}, 1')
                I(f'v_readlane_b32 s{sSA0}, v{vSL}, s{sLN}')
                I(f'v_readlane_b32 s{sSB0}, v{vSL}, s{sA}')
            if sig == 9:
                I(f's_add_u32 s{sKI}, s{sKI}, 1')
                I(f's_set_gpr_idx_on s{sKI}, gpr_idx(SRC0)')
                I(f'v_mov_b32 v{vK}, v{vKQ}')
                I(f'v_or_b32 v{vIC}, v{vIQ}, v{vKG11}')
                I('s_set_gpr_idx_off')
            if s == 2 and p == 1:
                I(f's_bitcmp1_b32 s{sI}, 1')
                I('s_cbranch_scc1 L2_shrot')
                I(f's_add_u32 s{sSI}, s{sSI}, 2')
                I(f's_set_gpr_idx_on s{sSI}, gpr_idx(SRC0)')
                I(f'v_mov_b32 v{vSHC}, v{vSQ}')
                I(f'v_mov_b32 v{vSHC+1}, v{vSQ+1}')
                I('s_set_gpr_idx_off')
                I('s_branch L2_shdone')
                L('L2_shrot')
                for j in range(2):
                    I(f'v_mov_b32_dpp v{vSHC+j}, v{vSHC+j} quad_perm:[2,3,0,1] row_mask:0xf bank_mask:0xf')
                L('L2_shdone')
            if s == 3: sh_bcast(p ^ 1)
            I(f's_add_u32 m0, s{sRG+d}, {so}')
            I(f's_waitcnt lgkmcnt({k})')
            I(f'buffer_load_dwordx4 v{vAD}, {sr(sX,4)}, 0 offen lds')
            mfmas(p, s)
            if s < opt.lpb:
                C('late feature pass')
                I(f's_cmp_ge_u32 s{sPJ}, s{sNP}')
                I(f's_cbranch_scc1 L2_nolate{p}{s}')
                I(f's_set_gpr_idx_on s{sPJ}, gpr_idx(SRC0)')
                I(f'v_mov_b32 v{vGT}, v{vGA}')
                I('s_set_gpr_idx_off')
                I(f's_lshl_b32 m0, s{sPJ}, 13')
                I(f's_add_u32 m0, m0, s{sEB}')
                I(f's_add_u32 s{sPJ}, s{sPJ}, 1')
                I(f'buffer_load_dwordx4 v{vGT}, {sr(sEAO,4)}, 0 offen sc1 lds')
                L(f'L2_nolate{p}{s}')
            if s == 3: rw_mfma(p ^ 1)
            if s == 4: ae_dots()
            if s == 5: ae_cvt(p ^ 1)
        if p == 1:
            I(f'v_mov_b32 v{vGT}, v{vRD+2}'); I(f'v_mov_b32 v{vRD+2}, v{vRD+1}'); I(f'v_mov_b32 v{vRD+1}, v{vRD}'); I(f'v_mov_b32 v{vRD}, v{vGT}')
            I(f's_mov_b32 s{sRG+3}, s{sRG+2}'); I(f's_mov_b32 s{sRG+2}, s{sRG+1}'); I(f's_mov_b32 s{sRG+1}, s{sRG}'); I(f's_mov_b32 s{sRG}, s{sRG+3}')
        I(f's_cmp_lg_u32 s{sI}, s{sK0}')
        I(f's_cbranch_scc1 L2_nosync{p}')
        C('all late features have landed (every wave waited for its own passes above)')
        I('s_barrier')
        L(f'L2_nosync{p}')
        I(f's_cmp_lt_u32 s{sI}, s{sNB}')
        if p == 0: I('s_cbranch_scc0 L2_tail0')
        else: I('s_cbranch_scc1 L2_loop')
    for p in (1, 0):
        if p == 0: L('L2_tail0')
        I('s_nop 4')
        fmas(p, 7)
        if p == 1: I('s_branch L2_drain')
    L('L2_drain')
    I('s_waitcnt vmcnt(0) lgkmcnt(0)')
    stamp(13, VST)
    I(f's_add_u32 s{sR0}, s{sR0}, s{sRC}')
    I(f's_cmp_ge_u32 s{sR0}, s{sTOT}')
    I('s_cbranch_scc1 L2_epi')
    L('L2_again')
    I('s_barrier')
    prefill()
    I('s_branch L2_round')

    L('L2_epi')
    C('---- epilogue: hand the partial sums of a shared node to its owner (the previous wave)')
    vP = 132
    vT = 228
    vLANE, vLO = vT + 16, vT + 17
    vBA, vOW, vOR, vO = vT + 2, vT + 3, vT + 4, vT + 8
    I(f'v_and_b32 v{vLANE}, 63, v0')
    I(f's_sub_u32 s{sA}, s{sOF}, 1')
    I(f's_and_b32 s{sA}, s{sA}, 15')
    I(f's_lshl_b32 s{sA}, s{sA}, 2')
    I(f'v_lshl_add_u32 v{vT}, v{vLANE}, 4, s3')
    I(f's_set_gpr_idx_on s{sA}, gpr_idx(SRC0)')
    for k in range(4): I(f'v_mov_b32 v{vP+k}, v{vACC+k}')
    I('s_set_gpr_idx_off')
    I(f'ds_write_b128 v{vT}, {vr(vP,4)} offset:5120')
    I(f'v_mul_u32_u24 v{vT+1}, {TC}, v{vLANE}')
    I(f'v_add_u32 v{vT+1}, s3, v{vT+1}')
    I(f'v_bfe_u32 v{vT+5}, v0, 5, 1')
    I(f'v_bfe_u32 v{vT+6}, v0, 2, 2')
    I(f'v_lshl_add_u32 v{vBA}, v{vT+5}, 3, v{vT+6}')
    I(f'v_mul_u32_u24 v{vBA}, {TC}, v{vBA}')
    I(f'v_bfe_u32 v{vT+6}, v0, 4, 1')
    I(f'v_lshl_add_u32 v{vBA}, v{vT+6}, 5, v{vBA}')
    I(f'v_and_b32 v{vT+6}, 3, v0')
    I(f'v_lshl_add_u32 v{vBA}, v{vT+6}, 3, v{vBA}')
    I(f'v_add_u32 v{vBA}, s3, v{vBA}')
    C('restage addresses')
    I(f'v_and_b32 v{vLO}, 31, v0')
    I(f'v_mul_u32_u24 v{vOW}, {TP}, v{vLO}')
    I(f'v_lshl_add_u32 v{vOW}, v{vT+5}, 6, v{vOW}')
    I(f'v_add_u32 v{vOW}, s3, v{vOW}')
    I(f'v_lshrrev_b32 v{vOR}, 3, v{vLANE}')
    I(f'v_mul_u32_u24 v{vOR}, {TP}, v{vOR}')
    I(f'v_and_b32 v{vT+6}, 7, v0')
    I(f'v_lshl_add_u32 v{vOR}, v{vT+6}, 4, v{vOR}')
    I(f'v_add_u32 v{vOR}, s3, v{vOR}')
    C('output offsets: store it covers slots 2it (lower lanes) and 2it+1 (upper lanes)')
    I(f's_mul_i32 s{sB}, s{sBK}, {NB}')
    I(f's_add_u32 s{sB}, s{sB}, s{sOF}')
    I(f's_lshl_b32 s{sB}, s{sB}, 9')
    I(f'v_lshl_add_u32 v{vLO}, v{vLO}, 4, s{sB}')
    I(f's_sub_u32 s{sB}, s{sON}, s{sOF}')
    I(f'v_subrev_u32 v{vT+6}, s{sOF}, v{vT+5}')
    I(f'v_mov_b32 v{vT+7}, 0x80000000')
    for it in range(8):
        I(f'v_add_u32 v{vO+it}, {2*it}, v{vT+6}')
        I(f'v_and_b32 v{vO+it}, 15, v{vO+it}')
        I(f'v_cmp_gt_u32 {sr(sVM,2)}, s{sB}, v{vO+it}')
        I(f'v_lshl_add_u32 v{vO+it}, v{vO+it}, 9, v{vLO}')
        I('s_nop 0')
        I(f'v_cndmask_b32 v{vO+it}, v{vT+7}, v{vO+it}, {sr(sVM,2)}')
    I(f's_sub_u32 s{sA}, s{sON}, 1')
    I(f's_and_b32 s{sA}, s{sA}, 15')
    I(f's_lshl_b32 s{sA}, s{sA}, 2')
    I(f's_cmp_eq_u32 s{sW}, 7')
    I(f's_cselect_b32 s{sA}, {DUMMY}, s{sA}')
    I('s_waitcnt lgkmcnt(0)')
    I('s_barrier')
    I(f'ds_read_b128 {vr(vP,4)}, v{vT} offset:{6144+5120}')
    I('s_waitcnt lgkmcnt(0)')
    I(f's_set_gpr_idx_on s{sA}, gpr_idx(SRC0,DST)')
    for k in range(4): I(f'v_add_f32 v{vACC+k}, v{vACC+k}, v{vP+k}')
    I('s_set_gpr_idx_off')
    C('out = agg @ w_out, staged through this wave\'s own ring')
    vBB = 164
    vD = 8
    for ct in range(2):
        for i in range(4 * ct, 4 * ct + 4):
            for k in range(4):
                I(f'v_cvt_pk_bf16_f32 v{vP+4*i+k}, v{vACC+8*i+2*k}, v{vACC+8*i+2*k+1}')
            if ct and i == 4: I('s_waitcnt lgkmcnt(3)')
            I(f'ds_write_b128 v{vT+1}, {vr(vP+4*i,4)} offset:{16*(i&3)}')
        for s in range(4):
            for i in range(2):
                I(f'ds_read_b64_tr_b16 {vr(vBB+16*ct+4*s+2*i,2)}, v{vBA} offset:{(16*s+4*i)*TC}')
    for ct in range(2):
        I(f's_waitcnt lgkmcnt({12 if ct == 0 else 0})')
        for tile in range(2):
            d = vD + 32 * ct + 16 * tile
            for s in range(4):
                I(f'v_mfma_f32_32x32x16_bf16 {vr(d,16)}, {vr(vWA+16*tile+4*s,4)}, {vr(vBB+16*ct+4*s,4)}, {vr(d,16) if s else 0}')
    I('s_nop 3')
    vPK = 132
    vRB = 196
    sco = ' sc1'
    for ct in range(2):
        for k in range(16):
            I(f'v_cvt_pk_bf16_f32 v{vPK+16*ct+k}, v{vD+32*ct+2*k}, v{vD+32*ct+2*k+1}')
        for i in range(4):
            I(f'ds_write_b128 v{vOW}, {vr(vPK+16*ct+4*i,4)} offset:{16*i}')
        its = list(range(4 * ct, 4 * ct + 4))
        for it in its:
            I(f'ds_read_b128 {vr(vRB+4*it,4)}, v{vOR} offset:{8*(it&3)*TP}')
        for it in its:
            I(f's_waitcnt lgkmcnt({its[-1]-it})')
            I(f'buffer_store_dwordx4 {vr(vRB+4*it,4)}, v{vO+it}, {sr(sOUT,4)}, 0 offen{sco}')
    stamp(14, VST)
    if opt.stamps: I('s_waitcnt vmcnt(0)')
    stamp(15, VST); stamp_flush(VST, vGT)
    L('L2_end')
    I('s_endpgm')

emit1(NAME, gen, 256, 512, K2_LDS, 256, 102)
```

```python
from common import *
parse(dict(stamps=0, nt=1, a0=2, a1=1, a2=1, a3=1, a4=2, s1=0, s2=0, split=12, lpb=1, late=1, la=0, lb=392, dyn=1, prio=1, xpf=1, s0b=13, arb=6, x1=99, x2=7, pob=9, u=6, s0c=0, slp=4, dl=0, u2=0, u3=0, pace=0, sx=0, sy=0, sz=0, offl=0, rot=1, dbg=0, amp=0, ampk=4))
NAME = 'standalone__tensor_product_equiv_mace__graph_kernel'
CH = 3136
NB = 98
RCAP = 3520
CAPX = 3640
WS_EA = 0
WS_MO = WS_EA + 256 * CH * 32
WS_OFF = WS_MO + 256 * CH * 12
WS_SYNC = WS_OFF + 524288
SPLIT = opt.split * 1024
SPIN = 1 << 20
L_RING = RCAP * 32
L_SH = L_RING
L_KI = L_SH + CAPX * 8
L_SLOT = L_KI + CAPX * 4
L_CNT = L_SLOT + 3648
L_NC = L_CNT + 1024
L_ST = L_NC + 512
L_NS = L_ST + 1024
L_WT = L_NS + 640
K2_LDS = max(L_RING + 49152, L_WT + 32)
assert K2_LDS <= 163840
NULLKI = 0x7fff
DUMMY = 16 * 4
RSMALL = 496
TP = 144
TC = 80
L_GI = L_SH
L_WO = L_GI + 3584 * 4
L_WR = L_WO + 64 * TP
L_CG = L_WR + 16 * TP
assert L_CG + 128 <= L_KI

L_MI = L_RING
L_INV = L_MI + CH * 12
L_HIST = L_INV + CH * 2
assert L_HIST + 4096 <= K2_LDS

def gen():
    nt = ' nt' if opt.nt else ''
    I('s_cmp_ge_u32 s2, 0x100')
    I('s_cbranch_scc1 L2_end')
    I('s_load_dwordx16 s[4:19], s[0:1], 0')
    I('s_load_dwordx4 s[20:23], s[0:1], 64')
    I('s_load_dwordx2 s[24:25], s[0:1], 80')
    vPRE, vLEN, vG0, vLS, vKG11, vK, vIC = 1, 2, 3, 4, 5, 6, 7
    vACC = 8
    vBE, vBO, vCG, vA1, vA2, vWA = 76, 80, 84, 92, 96, 100
    vKQ, vSQ, vIQ, vSL = 132, 148, 164, 180
    vRD, vAD, vGT, vNUL = 182, 185, 186, 187
    vEAA = vGT
    vDT, vRW, vAE, vSHC, vSHR, vTT, vB = 188, 196, 228, 232, 234, 236, 240
    vGA = 240
    vME, vCL, vRK, vT = 132, 160, 188, 196
    vLANE = 167
    VST = 254
    vDST, vSRC, vSH, vBK, vCON, vMO, vIA = 132, 139, 146, 160, 168, 8, 240
    vED, vSO, vPF2, vEO, vPF1, vOFA, vSY = 8, 60, 61, 62, 63, 64, 65
    Q0, Q1, Q2, Q3, Q4, Q5, Q6 = 28, 32, 36, 40, 44, 48, 52
    sMO, sEAO, sOUT, sX, sEAS, sOFF, sSYN = Q0, Q1, Q2, Q3, Q4, Q5, Q6
    sVM = 6
    sBK, sW = 26, 27
    sTOT, sR0, sCNT, sNB, sNBM, sI, sRC, sXSZ = 56, 57, 58, 59, 60, 61, 62, 63
    sM0, sM1 = 64, 66
    sSA0, sSA1, sSB0, sSB1 = 68, 69, 70, 71
    sRG = 72
    sLN, sKI, sSI = 76, 77, 78
    sT0, sPJ, sNP, sK0, sEB, sMG, sOF, sON = 79, 80, 81, 82, 83, 84, 85, 86
    sE0, sNE, sFIRST, sC, sD = 87, 88, 89, 90, 91
    sA, sB = 0, 1
    C('==== phase A: partition this workgroup\'s chunk of edges by (src phase, dst bucket)')
    I(f'v_lshlrev_b32 v{vT}, 2, v0')
    I(f'v_add_u32 v{vT+1}, {L_HIST}, v{vT}')
    I(f'v_mov_b32 v{vT+2}, 0')
    I(f'ds_write_b32 v{vT+1}, v{vT+2}')
    I(f'v_lshrrev_b32 v{vT+3}, 6, v0')
    I(f's_and_b32 s{sBK}, s2, 7')
    I(f's_lshl_b32 s{sBK}, s{sBK}, 5')
    I('s_lshr_b32 s3, s2, 3')
    I(f's_add_u32 s{sBK}, s{sBK}, s3')
    I(f'v_readfirstlane_b32 s{sW}, v{vT+3}')
    I(f's_mul_i32 s{sE0}, s{sBK}, {CH}')
    I(f's_sub_u32 s{sNE}, {E}, s{sE0}')
    I(f's_min_u32 s{sNE}, s{sNE}, {CH}')
    for i in range(1, 4): I(f'v_add_u32 v{vT+3+i}, {4096*i}, v{vT}')
    I(f'v_lshlrev_b32 v{vT+8}, 3, v0')
    I(f'v_lshlrev_b32 v{vEO}, 4, v0')
    I(f'v_and_b32 v{vLANE}, 63, v0')
    I(f's_lshl_b32 s{sC}, s{sE0}, 2'); I(f's_lshl_b32 s{sD}, s{sNE}, 2')
    I(f's_lshl_b32 s{sEB}, s{sW}, 10')
    I('s_waitcnt lgkmcnt(0)')
    srd(Q0, 8, off_s=sC, size_s=sD)
    for m in range(7):
        I(f'buffer_load_dword v{vDST+m}, v{vT+3+(m>>1) if m > 1 else vT}, {sr(Q0,4)}, 0 offen offset:{2048*(m&1)}{nt}')
    srd(Q1, 6, off_s=sC, size_s=sD)
    for m in range(7):
        I(f'buffer_load_dword v{vSRC+m}, v{vT+3+(m>>1) if m > 1 else vT}, {sr(Q1,4)}, 0 offen offset:{2048*(m&1)}{nt}')
    stamp_init(1, VST, vGT, 24); stamp(0, VST)
    srd(sSYN, 24, off_imm=WS_SYNC, size=8192)
    C('workgroup 0 clears the hand-off counters, then raises the flag in d_debug')
    I(f's_or_b32 s{sA}, s2, s{sW}')
    I('s_cbranch_scc1 L1_noinit')
    srd(Q2, 22, size=256)
    I(f'v_lshlrev_b32 v{vT+9}, 8, v0')
    I(f'buffer_store_dword v{vT+2}, v{vT+9}, {sr(sSYN,4)}, 0 offen sc1')
    I(f'v_mov_b32 v{vT+10}, 1')
    I('s_waitcnt vmcnt(0)')
    I(f'buffer_store_dword v{vT+10}, v{vT+9}, {sr(Q2,4)}, 0 offen sc1')
    L('L1_noinit')
    I('s_barrier')
    I(f's_lshl_b32 s{sC}, s{sE0}, 3'); I(f's_lshl_b32 s{sD}, s{sNE}, 3')
    srd(Q2, 10, off_s=sC, size_s=sD)
    for m in range(7):
        I(f'buffer_load_dwordx2 {vr(vSH+2*m,2)}, v{vT+8}, {sr(Q2,4)}, 0 offen{nt}')
        if m < 6: I(f'v_add_u32 v{vT+8}, 4096, v{vT+8}')
    srd(Q1, 18, size=8192)
    I(f'buffer_load_dwordx4 {vr(vCON,4)}, v{vEO}, {sr(Q1,4)}, 0 offen')
    srd(Q1, 16, size=2048)
    I(f'buffer_load_dwordx4 {vr(vCON+4,4)}, v{vEO}, {sr(Q1,4)}, 0 offen')
    srd(Q1, 14, size=128)
    I(f'buffer_load_dwordx4 {vr(vCON+8,4)}, v{vEO}, {sr(Q1,4)}, 0 offen')
    I(f's_lshl_b32 s{sC}, s{sE0}, 5'); I(f's_lshl_b32 s{sD}, s{sNE}, 5')
    srd(Q3, 12, off_s=sC, size_s=sD)
    nin = [0]
    def ea_in(k):
        for _ in range(k):
            j = nin[0]
            if j >= 13: return
            I(f's_add_u32 m0, s{sEB}, {8192*j}')
            if j: I(f'v_add_u32 v{vEO}, 8192, v{vEO}')
            else: I('s_nop 0')
            I(f'buffer_load_dwordx4 v{vEO}, {sr(Q3,4)}, 0 offen{nt} lds')
            nin[0] += 1
    ea_in(opt.a0)
    srd(sEAS, 24, off_s=sC, off_imm=WS_EA, size_s=sD)
    I(f's_mul_i32 s{sC}, s{sE0}, 12'); I(f's_mul_i32 s{sD}, s{sNE}, 12')
    srd(Q0, 24, off_s=sC, off_imm=WS_MO, size_s=sD)
    srd(sOFF, 24, off_imm=WS_OFF, size=524288)
    srd(Q2, 22, size=256)
    for m in range(7):
        I(f'v_add_u32 v{vT+10}, {512*m}, v0')
        I(f'v_cmp_gt_u32 {sr(sVM+2*m,2)}, s{sNE}, v{vT+10}')
    I(f'v_mov_b32 v{vT+9}, 1')
    I(f's_mov_b32 s{sC}, {SPLIT}')
    I(f's_mov_b32 s{sD}, {-32*NB if opt.rot else 0}')
    vBN = vT + 20
    I(f'v_mov_b32 v{vT+12}, {L_HIST}')
    I(f'v_mov_b32 v{vT+13}, {L_HIST+1024}')
    I(f's_waitcnt vmcnt({10+nin[0]})')
    for m in range(7):
        I(f'v_mul_u32_u24 v{vBK+m}, 42800, v{vDST+m}')
        I(f'v_lshrrev_b32 v{vT+10}, 27, v{vBK+m}')
        I(f'v_mad_i32_i24 v{vT+10}, v{vT+10}, s{sD}, v{vSRC+m}')
        I(f'v_add_u32 v{vT+11}, {N}, v{vT+10}')
        I(f'v_min_u32 v{vBN+m}, v{vT+10}, v{vT+11}')
        I(f'v_cmp_le_u32 {sr(sA,2)}, s{sC}, v{vBN+m}')
        I(f'v_lshrrev_b32 v{vBK+m}, 22, v{vBK+m}')
        I(f'v_mul_u32_u24 v{vT+10}, {NB}, v{vBK+m}')
        I(f'v_sub_u32 v{vDST+m}, v{vDST+m}, v{vT+10}')
        I(f'v_cndmask_b32 v{vT+11}, v{vT+12}, v{vT+13}, {sr(sA,2)}')
        I(f'v_lshl_add_u32 v{vBK+m}, v{vBK+m}, 2, v{vT+11}')
        I(f's_mov_b64 exec, {sr(sVM+2*m,2)}')
        I(f'ds_add_rtn_u32 v{vRK+m}, v{vBK+m}, v{vT+9}')
        I('s_mov_b64 exec, -1')
    ea_in(opt.a1)
    C('key = bin<<27 | static wave<<24 | src<<9 | dlocal<<2')
    for m in range(7):
        I(f'v_mul_u32_u24 v{vT+11}, 5350, v{vDST+m}')
        I(f'v_and_b32 v{vT+11}, 0x70000, v{vT+11}')
        I(f'v_lshrrev_b32 v{vBN+m}, 10, v{vBN+m}')
        I(f'v_lshl_or_b32 v{vT+11}, v{vBN+m}, 19, v{vT+11}')
        I(f'v_lshlrev_b32 v{vT+11}, 8, v{vT+11}')
        I(f'v_lshl_add_u32 v{vT+11}, v{vDST+m}, 2, v{vT+11}')
        I(f'v_lshl_add_u32 v{vSRC+m}, v{vSRC+m}, 9, v{vT+11}')
    I(f'v_lshlrev_b32 v{vT+16}, 4, v{vLANE}')
    I(f'v_add_u32 v{vT+16}, {L_HIST}, v{vT+16}')
    I('s_waitcnt lgkmcnt(0)')
    I('s_barrier')
    stamp(1, VST)
    C('every wave scans the histogram and writes the (identical) start table')
    cnt, st = vT + 28, vT + 20
    I(f'ds_read_b128 {vr(cnt,4)}, v{vT+16}')
    I(f'ds_read_b128 {vr(cnt+4,4)}, v{vT+16} offset:1024')
    I('s_waitcnt lgkmcnt(0)')
    for h in range(2):
        I(f'v_add_u32 v{st+4*h+1}, v{cnt+4*h}, v{cnt+4*h+1}')
        I(f'v_add_u32 v{st+4*h+2}, v{st+4*h+1}, v{cnt+4*h+2}')
        I(f'v_add_u32 v{vT+12+h}, v{st+4*h+2}, v{cnt+4*h+3}')
    I(f'v_lshl_add_u32 v{vT+17}, v{vT+13}, 16, v{vT+12}')
    I(f'v_mov_b32 v{vT+18}, v{vT+17}')
    wave_scan(vT + 18)
    I(f'v_sub_u32 v{vT+17}, v{vT+18}, v{vT+17}')
    I(f'v_readlane_b32 s{sA}, v{vT+18}, 63')
    I(f'v_and_b32 v{st}, 0xffff, v{vT+17}')
    I(f'v_lshrrev_b32 v{st+4}, 16, v{vT+17}')
    I(f's_and_b32 s{sA}, s{sA}, 0xffff')
    I(f'v_add_u32 v{st+4}, s{sA}, v{st+4}')
    for h in range(2):
        I(f'v_add_u32 v{st+4*h+3}, v{st+4*h}, v{st+4*h+2}')
        I(f'v_add_u32 v{st+4*h+2}, v{st+4*h}, v{st+4*h+1}')
        I(f'v_add_u32 v{st+4*h+1}, v{st+4*h}, v{cnt+4*h}')
        I(f'ds_write_b128 v{vT+16}, {vr(st+4*h,4)} offset:{2048+1024*h}')
    for m in range(7):
        I(f'ds_read_b32 v{vBK+m}, v{vBK+m} offset:2048')
    ea_in(opt.a2)
    I(f's_mov_b32 s{sC}, {L_MI}')
    I(f's_mov_b32 s{sD}, {L_INV}')
    I(f's_waitcnt vmcnt({3+nin[0]}) lgkmcnt(0)')
    for m in range(7):
        I(f'v_add_u32 v{vRK+m}, v{vRK+m}, v{vBK+m}')
        I(f'v_mad_u32_u24 v{vBK+m}, v{vRK+m}, 12, s{sC}')
        I(f'v_lshl_add_u32 v{vRK+m}, v{vRK+m}, 1, s{sD}')
        I(f'v_add_u32 v{vDST+m}, {512*m}, v0')
    for m in range(7):
        I(f's_mov_b64 exec, {sr(sVM+2*m,2)}')
        I(f'ds_write_b16 v{vRK+m}, v{vDST+m}')
        I(f'ds_write2_b32 v{vBK+m}, v{vSRC+m}, v{vSH+2*m} offset0:0 offset1:1')
        I(f'ds_write_b32 v{vBK+m}, v{vSH+2*m+1} offset:8')
    I('s_mov_b64 exec, -1')
    ea_in(opt.a3)
    I(f'v_lshlrev_b32 v{vSO}, 4, v0')
    I(f'v_add_u32 v{vT+10}, {L_MI}, v{vSO}')
    I(f'v_and_b32 v{vT+8}, 0x1fe, v0')
    I(f'v_add_u32 v{vT+8}, {L_INV}, v{vT+8}')
    I('s_waitcnt lgkmcnt(0)')
    I('s_barrier')
    stamp(2, VST)
    C('meta image and run table -> global')
    for j in range(5):
        I(f'ds_read_b128 {vr(vMO+4*j,4)}, v{vT+10} offset:{8192*j}')
    for j in range(5):
        I(f's_waitcnt lgkmcnt({4-j})')
        I(f'buffer_store_dwordx4 {vr(vMO+4*j,4)}, v{vSO}, {sr(Q0,4)}, 0 offen sc1')
        if j < 4: I(f'v_add_u32 v{vSO}, 8192, v{vSO}')
    for j in range(13):
        I(f'ds_read_u16 v{vIA+j}, v{vT+8} offset:{512*j}')
    I(f's_cmp_lg_u32 s{sW}, 7')
    I('s_cbranch_scc1 L1_nooff')
    C('OFF[bucket/4][chunk][phase][bucket%4] = start | len<<16')
    I(f's_lshl_b32 s{sA}, s{sBK}, {11 if opt.offl else 5}')
    I(f'v_lshlrev_b32 v{vT+17}, {4 if opt.offl else 13}, v{vLANE}')
    I(f'v_add_u32 v{vT+17}, s{sA}, v{vT+17}')
    for i in range(8):
        I(f'v_lshl_add_u32 v{cnt+i}, v{cnt+i}, 16, v{st+i}')
    for h in range(2):
        I(f'buffer_store_dwordx4 {vr(cnt+4*h,4)}, v{vT+17}, {sr(sOFF,4)}, 0 offen offset:{(1024 if opt.offl else 16)*h} sc1')
    L('L1_nooff')
    I(f'v_mov_b32 v{vT+2}, 0')
    I(f's_cmp_lg_u32 s{sW}, 0')
    I('s_cbranch_scc1 L1_noflag')
    I(f'buffer_load_dword v{vT+3}, v{vT+2}, {sr(Q2,4)}, 0 offen sc1')
    L('L1_noflag')
    n0 = nin[0]
    ea_in(opt.a4)
    n4 = nin[0] - n0
    I(f'v_and_b32 v{vT+9}, 1, v0')
    I(f'v_lshlrev_b32 v{vT+9}, 4, v{vT+9}')
    I('s_waitcnt lgkmcnt(0)')
    for j in range(13):
        I(f'v_lshl_add_u32 v{vIA+j}, v{vIA+j}, 5, v{vT+9}')
    I(f's_waitcnt vmcnt({n4})')
    I('s_barrier')
    stamp(3, VST)
    def arrive(tag, base):
        I(f's_and_b32 s{sA}, s2, 15')
        I(f's_lshl_b32 s{sA}, s{sA}, 8')
        I(f's_add_u32 s{sA}, s{sA}, {base}')
        I(f'v_mov_b32 v{vGT}, s{sA}')
        I(f'v_mov_b32 v{vAD}, 1')
        I('s_mov_b64 exec, 1')
        I(f'buffer_atomic_add v{vAD}, v{vGT}, {sr(sSYN,4)}, 0 offen sc1')
        I('s_mov_b64 exec, -1')
    def poll(tag, base):
        I(f'v_and_b32 v{vGT}, 15, v0')
        I(f'v_lshlrev_b32 v{vGT}, 8, v{vGT}')
        if base: I(f'v_add_u32 v{vGT}, {base}, v{vGT}')
        I(f's_mov_b32 s{sB}, 0')
        L(f'L_poll{tag}')
        I(f'buffer_load_dword v{vAD}, v{vGT}, {sr(sSYN,4)}, 0 offen sc1')
        I(f's_add_u32 s{sB}, s{sB}, 1')
        I('s_waitcnt vmcnt(0)')
        I(f'v_cmp_ne_u32 vcc, 16, v{vAD}')
        I('s_cmp_eq_u64 vcc, 0')
        I(f's_cbranch_scc1 L_polled{tag}')
        I(f's_sleep {opt.slp}')
        I(f's_cmp_lt_u32 s{sB}, {SPIN}')
        I(f's_cbranch_scc1 L_poll{tag}')
        L(f'L_polled{tag}')
    I(f's_cmp_lg_u32 s{sW}, 0')
    I('s_cbranch_scc1 L1_arrived')
    I(f's_mov_b32 s{sB}, 0')
    L('L1_flag')
    I(f'v_readfirstlane_b32 s{sA}, v{vT+3}')
    I(f's_cmp_eq_u32 s{sA}, 1')
    I('s_cbranch_scc1 L1_flagok')
    I(f'buffer_load_dword v{vT+3}, v{vT+2}, {sr(Q2,4)}, 0 offen sc1')
    I(f's_add_u32 s{sB}, s{sB}, 1')
    I('s_waitcnt vmcnt(0)')
    I(f's_cmp_lt_u32 s{sB}, {SPIN}')
    I('s_cbranch_scc1 L1_flag')
    L('L1_flagok')
    arrive('A', 0)
    L('L1_arrived')
    ea_in(13)
    def prefill():
        C('prefill KI with null entries, SLOT with the dummy slot, zero CNT')
        for i in range(4): I(f'v_mov_b32 v{vT+4+i}, 0x{NULLKI:x}')
        I(f'v_lshlrev_b32 v{vT}, 4, v0')
        I(f'v_add_u32 v{vT}, {L_KI}, v{vT}')
        I(f'ds_write_b128 v{vT}, {vr(vT+4,4)}')
        I(f'v_cmp_gt_u32 vcc, {(CAPX*4-8192)//16}, v0')
        I('s_and_b64 exec, exec, vcc')
        I(f'ds_write_b128 v{vT}, {vr(vT+4,4)} offset:8192')
        I('s_mov_b64 exec, -1')
        I(f'v_mov_b32 v{vT+8}, 0x{DUMMY*0x01010101:x}')
        I(f'v_cmp_gt_u32 vcc, {3648//16}, v0')
        I(f'v_add_u32 v{vT}, {L_SLOT-L_KI}, v{vT}')
        I('s_nop 0')
        I(f'v_cndmask_b32 v{vT+8}, 0, v{vT+8}, vcc')
        for i in range(1, 4): I(f'v_mov_b32 v{vT+8+i}, v{vT+8}')
        I(f'v_cmp_gt_u32 vcc, {3648//16+96}, v0')
        I('s_and_b64 exec, exec, vcc')
        I(f'ds_write_b128 v{vT}, {vr(vT+8,4)}')
        I('s_mov_b64 exec, -1')
    prefill()
    C('stage the constants')
    I(f'v_lshrrev_b32 v{vT+12}, 3, v0')
    I(f'v_mul_u32_u24 v{vT+12}, {TP}, v{vT+12}')
    I(f'v_and_b32 v{vT+3}, 7, v0')
    I(f'v_lshl_add_u32 v{vT+12}, v{vT+3}, 4, v{vT+12}')
    I(f'v_add_u32 v{vT+12}, {L_WO}, v{vT+12}')
    I(f'ds_write_b128 v{vT+12}, {vr(vCON,4)}')
    I('v_cmp_gt_u32 vcc, 0x80, v0')
    I('s_and_b64 exec, exec, vcc')
    I(f'ds_write_b128 v{vT+12}, {vr(vCON+4,4)} offset:{L_WR-L_WO}')
    I('v_cmp_gt_u32 vcc, 8, v0')
    I('s_and_b64 exec, exec, vcc')
    I(f'ds_write_b128 v{vT+12}, {vr(vCON+8,4)} offset:{L_CG-L_WO}')
    I('s_mov_b64 exec, -1')
    srd(sMO, 24, off_imm=WS_MO, size=E * 12)
    srd(sEAO, 24, off_imm=WS_EA, size=E * 32)
    srd(sOUT, 20, size=N * 512)
    srd(sX, 4, size=N * 512)
    I(f's_mov_b32 s{sXSZ}, 0x{N*512:x}')
    I(f's_mov_b32 s{sRC}, {RCAP}')
    I(f's_mov_b32 s{sR0}, 0')
    I(f's_mov_b32 s{sFIRST}, 1')
    C('run table address, x prefetch offsets')
    I(f'v_and_b32 v{vT+1}, 0xff, v0')
    I(f's_lshr_b32 s{sA}, s{sBK}, 2')
    I(f's_lshl_b32 s{sA}, s{sA}, 11')
    I(f's_and_b32 s{sB}, s{sBK}, 3')
    I(f's_add_u32 s{sA}, s{sA}, s{sB}')
    I(f's_lshl_b32 s{sA}, s{sA}, 2')
    I(f'v_mul_u32_u24 v{vG0}, {CH}, v{vT+1}')
    if opt.offl: I(f's_lshl_b32 s{sA}, s{sBK}, 2')
    I(f'v_lshl_add_u32 v{vOFA}, v{vT+1}, {11 if opt.offl else 5}, s{sA}')
    I(f'v_lshrrev_b32 v{vT+3}, 8, v0')
    I(f'v_lshl_add_u32 v{vOFA}, v{vT+3}, {10 if opt.offl else 4}, v{vOFA}')
    LA = opt.la; LB = opt.lb
    I(f'v_mov_b32 v{vT+14}, 0x80000000')
    if opt.rot:
        I(f's_lshr_b32 s{sC}, s{sBK}, 5')
        I(f's_mul_i32 s{sC}, s{sC}, {32*NB*512}')
        I(f's_and_b32 s{sD}, s{sBK}, 31')
        NG = 32
    else:
        I(f's_mov_b32 s{sC}, 0')
        I(f's_mov_b32 s{sD}, s{sBK}')
        NG = 256
    I(f's_mul_i32 s{sA}, s{sD}, {LB*128}')
    I(f's_add_u32 s{sA}, s{sA}, {NG*LA*128}')
    I(f's_add_u32 s{sA}, s{sA}, s{sC}')
    I(f'v_sub_u32 v{vT+15}, 511, v0')
    I(f'v_cmp_gt_u32 vcc, {LB}, v{vT+15}')
    I(f'v_lshlrev_b32 v{vT+13}, 7, v{vT+15}')
    I(f'v_add_u32 v{vPF2}, s{sA}, v{vT+13}')
    I(f'v_cndmask_b32 v{vPF2}, v{vT+14}, v{vPF2}, vcc')
    I(f'v_cmp_gt_u32 vcc, {LA}, v{vT+15}')
    I(f's_mul_i32 s{sA}, s{sD}, {LA*128}')
    I(f's_add_u32 s{sA}, s{sA}, s{sC}')
    I(f'v_add_u32 v{vPF1}, s{sA}, v{vT+13}')
    I(f'v_cndmask_b32 v{vPF1}, v{vT+14}, v{vPF1}, vcc')
    nst = [0]
    def ea_out(k, tag, lg=False):
        if k == 0: return
        if nst[0] >= 13: return
        I(f's_cmp_lg_u32 s{sFIRST}, 1')
        I(f's_cbranch_scc1 L2_noout{tag}')
        I(f'v_lshlrev_b32 v{vSO}, 4, v0')
        first = True
        for _ in range(k):
            j = nst[0]
            if j >= 13: break
            if j: I(f'v_add_u32 v{vSO}, {8192*j if first else 8192}, v{vSO}')
            first = False
            if lg: I(f's_waitcnt lgkmcnt({12-j})')
            if opt.pace and j >= opt.pace: I(f's_waitcnt vmcnt({opt.pace-1})')
            I(f'buffer_store_dwordx4 {vr(vED+4*j,4)}, v{vSO}, {sr(sEAS,4)}, 0 offen sc1')
            nst[0] += 1
        L(f'L2_noout{tag}')
    def xpf(at):
        for reg, pos in ((vPF1, opt.x1), (vPF2, opt.x2)):
            if opt.xpf and pos == at:
                C('pull a share of x towards the chip (one dword per line)')
                I(f's_cmp_eq_u32 s{sFIRST}, 0')
                I(f's_cbranch_scc1 L2_nopf{reg}')
                I(f'buffer_load_dword v{vNUL}, v{reg}, {sr(sX,4)}, 0 offen')
                L(f'L2_nopf{reg}')
    nea = [0]
    def early_static(k=None):
        for _ in range(opt.u if k is None else k):
            j = nea[0]; nea[0] += 1
            I(f's_add_u32 m0, s{sEB}, {8192*j}')
            I('s_nop 0')
            I(f'buffer_load_dwordx4 v{vGA+j}, {sr(sEAO,4)}, 0 offen sc1 lds')
    def bar_b(at):
        if opt.pob == at:
            assert opt.arb < at
            I(f's_cmp_eq_u32 s{sFIRST}, 0')
            I('s_cbranch_scc1 L_polledB')
            I(f's_cmp_lg_u32 s{sW}, 0')
            I('s_cbranch_scc1 L_polledB')
            poll('B', 4096)
        if opt.arb == at:
            assert nst[0] >= 13
            I(f's_waitcnt vmcnt({7 if at == 6 else 0}) lgkmcnt(0)')
        else:
            I('s_waitcnt lgkmcnt(0)')
        I('s_barrier')
        if at != 6: stamp(at, VST)
        if opt.pob == at and not (opt.dl and at == 9): early_static()
        if opt.arb == at:
            I(f's_cmp_lg_u32 s{sFIRST}, 1')
            I('s_cbranch_scc1 L2_arrivedB')
            I(f's_mov_b32 s{sFIRST}, 2')
            I(f's_cmp_lg_u32 s{sW}, 0')
            I('s_cbranch_scc1 L2_arrivedB')
            arrive('B', 4096)
            L('L2_arrivedB')
    xpf(99)
    I('s_waitcnt lgkmcnt(0)')
    I('s_barrier')
    C('constant operands and one-time setup')
    I(f'v_bfe_u32 v{vT}, v0, 5, 1')
    I(f'v_mul_u32_u24 v{vKG11}, 0x10001, v{vT}')
    I(f'v_bfe_u32 v{vT+1}, v0, 2, 2')
    I(f'v_lshl_add_u32 v{vT}, v{vT}, 3, v{vT+1}')
    I(f'v_mul_u32_u24 v{vT}, {TP}, v{vT}')
    I(f'v_add_u32 v{vT}, {L_WO}, v{vT}')
    I(f'v_bfe_u32 v{vT+2}, v0, 4, 1')
    I(f'v_and_b32 v{vT+3}, 3, v0')
    I(f'v_lshl_add_u32 v{vT+4}, v{vT+2}, 5, v{vT}')
    I(f'v_lshl_add_u32 v{vT+4}, v{vT+3}, 3, v{vT+4}')
    I(f'v_lshl_add_u32 v{vT+5}, v{vT+2}, 4, v{vT}')
    I(f'v_and_b32 v{vT+3}, 1, v0')
    I(f'v_lshl_add_u32 v{vT+5}, v{vT+3}, 6, v{vT+5}')
    I(f'v_bfe_u32 v{vT+3}, v0, 1, 1')
    I(f'v_lshl_add_u32 v{vT+5}, v{vT+3}, 3, v{vT+5}')
    I(f'v_lshlrev_b32 v{vT+1}, 3, v{vT+1}')
    I(f'v_add_u32 v{vT+1}, {L_CG}, v{vT+1}')
    for h in range(2):
        for i in range(2):
            I(f'ds_read_b64_tr_b16 {vr(vBE+4*h+2*i,2)}, v{vT+4} offset:{L_WR-L_WO+4*i*TP+64*h}')
    for u in range(4):
        I(f'ds_read_b64_tr_b16 {vr(vCG+2*u,2)}, v{vT+1} offset:{32*u}')
    for tile in range(2):
        I('s_waitcnt lgkmcnt(4)')
        for s in range(4):
            for i in range(2):
                I(f'ds_read_b64_tr_b16 {vr(vWA+16*tile+4*s+2*i,2)}, v{vT+5} offset:{(16*s+4*i)*TP+32*tile}')
    I(f's_mov_b32 s{sM0}, 0x0f0f0f0f'); I(f's_mov_b32 s{sM0+1}, 0x0f0f0f0f')
    I(f's_mov_b32 s{sM1}, 0xf0f0f0f0'); I(f's_mov_b32 s{sM1+1}, 0xf0f0f0f0')
    for r in range(8): I(f'v_mov_b32 v{vA1+r}, 0')
    I(f'v_and_b32 v{vLS}, 31, v0')
    I(f'v_lshlrev_b32 v{vLS}, 4, v{vLS}')
    C('swizzled lane offset inside a row, transposing-read address')
    I(f'v_bfe_u32 v{vT}, v0, 4, 1')
    I(f'v_lshlrev_b32 v{vT}, 6, v{vT}')
    I(f'v_xor_b32 v{vLS}, v{vT}, v{vLS}')
    I(f'v_bfe_u32 v{vT}, v0, 4, 2')
    I(f'v_and_b32 v{vT+3}, 3, v0')
    I(f'v_lshlrev_b32 v{vT+3}, 3, v{vT+3}')
    I(f'v_lshl_add_u32 v{vT}, v{vT}, 5, v{vT+3}')
    I(f'v_bfe_u32 v{vT+3}, v0, 3, 1')
    I(f'v_lshlrev_b32 v{vT+3}, 6, v{vT+3}')
    I(f'v_xor_b32 v{vT}, v{vT}, v{vT+3}')
    I(f'v_bfe_u32 v{vT+3}, v0, 2, 2')
    I(f'v_lshl_add_u32 v{vT}, v{vT+3}, 7, v{vT}')
    I(f's_mul_i32 s3, s{sW}, 6144')
    I(f's_add_u32 s3, s3, {L_RING}')
    for d in range(3):
        I(f's_add_u32 s{sRG+d}, s3, {2048*d}')
        I(f'v_add_u32 v{vRD+d}, s{sRG+d}, v{vT}')
    stamp(4, VST)
    I(f's_cmp_lg_u32 s{sW}, 0')
    I('s_cbranch_scc1 L_polledA')
    poll('A', 0)
    I(f's_waitcnt vmcnt({(opt.xpf and opt.x1 == 99)+(opt.xpf and opt.x2 == 99)}) lgkmcnt(0)')
    I('s_barrier')
    stamp(5, VST)
    C('==== phase B: every chunk has published its keys; this chunk\'s features are in LDS')
    F = vT + 16
    I(f'buffer_load_dword v{F}, v{vOFA}, {sr(sOFF,4)}, 0 offen sc1')
    for j in range(13):
        I(f'ds_read_b128 {vr(vED+4*j,4)}, v{vIA+j}')
    xpf(0)
    ea_out(opt.s0b, '0b', lg=True)
    I(f's_waitcnt vmcnt({nst[0]+(opt.xpf and opt.x1 == 0)+(opt.xpf and opt.x2 == 0)})')
    C('run lengths -> prefix')
    I(f'v_lshrrev_b32 v{vLEN}, 16, v{F}')
    I(f'v_and_b32 v{F}, 0xffff, v{F}')
    I(f'v_mov_b32 v{vT}, v{vLEN}')
    I(f'v_add_u32 v{vG0}, v{vG0}, v{F}')
    wave_scan(vT)
    I(f's_lshl_b32 s{sA}, s{sW}, 2')
    I(f's_add_u32 s{sA}, s{sA}, {L_WT}')
    I(f'v_mov_b32 v{vT+1}, s{sA}')
    I(f'v_sub_u32 v{vPRE}, v{vT}, v{vLEN}')
    I('s_mov_b32 exec_lo, 0')
    I('s_brev_b32 exec_hi, 1')
    I(f'ds_write_b32 v{vT+1}, v{vT}')
    I('s_mov_b64 exec, -1')
    I(f'v_and_b32 v{vT+1}, 7, v0')
    I(f'v_lshlrev_b32 v{vT+1}, 2, v{vT+1}')
    I(f'v_add_u32 v{vT+1}, {L_WT}, v{vT+1}')
    I('s_waitcnt lgkmcnt(0)')
    I('s_barrier')
    I(f'ds_read_b32 v{vT+2}, v{vT+1}')
    I('s_waitcnt lgkmcnt(0)')
    I(f'v_mov_b32 v{vT+3}, v{vT+2}')
    for sh in (1, 2, 4):
        I('s_nop 1')
        I(f'v_add_u32_dpp v{vT+3}, v{vT+3}, v{vT+3} row_shr:{sh} row_mask:0xf bank_mask:0xf')
    I(f'v_sub_u32 v{vT+2}, v{vT+3}, v{vT+2}')
    I(f'v_readlane_b32 s{sTOT}, v{vT+3}, 7')
    I(f'v_readlane_b32 s{sA}, v{vT+2}, s{sW}')
    I(f'v_readlane_b32 s{sT0}, v{vT+3}, 3')
    I('s_nop 0')
    I(f'v_add_u32 v{vPRE}, s{sA}, v{vPRE}')
    ea_out(opt.sx, 'x')
    L('L2_round')
    I(f's_sub_u32 s{sCNT}, s{sTOT}, s{sR0}')
    I(f's_min_u32 s{sCNT}, s{sCNT}, s{sRC}')
    I(f'v_and_b32 v{vLANE}, 63, v0')
    C('expand: GIDX[pre+k-r0] = g0+k for k in window')
    I(f'v_sub_u32 v{vT+1}, s{sR0}, v{vPRE}')
    I(f'v_max_i32 v{vT+2}, 0, v{vT+1}')
    I(f'v_add_u32 v{vT+3}, s{sRC}, v{vT+1}')
    I(f'v_min_i32 v{vT+3}, v{vT+3}, v{vLEN}')
    I(f'v_sub_u32 v{vT+4}, v{vT+2}, v{vT+1}')
    I(f'v_lshlrev_b32 v{vT+4}, 2, v{vT+4}')
    I(f'v_add_u32 v{vT+4}, {L_GI}, v{vT+4}')
    I(f'v_add_u32 v{vT+5}, v{vG0}, v{vT+2}')
    I(f'v_add_u32 v{vT+3}, v{vG0}, v{vT+3}')
    L('L2_exp')
    for j in range(4):
        I(f'v_cmpx_lt_i32 vcc, v{vT+5}, v{vT+3}')
        I(f'ds_write_b32 v{vT+4}, v{vT+5} offset:{4*j}')
        I(f'v_add_u32 v{vT+5}, 1, v{vT+5}')
    I(f'v_add_u32 v{vT+4}, 16, v{vT+4}')
    I('s_cbranch_execnz L2_exp')
    I('s_mov_b64 exec, -1')
    ea_out(opt.sy, 'y')
    C('slots past the end of the window get an out-of-range record number')
    I(f'v_lshlrev_b32 v{vT}, 2, v0')
    I(f'v_add_u32 v{vT}, {L_GI}, v{vT}')
    I(f'v_mov_b32 v{vT+2}, 0x1000000')
    for m in range(7):
        I(f'v_add_u32 v{vT+1}, {512*m}, v0')
        I(f'v_cmp_gt_u32 {sr(sVM+2*m,2)}, s{sCNT}, v{vT+1}')
    for m in range(7):
        I(f's_not_b64 exec, {sr(sVM+2*m,2)}')
        I(f's_cbranch_scc0 L2_nomark{m}')
        I(f'ds_write_b32 v{vT}, v{vT+2} offset:{2048*m}')
        L(f'L2_nomark{m}')
    I('s_mov_b64 exec, -1')
    I(f'v_lshrrev_b32 v{vT+3}, 1, v0')
    I(f'v_lshlrev_b32 v{vT+3}, 2, v{vT+3}')
    I(f'v_add_u32 v{vT+3}, {L_GI}, v{vT+3}')
    I(f'v_and_b32 v{vT+4}, 1, v0')
    I(f'v_lshlrev_b32 v{vT+4}, 4, v{vT+4}')
    I('s_waitcnt lgkmcnt(0)')
    I('s_barrier')
    stamp(6, VST)
    C('record loads')
    G = vT + 6
    for m in range(7):
        I(f'ds_read_b32 v{G+m}, v{vT} offset:{2048*m}')
    for j in range(0, 14, 2):
        I(f'ds_read2st64_b32 {vr(vGA+j,2)}, v{vT+3} offset0:{4*j} offset1:{4*j+4}')
    ea_out(opt.sz, 'z')
    for m in range(7):
        I(f's_waitcnt lgkmcnt({13-m})')
        I(f'v_lshlrev_b32 v{vT+1}, 2, v{G+m}')
        I(f'v_lshl_add_u32 v{vT+1}, v{G+m}, 3, v{vT+1}')
        I(f'buffer_load_dwordx3 {vr(vME+4*m,3)}, v{vT+1}, {sr(sMO,4)}, 0 offen sc1')
    I('s_waitcnt lgkmcnt(0)')
    for j in range(14):
        I(f'v_lshl_add_u32 v{vGA+j}, v{vGA+j}, 5, v{vT+4}')
    n0 = nst[0]
    if opt.s0c:
        I(f's_cmp_eq_u32 s{sFIRST}, 1')
        I('s_cbranch_scc1 L2_more')
        I('s_waitcnt vmcnt(0)')
        L('L2_more')
        ea_out(opt.s0c, '0c')
    nc = nst[0] - n0
    I(f'v_mov_b32 v{vGT}, 0x80000000')
    if opt.arb == 6: bar_b(6)
    for reg, pos in ((vPF1, opt.x1), (vPF2, opt.x2)):
        if opt.xpf and pos == 6:
            C('pull a share of x towards the chip (one dword per line; later rounds: a harmless range-checked read)')
            I(f'buffer_load_dword v{vNUL}, v{reg}, {sr(sX,4)}, 0 offen')
            nc += 1
    C('even split of the window: wave(q) = q*M >> 20 with M = 2^23/(count+1), q = position in node order')
    I(f's_add_u32 s{sA}, s{sCNT}, 1')
    I(f'v_cvt_f32_u32 v{vT}, s{sA}')
    I(f'v_rcp_f32 v{vT}, v{vT}')
    I(f'v_mov_b32 v{vT+2}, 1')
    I(f'v_mul_f32 v{vT}, 0x4b000000, v{vT}')
    I(f'v_cvt_u32_f32 v{vT}, v{vT}')
    I(f'v_lshlrev_b32 v{vT+1}, 3, v{vLANE}')
    I(f'v_readfirstlane_b32 s{sMG}, v{vT}')
    I(f'v_add_u32 v{vT+1}, {L_NC}, v{vT+1}')
    C('rank inside the destination node')
    for m in range(7):
        I(f's_waitcnt vmcnt({6-m+nc})')
        I(f'v_and_b32 v{vCL+m}, 0x1fc, v{vME+4*m}')
        I(f'v_add_u32 v{vCL+m}, {L_NC}, v{vCL+m}')
        I(f's_mov_b64 exec, {sr(sVM+2*m,2)}')
        I(f'ds_add_rtn_u32 v{vRK+m}, v{vCL+m}, v{vT+2}')
        I('s_mov_b64 exec, -1')
    ea_out(opt.s1, 1)
    bar_b(7)
    xpf(7)
    C('node scan (every wave)')
    c0, s0, sn, sf = vT + 4, vT + 6, vT + 8, vT + 10
    I(f'ds_read_b64 {vr(c0,2)}, v{vT+1}')
    I('s_waitcnt lgkmcnt(0)')
    I(f'v_add_u32 v{vT+3}, v{c0}, v{c0+1}')
    I(f'v_mov_b32 v{sn}, v{vT+3}')
    wave_scan(sn)
    I(f'v_sub_u32 v{s0}, v{sn}, v{vT+3}')
    I(f'v_add_u32 v{s0+1}, v{s0}, v{c0}')
    I(f'ds_write_b64 v{vT+1}, {vr(s0,2)} offset:{L_NS-L_NC}')
    for m in range(7):
        I(f'ds_read_b32 v{vCL+m}, v{vCL+m} offset:{L_NS-L_NC}')
    I(f'v_add_u32 v{vT+1}, {L_NS-L_NC}, v{vT+1}')
    I(f'ds_read2_b32 {vr(sf,2)}, v{vT+1} offset0:15 offset1:16')
    def wv(r):
        I(f'v_mul_u32_u24 v{r}, s{sMG}, v{r}')
        I(f'v_lshrrev_b32 v{r}, 20, v{r}')
    for r in (s0, s0 + 1, sn): wv(r)
    C('owned node range of this wave')
    I(f's_mov_b32 exec_hi, 0x1ffff')
    I(f'v_cmp_gt_u32 vcc, s{sW}, v{s0}')
    I(f's_bcnt1_i32_b64 s{sOF}, vcc')
    I(f'v_cmp_gt_u32 vcc, s{sW}, v{s0+1}')
    I(f's_bcnt1_i32_b64 s{sA}, vcc')
    I(f's_add_u32 s{sOF}, s{sOF}, s{sA}')
    I(f'v_cmp_ge_u32 vcc, s{sW}, v{s0}')
    I(f's_bcnt1_i32_b64 s{sON}, vcc')
    I(f'v_cmp_ge_u32 vcc, s{sW}, v{s0+1}')
    I(f's_bcnt1_i32_b64 s{sA}, vcc')
    I(f's_add_u32 s{sON}, s{sON}, s{sA}')
    C('the even split needs: one round, every wave owns 1..15 nodes')
    I(f'v_sub_u32 v{vT+3}, v{s0+1}, v{s0}')
    I(f'v_sub_u32 v{sn}, v{sn}, v{s0+1}')
    I(f'v_max_u32 v{vT+3}, v{vT+3}, v{sn}')
    I(f'v_cmp_lt_u32 {sr(sA,2)}, 1, v{vT+3}')
    I('s_mov_b64 exec, -1')
    I(f'v_readlane_b32 s{sNB}, v{s0+1}, 48')
    I('s_waitcnt lgkmcnt(0)')
    for r in (sf, sf + 1): wv(r)
    I(f's_mov_b32 exec_hi, 0x3ff')
    I(f'v_cmp_ge_u32 vcc, v{s0}, v{sf}')
    I(f's_or_b64 {sr(sA,2)}, {sr(sA,2)}, vcc')
    I(f's_mov_b32 exec_hi, 0x1ff')
    I(f'v_cmp_ge_u32 vcc, v{s0+1}, v{sf+1}')
    I(f's_or_b64 {sr(sA,2)}, {sr(sA,2)}, vcc')
    I('s_mov_b64 exec, -1')
    I('s_cbranch_scc1 L2_static')
    I(f's_cmp_lg_u32 s{sNB}, 7')
    I('s_cbranch_scc1 L2_static')
    I(f's_cmp_lg_u32 s{sCNT}, s{sTOT}')
    I('s_cbranch_scc1 L2_static')
    if not opt.dyn: I('s_branch L2_static')
    for m in range(7):
        I(f'v_add_u32 v{vRK+m}, v{vRK+m}, v{vCL+m}')
        I(f'v_mul_u32_u24 v{vRK+m}, s{sMG}, v{vRK+m}')
        I(f'v_lshrrev_b32 v{vRK+m}, 20, v{vRK+m}')
        I(f'v_lshrrev_b32 v{vCL+m}, 27, v{vME+4*m}')
        I(f'v_lshl_add_u32 v{vCL+m}, v{vRK+m}, 5, v{vCL+m}')
    I('s_branch L2_cells')
    L('L2_static')
    I(f's_mul_i32 s{sOF}, s{sW}, {NB}')
    I(f's_add_u32 s{sON}, s{sOF}, {NB+7}')
    I(f's_add_u32 s{sOF}, s{sOF}, 7')
    I(f's_lshr_b32 s{sOF}, s{sOF}, 3')
    I(f's_lshr_b32 s{sON}, s{sON}, 3')
    for m in range(7):
        I(f'v_bfe_u32 v{vRK+m}, v{vME+4*m}, 24, 3')
        I(f'v_lshrrev_b32 v{vCL+m}, 27, v{vME+4*m}')
        I(f'v_lshl_add_u32 v{vCL+m}, v{vRK+m}, 5, v{vCL+m}')
    L('L2_cells')
    for m in range(7):
        I(f'v_lshlrev_b32 v{vCL+m}, 2, v{vCL+m}')
        I(f'v_add_u32 v{vCL+m}, {L_CNT}, v{vCL+m}')
        I(f's_mov_b64 exec, {sr(sVM+2*m,2)}')
        I(f'ds_add_rtn_u32 v{vRK+m}, v{vCL+m}, v{vT+2}')
        I('s_mov_b64 exec, -1')
    ea_out(opt.s2, 2)
    I(f'v_lshlrev_b32 v{vT}, 4, v{vLANE}')
    I(f'v_add_u32 v{vT}, {L_CNT}, v{vT}')
    bar_b(8)
    xpf(8)
    C('cell scan (every wave), lists padded to 16')
    cnt, st = vT + 14, vT + 18
    I(f'ds_read_b128 {vr(cnt,4)}, v{vT}')
    I(f'v_and_b32 v{vT+4}, 7, v0')
    I(f'v_cmp_eq_u32 {sr(sA,2)}, 7, v{vT+4}')
    I('s_waitcnt lgkmcnt(0)')
    I(f'v_add_u32 v{st+1}, v{cnt}, v{cnt+1}')
    I(f'v_add_u32 v{st+2}, v{st+1}, v{cnt+2}')
    I(f'v_add_u32 v{vT+1}, v{st+2}, v{cnt+3}')
    I('s_nop 1')
    I(f'v_add_u32_dpp v{vT+2}, v{vT+1}, v{vT+1} quad_perm:[1,0,3,2] row_mask:0xf bank_mask:0xf')
    I('s_nop 1')
    I(f'v_add_u32_dpp v{vT+2}, v{vT+2}, v{vT+2} quad_perm:[2,3,0,1] row_mask:0xf bank_mask:0xf')
    I('s_nop 1')
    I(f'v_add_u32_dpp v{vT+2}, v{vT+2}, v{vT+2} row_half_mirror row_mask:0xf bank_mask:0xf')
    I(f'v_add_u32 v{vT+3}, 15, v{vT+2}')
    I(f'v_and_b32 v{vT+3}, -16, v{vT+3}')
    I(f'v_sub_u32 v{vT+2}, v{vT+3}, v{vT+2}')
    I(f'v_cndmask_b32 v{vT+2}, 0, v{vT+2}, {sr(sA,2)}')
    I(f'v_add_u32 v{vT+1}, v{vT+1}, v{vT+2}')
    I(f'v_mov_b32 v{vT+2}, v{vT+1}')
    wave_scan(vT + 2)
    I(f'v_sub_u32 v{st}, v{vT+2}, v{vT+1}')
    I(f'v_add_u32 v{st+3}, v{st}, v{st+2}')
    I(f'v_add_u32 v{st+2}, v{st}, v{st+1}')
    I(f'v_add_u32 v{st+1}, v{st}, v{cnt}')
    I(f'ds_write_b128 v{vT}, {vr(st,4)} offset:{L_ST-L_CNT}')
    for m in range(7):
        I(f'ds_read_b32 v{vCL+m}, v{vCL+m} offset:{L_ST-L_CNT}')
    C('early-phase length of every list: start of bin SPLIT minus list start (in lane 8*wave)')
    sl_lane, sl_reg = opt.split >> 2, opt.split & 3
    if sl_lane: I(f'v_sub_u32_dpp v{vT+5}, v{st+sl_reg}, v{st} row_shl:{sl_lane} row_mask:0xf bank_mask:0xf')
    else: I(f'v_sub_u32 v{vT+5}, v{st+sl_reg}, v{st}')
    I(f's_lshl_b32 s{sA}, s{sW}, 3')
    I(f'v_readlane_b32 s{sNB}, v{vT+3}, s{sA}')
    I(f'v_readlane_b32 s{sI}, v{st}, s{sA}')
    I(f'v_readlane_b32 s{sNBM}, v{vT+3}, 0')
    I(f'v_readlane_b32 s{sK0}, v{vT+5}, 0')
    for g in range(1, 8):
        I(f'v_readlane_b32 s{sA}, v{vT+3}, {8*g}')
        I(f'v_readlane_b32 s{sB}, v{vT+5}, {8*g}')
        I(f's_max_u32 s{sNBM}, s{sNBM}, s{sA}')
        I(f's_min_u32 s{sK0}, s{sK0}, s{sB}')
    I(f's_lshr_b32 s{sNB}, s{sNB}, 4')
    I(f's_lshr_b32 s{sNBM}, s{sNBM}, 4')
    C('a list longer than the register copies hold: redo this round with a small window')
    I(f's_cmp_le_u32 s{sNBM}, 32')
    I('s_cbranch_scc1 L2_fits')
    I(f's_mov_b32 s{sRC}, {RSMALL}')
    I('s_waitcnt vmcnt(0) lgkmcnt(0)')
    I('s_branch L2_again')
    L('L2_fits')
    early_static(opt.u2)
    I(f'v_lshlrev_b32 v{vT+4}, 17, v0')
    I('s_waitcnt lgkmcnt(0)')
    for m in range(7):
        I(f'v_add_u32 v{vRK+m}, v{vRK+m}, v{vCL+m}')
        I(f'v_lshlrev_b32 v{vT}, 2, v{vRK+m}')
        I(f'v_add_u32 v{vT}, {L_KI}, v{vT}')
        I(f'v_lshlrev_b32 v{vT+1}, 3, v{vRK+m}')
        I(f'v_add_u32 v{vT+1}, {L_SH}, v{vT+1}')
        I(f'v_add_u32 v{vT+2}, {L_SLOT}, v{vRK+m}')
        I(f'v_bfe_u32 v{vT+3}, v{vME+4*m}, 9, 15')
        I(f'v_or_b32 v{vT+3}, v{vT+3}, v{vT+4}')
        I(f'v_and_b32 v{vME+4*m}, 0x3c, v{vME+4*m}')
        I(f's_mov_b64 exec, {sr(sVM+2*m,2)}')
        I(f'ds_write_b32 v{vT}, v{vT+3}')
        I(f'ds_write_b8 v{vT+2}, v{vME+4*m}')
        I(f'ds_write2_b32 v{vT+1}, v{vME+4*m+1}, v{vME+4*m+2} offset0:0 offset1:1')
        I('s_mov_b64 exec, -1')
        if m < 6: I(f'v_add_u32 v{vT+4}, {512<<17}, v{vT+4}')
    ea_out(13, 3)
    early_static(opt.u3)
    U = opt.u + opt.u2 + opt.u3
    assert opt.pob <= 8 or opt.u2 + opt.u3 == 0
    assert 4 <= U <= 13
    C('which feature passes must land before the main loop')
    I(f's_sub_i32 s{sA}, s{sT0}, s{sR0}')
    I(f's_max_i32 s{sA}, s{sA}, 0')
    I(f's_add_u32 s{sA}, s{sA}, 255')
    I(f's_lshr_b32 s{sA}, s{sA}, 8')
    I(f's_max_u32 s{sA}, s{sA}, {U}')
    I(f's_add_u32 s{sB}, s{sCNT}, 255')
    I(f's_lshr_b32 s{sB}, s{sB}, 8')
    I(f's_lshr_b32 s{sK0}, s{sK0}, 4')
    I(f's_sub_i32 s{sK0}, s{sK0}, 1')
    I(f's_sub_i32 s{sB}, s{sB}, s{sA}')
    I(f's_mul_i32 s{sC}, s{sK0}, {opt.lpb}')
    I(f's_cmp_le_i32 s{sB}, s{sC}')
    I(f's_cselect_b32 s{sPJ}, s{sA}, 14')
    I(f's_cselect_b32 s{sK0}, s{sK0}, -1')
    I(f's_cmp_gt_i32 s{sB}, 0')
    I(f's_cselect_b32 s{sK0}, s{sK0}, -1')
    if not opt.late:
        I(f's_mov_b32 s{sPJ}, 14'); I(f's_mov_b32 s{sK0}, -1')
    I(f's_lshl_b32 s{sA}, s{sW}, 5')
    I(f's_sub_i32 s{sNP}, s{sCNT}, s{sA}')
    I(f's_add_i32 s{sNP}, s{sNP}, 255')
    I(f's_lshr_b32 s{sNP}, s{sNP}, 8')
    C('read-back addresses')
    I(f'v_bfe_u32 v{vT}, v0, 3, 1')
    I(f'v_bfe_u32 v{vT+1}, v0, 5, 1')
    I(f'v_lshl_add_u32 v{vT}, v{vT}, 1, v{vT+1}')
    I(f'v_and_b32 v{vT+2}, 7, v0')
    I(f'v_lshl_add_u32 v{vT}, v{vT}, 3, v{vT+2}')
    I(f'v_add_u32 v{vT}, s{sI}, v{vT}')
    I(f'v_lshlrev_b32 v{vT}, 2, v{vT}')
    I(f'v_add_u32 v{vT}, {L_KI}, v{vT}')
    I(f'v_and_b32 v{vT+2}, 3, v0')
    I(f'v_lshrrev_b32 v{vT+3}, 2, v{vLANE}')
    I(f'v_lshl_add_u32 v{vT+3}, v{vT+2}, 4, v{vT+3}')
    I(f'v_add_u32 v{vT+3}, s{sI}, v{vT+3}')
    I(f'v_lshlrev_b32 v{vT+3}, 3, v{vT+3}')
    I(f'v_add_u32 v{vT+3}, {L_SH}, v{vT+3}')
    I(f'v_lshl_add_u32 v{vT+4}, v{vLANE}, 3, s{sI}')
    I(f'v_add_u32 v{vT+4}, {L_SLOT}, v{vT+4}')
    I(f'v_bfe_u32 v{vT+5}, v0, 3, 2')
    I(f'v_lshl_add_u32 v{vT+5}, v{vT+5}, 2, v{vT+2}')
    I(f'v_add_u32 v{vT+5}, s{sI}, v{vT+5}')
    I(f'v_lshlrev_b32 v{vT+5}, 2, v{vT+5}')
    I(f'v_add_u32 v{vT+5}, {L_KI}, v{vT+5}')
    I(f'v_add_u32 v{vT+6}, 1024, v{vT}')
    I(f'v_add_u32 v{vT+7}, 1024, v{vT+5}')
    bar_b(9)
    xpf(9)
    IT = vT + 8
    for g in range(0, 16, 2):
        I(f'ds_read2_b32 {vr(vKQ+g,2)}, v{vT+(6 if g >= 8 else 0)} offset0:{32*g%256} offset1:{32*(g+1)%256}')
    I(f'ds_read_b64 {vr(vSL,2)}, v{vT+4}')
    for g in range(16):
        if g in (4, 10): I('s_waitcnt lgkmcnt(7)')
        I(f'ds_read2_b32 {vr(IT+2*g,2)}, v{vT+(7 if g >= 8 else 5)} offset0:{32*g%256} offset1:{32*g%256+16}')
    I('s_waitcnt lgkmcnt(6)')
    for g in range(8):
        I(f'ds_read_b64 {vr(vSQ+2*g,2)}, v{vT+3} offset:{512*g}')
    if opt.dl and opt.pob == 9: early_static()
    assert opt.pob <= 9 and opt.x1 != 10 and opt.x2 != 10
    I(f's_mov_b32 s{sA}, {U}')
    I(f's_min_u32 s{sB}, s{sPJ}, s{sNP}')
    L('L2_early')
    I(f's_cmp_ge_u32 s{sA}, s{sB}')
    I('s_cbranch_scc1 L2_early_done')
    I(f's_set_gpr_idx_on s{sA}, gpr_idx(SRC0)')
    I(f'v_mov_b32 v{vGT}, v{vGA}')
    I('s_set_gpr_idx_off')
    I(f's_lshl_b32 m0, s{sA}, 13')
    I(f's_add_u32 m0, m0, s{sEB}')
    I(f's_add_u32 s{sA}, s{sA}, 1')
    I(f'buffer_load_dwordx4 v{vGT}, {sr(sEAO,4)}, 0 offen sc1 lds')
    I('s_branch L2_early')
    L('L2_early_done')
    for g in range(16):
        I(f'v_lshlrev_b32_sdwa v{vKQ+g}, 9, v{vKQ+g} dst_sel:DWORD dst_unused:UNUSED_PAD src0_sel:DWORD src1_sel:WORD_0')
    I(f'v_mov_b32 v{vK}, v{vKQ}')
    def fetch(sig, lane):
        I(f'v_add_u32_dpp v{vAD}, v{vK}, v{vLS} row_newbcast:{lane} row_mask:0xf bank_mask:0xf')

    bar_b(10)
    I(f's_cmp_lg_u32 s{sNB}, 0')
    I(f's_cselect_b32 s{sX+2}, s{sXSZ}, 0')
    for sig in range(6):
        I(f's_add_u32 m0, s{sRG+(sig>>1)}, {1024*(sig&1)}')
        fetch(sig, sig)
        I(f'buffer_load_dwordx4 v{vAD}, {sr(sX,4)}, 0 offen lds')
    I(f's_mov_b32 s{sA}, 0x07060302')
    for g in range(16):
        I(f'v_perm_b32 v{vIQ+g}, v{IT+2*g+1}, v{IT+2*g}, s{sA}')
    def ea_reads(word):
        I(f'v_lshlrev_b32_sdwa v{vEAA}, 4, v{vIC} dst_sel:DWORD dst_unused:UNUSED_PAD src0_sel:DWORD src1_sel:WORD_{word}')
        I(f's_mov_b64 exec, {sr(sM0,2)}')
        I(f'ds_read_b128 {vr(vA1,4)}, v{vEAA}')
        I(f's_mov_b64 exec, {sr(sM1,2)}')
        I(f'ds_read_b128 {vr(vA2,4)}, v{vEAA}')
        I('s_mov_b64 exec, -1')
    def rw_mfma(p):
        I(f'v_mfma_f32_32x32x16_bf16 {vr(vRW+16*p,16)}, {vr(vA1,4)}, {vr(vBE,4)}, 0')
        I(f'v_mfma_f32_32x32x16_bf16 {vr(vRW+16*p,16)}, {vr(vA2,4)}, {vr(vBO,4)}, {vr(vRW+16*p,16)}')
    def sh_bcast(i):
        for j in range(2):
            I(f'v_mov_b32_dpp v{vSHR+j}, v{vSHC+j} quad_perm:[{i},{i},{i},{i}] row_mask:0xf bank_mask:0xf')
    def ae_dots():
        for u in range(4):
            I(f'v_dot2_f32_bf16 v{vTT+u}, v{vSHR}, v{vCG+2*u}, 0')
        for u in range(4):
            I(f'v_dot2_f32_bf16 v{vTT+u}, v{vSHR+1}, v{vCG+2*u+1}, v{vTT+u}')
    def ae_cvt(p):
        I(f'v_cvt_pk_bf16_f32 v{vAE+2*p}, v{vTT}, v{vTT+1}')
        I(f'v_cvt_pk_bf16_f32 v{vAE+2*p+1}, v{vTT+2}, v{vTT+3}')
    def mfmas(p, s):
        d = vDT; b = vB
        I(f'v_mfma_f32_4x4x4_16b_bf16 {vr(d,4)}, {vr(vAE+2*p,2)}, {vr(b,2)}, 0 cbsz:4 abid:{s}')
        I(f'v_mfma_f32_4x4x4_16b_bf16 {vr(d+4,4)}, {vr(vAE+2*p,2)}, {vr(b+2,2)}, 0 cbsz:4 abid:{8+s}')
    def fmas(p, s):
        d = vDT
        for h, e in ((0, s), (1, 8 + s)):
            sl = (sSB0 if h else sSA0) + (s >> 2)
            I(f's_set_gpr_idx_on s{sl}, gpr_idx(SRC2,DST)' if h == 0 else f's_set_gpr_idx_idx s{sl}')
            r = vRW + 16 * p + (e & ~1)
            mod = 'op_sel:[0,1,0] op_sel_hi:[1,1,1]' if e & 1 else 'op_sel_hi:[1,0,1]'
            I(f'v_pk_fma_f32 {vr(vACC,2)}, {vr(d+4*h,2)}, {vr(r,2)}, {vr(vACC,2)} {mod}')
            if (s & 3) != 3: I(f's_lshr_b32 s{sl}, s{sl}, 8')
            I(f'v_pk_fma_f32 {vr(vACC+2,2)}, {vr(d+4*h+2,2)}, {vr(r,2)}, {vr(vACC+2,2)} {mod}')
        I('s_set_gpr_idx_off')

    C('operands of batch 0 that do not need the edge features')
    I(f'v_or_b32 v{vIC}, v{vIQ}, v{vKG11}')
    I(f'v_mov_b32 v{vSHC}, v{vSQ}')
    I(f'v_mov_b32 v{vSHC+1}, v{vSQ+1}')
    I(f'v_readlane_b32 s{sSA0}, v{vSL}, 0')
    I(f'v_readlane_b32 s{sSB0}, v{vSL}, 1')
    sh_bcast(0)
    ae_dots()
    I(f's_mov_b32 s{sSA1}, {DUMMY}')
    I(f's_mov_b32 s{sSB1}, {DUMMY}')
    I(f's_mov_b32 s{sI}, 0')
    I(f's_mov_b32 s{sLN}, 0')
    I(f's_mov_b32 s{sKI}, 0')
    I(f's_mov_b32 s{sSI}, 0')
    ae_cvt(0)
    I(f's_cmp_eq_u32 s{sFIRST}, 0')
    I('s_cbranch_scc1 L2_haveB')
    xpf(10)
    I(f's_mov_b32 s{sFIRST}, 0')
    for r in range(57): I(f'v_mov_b32 v{vACC+r}, 0')
    if opt.pob == 11:
        I(f's_cmp_lg_u32 s{sW}, 0')
        I('s_cbranch_scc1 L_polledB')
        poll('B', 4096)
    for r in range(57, 68): I(f'v_mov_b32 v{vACC+r}, 0')
    if opt.pob == 11: I('s_barrier')
    L('L2_haveB')
    stamp(11, VST)
    C('early feature passes, then the first row fetches')
    if opt.pob == 11: early_static()
    I('s_waitcnt vmcnt(6)')
    I('s_barrier')
    stamp(12, VST)
    I(f's_cmp_eq_u32 s{sNB}, 0')
    I('s_cbranch_scc1 L2_drain')
    ea_reads(0)
    I('s_waitcnt lgkmcnt(0)')
    rw_mfma(0)
    L('L2_loop')
    for p in range(2):
        C(f'batch parity {p}')
        if opt.prio and p == 0:
            I(f's_cmp_lt_u32 s{sW}, 4')
            I('s_cbranch_scc1 L2_prio')
            I('s_setprio 1')
            L('L2_prio')
        if opt.prio and p == 1: I('s_setprio 0')
        I(f's_add_u32 s{sI}, s{sI}, 1')
        for s in range(8):
            sig = 8 * p + s
            d = (sig >> 1) % 3
            so = 1024 * (sig & 1)
            if s == 2:
                I(f's_cmp_lt_u32 s{sI}, s{sNB}')
                I(f's_cselect_b32 s{sX+2}, s{sXSZ}, 0')
            I('s_waitcnt vmcnt(5)')
            I(f'ds_read_b64_tr_b16 {vr(vB,2)}, v{vRD+d} offset:{so}')
            I(f'ds_read_b64_tr_b16 {vr(vB+2,2)}, v{vRD+d} offset:{so+512}')
            k = 0
            if s == 2:
                ea_reads(p ^ 1); k = 2
            fetch(sig, (sig + 6) % 16)
            if s == 0: fmas(p ^ 1, 7)
            else: fmas(p, s - 1)
            if s == 0:
                I(f's_add_u32 s{sA}, s{sLN}, 1')
                I(f'v_readlane_b32 s{sSA1}, v{vSL+1}, s{sLN}')
                I(f'v_readlane_b32 s{sSB1}, v{vSL+1}, s{sA}')
            if s == 5:
                I(f's_add_u32 s{sLN}, s{sLN}, 2')
                I(f's_add_u32 s{sA}, s{sLN}, 1')
                I(f'v_readlane_b32 s{sSA0}, v{vSL}, s{sLN}')
                I(f'v_readlane_b32 s{sSB0}, v{vSL}, s{sA}')
            if sig == 9:
                I(f's_add_u32 s{sKI}, s{sKI}, 1')
                I(f's_set_gpr_idx_on s{sKI}, gpr_idx(SRC0)')
                I(f'v_mov_b32 v{vK}, v{vKQ}')
                I(f'v_or_b32 v{vIC}, v{vIQ}, v{vKG11}')
                I('s_set_gpr_idx_off')
            if s == 2 and p == 1:
                I(f's_bitcmp1_b32 s{sI}, 1')
                I('s_cbranch_scc1 L2_shrot')
                I(f's_add_u32 s{sSI}, s{sSI}, 2')
                I(f's_set_gpr_idx_on s{sSI}, gpr_idx(SRC0)')
                I(f'v_mov_b32 v{vSHC}, v{vSQ}')
                I(f'v_mov_b32 v{vSHC+1}, v{vSQ+1}')
                I('s_set_gpr_idx_off')
                I('s_branch L2_shdone')
                L('L2_shrot')
                for j in range(2):
                    I(f'v_mov_b32_dpp v{vSHC+j}, v{vSHC+j} quad_perm:[2,3,0,1] row_mask:0xf bank_mask:0xf')
                L('L2_shdone')
            if s == 3: sh_bcast(p ^ 1)
            I(f's_add_u32 m0, s{sRG+d}, {so}')
            I(f's_waitcnt lgkmcnt({k})')
            I(f'buffer_load_dwordx4 v{vAD}, {sr(sX,4)}, 0 offen lds')
            mfmas(p, s)
            if s < opt.lpb:
                C('late feature pass')
                I(f's_cmp_ge_u32 s{sPJ}, s{sNP}')
                I(f's_cbranch_scc1 L2_nolate{p}{s}')
                I(f's_set_gpr_idx_on s{sPJ}, gpr_idx(SRC0)')
                I(f'v_mov_b32 v{vGT}, v{vGA}')
                I('s_set_gpr_idx_off')
                I(f's_lshl_b32 m0, s{sPJ}, 13')
                I(f's_add_u32 m0, m0, s{sEB}')
                I(f's_add_u32 s{sPJ}, s{sPJ}, 1')
                I(f'buffer_load_dwordx4 v{vGT}, {sr(sEAO,4)}, 0 offen sc1 lds')
                L(f'L2_nolate{p}{s}')
            if s == 3: rw_mfma(p ^ 1)
            if s == 4: ae_dots()
            if s == 5: ae_cvt(p ^ 1)
        if p == 1:
            I(f'v_mov_b32 v{vGT}, v{vRD+2}'); I(f'v_mov_b32 v{vRD+2}, v{vRD+1}'); I(f'v_mov_b32 v{vRD+1}, v{vRD}'); I(f'v_mov_b32 v{vRD}, v{vGT}')
            I(f's_mov_b32 s{sRG+3}, s{sRG+2}'); I(f's_mov_b32 s{sRG+2}, s{sRG+1}'); I(f's_mov_b32 s{sRG+1}, s{sRG}'); I(f's_mov_b32 s{sRG}, s{sRG+3}')
        I(f's_cmp_lg_u32 s{sI}, s{sK0}')
        I(f's_cbranch_scc1 L2_nosync{p}')
        C('all late features have landed (every wave waited for its own passes above)')
        I('s_barrier')
        L(f'L2_nosync{p}')
        I(f's_cmp_lt_u32 s{sI}, s{sNB}')
        if p == 0: I('s_cbranch_scc0 L2_tail0')
        else: I('s_cbranch_scc1 L2_loop')
    for p in (1, 0):
        if p == 0: L('L2_tail0')
        I('s_nop 4')
        fmas(p, 7)
        if p == 1: I('s_branch L2_drain')
    L('L2_drain')
    I('s_waitcnt vmcnt(0) lgkmcnt(0)')
    stamp(13, VST)
    I(f's_add_u32 s{sR0}, s{sR0}, s{sRC}')
    I(f's_cmp_ge_u32 s{sR0}, s{sTOT}')
    I('s_cbranch_scc1 L2_epi')
    L('L2_again')
    I('s_barrier')
    prefill()
    I('s_branch L2_round')

    L('L2_epi')
    C('---- epilogue: hand the partial sums of a shared node to its owner (the previous wave)')
    vP = 132
    vT = 228
    vLANE, vLO = vT + 16, vT + 17
    vBA, vOW, vOR, vO = vT + 2, vT + 3, vT + 4, vT + 8
    I(f'v_and_b32 v{vLANE}, 63, v0')
    I(f's_sub_u32 s{sA}, s{sOF}, 1')
    I(f's_and_b32 s{sA}, s{sA}, 15')
    I(f's_lshl_b32 s{sA}, s{sA}, 2')
    I(f'v_lshl_add_u32 v{vT}, v{vLANE}, 4, s3')
    I(f's_set_gpr_idx_on s{sA}, gpr_idx(SRC0)')
    for k in range(4): I(f'v_mov_b32 v{vP+k}, v{vACC+k}')
    I('s_set_gpr_idx_off')
    I(f'ds_write_b128 v{vT}, {vr(vP,4)} offset:5120')
    I(f'v_mul_u32_u24 v{vT+1}, {TC}, v{vLANE}')
    I(f'v_add_u32 v{vT+1}, s3, v{vT+1}')
    I(f'v_bfe_u32 v{vT+5}, v0, 5, 1')
    I(f'v_bfe_u32 v{vT+6}, v0, 2, 2')
    I(f'v_lshl_add_u32 v{vBA}, v{vT+5}, 3, v{vT+6}')
    I(f'v_mul_u32_u24 v{vBA}, {TC}, v{vBA}')
    I(f'v_bfe_u32 v{vT+6}, v0, 4, 1')
    I(f'v_lshl_add_u32 v{vBA}, v{vT+6}, 5, v{vBA}')
    I(f'v_and_b32 v{vT+6}, 3, v0')
    I(f'v_lshl_add_u32 v{vBA}, v{vT+6}, 3, v{vBA}')
    I(f'v_add_u32 v{vBA}, s3, v{vBA}')
    C('restage addresses')
    I(f'v_and_b32 v{vLO}, 31, v0')
    I(f'v_mul_u32_u24 v{vOW}, {TP}, v{vLO}')
    I(f'v_lshl_add_u32 v{vOW}, v{vT+5}, 6, v{vOW}')
    I(f'v_add_u32 v{vOW}, s3, v{vOW}')
    I(f'v_lshrrev_b32 v{vOR}, 3, v{vLANE}')
    I(f'v_mul_u32_u24 v{vOR}, {TP}, v{vOR}')
    I(f'v_and_b32 v{vT+6}, 7, v0')
    I(f'v_lshl_add_u32 v{vOR}, v{vT+6}, 4, v{vOR}')
    I(f'v_add_u32 v{vOR}, s3, v{vOR}')
    C('output offsets: store it covers slots 2it (lower lanes) and 2it+1 (upper lanes)')
    I(f's_mul_i32 s{sB}, s{sBK}, {NB}')
    I(f's_add_u32 s{sB}, s{sB}, s{sOF}')
    I(f's_lshl_b32 s{sB}, s{sB}, 9')
    I(f'v_lshl_add_u32 v{vLO}, v{vLO}, 4, s{sB}')
    I(f's_sub_u32 s{sB}, s{sON}, s{sOF}')
    I(f'v_subrev_u32 v{vT+6}, s{sOF}, v{vT+5}')
    I(f'v_mov_b32 v{vT+7}, 0x80000000')
    for it in range(8):
        I(f'v_add_u32 v{vO+it}, {2*it}, v{vT+6}')
        I(f'v_and_b32 v{vO+it}, 15, v{vO+it}')
        I(f'v_cmp_gt_u32 {sr(sVM,2)}, s{sB}, v{vO+it}')
        I(f'v_lshl_add_u32 v{vO+it}, v{vO+it}, 9, v{vLO}')
        I('s_nop 0')
        I(f'v_cndmask_b32 v{vO+it}, v{vT+7}, v{vO+it}, {sr(sVM,2)}')
    I(f's_sub_u32 s{sA}, s{sON}, 1')
    I(f's_and_b32 s{sA}, s{sA}, 15')
    I(f's_lshl_b32 s{sA}, s{sA}, 2')
    I(f's_cmp_eq_u32 s{sW}, 7')
    I(f's_cselect_b32 s{sA}, {DUMMY}, s{sA}')
    I('s_waitcnt lgkmcnt(0)')
    I('s_barrier')
    I(f'ds_read_b128 {vr(vP,4)}, v{vT} offset:{6144+5120}')
    I('s_waitcnt lgkmcnt(0)')
    I(f's_set_gpr_idx_on s{sA}, gpr_idx(SRC0,DST)')
    for k in range(4): I(f'v_add_f32 v{vACC+k}, v{vACC+k}, v{vP+k}')
    I('s_set_gpr_idx_off')
    C('out = agg @ w_out, staged through this wave\'s own ring')
    vBB = 164
    vD = 8
    for ct in range(2):
        for i in range(4 * ct, 4 * ct + 4):
            for k in range(4):
                I(f'v_cvt_pk_bf16_f32 v{vP+4*i+k}, v{vACC+8*i+2*k}, v{vACC+8*i+2*k+1}')
            if ct and i == 4: I('s_waitcnt lgkmcnt(3)')
            I(f'ds_write_b128 v{vT+1}, {vr(vP+4*i,4)} offset:{16*(i&3)}')
        for s in range(4):
            for i in range(2):
                I(f'ds_read_b64_tr_b16 {vr(vBB+16*ct+4*s+2*i,2)}, v{vBA} offset:{(16*s+4*i)*TC}')
    for ct in range(2):
        I(f's_waitcnt lgkmcnt({12 if ct == 0 else 0})')
        for tile in range(2):
            d = vD + 32 * ct + 16 * tile
            for s in range(4):
                I(f'v_mfma_f32_32x32x16_bf16 {vr(d,16)}, {vr(vWA+16*tile+4*s,4)}, {vr(vBB+16*ct+4*s,4)}, {vr(d,16) if s else 0}')
    I('s_nop 3')
    vPK = 132
    vRB = 196
    sco = ' sc1'
    for ct in range(2):
        for k in range(16):
            I(f'v_cvt_pk_bf16_f32 v{vPK+16*ct+k}, v{vD+32*ct+2*k}, v{vD+32*ct+2*k+1}')
        for i in range(4):
            I(f'ds_write_b128 v{vOW}, {vr(vPK+16*ct+4*i,4)} offset:{16*i}')
        its = list(range(4 * ct, 4 * ct + 4))
        for it in its:
            I(f'ds_read_b128 {vr(vRB+4*it,4)}, v{vOR} offset:{8*(it&3)*TP}')
        for it in its:
            I(f's_waitcnt lgkmcnt({its[-1]-it})')
            I(f'buffer_store_dwordx4 {vr(vRB+4*it,4)}, v{vO+it}, {sr(sOUT,4)}, 0 offen{sco}')
    stamp(14, VST)
    if opt.stamps: I('s_waitcnt vmcnt(0)')
    stamp(15, VST); stamp_flush(VST, vGT)
    if opt.dbg:
        I(f's_cmp_lg_u32 s2, {opt.dbg}')
        I('s_cbranch_scc1 L2_end')
        I(f's_cmp_lg_u32 s{sW}, 0')
        I('s_cbranch_scc1 L2_end')
        I(f'v_readlane_b32 s{sA}, v{VST}, 0')
        srd(Q0, 22, size=64)
        I(f'v_subrev_u32 v{vAD}, s{sA}, v{VST}')
        I(f'v_lshlrev_b32 v{vGT}, 2, v0')
        I('s_mov_b64 exec, 0xfffe')
        I(f'buffer_store_dword v{vAD}, v{vGT}, {sr(Q0,4)}, 0 offen')
        if opt.amp:
            I(f'v_readlane_b32 s{sB}, v{VST}, {opt.amp}')
            I(f's_sub_u32 s{sB}, s{sB}, s{sA}')
            I(f's_mul_i32 s{sB}, s{sB}, {opt.ampk}')
            I(f's_min_u32 s{sB}, s{sB}, 100000')
            I(f's_add_u32 s{sB}, s{sB}, 5000')
            L('L2_amp')
            I('s_memrealtime s[100:101]')
            I('s_waitcnt lgkmcnt(0)')
            I(f's_sub_u32 s100, s100, s{sA}')
            I(f's_cmp_lt_u32 s100, s{sB}')
            I('s_cbranch_scc1 L2_amp')
    L('L2_end')
    I('s_endpgm')

emit1(NAME, gen, 256, 512, K2_LDS, 256, 102)
```

```python
from common import *
parse(dict(stamps=0, nt=1, a0=2, a1=1, a2=1, a3=1, a4=2, s1=0, s2=0, split=12, lpb=1, late=1, la=0, lb=392, dyn=1, prio=1, xpf=1, s0b=13, arb=6, x1=99, x2=7, pob=9, u=6, s0c=0, slp=4, dl=0, u2=0, u3=0, pace=0, sx=0, sy=0, sz=0, offl=0, rot=1, dbg=0, amp=0, ampk=4, tfirst=0, nodbgst=0))
NAME = 'standalone__tensor_product_equiv_mace__graph_kernel'
CH = 3136
NB = 98
RCAP = 3520
CAPX = 3640
WS_EA = 0
WS_MO = WS_EA + 256 * CH * 32
WS_OFF = WS_MO + 256 * CH * 12
WS_SYNC = WS_OFF + 524288
SPLIT = opt.split * 1024
SPIN = 1 << 20
L_RING = RCAP * 32
L_SH = L_RING
L_KI = L_SH + CAPX * 8
L_SLOT = L_KI + CAPX * 4
L_CNT = L_SLOT + 3648
L_NC = L_CNT + 1024
L_ST = L_NC + 512
L_NS = L_ST + 1024
L_WT = L_NS + 640
K2_LDS = max(L_RING + 49152, L_WT + 32)
assert K2_LDS <= 163840
NULLKI = 0x7fff
DUMMY = 16 * 4
RSMALL = 496
TP = 144
TC = 80
L_GI = L_SH
L_WO = L_GI + 3584 * 4
L_WR = L_WO + 64 * TP
L_CG = L_WR + 16 * TP
assert L_CG + 128 <= L_KI

L_MI = L_RING
L_INV = L_MI + CH * 12
L_HIST = L_INV + CH * 2
assert L_HIST + 4096 <= K2_LDS

def gen():
    nt = ' nt' if opt.nt else ''
    if opt.tfirst: I('s_memrealtime s[94:95]')
    I('s_cmp_ge_u32 s2, 0x100')
    I('s_cbranch_scc1 L2_end')
    I('s_load_dwordx16 s[4:19], s[0:1], 0')
    I('s_load_dwordx4 s[20:23], s[0:1], 64')
    I('s_load_dwordx2 s[24:25], s[0:1], 80')
    vPRE, vLEN, vG0, vLS, vKG11, vK, vIC = 1, 2, 3, 4, 5, 6, 7
    vACC = 8
    vBE, vBO, vCG, vA1, vA2, vWA = 76, 80, 84, 92, 96, 100
    vKQ, vSQ, vIQ, vSL = 132, 148, 164, 180
    vRD, vAD, vGT, vNUL = 182, 185, 186, 187
    vEAA = vGT
    vDT, vRW, vAE, vSHC, vSHR, vTT, vB = 188, 196, 228, 232, 234, 236, 240
    vGA = 240
    vME, vCL, vRK, vT = 132, 160, 188, 196
    vLANE = 167
    VST = 254
    vDST, vSRC, vSH, vBK, vCON, vMO, vIA = 132, 139, 146, 160, 168, 8, 240
    vED, vSO, vPF2, vEO, vPF1, vOFA, vSY = 8, 60, 61, 62, 63, 64, 65
    Q0, Q1, Q2, Q3, Q4, Q5, Q6 = 28, 32, 36, 40, 44, 48, 52
    sMO, sEAO, sOUT, sX, sEAS, sOFF, sSYN = Q0, Q1, Q2, Q3, Q4, Q5, Q6
    sVM = 6
    sBK, sW = 26, 27
    sTOT, sR0, sCNT, sNB, sNBM, sI, sRC, sXSZ = 56, 57, 58, 59, 60, 61, 62, 63
    sM0, sM1 = 64, 66
    sSA0, sSA1, sSB0, sSB1 = 68, 69, 70, 71
    sRG = 72
    sLN, sKI, sSI = 76, 77, 78
    sT0, sPJ, sNP, sK0, sEB, sMG, sOF, sON = 79, 80, 81, 82, 83, 84, 85, 86
    sE0, sNE, sFIRST, sC, sD = 87, 88, 89, 90, 91
    sA, sB = 0, 1
    C('==== phase A: partition this workgroup\'s chunk of edges by (src phase, dst bucket)')
    I(f'v_lshlrev_b32 v{vT}, 2, v0')
    I(f'v_add_u32 v{vT+1}, {L_HIST}, v{vT}')
    I(f'v_mov_b32 v{vT+2}, 0')
    I(f'ds_write_b32 v{vT+1}, v{vT+2}')
    I(f'v_lshrrev_b32 v{vT+3}, 6, v0')
    I(f's_and_b32 s{sBK}, s2, 7')
    I(f's_lshl_b32 s{sBK}, s{sBK}, 5')
    I('s_lshr_b32 s3, s2, 3')
    I(f's_add_u32 s{sBK}, s{sBK}, s3')
    I(f'v_readfirstlane_b32 s{sW}, v{vT+3}')
    I(f's_mul_i32 s{sE0}, s{sBK}, {CH}')
    I(f's_sub_u32 s{sNE}, {E}, s{sE0}')
    I(f's_min_u32 s{sNE}, s{sNE}, {CH}')
    for i in range(1, 4): I(f'v_add_u32 v{vT+3+i}, {4096*i}, v{vT}')
    I(f'v_lshlrev_b32 v{vT+8}, 3, v0')
    I(f'v_lshlrev_b32 v{vEO}, 4, v0')
    I(f'v_and_b32 v{vLANE}, 63, v0')
    I(f's_lshl_b32 s{sC}, s{sE0}, 2'); I(f's_lshl_b32 s{sD}, s{sNE}, 2')
    I(f's_lshl_b32 s{sEB}, s{sW}, 10')
    I('s_waitcnt lgkmcnt(0)')
    srd(Q0, 8, off_s=sC, size_s=sD)
    for m in range(7):
        I(f'buffer_load_dword v{vDST+m}, v{vT+3+(m>>1) if m > 1 else vT}, {sr(Q0,4)}, 0 offen offset:{2048*(m&1)}{nt}')
    srd(Q1, 6, off_s=sC, size_s=sD)
    for m in range(7):
        I(f'buffer_load_dword v{vSRC+m}, v{vT+3+(m>>1) if m > 1 else vT}, {sr(Q1,4)}, 0 offen offset:{2048*(m&1)}{nt}')
    stamp_init(1, VST, vGT, 24); stamp(0, VST)
    srd(sSYN, 24, off_imm=WS_SYNC, size=8192)
    C('workgroup 0 clears the hand-off counters, then raises the flag in d_debug')
    I(f's_or_b32 s{sA}, s2, s{sW}')
    I('s_cbranch_scc1 L1_noinit')
    srd(Q2, 22, size=256)
    I(f'v_lshlrev_b32 v{vT+9}, 8, v0')
    I(f'buffer_store_dword v{vT+2}, v{vT+9}, {sr(sSYN,4)}, 0 offen sc1')
    I(f'v_mov_b32 v{vT+10}, 1')
    I('s_waitcnt vmcnt(0)')
    I(f'buffer_store_dword v{vT+10}, v{vT+9}, {sr(Q2,4)}, 0 offen sc1')
    L('L1_noinit')
    I('s_barrier')
    I(f's_lshl_b32 s{sC}, s{sE0}, 3'); I(f's_lshl_b32 s{sD}, s{sNE}, 3')
    srd(Q2, 10, off_s=sC, size_s=sD)
    for m in range(7):
        I(f'buffer_load_dwordx2 {vr(vSH+2*m,2)}, v{vT+8}, {sr(Q2,4)}, 0 offen{nt}')
        if m < 6: I(f'v_add_u32 v{vT+8}, 4096, v{vT+8}')
    srd(Q1, 18, size=8192)
    I(f'buffer_load_dwordx4 {vr(vCON,4)}, v{vEO}, {sr(Q1,4)}, 0 offen')
    srd(Q1, 16, size=2048)
    I(f'buffer_load_dwordx4 {vr(vCON+4,4)}, v{vEO}, {sr(Q1,4)}, 0 offen')
    srd(Q1, 14, size=128)
    I(f'buffer_load_dwordx4 {vr(vCON+8,4)}, v{vEO}, {sr(Q1,4)}, 0 offen')
    I(f's_lshl_b32 s{sC}, s{sE0}, 5'); I(f's_lshl_b32 s{sD}, s{sNE}, 5')
    srd(Q3, 12, off_s=sC, size_s=sD)
    nin = [0]
    def ea_in(k):
        for _ in range(k):
            j = nin[0]
            if j >= 13: return
            I(f's_add_u32 m0, s{sEB}, {8192*j}')
            if j: I(f'v_add_u32 v{vEO}, 8192, v{vEO}')
            else: I('s_nop 0')
            I(f'buffer_load_dwordx4 v{vEO}, {sr(Q3,4)}, 0 offen{nt} lds')
            nin[0] += 1
    ea_in(opt.a0)
    srd(sEAS, 24, off_s=sC, off_imm=WS_EA, size_s=sD)
    I(f's_mul_i32 s{sC}, s{sE0}, 12'); I(f's_mul_i32 s{sD}, s{sNE}, 12')
    srd(Q0, 24, off_s=sC, off_imm=WS_MO, size_s=sD)
    srd(sOFF, 24, off_imm=WS_OFF, size=524288)
    srd(Q2, 22, size=256)
    for m in range(7):
        I(f'v_add_u32 v{vT+10}, {512*m}, v0')
        I(f'v_cmp_gt_u32 {sr(sVM+2*m,2)}, s{sNE}, v{vT+10}')
    I(f'v_mov_b32 v{vT+9}, 1')
    I(f's_mov_b32 s{sC}, {SPLIT}')
    I(f's_mov_b32 s{sD}, {-32*NB if opt.rot else 0}')
    vBN = vT + 20
    I(f'v_mov_b32 v{vT+12}, {L_HIST}')
    I(f'v_mov_b32 v{vT+13}, {L_HIST+1024}')
    I(f's_waitcnt vmcnt({10+nin[0]})')
    for m in range(7):
        I(f'v_mul_u32_u24 v{vBK+m}, 42800, v{vDST+m}')
        I(f'v_lshrrev_b32 v{vT+10}, 27, v{vBK+m}')
        I(f'v_mad_i32_i24 v{vT+10}, v{vT+10}, s{sD}, v{vSRC+m}')
        I(f'v_add_u32 v{vT+11}, {N}, v{vT+10}')
        I(f'v_min_u32 v{vBN+m}, v{vT+10}, v{vT+11}')
        I(f'v_cmp_le_u32 {sr(sA,2)}, s{sC}, v{vBN+m}')
        I(f'v_lshrrev_b32 v{vBK+m}, 22, v{vBK+m}')
        I(f'v_mul_u32_u24 v{vT+10}, {NB}, v{vBK+m}')
        I(f'v_sub_u32 v{vDST+m}, v{vDST+m}, v{vT+10}')
        I(f'v_cndmask_b32 v{vT+11}, v{vT+12}, v{vT+13}, {sr(sA,2)}')
        I(f'v_lshl_add_u32 v{vBK+m}, v{vBK+m}, 2, v{vT+11}')
        I(f's_mov_b64 exec, {sr(sVM+2*m,2)}')
        I(f'ds_add_rtn_u32 v{vRK+m}, v{vBK+m}, v{vT+9}')
        I('s_mov_b64 exec, -1')
    ea_in(opt.a1)
    C('key = bin<<27 | static wave<<24 | src<<9 | dlocal<<2')
    for m in range(7):
        I(f'v_mul_u32_u24 v{vT+11}, 5350, v{vDST+m}')
        I(f'v_and_b32 v{vT+11}, 0x70000, v{vT+11}')
        I(f'v_lshrrev_b32 v{vBN+m}, 10, v{vBN+m}')
        I(f'v_lshl_or_b32 v{vT+11}, v{vBN+m}, 19, v{vT+11}')
        I(f'v_lshlrev_b32 v{vT+11}, 8, v{vT+11}')
        I(f'v_lshl_add_u32 v{vT+11}, v{vDST+m}, 2, v{vT+11}')
        I(f'v_lshl_add_u32 v{vSRC+m}, v{vSRC+m}, 9, v{vT+11}')
    I(f'v_lshlrev_b32 v{vT+16}, 4, v{vLANE}')
    I(f'v_add_u32 v{vT+16}, {L_HIST}, v{vT+16}')
    I('s_waitcnt lgkmcnt(0)')
    I('s_barrier')
    stamp(1, VST)
    C('every wave scans the histogram and writes the (identical) start table')
    cnt, st = vT + 28, vT + 20
    I(f'ds_read_b128 {vr(cnt,4)}, v{vT+16}')
    I(f'ds_read_b128 {vr(cnt+4,4)}, v{vT+16} offset:1024')
    I('s_waitcnt lgkmcnt(0)')
    for h in range(2):
        I(f'v_add_u32 v{st+4*h+1}, v{cnt+4*h}, v{cnt+4*h+1}')
        I(f'v_add_u32 v{st+4*h+2}, v{st+4*h+1}, v{cnt+4*h+2}')
        I(f'v_add_u32 v{vT+12+h}, v{st+4*h+2}, v{cnt+4*h+3}')
    I(f'v_lshl_add_u32 v{vT+17}, v{vT+13}, 16, v{vT+12}')
    I(f'v_mov_b32 v{vT+18}, v{vT+17}')
    wave_scan(vT + 18)
    I(f'v_sub_u32 v{vT+17}, v{vT+18}, v{vT+17}')
    I(f'v_readlane_b32 s{sA}, v{vT+18}, 63')
    I(f'v_and_b32 v{st}, 0xffff, v{vT+17}')
    I(f'v_lshrrev_b32 v{st+4}, 16, v{vT+17}')
    I(f's_and_b32 s{sA}, s{sA}, 0xffff')
    I(f'v_add_u32 v{st+4}, s{sA}, v{st+4}')
    for h in range(2):
        I(f'v_add_u32 v{st+4*h+3}, v{st+4*h}, v{st+4*h+2}')
        I(f'v_add_u32 v{st+4*h+2}, v{st+4*h}, v{st+4*h+1}')
        I(f'v_add_u32 v{st+4*h+1}, v{st+4*h}, v{cnt+4*h}')
        I(f'ds_write_b128 v{vT+16}, {vr(st+4*h,4)} offset:{2048+1024*h}')
    for m in range(7):
        I(f'ds_read_b32 v{vBK+m}, v{vBK+m} offset:2048')
    ea_in(opt.a2)
    I(f's_mov_b32 s{sC}, {L_MI}')
    I(f's_mov_b32 s{sD}, {L_INV}')
    I(f's_waitcnt vmcnt({3+nin[0]}) lgkmcnt(0)')
    for m in range(7):
        I(f'v_add_u32 v{vRK+m}, v{vRK+m}, v{vBK+m}')
        I(f'v_mad_u32_u24 v{vBK+m}, v{vRK+m}, 12, s{sC}')
        I(f'v_lshl_add_u32 v{vRK+m}, v{vRK+m}, 1, s{sD}')
        I(f'v_add_u32 v{vDST+m}, {512*m}, v0')
    for m in range(7):
        I(f's_mov_b64 exec, {sr(sVM+2*m,2)}')
        I(f'ds_write_b16 v{vRK+m}, v{vDST+m}')
        I(f'ds_write2_b32 v{vBK+m}, v{vSRC+m}, v{vSH+2*m} offset0:0 offset1:1')
        I(f'ds_write_b32 v{vBK+m}, v{vSH+2*m+1} offset:8')
    I('s_mov_b64 exec, -1')
    ea_in(opt.a3)
    I(f'v_lshlrev_b32 v{vSO}, 4, v0')
    I(f'v_add_u32 v{vT+10}, {L_MI}, v{vSO}')
    I(f'v_and_b32 v{vT+8}, 0x1fe, v0')
    I(f'v_add_u32 v{vT+8}, {L_INV}, v{vT+8}')
    I('s_waitcnt lgkmcnt(0)')
    I('s_barrier')
    stamp(2, VST)
    C('meta image and run table -> global')
    for j in range(5):
        I(f'ds_read_b128 {vr(vMO+4*j,4)}, v{vT+10} offset:{8192*j}')
    for j in range(5):
        I(f's_waitcnt lgkmcnt({4-j})')
        I(f'buffer_store_dwordx4 {vr(vMO+4*j,4)}, v{vSO}, {sr(Q0,4)}, 0 offen sc1')
        if j < 4: I(f'v_add_u32 v{vSO}, 8192, v{vSO}')
    for j in range(13):
        I(f'ds_read_u16 v{vIA+j}, v{vT+8} offset:{512*j}')
    I(f's_cmp_lg_u32 s{sW}, 7')
    I('s_cbranch_scc1 L1_nooff')
    C('OFF[bucket/4][chunk][phase][bucket%4] = start | len<<16')
    I(f's_lshl_b32 s{sA}, s{sBK}, {11 if opt.offl else 5}')
    I(f'v_lshlrev_b32 v{vT+17}, {4 if opt.offl else 13}, v{vLANE}')
    I(f'v_add_u32 v{vT+17}, s{sA}, v{vT+17}')
    for i in range(8):
        I(f'v_lshl_add_u32 v{cnt+i}, v{cnt+i}, 16, v{st+i}')
    for h in range(2):
        I(f'buffer_store_dwordx4 {vr(cnt+4*h,4)}, v{vT+17}, {sr(sOFF,4)}, 0 offen offset:{(1024 if opt.offl else 16)*h} sc1')
    L('L1_nooff')
    I(f'v_mov_b32 v{vT+2}, 0')
    I(f's_cmp_lg_u32 s{sW}, 0')
    I('s_cbranch_scc1 L1_noflag')
    I(f'buffer_load_dword v{vT+3}, v{vT+2}, {sr(Q2,4)}, 0 offen sc1')
    L('L1_noflag')
    n0 = nin[0]
    ea_in(opt.a4)
    n4 = nin[0] - n0
    I(f'v_and_b32 v{vT+9}, 1, v0')
    I(f'v_lshlrev_b32 v{vT+9}, 4, v{vT+9}')
    I('s_waitcnt lgkmcnt(0)')
    for j in range(13):
        I(f'v_lshl_add_u32 v{vIA+j}, v{vIA+j}, 5, v{vT+9}')
    I(f's_waitcnt vmcnt({n4})')
    I('s_barrier')
    stamp(3, VST)
    def arrive(tag, base):
        I(f's_and_b32 s{sA}, s2, 15')
        I(f's_lshl_b32 s{sA}, s{sA}, 8')
        I(f's_add_u32 s{sA}, s{sA}, {base}')
        I(f'v_mov_b32 v{vGT}, s{sA}')
        I(f'v_mov_b32 v{vAD}, 1')
        I('s_mov_b64 exec, 1')
        I(f'buffer_atomic_add v{vAD}, v{vGT}, {sr(sSYN,4)}, 0 offen sc1')
        I('s_mov_b64 exec, -1')
    def poll(tag, base):
        I(f'v_and_b32 v{vGT}, 15, v0')
        I(f'v_lshlrev_b32 v{vGT}, 8, v{vGT}')
        if base: I(f'v_add_u32 v{vGT}, {base}, v{vGT}')
        I(f's_mov_b32 s{sB}, 0')
        L(f'L_poll{tag}')
        I(f'buffer_load_dword v{vAD}, v{vGT}, {sr(sSYN,4)}, 0 offen sc1')
        I(f's_add_u32 s{sB}, s{sB}, 1')
        I('s_waitcnt vmcnt(0)')
        I(f'v_cmp_ne_u32 vcc, 16, v{vAD}')
        I('s_cmp_eq_u64 vcc, 0')
        I(f's_cbranch_scc1 L_polled{tag}')
        I(f's_sleep {opt.slp}')
        I(f's_cmp_lt_u32 s{sB}, {SPIN}')
        I(f's_cbranch_scc1 L_poll{tag}')
        L(f'L_polled{tag}')
    I(f's_cmp_lg_u32 s{sW}, 0')
    I('s_cbranch_scc1 L1_arrived')
    I(f's_mov_b32 s{sB}, 0')
    L('L1_flag')
    I(f'v_readfirstlane_b32 s{sA}, v{vT+3}')
    I(f's_cmp_eq_u32 s{sA}, 1')
    I('s_cbranch_scc1 L1_flagok')
    I(f'buffer_load_dword v{vT+3}, v{vT+2}, {sr(Q2,4)}, 0 offen sc1')
    I(f's_add_u32 s{sB}, s{sB}, 1')
    I('s_waitcnt vmcnt(0)')
    I(f's_cmp_lt_u32 s{sB}, {SPIN}')
    I('s_cbranch_scc1 L1_flag')
    L('L1_flagok')
    arrive('A', 0)
    L('L1_arrived')
    ea_in(13)
    def prefill():
        C('prefill KI with null entries, SLOT with the dummy slot, zero CNT')
        for i in range(4): I(f'v_mov_b32 v{vT+4+i}, 0x{NULLKI:x}')
        I(f'v_lshlrev_b32 v{vT}, 4, v0')
        I(f'v_add_u32 v{vT}, {L_KI}, v{vT}')
        I(f'ds_write_b128 v{vT}, {vr(vT+4,4)}')
        I(f'v_cmp_gt_u32 vcc, {(CAPX*4-8192)//16}, v0')
        I('s_and_b64 exec, exec, vcc')
        I(f'ds_write_b128 v{vT}, {vr(vT+4,4)} offset:8192')
        I('s_mov_b64 exec, -1')
        I(f'v_mov_b32 v{vT+8}, 0x{DUMMY*0x01010101:x}')
        I(f'v_cmp_gt_u32 vcc, {3648//16}, v0')
        I(f'v_add_u32 v{vT}, {L_SLOT-L_KI}, v{vT}')
        I('s_nop 0')
        I(f'v_cndmask_b32 v{vT+8}, 0, v{vT+8}, vcc')
        for i in range(1, 4): I(f'v_mov_b32 v{vT+8+i}, v{vT+8}')
        I(f'v_cmp_gt_u32 vcc, {3648//16+96}, v0')
        I('s_and_b64 exec, exec, vcc')
        I(f'ds_write_b128 v{vT}, {vr(vT+8,4)}')
        I('s_mov_b64 exec, -1')
    prefill()
    C('stage the constants')
    I(f'v_lshrrev_b32 v{vT+12}, 3, v0')
    I(f'v_mul_u32_u24 v{vT+12}, {TP}, v{vT+12}')
    I(f'v_and_b32 v{vT+3}, 7, v0')
    I(f'v_lshl_add_u32 v{vT+12}, v{vT+3}, 4, v{vT+12}')
    I(f'v_add_u32 v{vT+12}, {L_WO}, v{vT+12}')
    I(f'ds_write_b128 v{vT+12}, {vr(vCON,4)}')
    I('v_cmp_gt_u32 vcc, 0x80, v0')
    I('s_and_b64 exec, exec, vcc')
    I(f'ds_write_b128 v{vT+12}, {vr(vCON+4,4)} offset:{L_WR-L_WO}')
    I('v_cmp_gt_u32 vcc, 8, v0')
    I('s_and_b64 exec, exec, vcc')
    I(f'ds_write_b128 v{vT+12}, {vr(vCON+8,4)} offset:{L_CG-L_WO}')
    I('s_mov_b64 exec, -1')
    srd(sMO, 24, off_imm=WS_MO, size=E * 12)
    srd(sEAO, 24, off_imm=WS_EA, size=E * 32)
    srd(sOUT, 20, size=N * 512)
    srd(sX, 4, size=N * 512)
    I(f's_mov_b32 s{sXSZ}, 0x{N*512:x}')
    I(f's_mov_b32 s{sRC}, {RCAP}')
    I(f's_mov_b32 s{sR0}, 0')
    I(f's_mov_b32 s{sFIRST}, 1')
    C('run table address, x prefetch offsets')
    I(f'v_and_b32 v{vT+1}, 0xff, v0')
    I(f's_lshr_b32 s{sA}, s{sBK}, 2')
    I(f's_lshl_b32 s{sA}, s{sA}, 11')
    I(f's_and_b32 s{sB}, s{sBK}, 3')
    I(f's_add_u32 s{sA}, s{sA}, s{sB}')
    I(f's_lshl_b32 s{sA}, s{sA}, 2')
    I(f'v_mul_u32_u24 v{vG0}, {CH}, v{vT+1}')
    if opt.offl: I(f's_lshl_b32 s{sA}, s{sBK}, 2')
    I(f'v_lshl_add_u32 v{vOFA}, v{vT+1}, {11 if opt.offl else 5}, s{sA}')
    I(f'v_lshrrev_b32 v{vT+3}, 8, v0')
    I(f'v_lshl_add_u32 v{vOFA}, v{vT+3}, {10 if opt.offl else 4}, v{vOFA}')
    LA = opt.la; LB = opt.lb
    I(f'v_mov_b32 v{vT+14}, 0x80000000')
    if opt.rot:
        I(f's_lshr_b32 s{sC}, s{sBK}, 5')
        I(f's_mul_i32 s{sC}, s{sC}, {32*NB*512}')
        I(f's_and_b32 s{sD}, s{sBK}, 31')
        NG = 32
    else:
        I(f's_mov_b32 s{sC}, 0')
        I(f's_mov_b32 s{sD}, s{sBK}')
        NG = 256
    I(f's_mul_i32 s{sA}, s{sD}, {LB*128}')
    I(f's_add_u32 s{sA}, s{sA}, {NG*LA*128}')
    I(f's_add_u32 s{sA}, s{sA}, s{sC}')
    I(f'v_sub_u32 v{vT+15}, 511, v0')
    I(f'v_cmp_gt_u32 vcc, {LB}, v{vT+15}')
    I(f'v_lshlrev_b32 v{vT+13}, 7, v{vT+15}')
    I(f'v_add_u32 v{vPF2}, s{sA}, v{vT+13}')
    I(f'v_cndmask_b32 v{vPF2}, v{vT+14}, v{vPF2}, vcc')
    I(f'v_cmp_gt_u32 vcc, {LA}, v{vT+15}')
    I(f's_mul_i32 s{sA}, s{sD}, {LA*128}')
    I(f's_add_u32 s{sA}, s{sA}, s{sC}')
    I(f'v_add_u32 v{vPF1}, s{sA}, v{vT+13}')
    I(f'v_cndmask_b32 v{vPF1}, v{vT+14}, v{vPF1}, vcc')
    nst = [0]
    def ea_out(k, tag, lg=False):
        if k == 0: return
        if nst[0] >= 13: return
        I(f's_cmp_lg_u32 s{sFIRST}, 1')
        I(f's_cbranch_scc1 L2_noout{tag}')
        I(f'v_lshlrev_b32 v{vSO}, 4, v0')
        first = True
        for _ in range(k):
            j = nst[0]
            if j >= 13: break
            if j: I(f'v_add_u32 v{vSO}, {8192*j if first else 8192}, v{vSO}')
            first = False
            if lg: I(f's_waitcnt lgkmcnt({12-j})')
            if opt.pace and j >= opt.pace: I(f's_waitcnt vmcnt({opt.pace-1})')
            I(f'buffer_store_dwordx4 {vr(vED+4*j,4)}, v{vSO}, {sr(sEAS,4)}, 0 offen sc1')
            nst[0] += 1
        L(f'L2_noout{tag}')
    def xpf(at):
        for reg, pos in ((vPF1, opt.x1), (vPF2, opt.x2)):
            if opt.xpf and pos == at:
                C('pull a share of x towards the chip (one dword per line)')
                I(f's_cmp_eq_u32 s{sFIRST}, 0')
                I(f's_cbranch_scc1 L2_nopf{reg}')
                I(f'buffer_load_dword v{vNUL}, v{reg}, {sr(sX,4)}, 0 offen')
                L(f'L2_nopf{reg}')
    nea = [0]
    def early_static(k=None):
        for _ in range(opt.u if k is None else k):
            j = nea[0]; nea[0] += 1
            I(f's_add_u32 m0, s{sEB}, {8192*j}')
            I('s_nop 0')
            I(f'buffer_load_dwordx4 v{vGA+j}, {sr(sEAO,4)}, 0 offen sc1 lds')
    def bar_b(at):
        if opt.pob == at:
            assert opt.arb < at
            I(f's_cmp_eq_u32 s{sFIRST}, 0')
            I('s_cbranch_scc1 L_polledB')
            I(f's_cmp_lg_u32 s{sW}, 0')
            I('s_cbranch_scc1 L_polledB')
            poll('B', 4096)
        if opt.arb == at:
            assert nst[0] >= 13
            I(f's_waitcnt vmcnt({7 if at == 6 else 0}) lgkmcnt(0)')
        else:
            I('s_waitcnt lgkmcnt(0)')
        I('s_barrier')
        if at != 6: stamp(at, VST)
        if opt.pob == at and not (opt.dl and at == 9): early_static()
        if opt.arb == at:
            I(f's_cmp_lg_u32 s{sFIRST}, 1')
            I('s_cbranch_scc1 L2_arrivedB')
            I(f's_mov_b32 s{sFIRST}, 2')
            I(f's_cmp_lg_u32 s{sW}, 0')
            I('s_cbranch_scc1 L2_arrivedB')
            arrive('B', 4096)
            L('L2_arrivedB')
    xpf(99)
    I('s_waitcnt lgkmcnt(0)')
    I('s_barrier')
    C('constant operands and one-time setup')
    I(f'v_bfe_u32 v{vT}, v0, 5, 1')
    I(f'v_mul_u32_u24 v{vKG11}, 0x10001, v{vT}')
    I(f'v_bfe_u32 v{vT+1}, v0, 2, 2')
    I(f'v_lshl_add_u32 v{vT}, v{vT}, 3, v{vT+1}')
    I(f'v_mul_u32_u24 v{vT}, {TP}, v{vT}')
    I(f'v_add_u32 v{vT}, {L_WO}, v{vT}')
    I(f'v_bfe_u32 v{vT+2}, v0, 4, 1')
    I(f'v_and_b32 v{vT+3}, 3, v0')
    I(f'v_lshl_add_u32 v{vT+4}, v{vT+2}, 5, v{vT}')
    I(f'v_lshl_add_u32 v{vT+4}, v{vT+3}, 3, v{vT+4}')
    I(f'v_lshl_add_u32 v{vT+5}, v{vT+2}, 4, v{vT}')
    I(f'v_and_b32 v{vT+3}, 1, v0')
    I(f'v_lshl_add_u32 v{vT+5}, v{vT+3}, 6, v{vT+5}')
    I(f'v_bfe_u32 v{vT+3}, v0, 1, 1')
    I(f'v_lshl_add_u32 v{vT+5}, v{vT+3}, 3, v{vT+5}')
    I(f'v_lshlrev_b32 v{vT+1}, 3, v{vT+1}')
    I(f'v_add_u32 v{vT+1}, {L_CG}, v{vT+1}')
    for h in range(2):
        for i in range(2):
            I(f'ds_read_b64_tr_b16 {vr(vBE+4*h+2*i,2)}, v{vT+4} offset:{L_WR-L_WO+4*i*TP+64*h}')
    for u in range(4):
        I(f'ds_read_b64_tr_b16 {vr(vCG+2*u,2)}, v{vT+1} offset:{32*u}')
    for tile in range(2):
        I('s_waitcnt lgkmcnt(4)')
        for s in range(4):
            for i in range(2):
                I(f'ds_read_b64_tr_b16 {vr(vWA+16*tile+4*s+2*i,2)}, v{vT+5} offset:{(16*s+4*i)*TP+32*tile}')
    I(f's_mov_b32 s{sM0}, 0x0f0f0f0f'); I(f's_mov_b32 s{sM0+1}, 0x0f0f0f0f')
    I(f's_mov_b32 s{sM1}, 0xf0f0f0f0'); I(f's_mov_b32 s{sM1+1}, 0xf0f0f0f0')
    for r in range(8): I(f'v_mov_b32 v{vA1+r}, 0')
    I(f'v_and_b32 v{vLS}, 31, v0')
    I(f'v_lshlrev_b32 v{vLS}, 4, v{vLS}')
    C('swizzled lane offset inside a row, transposing-read address')
    I(f'v_bfe_u32 v{vT}, v0, 4, 1')
    I(f'v_lshlrev_b32 v{vT}, 6, v{vT}')
    I(f'v_xor_b32 v{vLS}, v{vT}, v{vLS}')
    I(f'v_bfe_u32 v{vT}, v0, 4, 2')
    I(f'v_and_b32 v{vT+3}, 3, v0')
    I(f'v_lshlrev_b32 v{vT+3}, 3, v{vT+3}')
    I(f'v_lshl_add_u32 v{vT}, v{vT}, 5, v{vT+3}')
    I(f'v_bfe_u32 v{vT+3}, v0, 3, 1')
    I(f'v_lshlrev_b32 v{vT+3}, 6, v{vT+3}')
    I(f'v_xor_b32 v{vT}, v{vT}, v{vT+3}')
    I(f'v_bfe_u32 v{vT+3}, v0, 2, 2')
    I(f'v_lshl_add_u32 v{vT}, v{vT+3}, 7, v{vT}')
    I(f's_mul_i32 s3, s{sW}, 6144')
    I(f's_add_u32 s3, s3, {L_RING}')
    for d in range(3):
        I(f's_add_u32 s{sRG+d}, s3, {2048*d}')
        I(f'v_add_u32 v{vRD+d}, s{sRG+d}, v{vT}')
    stamp(4, VST)
    I(f's_cmp_lg_u32 s{sW}, 0')
    I('s_cbranch_scc1 L_polledA')
    poll('A', 0)
    I(f's_waitcnt vmcnt({(opt.xpf and opt.x1 == 99)+(opt.xpf and opt.x2 == 99)}) lgkmcnt(0)')
    I('s_barrier')
    stamp(5, VST)
    C('==== phase B: every chunk has published its keys; this chunk\'s features are in LDS')
    F = vT + 16
    I(f'buffer_load_dword v{F}, v{vOFA}, {sr(sOFF,4)}, 0 offen sc1')
    for j in range(13):
        I(f'ds_read_b128 {vr(vED+4*j,4)}, v{vIA+j}')
    xpf(0)
    ea_out(opt.s0b, '0b', lg=True)
    I(f's_waitcnt vmcnt({nst[0]+(opt.xpf and opt.x1 == 0)+(opt.xpf and opt.x2 == 0)})')
    C('run lengths -> prefix')
    I(f'v_lshrrev_b32 v{vLEN}, 16, v{F}')
    I(f'v_and_b32 v{F}, 0xffff, v{F}')
    I(f'v_mov_b32 v{vT}, v{vLEN}')
    I(f'v_add_u32 v{vG0}, v{vG0}, v{F}')
    wave_scan(vT)
    I(f's_lshl_b32 s{sA}, s{sW}, 2')
    I(f's_add_u32 s{sA}, s{sA}, {L_WT}')
    I(f'v_mov_b32 v{vT+1}, s{sA}')
    I(f'v_sub_u32 v{vPRE}, v{vT}, v{vLEN}')
    I('s_mov_b32 exec_lo, 0')
    I('s_brev_b32 exec_hi, 1')
    I(f'ds_write_b32 v{vT+1}, v{vT}')
    I('s_mov_b64 exec, -1')
    I(f'v_and_b32 v{vT+1}, 7, v0')
    I(f'v_lshlrev_b32 v{vT+1}, 2, v{vT+1}')
    I(f'v_add_u32 v{vT+1}, {L_WT}, v{vT+1}')
    I('s_waitcnt lgkmcnt(0)')
    I('s_barrier')
    I(f'ds_read_b32 v{vT+2}, v{vT+1}')
    I('s_waitcnt lgkmcnt(0)')
    I(f'v_mov_b32 v{vT+3}, v{vT+2}')
    for sh in (1, 2, 4):
        I('s_nop 1')
        I(f'v_add_u32_dpp v{vT+3}, v{vT+3}, v{vT+3} row_shr:{sh} row_mask:0xf bank_mask:0xf')
    I(f'v_sub_u32 v{vT+2}, v{vT+3}, v{vT+2}')
    I(f'v_readlane_b32 s{sTOT}, v{vT+3}, 7')
    I(f'v_readlane_b32 s{sA}, v{vT+2}, s{sW}')
    I(f'v_readlane_b32 s{sT0}, v{vT+3}, 3')
    I('s_nop 0')
    I(f'v_add_u32 v{vPRE}, s{sA}, v{vPRE}')
    ea_out(opt.sx, 'x')
    L('L2_round')
    I(f's_sub_u32 s{sCNT}, s{sTOT}, s{sR0}')
    I(f's_min_u32 s{sCNT}, s{sCNT}, s{sRC}')
    I(f'v_and_b32 v{vLANE}, 63, v0')
    C('expand: GIDX[pre+k-r0] = g0+k for k in window')
    I(f'v_sub_u32 v{vT+1}, s{sR0}, v{vPRE}')
    I(f'v_max_i32 v{vT+2}, 0, v{vT+1}')
    I(f'v_add_u32 v{vT+3}, s{sRC}, v{vT+1}')
    I(f'v_min_i32 v{vT+3}, v{vT+3}, v{vLEN}')
    I(f'v_sub_u32 v{vT+4}, v{vT+2}, v{vT+1}')
    I(f'v_lshlrev_b32 v{vT+4}, 2, v{vT+4}')
    I(f'v_add_u32 v{vT+4}, {L_GI}, v{vT+4}')
    I(f'v_add_u32 v{vT+5}, v{vG0}, v{vT+2}')
    I(f'v_add_u32 v{vT+3}, v{vG0}, v{vT+3}')
    L('L2_exp')
    for j in range(4):
        I(f'v_cmpx_lt_i32 vcc, v{vT+5}, v{vT+3}')
        I(f'ds_write_b32 v{vT+4}, v{vT+5} offset:{4*j}')
        I(f'v_add_u32 v{vT+5}, 1, v{vT+5}')
    I(f'v_add_u32 v{vT+4}, 16, v{vT+4}')
    I('s_cbranch_execnz L2_exp')
    I('s_mov_b64 exec, -1')
    ea_out(opt.sy, 'y')
    C('slots past the end of the window get an out-of-range record number')
    I(f'v_lshlrev_b32 v{vT}, 2, v0')
    I(f'v_add_u32 v{vT}, {L_GI}, v{vT}')
    I(f'v_mov_b32 v{vT+2}, 0x1000000')
    for m in range(7):
        I(f'v_add_u32 v{vT+1}, {512*m}, v0')
        I(f'v_cmp_gt_u32 {sr(sVM+2*m,2)}, s{sCNT}, v{vT+1}')
    for m in range(7):
        I(f's_not_b64 exec, {sr(sVM+2*m,2)}')
        I(f's_cbranch_scc0 L2_nomark{m}')
        I(f'ds_write_b32 v{vT}, v{vT+2} offset:{2048*m}')
        L(f'L2_nomark{m}')
    I('s_mov_b64 exec, -1')
    I(f'v_lshrrev_b32 v{vT+3}, 1, v0')
    I(f'v_lshlrev_b32 v{vT+3}, 2, v{vT+3}')
    I(f'v_add_u32 v{vT+3}, {L_GI}, v{vT+3}')
    I(f'v_and_b32 v{vT+4}, 1, v0')
    I(f'v_lshlrev_b32 v{vT+4}, 4, v{vT+4}')
    I('s_waitcnt lgkmcnt(0)')
    I('s_barrier')
    stamp(6, VST)
    C('record loads')
    G = vT + 6
    for m in range(7):
        I(f'ds_read_b32 v{G+m}, v{vT} offset:{2048*m}')
    for j in range(0, 14, 2):
        I(f'ds_read2st64_b32 {vr(vGA+j,2)}, v{vT+3} offset0:{4*j} offset1:{4*j+4}')
    ea_out(opt.sz, 'z')
    for m in range(7):
        I(f's_waitcnt lgkmcnt({13-m})')
        I(f'v_lshlrev_b32 v{vT+1}, 2, v{G+m}')
        I(f'v_lshl_add_u32 v{vT+1}, v{G+m}, 3, v{vT+1}')
        I(f'buffer_load_dwordx3 {vr(vME+4*m,3)}, v{vT+1}, {sr(sMO,4)}, 0 offen sc1')
    I('s_waitcnt lgkmcnt(0)')
    for j in range(14):
        I(f'v_lshl_add_u32 v{vGA+j}, v{vGA+j}, 5, v{vT+4}')
    n0 = nst[0]
    if opt.s0c:
        I(f's_cmp_eq_u32 s{sFIRST}, 1')
        I('s_cbranch_scc1 L2_more')
        I('s_waitcnt vmcnt(0)')
        L('L2_more')
        ea_out(opt.s0c, '0c')
    nc = nst[0] - n0
    I(f'v_mov_b32 v{vGT}, 0x80000000')
    if opt.arb == 6: bar_b(6)
    for reg, pos in ((vPF1, opt.x1), (vPF2, opt.x2)):
        if opt.xpf and pos == 6:
            C('pull a share of x towards the chip (one dword per line; later rounds: a harmless range-checked read)')
            I(f'buffer_load_dword v{vNUL}, v{reg}, {sr(sX,4)}, 0 offen')
            nc += 1
    C('even split of the window: wave(q) = q*M >> 20 with M = 2^23/(count+1), q = position in node order')
    I(f's_add_u32 s{sA}, s{sCNT}, 1')
    I(f'v_cvt_f32_u32 v{vT}, s{sA}')
    I(f'v_rcp_f32 v{vT}, v{vT}')
    I(f'v_mov_b32 v{vT+2}, 1')
    I(f'v_mul_f32 v{vT}, 0x4b000000, v{vT}')
    I(f'v_cvt_u32_f32 v{vT}, v{vT}')
    I(f'v_lshlrev_b32 v{vT+1}, 3, v{vLANE}')
    I(f'v_readfirstlane_b32 s{sMG}, v{vT}')
    I(f'v_add_u32 v{vT+1}, {L_NC}, v{vT+1}')
    C('rank inside the destination node')
    for m in range(7):
        I(f's_waitcnt vmcnt({6-m+nc})')
        I(f'v_and_b32 v{vCL+m}, 0x1fc, v{vME+4*m}')
        I(f'v_add_u32 v{vCL+m}, {L_NC}, v{vCL+m}')
        I(f's_mov_b64 exec, {sr(sVM+2*m,2)}')
        I(f'ds_add_rtn_u32 v{vRK+m}, v{vCL+m}, v{vT+2}')
        I('s_mov_b64 exec, -1')
    ea_out(opt.s1, 1)
    bar_b(7)
    xpf(7)
    C('node scan (every wave)')
    c0, s0, sn, sf = vT + 4, vT + 6, vT + 8, vT + 10
    I(f'ds_read_b64 {vr(c0,2)}, v{vT+1}')
    I('s_waitcnt lgkmcnt(0)')
    I(f'v_add_u32 v{vT+3}, v{c0}, v{c0+1}')
    I(f'v_mov_b32 v{sn}, v{vT+3}')
    wave_scan(sn)
    I(f'v_sub_u32 v{s0}, v{sn}, v{vT+3}')
    I(f'v_add_u32 v{s0+1}, v{s0}, v{c0}')
    I(f'ds_write_b64 v{vT+1}, {vr(s0,2)} offset:{L_NS-L_NC}')
    for m in range(7):
        I(f'ds_read_b32 v{vCL+m}, v{vCL+m} offset:{L_NS-L_NC}')
    I(f'v_add_u32 v{vT+1}, {L_NS-L_NC}, v{vT+1}')
    I(f'ds_read2_b32 {vr(sf,2)}, v{vT+1} offset0:15 offset1:16')
    def wv(r):
        I(f'v_mul_u32_u24 v{r}, s{sMG}, v{r}')
        I(f'v_lshrrev_b32 v{r}, 20, v{r}')
    for r in (s0, s0 + 1, sn): wv(r)
    C('owned node range of this wave')
    I(f's_mov_b32 exec_hi, 0x1ffff')
    I(f'v_cmp_gt_u32 vcc, s{sW}, v{s0}')
    I(f's_bcnt1_i32_b64 s{sOF}, vcc')
    I(f'v_cmp_gt_u32 vcc, s{sW}, v{s0+1}')
    I(f's_bcnt1_i32_b64 s{sA}, vcc')
    I(f's_add_u32 s{sOF}, s{sOF}, s{sA}')
    I(f'v_cmp_ge_u32 vcc, s{sW}, v{s0}')
    I(f's_bcnt1_i32_b64 s{sON}, vcc')
    I(f'v_cmp_ge_u32 vcc, s{sW}, v{s0+1}')
    I(f's_bcnt1_i32_b64 s{sA}, vcc')
    I(f's_add_u32 s{sON}, s{sON}, s{sA}')
    C('the even split needs: one round, every wave owns 1..15 nodes')
    I(f'v_sub_u32 v{vT+3}, v{s0+1}, v{s0}')
    I(f'v_sub_u32 v{sn}, v{sn}, v{s0+1}')
    I(f'v_max_u32 v{vT+3}, v{vT+3}, v{sn}')
    I(f'v_cmp_lt_u32 {sr(sA,2)}, 1, v{vT+3}')
    I('s_mov_b64 exec, -1')
    I(f'v_readlane_b32 s{sNB}, v{s0+1}, 48')
    I('s_waitcnt lgkmcnt(0)')
    for r in (sf, sf + 1): wv(r)
    I(f's_mov_b32 exec_hi, 0x3ff')
    I(f'v_cmp_ge_u32 vcc, v{s0}, v{sf}')
    I(f's_or_b64 {sr(sA,2)}, {sr(sA,2)}, vcc')
    I(f's_mov_b32 exec_hi, 0x1ff')
    I(f'v_cmp_ge_u32 vcc, v{s0+1}, v{sf+1}')
    I(f's_or_b64 {sr(sA,2)}, {sr(sA,2)}, vcc')
    I('s_mov_b64 exec, -1')
    I('s_cbranch_scc1 L2_static')
    I(f's_cmp_lg_u32 s{sNB}, 7')
    I('s_cbranch_scc1 L2_static')
    I(f's_cmp_lg_u32 s{sCNT}, s{sTOT}')
    I('s_cbranch_scc1 L2_static')
    if not opt.dyn: I('s_branch L2_static')
    for m in range(7):
        I(f'v_add_u32 v{vRK+m}, v{vRK+m}, v{vCL+m}')
        I(f'v_mul_u32_u24 v{vRK+m}, s{sMG}, v{vRK+m}')
        I(f'v_lshrrev_b32 v{vRK+m}, 20, v{vRK+m}')
        I(f'v_lshrrev_b32 v{vCL+m}, 27, v{vME+4*m}')
        I(f'v_lshl_add_u32 v{vCL+m}, v{vRK+m}, 5, v{vCL+m}')
    I('s_branch L2_cells')
    L('L2_static')
    I(f's_mul_i32 s{sOF}, s{sW}, {NB}')
    I(f's_add_u32 s{sON}, s{sOF}, {NB+7}')
    I(f's_add_u32 s{sOF}, s{sOF}, 7')
    I(f's_lshr_b32 s{sOF}, s{sOF}, 3')
    I(f's_lshr_b32 s{sON}, s{sON}, 3')
    for m in range(7):
        I(f'v_bfe_u32 v{vRK+m}, v{vME+4*m}, 24, 3')
        I(f'v_lshrrev_b32 v{vCL+m}, 27, v{vME+4*m}')
        I(f'v_lshl_add_u32 v{vCL+m}, v{vRK+m}, 5, v{vCL+m}')
    L('L2_cells')
    for m in range(7):
        I(f'v_lshlrev_b32 v{vCL+m}, 2, v{vCL+m}')
        I(f'v_add_u32 v{vCL+m}, {L_CNT}, v{vCL+m}')
        I(f's_mov_b64 exec, {sr(sVM+2*m,2)}')
        I(f'ds_add_rtn_u32 v{vRK+m}, v{vCL+m}, v{vT+2}')
        I('s_mov_b64 exec, -1')
    ea_out(opt.s2, 2)
    I(f'v_lshlrev_b32 v{vT}, 4, v{vLANE}')
    I(f'v_add_u32 v{vT}, {L_CNT}, v{vT}')
    bar_b(8)
    xpf(8)
    C('cell scan (every wave), lists padded to 16')
    cnt, st = vT + 14, vT + 18
    I(f'ds_read_b128 {vr(cnt,4)}, v{vT}')
    I(f'v_and_b32 v{vT+4}, 7, v0')
    I(f'v_cmp_eq_u32 {sr(sA,2)}, 7, v{vT+4}')
    I('s_waitcnt lgkmcnt(0)')
    I(f'v_add_u32 v{st+1}, v{cnt}, v{cnt+1}')
    I(f'v_add_u32 v{st+2}, v{st+1}, v{cnt+2}')
    I(f'v_add_u32 v{vT+1}, v{st+2}, v{cnt+3}')
    I('s_nop 1')
    I(f'v_add_u32_dpp v{vT+2}, v{vT+1}, v{vT+1} quad_perm:[1,0,3,2] row_mask:0xf bank_mask:0xf')
    I('s_nop 1')
    I(f'v_add_u32_dpp v{vT+2}, v{vT+2}, v{vT+2} quad_perm:[2,3,0,1] row_mask:0xf bank_mask:0xf')
    I('s_nop 1')
    I(f'v_add_u32_dpp v{vT+2}, v{vT+2}, v{vT+2} row_half_mirror row_mask:0xf bank_mask:0xf')
    I(f'v_add_u32 v{vT+3}, 15, v{vT+2}')
    I(f'v_and_b32 v{vT+3}, -16, v{vT+3}')
    I(f'v_sub_u32 v{vT+2}, v{vT+3}, v{vT+2}')
    I(f'v_cndmask_b32 v{vT+2}, 0, v{vT+2}, {sr(sA,2)}')
    I(f'v_add_u32 v{vT+1}, v{vT+1}, v{vT+2}')
    I(f'v_mov_b32 v{vT+2}, v{vT+1}')
    wave_scan(vT + 2)
    I(f'v_sub_u32 v{st}, v{vT+2}, v{vT+1}')
    I(f'v_add_u32 v{st+3}, v{st}, v{st+2}')
    I(f'v_add_u32 v{st+2}, v{st}, v{st+1}')
    I(f'v_add_u32 v{st+1}, v{st}, v{cnt}')
    I(f'ds_write_b128 v{vT}, {vr(st,4)} offset:{L_ST-L_CNT}')
    for m in range(7):
        I(f'ds_read_b32 v{vCL+m}, v{vCL+m} offset:{L_ST-L_CNT}')
    C('early-phase length of every list: start of bin SPLIT minus list start (in lane 8*wave)')
    sl_lane, sl_reg = opt.split >> 2, opt.split & 3
    if sl_lane: I(f'v_sub_u32_dpp v{vT+5}, v{st+sl_reg}, v{st} row_shl:{sl_lane} row_mask:0xf bank_mask:0xf')
    else: I(f'v_sub_u32 v{vT+5}, v{st+sl_reg}, v{st}')
    I(f's_lshl_b32 s{sA}, s{sW}, 3')
    I(f'v_readlane_b32 s{sNB}, v{vT+3}, s{sA}')
    I(f'v_readlane_b32 s{sI}, v{st}, s{sA}')
    I(f'v_readlane_b32 s{sNBM}, v{vT+3}, 0')
    I(f'v_readlane_b32 s{sK0}, v{vT+5}, 0')
    for g in range(1, 8):
        I(f'v_readlane_b32 s{sA}, v{vT+3}, {8*g}')
        I(f'v_readlane_b32 s{sB}, v{vT+5}, {8*g}')
        I(f's_max_u32 s{sNBM}, s{sNBM}, s{sA}')
        I(f's_min_u32 s{sK0}, s{sK0}, s{sB}')
    I(f's_lshr_b32 s{sNB}, s{sNB}, 4')
    I(f's_lshr_b32 s{sNBM}, s{sNBM}, 4')
    C('a list longer than the register copies hold: redo this round with a small window')
    I(f's_cmp_le_u32 s{sNBM}, 32')
    I('s_cbranch_scc1 L2_fits')
    I(f's_mov_b32 s{sRC}, {RSMALL}')
    I('s_waitcnt vmcnt(0) lgkmcnt(0)')
    I('s_branch L2_again')
    L('L2_fits')
    early_static(opt.u2)
    I(f'v_lshlrev_b32 v{vT+4}, 17, v0')
    I('s_waitcnt lgkmcnt(0)')
    for m in range(7):
        I(f'v_add_u32 v{vRK+m}, v{vRK+m}, v{vCL+m}')
        I(f'v_lshlrev_b32 v{vT}, 2, v{vRK+m}')
        I(f'v_add_u32 v{vT}, {L_KI}, v{vT}')
        I(f'v_lshlrev_b32 v{vT+1}, 3, v{vRK+m}')
        I(f'v_add_u32 v{vT+1}, {L_SH}, v{vT+1}')
        I(f'v_add_u32 v{vT+2}, {L_SLOT}, v{vRK+m}')
        I(f'v_bfe_u32 v{vT+3}, v{vME+4*m}, 9, 15')
        I(f'v_or_b32 v{vT+3}, v{vT+3}, v{vT+4}')
        I(f'v_and_b32 v{vME+4*m}, 0x3c, v{vME+4*m}')
        I(f's_mov_b64 exec, {sr(sVM+2*m,2)}')
        I(f'ds_write_b32 v{vT}, v{vT+3}')
        I(f'ds_write_b8 v{vT+2}, v{vME+4*m}')
        I(f'ds_write2_b32 v{vT+1}, v{vME+4*m+1}, v{vME+4*m+2} offset0:0 offset1:1')
        I('s_mov_b64 exec, -1')
        if m < 6: I(f'v_add_u32 v{vT+4}, {512<<17}, v{vT+4}')
    ea_out(13, 3)
    early_static(opt.u3)
    U = opt.u + opt.u2 + opt.u3
    assert opt.pob <= 8 or opt.u2 + opt.u3 == 0
    assert 4 <= U <= 13
    C('which feature passes must land before the main loop')
    I(f's_sub_i32 s{sA}, s{sT0}, s{sR0}')
    I(f's_max_i32 s{sA}, s{sA}, 0')
    I(f's_add_u32 s{sA}, s{sA}, 255')
    I(f's_lshr_b32 s{sA}, s{sA}, 8')
    I(f's_max_u32 s{sA}, s{sA}, {U}')
    I(f's_add_u32 s{sB}, s{sCNT}, 255')
    I(f's_lshr_b32 s{sB}, s{sB}, 8')
    I(f's_lshr_b32 s{sK0}, s{sK0}, 4')
    I(f's_sub_i32 s{sK0}, s{sK0}, 1')
    I(f's_sub_i32 s{sB}, s{sB}, s{sA}')
    I(f's_mul_i32 s{sC}, s{sK0}, {opt.lpb}')
    I(f's_cmp_le_i32 s{sB}, s{sC}')
    I(f's_cselect_b32 s{sPJ}, s{sA}, 14')
    I(f's_cselect_b32 s{sK0}, s{sK0}, -1')
    I(f's_cmp_gt_i32 s{sB}, 0')
    I(f's_cselect_b32 s{sK0}, s{sK0}, -1')
    if not opt.late:
        I(f's_mov_b32 s{sPJ}, 14'); I(f's_mov_b32 s{sK0}, -1')
    I(f's_lshl_b32 s{sA}, s{sW}, 5')
    I(f's_sub_i32 s{sNP}, s{sCNT}, s{sA}')
    I(f's_add_i32 s{sNP}, s{sNP}, 255')
    I(f's_lshr_b32 s{sNP}, s{sNP}, 8')
    C('read-back addresses')
    I(f'v_bfe_u32 v{vT}, v0, 3, 1')
    I(f'v_bfe_u32 v{vT+1}, v0, 5, 1')
    I(f'v_lshl_add_u32 v{vT}, v{vT}, 1, v{vT+1}')
    I(f'v_and_b32 v{vT+2}, 7, v0')
    I(f'v_lshl_add_u32 v{vT}, v{vT}, 3, v{vT+2}')
    I(f'v_add_u32 v{vT}, s{sI}, v{vT}')
    I(f'v_lshlrev_b32 v{vT}, 2, v{vT}')
    I(f'v_add_u32 v{vT}, {L_KI}, v{vT}')
    I(f'v_and_b32 v{vT+2}, 3, v0')
    I(f'v_lshrrev_b32 v{vT+3}, 2, v{vLANE}')
    I(f'v_lshl_add_u32 v{vT+3}, v{vT+2}, 4, v{vT+3}')
    I(f'v_add_u32 v{vT+3}, s{sI}, v{vT+3}')
    I(f'v_lshlrev_b32 v{vT+3}, 3, v{vT+3}')
    I(f'v_add_u32 v{vT+3}, {L_SH}, v{vT+3}')
    I(f'v_lshl_add_u32 v{vT+4}, v{vLANE}, 3, s{sI}')
    I(f'v_add_u32 v{vT+4}, {L_SLOT}, v{vT+4}')
    I(f'v_bfe_u32 v{vT+5}, v0, 3, 2')
    I(f'v_lshl_add_u32 v{vT+5}, v{vT+5}, 2, v{vT+2}')
    I(f'v_add_u32 v{vT+5}, s{sI}, v{vT+5}')
    I(f'v_lshlrev_b32 v{vT+5}, 2, v{vT+5}')
    I(f'v_add_u32 v{vT+5}, {L_KI}, v{vT+5}')
    I(f'v_add_u32 v{vT+6}, 1024, v{vT}')
    I(f'v_add_u32 v{vT+7}, 1024, v{vT+5}')
    bar_b(9)
    xpf(9)
    IT = vT + 8
    for g in range(0, 16, 2):
        I(f'ds_read2_b32 {vr(vKQ+g,2)}, v{vT+(6 if g >= 8 else 0)} offset0:{32*g%256} offset1:{32*(g+1)%256}')
    I(f'ds_read_b64 {vr(vSL,2)}, v{vT+4}')
    for g in range(16):
        if g in (4, 10): I('s_waitcnt lgkmcnt(7)')
        I(f'ds_read2_b32 {vr(IT+2*g,2)}, v{vT+(7 if g >= 8 else 5)} offset0:{32*g%256} offset1:{32*g%256+16}')
    I('s_waitcnt lgkmcnt(6)')
    for g in range(8):
        I(f'ds_read_b64 {vr(vSQ+2*g,2)}, v{vT+3} offset:{512*g}')
    if opt.dl and opt.pob == 9: early_static()
    assert opt.pob <= 9 and opt.x1 != 10 and opt.x2 != 10
    I(f's_mov_b32 s{sA}, {U}')
    I(f's_min_u32 s{sB}, s{sPJ}, s{sNP}')
    L('L2_early')
    I(f's_cmp_ge_u32 s{sA}, s{sB}')
    I('s_cbranch_scc1 L2_early_done')
    I(f's_set_gpr_idx_on s{sA}, gpr_idx(SRC0)')
    I(f'v_mov_b32 v{vGT}, v{vGA}')
    I('s_set_gpr_idx_off')
    I(f's_lshl_b32 m0, s{sA}, 13')
    I(f's_add_u32 m0, m0, s{sEB}')
    I(f's_add_u32 s{sA}, s{sA}, 1')
    I(f'buffer_load_dwordx4 v{vGT}, {sr(sEAO,4)}, 0 offen sc1 lds')
    I('s_branch L2_early')
    L('L2_early_done')
    for g in range(16):
        I(f'v_lshlrev_b32_sdwa v{vKQ+g}, 9, v{vKQ+g} dst_sel:DWORD dst_unused:UNUSED_PAD src0_sel:DWORD src1_sel:WORD_0')
    I(f'v_mov_b32 v{vK}, v{vKQ}')
    def fetch(sig, lane):
        I(f'v_add_u32_dpp v{vAD}, v{vK}, v{vLS} row_newbcast:{lane} row_mask:0xf bank_mask:0xf')

    bar_b(10)
    I(f's_cmp_lg_u32 s{sNB}, 0')
    I(f's_cselect_b32 s{sX+2}, s{sXSZ}, 0')
    for sig in range(6):
        I(f's_add_u32 m0, s{sRG+(sig>>1)}, {1024*(sig&1)}')
        fetch(sig, sig)
        I(f'buffer_load_dwordx4 v{vAD}, {sr(sX,4)}, 0 offen lds')
    I(f's_mov_b32 s{sA}, 0x07060302')
    for g in range(16):
        I(f'v_perm_b32 v{vIQ+g}, v{IT+2*g+1}, v{IT+2*g}, s{sA}')
    def ea_reads(word):
        I(f'v_lshlrev_b32_sdwa v{vEAA}, 4, v{vIC} dst_sel:DWORD dst_unused:UNUSED_PAD src0_sel:DWORD src1_sel:WORD_{word}')
        I(f's_mov_b64 exec, {sr(sM0,2)}')
        I(f'ds_read_b128 {vr(vA1,4)}, v{vEAA}')
        I(f's_mov_b64 exec, {sr(sM1,2)}')
        I(f'ds_read_b128 {vr(vA2,4)}, v{vEAA}')
        I('s_mov_b64 exec, -1')
    def rw_mfma(p):
        I(f'v_mfma_f32_32x32x16_bf16 {vr(vRW+16*p,16)}, {vr(vA1,4)}, {vr(vBE,4)}, 0')
        I(f'v_mfma_f32_32x32x16_bf16 {vr(vRW+16*p,16)}, {vr(vA2,4)}, {vr(vBO,4)}, {vr(vRW+16*p,16)}')
    def sh_bcast(i):
        for j in range(2):
            I(f'v_mov_b32_dpp v{vSHR+j}, v{vSHC+j} quad_perm:[{i},{i},{i},{i}] row_mask:0xf bank_mask:0xf')
    def ae_dots():
        for u in range(4):
            I(f'v_dot2_f32_bf16 v{vTT+u}, v{vSHR}, v{vCG+2*u}, 0')
        for u in range(4):
            I(f'v_dot2_f32_bf16 v{vTT+u}, v{vSHR+1}, v{vCG+2*u+1}, v{vTT+u}')
    def ae_cvt(p):
        I(f'v_cvt_pk_bf16_f32 v{vAE+2*p}, v{vTT}, v{vTT+1}')
        I(f'v_cvt_pk_bf16_f32 v{vAE+2*p+1}, v{vTT+2}, v{vTT+3}')
    def mfmas(p, s):
        d = vDT; b = vB
        I(f'v_mfma_f32_4x4x4_16b_bf16 {vr(d,4)}, {vr(vAE+2*p,2)}, {vr(b,2)}, 0 cbsz:4 abid:{s}')
        I(f'v_mfma_f32_4x4x4_16b_bf16 {vr(d+4,4)}, {vr(vAE+2*p,2)}, {vr(b+2,2)}, 0 cbsz:4 abid:{8+s}')
    def fmas(p, s):
        d = vDT
        for h, e in ((0, s), (1, 8 + s)):
            sl = (sSB0 if h else sSA0) + (s >> 2)
            I(f's_set_gpr_idx_on s{sl}, gpr_idx(SRC2,DST)' if h == 0 else f's_set_gpr_idx_idx s{sl}')
            r = vRW + 16 * p + (e & ~1)
            mod = 'op_sel:[0,1,0] op_sel_hi:[1,1,1]' if e & 1 else 'op_sel_hi:[1,0,1]'
            I(f'v_pk_fma_f32 {vr(vACC,2)}, {vr(d+4*h,2)}, {vr(r,2)}, {vr(vACC,2)} {mod}')
            if (s & 3) != 3: I(f's_lshr_b32 s{sl}, s{sl}, 8')
            I(f'v_pk_fma_f32 {vr(vACC+2,2)}, {vr(d+4*h+2,2)}, {vr(r,2)}, {vr(vACC+2,2)} {mod}')
        I('s_set_gpr_idx_off')

    C('operands of batch 0 that do not need the edge features')
    I(f'v_or_b32 v{vIC}, v{vIQ}, v{vKG11}')
    I(f'v_mov_b32 v{vSHC}, v{vSQ}')
    I(f'v_mov_b32 v{vSHC+1}, v{vSQ+1}')
    I(f'v_readlane_b32 s{sSA0}, v{vSL}, 0')
    I(f'v_readlane_b32 s{sSB0}, v{vSL}, 1')
    sh_bcast(0)
    ae_dots()
    I(f's_mov_b32 s{sSA1}, {DUMMY}')
    I(f's_mov_b32 s{sSB1}, {DUMMY}')
    I(f's_mov_b32 s{sI}, 0')
    I(f's_mov_b32 s{sLN}, 0')
    I(f's_mov_b32 s{sKI}, 0')
    I(f's_mov_b32 s{sSI}, 0')
    ae_cvt(0)
    I(f's_cmp_eq_u32 s{sFIRST}, 0')
    I('s_cbranch_scc1 L2_haveB')
    xpf(10)
    I(f's_mov_b32 s{sFIRST}, 0')
    for r in range(57): I(f'v_mov_b32 v{vACC+r}, 0')
    if opt.pob == 11:
        I(f's_cmp_lg_u32 s{sW}, 0')
        I('s_cbranch_scc1 L_polledB')
        poll('B', 4096)
    for r in range(57, 68): I(f'v_mov_b32 v{vACC+r}, 0')
    if opt.pob == 11: I('s_barrier')
    L('L2_haveB')
    stamp(11, VST)
    C('early feature passes, then the first row fetches')
    if opt.pob == 11: early_static()
    I('s_waitcnt vmcnt(6)')
    I('s_barrier')
    stamp(12, VST)
    I(f's_cmp_eq_u32 s{sNB}, 0')
    I('s_cbranch_scc1 L2_drain')
    ea_reads(0)
    I('s_waitcnt lgkmcnt(0)')
    rw_mfma(0)
    L('L2_loop')
    for p in range(2):
        C(f'batch parity {p}')
        if opt.prio and p == 0:
            I(f's_cmp_lt_u32 s{sW}, 4')
            I('s_cbranch_scc1 L2_prio')
            I('s_setprio 1')
            L('L2_prio')
        if opt.prio and p == 1: I('s_setprio 0')
        I(f's_add_u32 s{sI}, s{sI}, 1')
        for s in range(8):
            sig = 8 * p + s
            d = (sig >> 1) % 3
            so = 1024 * (sig & 1)
            if s == 2:
                I(f's_cmp_lt_u32 s{sI}, s{sNB}')
                I(f's_cselect_b32 s{sX+2}, s{sXSZ}, 0')
            I('s_waitcnt vmcnt(5)')
            I(f'ds_read_b64_tr_b16 {vr(vB,2)}, v{vRD+d} offset:{so}')
            I(f'ds_read_b64_tr_b16 {vr(vB+2,2)}, v{vRD+d} offset:{so+512}')
            k = 0
            if s == 2:
                ea_reads(p ^ 1); k = 2
            fetch(sig, (sig + 6) % 16)
            if s == 0: fmas(p ^ 1, 7)
            else: fmas(p, s - 1)
            if s == 0:
                I(f's_add_u32 s{sA}, s{sLN}, 1')
                I(f'v_readlane_b32 s{sSA1}, v{vSL+1}, s{sLN}')
                I(f'v_readlane_b32 s{sSB1}, v{vSL+1}, s{sA}')
            if s == 5:
                I(f's_add_u32 s{sLN}, s{sLN}, 2')
                I(f's_add_u32 s{sA}, s{sLN}, 1')
                I(f'v_readlane_b32 s{sSA0}, v{vSL}, s{sLN}')
                I(f'v_readlane_b32 s{sSB0}, v{vSL}, s{sA}')
            if sig == 9:
                I(f's_add_u32 s{sKI}, s{sKI}, 1')
                I(f's_set_gpr_idx_on s{sKI}, gpr_idx(SRC0)')
                I(f'v_mov_b32 v{vK}, v{vKQ}')
                I(f'v_or_b32 v{vIC}, v{vIQ}, v{vKG11}')
                I('s_set_gpr_idx_off')
            if s == 2 and p == 1:
                I(f's_bitcmp1_b32 s{sI}, 1')
                I('s_cbranch_scc1 L2_shrot')
                I(f's_add_u32 s{sSI}, s{sSI}, 2')
                I(f's_set_gpr_idx_on s{sSI}, gpr_idx(SRC0)')
                I(f'v_mov_b32 v{vSHC}, v{vSQ}')
                I(f'v_mov_b32 v{vSHC+1}, v{vSQ+1}')
                I('s_set_gpr_idx_off')
                I('s_branch L2_shdone')
                L('L2_shrot')
                for j in range(2):
                    I(f'v_mov_b32_dpp v{vSHC+j}, v{vSHC+j} quad_perm:[2,3,0,1] row_mask:0xf bank_mask:0xf')
                L('L2_shdone')
            if s == 3: sh_bcast(p ^ 1)
            I(f's_add_u32 m0, s{sRG+d}, {so}')
            I(f's_waitcnt lgkmcnt({k})')
            I(f'buffer_load_dwordx4 v{vAD}, {sr(sX,4)}, 0 offen lds')
            mfmas(p, s)
            if s < opt.lpb:
                C('late feature pass')
                I(f's_cmp_ge_u32 s{sPJ}, s{sNP}')
                I(f's_cbranch_scc1 L2_nolate{p}{s}')
                I(f's_set_gpr_idx_on s{sPJ}, gpr_idx(SRC0)')
                I(f'v_mov_b32 v{vGT}, v{vGA}')
                I('s_set_gpr_idx_off')
                I(f's_lshl_b32 m0, s{sPJ}, 13')
                I(f's_add_u32 m0, m0, s{sEB}')
                I(f's_add_u32 s{sPJ}, s{sPJ}, 1')
                I(f'buffer_load_dwordx4 v{vGT}, {sr(sEAO,4)}, 0 offen sc1 lds')
                L(f'L2_nolate{p}{s}')
            if s == 3: rw_mfma(p ^ 1)
            if s == 4: ae_dots()
            if s == 5: ae_cvt(p ^ 1)
        if p == 1:
            I(f'v_mov_b32 v{vGT}, v{vRD+2}'); I(f'v_mov_b32 v{vRD+2}, v{vRD+1}'); I(f'v_mov_b32 v{vRD+1}, v{vRD}'); I(f'v_mov_b32 v{vRD}, v{vGT}')
            I(f's_mov_b32 s{sRG+3}, s{sRG+2}'); I(f's_mov_b32 s{sRG+2}, s{sRG+1}'); I(f's_mov_b32 s{sRG+1}, s{sRG}'); I(f's_mov_b32 s{sRG}, s{sRG+3}')
        I(f's_cmp_lg_u32 s{sI}, s{sK0}')
        I(f's_cbranch_scc1 L2_nosync{p}')
        C('all late features have landed (every wave waited for its own passes above)')
        I('s_barrier')
        L(f'L2_nosync{p}')
        I(f's_cmp_lt_u32 s{sI}, s{sNB}')
        if p == 0: I('s_cbranch_scc0 L2_tail0')
        else: I('s_cbranch_scc1 L2_loop')
    for p in (1, 0):
        if p == 0: L('L2_tail0')
        I('s_nop 4')
        fmas(p, 7)
        if p == 1: I('s_branch L2_drain')
    L('L2_drain')
    I('s_waitcnt vmcnt(0) lgkmcnt(0)')
    stamp(13, VST)
    I(f's_add_u32 s{sR0}, s{sR0}, s{sRC}')
    I(f's_cmp_ge_u32 s{sR0}, s{sTOT}')
    I('s_cbranch_scc1 L2_epi')
    L('L2_again')
    I('s_barrier')
    prefill()
    I('s_branch L2_round')

    L('L2_epi')
    C('---- epilogue: hand the partial sums of a shared node to its owner (the previous wave)')
    vP = 132
    vT = 228
    vLANE, vLO = vT + 16, vT + 17
    vBA, vOW, vOR, vO = vT + 2, vT + 3, vT + 4, vT + 8
    I(f'v_and_b32 v{vLANE}, 63, v0')
    I(f's_sub_u32 s{sA}, s{sOF}, 1')
    I(f's_and_b32 s{sA}, s{sA}, 15')
    I(f's_lshl_b32 s{sA}, s{sA}, 2')
    I(f'v_lshl_add_u32 v{vT}, v{vLANE}, 4, s3')
    I(f's_set_gpr_idx_on s{sA}, gpr_idx(SRC0)')
    for k in range(4): I(f'v_mov_b32 v{vP+k}, v{vACC+k}')
    I('s_set_gpr_idx_off')
    I(f'ds_write_b128 v{vT}, {vr(vP,4)} offset:5120')
    I(f'v_mul_u32_u24 v{vT+1}, {TC}, v{vLANE}')
    I(f'v_add_u32 v{vT+1}, s3, v{vT+1}')
    I(f'v_bfe_u32 v{vT+5}, v0, 5, 1')
    I(f'v_bfe_u32 v{vT+6}, v0, 2, 2')
    I(f'v_lshl_add_u32 v{vBA}, v{vT+5}, 3, v{vT+6}')
    I(f'v_mul_u32_u24 v{vBA}, {TC}, v{vBA}')
    I(f'v_bfe_u32 v{vT+6}, v0, 4, 1')
    I(f'v_lshl_add_u32 v{vBA}, v{vT+6}, 5, v{vBA}')
    I(f'v_and_b32 v{vT+6}, 3, v0')
    I(f'v_lshl_add_u32 v{vBA}, v{vT+6}, 3, v{vBA}')
    I(f'v_add_u32 v{vBA}, s3, v{vBA}')
    C('restage addresses')
    I(f'v_and_b32 v{vLO}, 31, v0')
    I(f'v_mul_u32_u24 v{vOW}, {TP}, v{vLO}')
    I(f'v_lshl_add_u32 v{vOW}, v{vT+5}, 6, v{vOW}')
    I(f'v_add_u32 v{vOW}, s3, v{vOW}')
    I(f'v_lshrrev_b32 v{vOR}, 3, v{vLANE}')
    I(f'v_mul_u32_u24 v{vOR}, {TP}, v{vOR}')
    I(f'v_and_b32 v{vT+6}, 7, v0')
    I(f'v_lshl_add_u32 v{vOR}, v{vT+6}, 4, v{vOR}')
    I(f'v_add_u32 v{vOR}, s3, v{vOR}')
    C('output offsets: store it covers slots 2it (lower lanes) and 2it+1 (upper lanes)')
    I(f's_mul_i32 s{sB}, s{sBK}, {NB}')
    I(f's_add_u32 s{sB}, s{sB}, s{sOF}')
    I(f's_lshl_b32 s{sB}, s{sB}, 9')
    I(f'v_lshl_add_u32 v{vLO}, v{vLO}, 4, s{sB}')
    I(f's_sub_u32 s{sB}, s{sON}, s{sOF}')
    I(f'v_subrev_u32 v{vT+6}, s{sOF}, v{vT+5}')
    I(f'v_mov_b32 v{vT+7}, 0x80000000')
    for it in range(8):
        I(f'v_add_u32 v{vO+it}, {2*it}, v{vT+6}')
        I(f'v_and_b32 v{vO+it}, 15, v{vO+it}')
        I(f'v_cmp_gt_u32 {sr(sVM,2)}, s{sB}, v{vO+it}')
        I(f'v_lshl_add_u32 v{vO+it}, v{vO+it}, 9, v{vLO}')
        I('s_nop 0')
        I(f'v_cndmask_b32 v{vO+it}, v{vT+7}, v{vO+it}, {sr(sVM,2)}')
    I(f's_sub_u32 s{sA}, s{sON}, 1')
    I(f's_and_b32 s{sA}, s{sA}, 15')
    I(f's_lshl_b32 s{sA}, s{sA}, 2')
    I(f's_cmp_eq_u32 s{sW}, 7')
    I(f's_cselect_b32 s{sA}, {DUMMY}, s{sA}')
    I('s_waitcnt lgkmcnt(0)')
    I('s_barrier')
    I(f'ds_read_b128 {vr(vP,4)}, v{vT} offset:{6144+5120}')
    I('s_waitcnt lgkmcnt(0)')
    I(f's_set_gpr_idx_on s{sA}, gpr_idx(SRC0,DST)')
    for k in range(4): I(f'v_add_f32 v{vACC+k}, v{vACC+k}, v{vP+k}')
    I('s_set_gpr_idx_off')
    C('out = agg @ w_out, staged through this wave\'s own ring')
    vBB = 164
    vD = 8
    for ct in range(2):
        for i in range(4 * ct, 4 * ct + 4):
            for k in range(4):
                I(f'v_cvt_pk_bf16_f32 v{vP+4*i+k}, v{vACC+8*i+2*k}, v{vACC+8*i+2*k+1}')
            if ct and i == 4: I('s_waitcnt lgkmcnt(3)')
            I(f'ds_write_b128 v{vT+1}, {vr(vP+4*i,4)} offset:{16*(i&3)}')
        for s in range(4):
            for i in range(2):
                I(f'ds_read_b64_tr_b16 {vr(vBB+16*ct+4*s+2*i,2)}, v{vBA} offset:{(16*s+4*i)*TC}')
    for ct in range(2):
        I(f's_waitcnt lgkmcnt({12 if ct == 0 else 0})')
        for tile in range(2):
            d = vD + 32 * ct + 16 * tile
            for s in range(4):
                I(f'v_mfma_f32_32x32x16_bf16 {vr(d,16)}, {vr(vWA+16*tile+4*s,4)}, {vr(vBB+16*ct+4*s,4)}, {vr(d,16) if s else 0}')
    I('s_nop 3')
    vPK = 132
    vRB = 196
    sco = ' sc1'
    for ct in range(2):
        for k in range(16):
            I(f'v_cvt_pk_bf16_f32 v{vPK+16*ct+k}, v{vD+32*ct+2*k}, v{vD+32*ct+2*k+1}')
        for i in range(4):
            I(f'ds_write_b128 v{vOW}, {vr(vPK+16*ct+4*i,4)} offset:{16*i}')
        its = list(range(4 * ct, 4 * ct + 4))
        for it in its:
            I(f'ds_read_b128 {vr(vRB+4*it,4)}, v{vOR} offset:{8*(it&3)*TP}')
        for it in its:
            I(f's_waitcnt lgkmcnt({its[-1]-it})')
            I(f'buffer_store_dwordx4 {vr(vRB+4*it,4)}, v{vO+it}, {sr(sOUT,4)}, 0 offen{sco}')
    stamp(14, VST)
    if opt.stamps: I('s_waitcnt vmcnt(0)')
    stamp(15, VST); stamp_flush(VST, vGT)
    if opt.dbg:
        I(f's_cmp_lg_u32 s2, {opt.dbg}')
        I('s_cbranch_scc1 L2_end')
        I(f's_cmp_lg_u32 s{sW}, 0')
        I('s_cbranch_scc1 L2_end')
        I(f'v_readlane_b32 s{sA}, v{VST}, 0')
        if opt.tfirst: I(f's_mov_b32 s{sA}, s94')
        srd(Q0, 22, size=64)
        I(f'v_subrev_u32 v{vAD}, s{sA}, v{VST}')
        I(f'v_lshlrev_b32 v{vGT}, 2, v0')
        I('s_mov_b64 exec, 0xfffe')
        I(f'buffer_store_dword v{vAD}, v{vGT}, {sr(Q0,4)}, 0 offen' + (' sc1' if opt.nodbgst else ''))
        if opt.amp:
            I(f'v_readlane_b32 s{sB}, v{VST}, {opt.amp}')
            I(f's_sub_u32 s{sB}, s{sB}, s{sA}')
            I(f's_mul_i32 s{sB}, s{sB}, {opt.ampk}')
            I(f's_min_u32 s{sB}, s{sB}, 100000')
            I(f's_add_u32 s{sB}, s{sB}, 5000')
            L('L2_amp')
            I('s_memrealtime s[100:101]')
            I('s_waitcnt lgkmcnt(0)')
            I(f's_sub_u32 s100, s100, s{sA}')
            I(f's_cmp_lt_u32 s100, s{sB}')
            I('s_cbranch_scc1 L2_amp')
    L('L2_end')
    I('s_endpgm')

emit1(NAME, gen, 256, 512, K2_LDS, 256, 102)
```

```python
import sys
N, E = 25000, 800000
out = []
class Opt: pass
opt = Opt()
def parse(defaults):
    for k, v in defaults.items(): setattr(opt, k, v)
    for a in sys.argv[2:]:
        k, v = a.split('=')
        assert k in defaults, k
        setattr(opt, k, int(v))
def I(s): out.append('    ' + s)
def L(s): out.append(s + ':')
def C(s): out.append('    ; ' + s)
def vr(b, n): return f'v[{b}:{b+n-1}]' if n > 1 else f'v{b}'
def sr(b, n): return f's[{b}:{b+n-1}]' if n > 1 else f's{b}'

def srd(d, base, off_s=None, off_imm=0, size=None, size_s=None):
    if off_imm:
        I(f's_add_u32 s{d}, s{base}, 0x{off_imm:x}')
        I(f's_addc_u32 s{d+1}, s{base+1}, 0')
        if off_s is not None:
            I(f's_add_u32 s{d}, s{d}, s{off_s}')
            I(f's_addc_u32 s{d+1}, s{d+1}, 0')
    elif off_s is not None:
        I(f's_add_u32 s{d}, s{base}, s{off_s}')
        I(f's_addc_u32 s{d+1}, s{base+1}, 0')
    else:
        I(f's_mov_b32 s{d}, s{base}')
        I(f's_mov_b32 s{d+1}, s{base+1}')
    if size_s is not None:
        I(f's_mov_b32 s{d+2}, s{size_s}')
    else:
        I(f's_mov_b32 s{d+2}, 0x{size:x}')
    I(f's_mov_b32 s{d+3}, 0x20000')

def wave_scan(v):
    for sh in (1, 2, 4, 8):
        I('s_nop 1')
        I(f'v_add_u32_dpp v{v}, v{v}, v{v} row_shr:{sh} row_mask:0xf bank_mask:0xf')
    I('s_nop 1')
    I(f'v_add_u32_dpp v{v}, v{v}, v{v} row_bcast:15 row_mask:0xa bank_mask:0xf')
    I('s_nop 1')
    I(f'v_add_u32_dpp v{v}, v{v}, v{v} row_bcast:31 row_mask:0xc bank_mask:0xf')

STAMP_OFF = 240 << 20
def stamp_init(kk, va, vtmp, wsreg=14):
    if not opt.stamps: return
    I(f'v_mov_b32 v{va}, 0'); I(f'v_mov_b32 v{va+1}, 0')
    I(f'v_lshrrev_b32 v{vtmp}, 6, v0')
    I('s_nop 0')
    I(f'v_readfirstlane_b32 s100, v{vtmp}')
    I('s_lshl_b32 s101, s2, 4')
    I('s_add_u32 s100, s100, s101')
    I('s_lshl_b32 s100, s100, 7')
    srd(96, wsreg, off_s=100, off_imm=STAMP_OFF + kk * 256 * 16 * 128, size=128)
def stamp(i, va):
    if not opt.stamps: return
    if opt.stamps == 2 and i not in (0, 15): return
    if opt.stamps == 3 and i < 12 and i != 0: return
    if i >= 100:
        if opt.stamps != 3: return
        i -= 100
    I('s_memrealtime s[100:101]')
    I('s_waitcnt lgkmcnt(0)')
    I(f'v_writelane_b32 v{va}, s100, {i}')
    I(f'v_writelane_b32 v{va+1}, s101, {i}')
def stamp_flush(va, vtmp):
    if not opt.stamps: return
    I(f'v_and_b32 v{vtmp}, 63, v0')
    I(f'v_lshlrev_b32 v{vtmp}, 3, v{vtmp}')
    I(f'buffer_store_dwordx2 v[{va}:{va+1}], v{vtmp}, s[96:99], 0 offen sc1')

def desc(name, vg, sg):
    out.append('.p2align 6')
    out.append(f'.amdhsa_kernel {name}')
    out.append(f'  .amdhsa_next_free_vgpr {vg}')
    out.append(f'  .amdhsa_next_free_sgpr {sg}')
    out.append(f'  .amdhsa_accum_offset {(vg+3)//4*4}')
    out.append('  .amdhsa_group_segment_fixed_size 0')
    out.append('  .amdhsa_kernarg_size 88')
    out.append('  .amdhsa_user_sgpr_count 2')
    out.append('  .amdhsa_user_sgpr_kernarg_segment_ptr 1')
    out.append('  .amdhsa_system_sgpr_workgroup_id_x 1')
    out.append('  .amdhsa_float_denorm_mode_32 3')
    out.append('.end_amdhsa_kernel')

def emit(kernels):
    hdr = open('standalone__tensor_product_equiv_mace__graph.s.ref').read().split('\n')
    for l in hdr:
        if l.startswith('; Override'): break
        out.append(l)
    for name, g, grid, block, lds, vg, sg in kernels:
        out.append(f'; @launch kernel={name} grid=({grid},1,1) block=({block},1,1) lds={lds}')
    out.append('.amdgcn_target "amdgcn-amd-amdhsa--gfx950"')
    out.append('.text')
    for name, g, grid, block, lds, vg, sg in kernels:
        out.append(f'.globl {name}')
        out.append('.p2align 8')
        out.append(f'.type {name},@function')
        L(name)
        g()
    out.append('.section .rodata,"a"')
    for name, g, grid, block, lds, vg, sg in kernels:
        desc(name, vg, sg)
    open(sys.argv[1], 'w').write('\n'.join(out) + '\n')

def emit1(name, g, grid, block, lds, vg, sg):
    hdr = open('standalone__tensor_product_equiv_mace__graph.s.ref').read().split('\n')
    for l in hdr:
        if l.startswith('; Override'): break
        out.append(l)
    out.append(f'; @launch grid=({grid},1,1) block=({block},1,1) lds={lds}')
    out.append('.amdgcn_target "amdgcn-amd-amdhsa--gfx950"')
    out.append('.text')
    out.append(f'.globl {name}')
    out.append('.p2align 8')
    out.append(f'.type {name},@function')
    L(name)
    g()
    out.append('.section .rodata,"a"')
    desc(name, vg, sg)
    open(sys.argv[1], 'w').write('\n'.join(out) + '\n')
```

```python
from common import *
parse(dict(stamps=0, nt=1, a0=2, a1=1, a2=1, a3=1, a4=4, s1=0, s2=0, split=12, lpb=1, late=1, la=0, lb=392, dyn=1, prio=1, xpf=1, s0b=13, arb=6, x1=99, x2=7, pob=9, u=6, s0c=0, slp=2, dl=0, u2=0, u3=0, pace=0, sx=0, sy=0, sz=0, offl=0, rot=1, ofl=1, dbg=0, amp=0, ampk=4, tfirst=0, nodbgst=0))
NAME = 'standalone__tensor_product_equiv_mace__graph_kernel'
CH = 3136
NB = 98
RCAP = 3520
CAPX = 3640
WS_EA = 0
WS_MO = WS_EA + 256 * CH * 32
WS_OFF = WS_MO + 256 * CH * 12
WS_SYNC = WS_OFF + 524288
SPLIT = opt.split * 1024
SPIN = 1 << 20
L_RING = RCAP * 32
L_SH = L_RING
L_KI = L_SH + CAPX * 8
L_SLOT = L_KI + CAPX * 4
L_CNT = L_SLOT + 3648
L_NC = L_CNT + 1024
L_ST = L_NC + 512
L_NS = L_ST + 1024
L_WT = L_NS + 640
K2_LDS = max(L_RING + 49152, L_WT + 32)
assert K2_LDS <= 163840
NULLKI = 0x7fff
DUMMY = 16 * 4
RSMALL = 496
TP = 144
TC = 80
L_GI = L_SH
L_WO = L_GI + 3584 * 4
L_WR = L_WO + 64 * TP
L_CG = L_WR + 16 * TP
assert L_CG + 128 <= L_KI

L_MI = L_RING
L_INV = L_MI + CH * 12
L_HIST = L_INV + CH * 2
assert L_HIST + 4096 <= K2_LDS

def gen():
    nt = ' nt' if opt.nt else ''
    if opt.tfirst: I('s_memrealtime s[94:95]')
    I('s_cmp_ge_u32 s2, 0x100')
    I('s_cbranch_scc1 L2_end')
    I('s_load_dwordx16 s[4:19], s[0:1], 0')
    I('s_load_dwordx4 s[20:23], s[0:1], 64')
    I('s_load_dwordx2 s[24:25], s[0:1], 80')
    vPRE, vLEN, vG0, vLS, vKG11, vK, vIC = 1, 2, 3, 4, 5, 6, 7
    vACC = 8
    vBE, vBO, vCG, vA1, vA2, vWA = 76, 80, 84, 92, 96, 100
    vKQ, vSQ, vIQ, vSL = 132, 148, 164, 180
    vRD, vAD, vGT, vNUL = 182, 185, 186, 187
    vEAA = vGT
    vDT, vRW, vAE, vSHC, vSHR, vTT, vB = 188, 196, 228, 232, 234, 236, 240
    vGA = 240
    vME, vCL, vRK, vT = 132, 160, 188, 196
    vLANE = 167
    VST = 254
    vDST, vSRC, vSH, vBK, vCON, vMO, vIA = 132, 139, 146, 160, 168, 8, 240
    vED, vSO, vPF2, vEO, vPF1, vOFA, vSY = 8, 60, 61, 62, 63, 64, 65
    Q0, Q1, Q2, Q3, Q4, Q5, Q6 = 28, 32, 36, 40, 44, 48, 52
    sMO, sEAO, sOUT, sX, sEAS, sOFF, sSYN = Q0, Q1, Q2, Q3, Q4, Q5, Q6
    sVM = 6
    sBK, sW = 26, 27
    sTOT, sR0, sCNT, sNB, sNBM, sI, sRC, sXSZ = 56, 57, 58, 59, 60, 61, 62, 63
    sM0, sM1 = 64, 66
    sSA0, sSA1, sSB0, sSB1 = 68, 69, 70, 71
    sRG = 72
    sLN, sKI, sSI = 76, 77, 78
    sT0, sPJ, sNP, sK0, sEB, sMG, sOF, sON = 79, 80, 81, 82, 83, 84, 85, 86
    sE0, sNE, sFIRST, sC, sD, sL7 = 87, 88, 89, 90, 91, 92
    sA, sB = 0, 1
    C('==== phase A: partition this workgroup\'s chunk of edges by (src phase, dst bucket)')
    I(f'v_lshlrev_b32 v{vT}, 2, v0')
    I(f'v_add_u32 v{vT+1}, {L_HIST}, v{vT}')
    I(f'v_mov_b32 v{vT+2}, 0')
    I(f'ds_write_b32 v{vT+1}, v{vT+2}')
    I(f'v_lshrrev_b32 v{vT+3}, 6, v0')
    I(f's_and_b32 s{sBK}, s2, 7')
    I(f's_lshl_b32 s{sBK}, s{sBK}, 5')
    I('s_lshr_b32 s3, s2, 3')
    I(f's_add_u32 s{sBK}, s{sBK}, s3')
    I(f'v_readfirstlane_b32 s{sW}, v{vT+3}')
    I(f's_mul_i32 s{sE0}, s{sBK}, {CH}')
    I(f's_sub_u32 s{sNE}, {E}, s{sE0}')
    I(f's_min_u32 s{sNE}, s{sNE}, {CH}')
    for i in range(1, 4): I(f'v_add_u32 v{vT+3+i}, {4096*i}, v{vT}')
    I(f'v_lshlrev_b32 v{vT+8}, 3, v0')
    I(f'v_lshlrev_b32 v{vEO}, 4, v0')
    I(f'v_and_b32 v{vLANE}, 63, v0')
    I(f's_lshl_b32 s{sC}, s{sE0}, 2'); I(f's_lshl_b32 s{sD}, s{sNE}, 2')
    I(f's_lshl_b32 s{sEB}, s{sW}, 10')
    I('s_waitcnt lgkmcnt(0)')
    srd(Q0, 8, off_s=sC, size_s=sD)
    for m in range(7):
        I(f'buffer_load_dword v{vDST+m}, v{vT+3+(m>>1) if m > 1 else vT}, {sr(Q0,4)}, 0 offen offset:{2048*(m&1)}{nt}')
    srd(Q1, 6, off_s=sC, size_s=sD)
    for m in range(7):
        I(f'buffer_load_dword v{vSRC+m}, v{vT+3+(m>>1) if m > 1 else vT}, {sr(Q1,4)}, 0 offen offset:{2048*(m&1)}{nt}')
    stamp_init(1, VST, vGT, 24); stamp(0, VST)
    srd(sSYN, 24, off_imm=WS_SYNC, size=32768)
    C('workgroup 0 clears the hand-off counters, then raises the flag in d_debug')
    I(f's_or_b32 s{sA}, s2, s{sW}')
    I('s_cbranch_scc1 L1_noinit')
    srd(Q2, 22, size=256)
    I(f'v_lshlrev_b32 v{vT+9}, 8, v0')
    I(f'buffer_store_dword v{vT+2}, v{vT+9}, {sr(sSYN,4)}, 0 offen sc1')
    I(f'v_add_u32 v{vT+10}, 16384, v{vT+9}')
    I(f'buffer_store_dword v{vT+2}, v{vT+10}, {sr(sSYN,4)}, 0 offen sc1')
    I(f'v_mov_b32 v{vT+10}, 1')
    I('s_waitcnt vmcnt(0)')
    I(f'buffer_store_dword v{vT+10}, v{vT+9}, {sr(Q2,4)}, 0 offen sc1')
    L('L1_noinit')
    I('s_barrier')
    I(f's_lshl_b32 s{sC}, s{sE0}, 3'); I(f's_lshl_b32 s{sD}, s{sNE}, 3')
    srd(Q2, 10, off_s=sC, size_s=sD)
    for m in range(7):
        I(f'buffer_load_dwordx2 {vr(vSH+2*m,2)}, v{vT+8}, {sr(Q2,4)}, 0 offen{nt}')
        if m < 6: I(f'v_add_u32 v{vT+8}, 4096, v{vT+8}')
    srd(Q1, 18, size=8192)
    I(f'buffer_load_dwordx4 {vr(vCON,4)}, v{vEO}, {sr(Q1,4)}, 0 offen')
    srd(Q1, 16, size=2048)
    I(f'buffer_load_dwordx4 {vr(vCON+4,4)}, v{vEO}, {sr(Q1,4)}, 0 offen')
    srd(Q1, 14, size=128)
    I(f'buffer_load_dwordx4 {vr(vCON+8,4)}, v{vEO}, {sr(Q1,4)}, 0 offen')
    I(f's_lshl_b32 s{sC}, s{sE0}, 5'); I(f's_lshl_b32 s{sD}, s{sNE}, 5')
    srd(Q3, 12, off_s=sC, size_s=sD)
    nin = [0]
    def ea_in(k):
        for _ in range(k):
            j = nin[0]
            if j >= 13: return
            I(f's_add_u32 m0, s{sEB}, {8192*j}')
            if j: I(f'v_add_u32 v{vEO}, 8192, v{vEO}')
            else: I('s_nop 0')
            I(f'buffer_load_dwordx4 v{vEO}, {sr(Q3,4)}, 0 offen{nt} lds')
            nin[0] += 1
    ea_in(opt.a0)
    srd(sEAS, 24, off_s=sC, off_imm=WS_EA, size_s=sD)
    I(f's_mul_i32 s{sC}, s{sE0}, 12'); I(f's_mul_i32 s{sD}, s{sNE}, 12')
    srd(Q0, 24, off_s=sC, off_imm=WS_MO, size_s=sD)
    srd(sOFF, 24, off_imm=WS_OFF, size=524288)
    srd(Q2, 22, size=256)
    for m in range(7):
        I(f'v_add_u32 v{vT+10}, {512*m}, v0')
        I(f'v_cmp_gt_u32 {sr(sVM+2*m,2)}, s{sNE}, v{vT+10}')
    I(f'v_mov_b32 v{vT+9}, 1')
    I(f's_mov_b32 s{sC}, {SPLIT}')
    I(f's_mov_b32 s{sD}, {-32*NB if opt.rot else 0}')
    vBN = vT + 20
    I(f'v_mov_b32 v{vT+12}, {L_HIST}')
    I(f'v_mov_b32 v{vT+13}, {L_HIST+1024}')
    I(f's_waitcnt vmcnt({10+nin[0]})')
    for m in range(7):
        I(f'v_mul_u32_u24 v{vBK+m}, 42800, v{vDST+m}')
        I(f'v_lshrrev_b32 v{vT+10}, 27, v{vBK+m}')
        I(f'v_mad_i32_i24 v{vT+10}, v{vT+10}, s{sD}, v{vSRC+m}')
        I(f'v_add_u32 v{vT+11}, {N}, v{vT+10}')
        I(f'v_min_u32 v{vBN+m}, v{vT+10}, v{vT+11}')
        I(f'v_cmp_le_u32 {sr(sA,2)}, s{sC}, v{vBN+m}')
        I(f'v_lshrrev_b32 v{vBK+m}, 22, v{vBK+m}')
        I(f'v_mul_u32_u24 v{vT+10}, {NB}, v{vBK+m}')
        I(f'v_sub_u32 v{vDST+m}, v{vDST+m}, v{vT+10}')
        I(f'v_cndmask_b32 v{vT+11}, v{vT+12}, v{vT+13}, {sr(sA,2)}')
        I(f'v_lshl_add_u32 v{vBK+m}, v{vBK+m}, 2, v{vT+11}')
        I(f's_mov_b64 exec, {sr(sVM+2*m,2)}')
        I(f'ds_add_rtn_u32 v{vRK+m}, v{vBK+m}, v{vT+9}')
        I('s_mov_b64 exec, -1')
    ea_in(opt.a1)
    C('key = bin<<27 | static wave<<24 | src<<9 | dlocal<<2')
    for m in range(7):
        I(f'v_mul_u32_u24 v{vT+11}, 5350, v{vDST+m}')
        I(f'v_and_b32 v{vT+11}, 0x70000, v{vT+11}')
        I(f'v_lshrrev_b32 v{vBN+m}, 10, v{vBN+m}')
        I(f'v_lshl_or_b32 v{vT+11}, v{vBN+m}, 19, v{vT+11}')
        I(f'v_lshlrev_b32 v{vT+11}, 8, v{vT+11}')
        I(f'v_lshl_add_u32 v{vT+11}, v{vDST+m}, 2, v{vT+11}')
        I(f'v_lshl_add_u32 v{vSRC+m}, v{vSRC+m}, 9, v{vT+11}')
    I(f'v_lshlrev_b32 v{vT+16}, 4, v{vLANE}')
    I(f'v_add_u32 v{vT+16}, {L_HIST}, v{vT+16}')
    I('s_waitcnt lgkmcnt(0)')
    I('s_barrier')
    stamp(1, VST)
    C('every wave scans the histogram and writes the (identical) start table')
    cnt, st = vT + 28, vT + 20
    I(f'ds_read_b128 {vr(cnt,4)}, v{vT+16}')
    I(f'ds_read_b128 {vr(cnt+4,4)}, v{vT+16} offset:1024')
    I('s_waitcnt lgkmcnt(0)')
    for h in range(2):
        I(f'v_add_u32 v{st+4*h+1}, v{cnt+4*h}, v{cnt+4*h+1}')
        I(f'v_add_u32 v{st+4*h+2}, v{st+4*h+1}, v{cnt+4*h+2}')
        I(f'v_add_u32 v{vT+12+h}, v{st+4*h+2}, v{cnt+4*h+3}')
    I(f'v_lshl_add_u32 v{vT+17}, v{vT+13}, 16, v{vT+12}')
    I(f'v_mov_b32 v{vT+18}, v{vT+17}')
    wave_scan(vT + 18)
    I(f'v_sub_u32 v{vT+17}, v{vT+18}, v{vT+17}')
    I(f'v_readlane_b32 s{sA}, v{vT+18}, 63')
    I(f'v_and_b32 v{st}, 0xffff, v{vT+17}')
    I(f'v_lshrrev_b32 v{st+4}, 16, v{vT+17}')
    I(f's_and_b32 s{sA}, s{sA}, 0xffff')
    I(f'v_add_u32 v{st+4}, s{sA}, v{st+4}')
    for h in range(2):
        I(f'v_add_u32 v{st+4*h+3}, v{st+4*h}, v{st+4*h+2}')
        I(f'v_add_u32 v{st+4*h+2}, v{st+4*h}, v{st+4*h+1}')
        I(f'v_add_u32 v{st+4*h+1}, v{st+4*h}, v{cnt+4*h}')
        I(f'ds_write_b128 v{vT+16}, {vr(st+4*h,4)} offset:{2048+1024*h}')
    for m in range(7):
        I(f'ds_read_b32 v{vBK+m}, v{vBK+m} offset:2048')
    ea_in(opt.a2)
    I(f's_mov_b32 s{sC}, {L_MI}')
    I(f's_mov_b32 s{sD}, {L_INV}')
    I(f's_waitcnt vmcnt({3+nin[0]}) lgkmcnt(0)')
    for m in range(7):
        I(f'v_add_u32 v{vRK+m}, v{vRK+m}, v{vBK+m}')
        I(f'v_mad_u32_u24 v{vBK+m}, v{vRK+m}, 12, s{sC}')
        I(f'v_lshl_add_u32 v{vRK+m}, v{vRK+m}, 1, s{sD}')
        I(f'v_add_u32 v{vDST+m}, {512*m}, v0')
    for m in range(7):
        I(f's_mov_b64 exec, {sr(sVM+2*m,2)}')
        I(f'ds_write_b16 v{vRK+m}, v{vDST+m}')
        I(f'ds_write2_b32 v{vBK+m}, v{vSRC+m}, v{vSH+2*m} offset0:0 offset1:1')
        I(f'ds_write_b32 v{vBK+m}, v{vSH+2*m+1} offset:8')
    I('s_mov_b64 exec, -1')
    ea_in(opt.a3)
    I(f'v_lshlrev_b32 v{vSO}, 4, v0')
    I(f'v_add_u32 v{vT+10}, {L_MI}, v{vSO}')
    I(f'v_and_b32 v{vT+8}, 0x1fe, v0')
    I(f'v_add_u32 v{vT+8}, {L_INV}, v{vT+8}')
    I('s_waitcnt lgkmcnt(0)')
    I('s_barrier')
    stamp(2, VST)
    C('meta image and run table -> global')
    for j in range(5):
        I(f'ds_read_b128 {vr(vMO+4*j,4)}, v{vT+10} offset:{8192*j}')
    for j in range(5):
        I(f's_waitcnt lgkmcnt({4-j})')
        I(f'buffer_store_dwordx4 {vr(vMO+4*j,4)}, v{vSO}, {sr(Q0,4)}, 0 offen sc1')
        if j < 4: I(f'v_add_u32 v{vSO}, 8192, v{vSO}')
    for j in range(13):
        I(f'ds_read_u16 v{vIA+j}, v{vT+8} offset:{512*j}')
    I(f's_cmp_lg_u32 s{sW}, 7')
    I('s_cbranch_scc1 L1_nooff')
    C('OFF[bucket/4][chunk][phase][bucket%4] = start | len<<16')
    I(f's_lshl_b32 s{sA}, s{sBK}, {11 if opt.offl else 5}')
    I(f'v_lshlrev_b32 v{vT+17}, {4 if opt.offl else 13}, v{vLANE}')
    I(f'v_add_u32 v{vT+17}, s{sA}, v{vT+17}')
    for i in range(8):
        I(f'v_lshl_add_u32 v{cnt+i}, v{cnt+i}, 16, v{st+i}')
    for h in range(2):
        I(f'buffer_store_dwordx4 {vr(cnt+4*h,4)}, v{vT+17}, {sr(sOFF,4)}, 0 offen offset:{(1024 if opt.offl else 16)*h} sc1')
    L('L1_nooff')
    I(f'v_mov_b32 v{vT+2}, 0')
    I(f's_cmp_lg_u32 s{sW}, 0')
    I('s_cbranch_scc1 L1_noflag')
    I(f'buffer_load_dword v{vT+3}, v{vT+2}, {sr(Q2,4)}, 0 offen sc1')
    L('L1_noflag')
    n0 = nin[0]
    ea_in(opt.a4)
    n4 = nin[0] - n0
    I(f'v_and_b32 v{vT+9}, 1, v0')
    I(f'v_lshlrev_b32 v{vT+9}, 4, v{vT+9}')
    I('s_waitcnt lgkmcnt(0)')
    for j in range(13):
        I(f'v_lshl_add_u32 v{vIA+j}, v{vIA+j}, 5, v{vT+9}')
    I(f's_waitcnt vmcnt({n4})')
    I('s_barrier')
    stamp(3, VST)
    def arrive(tag, base):
        I(f's_bfe_u32 s{sA}, s2, 0x30003')
        I(f's_lshl_b32 s{sA}, s{sA}, 8')
        I(f's_add_u32 s{sA}, s{sA}, {base}')
        I(f'v_lshl_add_u32 v{vGT}, v0, 11, s{sA}')
        I(f'v_mov_b32 v{vAD}, 1')
        I('s_mov_b64 exec, 0xff')
        I(f'buffer_atomic_add v{vAD}, v{vGT}, {sr(sSYN,4)}, 0 offen sc1')
        I('s_mov_b64 exec, -1')
    def poll(tag, base):
        I(f's_and_b32 s{sA}, s2, 7')
        I(f's_lshl_b32 s{sA}, s{sA}, 11')
        I(f's_add_u32 s{sA}, s{sA}, {base}')
        I(f'v_and_b32 v{vGT}, 7, v0')
        I(f'v_lshl_add_u32 v{vGT}, v{vGT}, 8, s{sA}')
        I(f's_mov_b32 s{sB}, 0')
        L(f'L_poll{tag}')
        I(f'buffer_load_dword v{vAD}, v{vGT}, {sr(sSYN,4)}, 0 offen sc1')
        I(f's_add_u32 s{sB}, s{sB}, 1')
        I('s_waitcnt vmcnt(0)')
        I(f'v_cmp_ne_u32 vcc, 32, v{vAD}')
        I('s_cmp_eq_u64 vcc, 0')
        I(f's_cbranch_scc1 L_polled{tag}')
        I(f's_sleep {opt.slp}')
        I(f's_cmp_lt_u32 s{sB}, {SPIN}')
        I(f's_cbranch_scc1 L_poll{tag}')
        L(f'L_polled{tag}')
    I(f's_cmp_lg_u32 s{sW}, 0')
    I('s_cbranch_scc1 L1_arrived')
    I(f's_mov_b32 s{sB}, 0')
    L('L1_flag')
    I(f'v_readfirstlane_b32 s{sA}, v{vT+3}')
    I(f's_cmp_eq_u32 s{sA}, 1')
    I('s_cbranch_scc1 L1_flagok')
    I(f'buffer_load_dword v{vT+3}, v{vT+2}, {sr(Q2,4)}, 0 offen sc1')
    I(f's_add_u32 s{sB}, s{sB}, 1')
    I('s_waitcnt vmcnt(0)')
    I(f's_cmp_lt_u32 s{sB}, {SPIN}')
    I('s_cbranch_scc1 L1_flag')
    L('L1_flagok')
    arrive('A', 0)
    L('L1_arrived')
    ea_in(13)
    def prefill():
        C('prefill KI with null entries, SLOT with the dummy slot, zero CNT')
        for i in range(4): I(f'v_mov_b32 v{vT+4+i}, 0x{NULLKI:x}')
        I(f'v_lshlrev_b32 v{vT}, 4, v0')
        I(f'v_add_u32 v{vT}, {L_KI}, v{vT}')
        I(f'ds_write_b128 v{vT}, {vr(vT+4,4)}')
        I(f'v_cmp_gt_u32 vcc, {(CAPX*4-8192)//16}, v0')
        I('s_and_b64 exec, exec, vcc')
        I(f'ds_write_b128 v{vT}, {vr(vT+4,4)} offset:8192')
        I('s_mov_b64 exec, -1')
        I(f'v_mov_b32 v{vT+8}, 0x{DUMMY*0x01010101:x}')
        I(f'v_cmp_gt_u32 vcc, {3648//16}, v0')
        I(f'v_add_u32 v{vT}, {L_SLOT-L_KI}, v{vT}')
        I('s_nop 0')
        I(f'v_cndmask_b32 v{vT+8}, 0, v{vT+8}, vcc')
        for i in range(1, 4): I(f'v_mov_b32 v{vT+8+i}, v{vT+8}')
        I(f'v_cmp_gt_u32 vcc, {3648//16+96}, v0')
        I('s_and_b64 exec, exec, vcc')
        I(f'ds_write_b128 v{vT}, {vr(vT+8,4)}')
        I('s_mov_b64 exec, -1')
    prefill()
    C('stage the constants')
    I(f'v_lshrrev_b32 v{vT+12}, 3, v0')
    I(f'v_mul_u32_u24 v{vT+12}, {TP}, v{vT+12}')
    I(f'v_and_b32 v{vT+3}, 7, v0')
    I(f'v_lshl_add_u32 v{vT+12}, v{vT+3}, 4, v{vT+12}')
    I(f'v_add_u32 v{vT+12}, {L_WO}, v{vT+12}')
    I(f's_mov_b32 s{sA}, 0x05040100')
    I(f's_mov_b32 s{sB}, 0x07060302')
    I(f'v_perm_b32 v{vT+4}, v{vCON+1}, v{vCON}, s{sA}')
    I(f'v_perm_b32 v{vT+5}, v{vCON+3}, v{vCON+2}, s{sA}')
    I(f'v_perm_b32 v{vT+6}, v{vCON+1}, v{vCON}, s{sB}')
    I(f'v_perm_b32 v{vT+7}, v{vCON+3}, v{vCON+2}, s{sB}')
    I(f'ds_write_b128 v{vT+12}, {vr(vT+4,4)}')
    I('v_cmp_gt_u32 vcc, 0x80, v0')
    I('s_and_b64 exec, exec, vcc')
    I(f'ds_write_b128 v{vT+12}, {vr(vCON+4,4)} offset:{L_WR-L_WO}')
    I('v_cmp_gt_u32 vcc, 8, v0')
    I('s_and_b64 exec, exec, vcc')
    I(f'ds_write_b128 v{vT+12}, {vr(vCON+8,4)} offset:{L_CG-L_WO}')
    I('s_mov_b64 exec, -1')
    srd(sMO, 24, off_imm=WS_MO, size=E * 12)
    srd(sEAO, 24, off_imm=WS_EA, size=E * 32)
    srd(sOUT, 20, size=N * 512)
    srd(sX, 4, size=N * 512)
    I(f's_mov_b32 s{sXSZ}, 0x{N*512:x}')
    I(f's_mov_b32 s{sRC}, {RCAP}')
    I(f's_mov_b32 s{sR0}, 0')
    I(f's_mov_b32 s{sFIRST}, 1')
    C('run table address, x prefetch offsets')
    I(f'v_and_b32 v{vT+1}, 0xff, v0')
    I(f's_lshr_b32 s{sA}, s{sBK}, 2')
    I(f's_lshl_b32 s{sA}, s{sA}, 11')
    I(f's_and_b32 s{sB}, s{sBK}, 3')
    I(f's_add_u32 s{sA}, s{sA}, s{sB}')
    I(f's_lshl_b32 s{sA}, s{sA}, 2')
    I(f'v_mul_u32_u24 v{vG0}, {CH}, v{vT+1}')
    if opt.offl: I(f's_lshl_b32 s{sA}, s{sBK}, 2')
    I(f'v_lshl_add_u32 v{vOFA}, v{vT+1}, {11 if opt.offl else 5}, s{sA}')
    I(f'v_lshrrev_b32 v{vT+3}, 8, v0')
    I(f'v_lshl_add_u32 v{vOFA}, v{vT+3}, {10 if opt.offl else 4}, v{vOFA}')
    LA = opt.la; LB = opt.lb
    I(f'v_mov_b32 v{vT+14}, 0x80000000')
    if opt.rot:
        I(f's_lshr_b32 s{sC}, s{sBK}, 5')
        I(f's_mul_i32 s{sC}, s{sC}, {32*NB*512}')
        I(f's_and_b32 s{sD}, s{sBK}, 31')
        NG = 32
    else:
        I(f's_mov_b32 s{sC}, 0')
        I(f's_mov_b32 s{sD}, s{sBK}')
        NG = 256
    I(f's_mul_i32 s{sA}, s{sD}, {LB*128}')
    I(f's_add_u32 s{sA}, s{sA}, {NG*LA*128}')
    I(f's_add_u32 s{sA}, s{sA}, s{sC}')
    I(f'v_sub_u32 v{vT+15}, 511, v0')
    I(f'v_cmp_gt_u32 vcc, {LB}, v{vT+15}')
    I(f'v_lshlrev_b32 v{vT+13}, 7, v{vT+15}')
    I(f'v_add_u32 v{vPF2}, s{sA}, v{vT+13}')
    I(f'v_cndmask_b32 v{vPF2}, v{vT+14}, v{vPF2}, vcc')
    I(f'v_cmp_gt_u32 vcc, {LA}, v{vT+15}')
    I(f's_mul_i32 s{sA}, s{sD}, {LA*128}')
    I(f's_add_u32 s{sA}, s{sA}, s{sC}')
    I(f'v_add_u32 v{vPF1}, s{sA}, v{vT+13}')
    I(f'v_cndmask_b32 v{vPF1}, v{vT+14}, v{vPF1}, vcc')
    nst = [0]
    def ea_out(k, tag, lg=False):
        if k == 0: return
        if nst[0] >= 13: return
        I(f's_cmp_lg_u32 s{sFIRST}, 1')
        I(f's_cbranch_scc1 L2_noout{tag}')
        I(f'v_lshlrev_b32 v{vSO}, 4, v0')
        first = True
        for _ in range(k):
            j = nst[0]
            if j >= 13: break
            if j: I(f'v_add_u32 v{vSO}, {8192*j if first else 8192}, v{vSO}')
            first = False
            if lg: I(f's_waitcnt lgkmcnt({12-j})')
            if opt.pace and j >= opt.pace: I(f's_waitcnt vmcnt({opt.pace-1})')
            I(f'buffer_store_dwordx4 {vr(vED+4*j,4)}, v{vSO}, {sr(sEAS,4)}, 0 offen sc1')
            nst[0] += 1
        L(f'L2_noout{tag}')
    def xpf(at):
        for reg, pos in ((vPF1, opt.x1), (vPF2, opt.x2)):
            if opt.xpf and pos == at:
                C('pull a share of x towards the chip (one dword per line)')
                I(f's_cmp_eq_u32 s{sFIRST}, 0')
                I(f's_cbranch_scc1 L2_nopf{reg}')
                I(f'buffer_load_dword v{vNUL}, v{reg}, {sr(sX,4)}, 0 offen')
                L(f'L2_nopf{reg}')
    nea = [0]
    def early_static(k=None):
        for _ in range(opt.u if k is None else k):
            j = nea[0]; nea[0] += 1
            I(f's_add_u32 m0, s{sEB}, {8192*j}')
            I('s_nop 0')
            I(f'buffer_load_dwordx4 v{vGA+j}, {sr(sEAO,4)}, 0 offen sc1 lds')
    def bar_b(at):
        if opt.pob == at:
            assert opt.arb < at
            I(f's_cmp_eq_u32 s{sFIRST}, 0')
            I('s_cbranch_scc1 L_polledB')
            I(f's_cmp_lg_u32 s{sW}, 0')
            I('s_cbranch_scc1 L_polledB')
            poll('B', 16384)
        if opt.arb == at:
            assert nst[0] >= 13
            I(f's_waitcnt vmcnt({7 if at == 6 else 0}) lgkmcnt(0)')
        else:
            I('s_waitcnt lgkmcnt(0)')
        I('s_barrier')
        if at != 6: stamp(at, VST)
        if opt.pob == at and not (opt.dl and at == 9): early_static()
        if opt.arb == at:
            I(f's_cmp_lg_u32 s{sFIRST}, 1')
            I('s_cbranch_scc1 L2_arrivedB')
            I(f's_mov_b32 s{sFIRST}, 2')
            I(f's_cmp_lg_u32 s{sW}, 0')
            I('s_cbranch_scc1 L2_arrivedB')
            arrive('B', 16384)
            L('L2_arrivedB')
    xpf(99)
    I('s_waitcnt lgkmcnt(0)')
    I('s_barrier')
    C('constant operands and one-time setup')
    I(f'v_bfe_u32 v{vT}, v0, 5, 1')
    I(f'v_mul_u32_u24 v{vKG11}, 0x10001, v{vT}')
    I(f'v_bfe_u32 v{vT+1}, v0, 2, 2')
    I(f'v_lshl_add_u32 v{vT}, v{vT}, 3, v{vT+1}')
    I(f'v_mul_u32_u24 v{vT}, {TP}, v{vT}')
    I(f'v_add_u32 v{vT}, {L_WO}, v{vT}')
    I(f'v_bfe_u32 v{vT+2}, v0, 4, 1')
    I(f'v_and_b32 v{vT+3}, 3, v0')
    I(f'v_lshl_add_u32 v{vT+4}, v{vT+2}, 5, v{vT}')
    I(f'v_lshl_add_u32 v{vT+4}, v{vT+3}, 3, v{vT+4}')
    I(f'v_lshl_add_u32 v{vT+5}, v{vT+2}, 6, v{vT}')
    I(f'v_lshl_add_u32 v{vT+5}, v{vT+3}, 4, v{vT+5}')
    I(f'v_lshlrev_b32 v{vT+1}, 3, v{vT+1}')
    I(f'v_add_u32 v{vT+1}, {L_CG}, v{vT+1}')
    for h in range(2):
        for i in range(2):
            I(f'ds_read_b64_tr_b16 {vr(vBE+4*h+2*i,2)}, v{vT+4} offset:{L_WR-L_WO+4*i*TP+64*h}')
    for u in range(4):
        I(f'ds_read_b64_tr_b16 {vr(vCG+2*u,2)}, v{vT+1} offset:{32*u}')
    for tile in range(2):
        I('s_waitcnt lgkmcnt(4)')
        for s in range(4):
            for i in range(2):
                I(f'ds_read_b64_tr_b16 {vr(vWA+16*tile+4*s+2*i,2)}, v{vT+5} offset:{(16*s+4*i)*TP+8*tile}')
    I(f's_mov_b32 s{sM0}, 0x0f0f0f0f'); I(f's_mov_b32 s{sM0+1}, 0x0f0f0f0f')
    I(f's_mov_b32 s{sM1}, 0xf0f0f0f0'); I(f's_mov_b32 s{sM1+1}, 0xf0f0f0f0')
    for r in range(8): I(f'v_mov_b32 v{vA1+r}, 0')
    I(f'v_and_b32 v{vLS}, 31, v0')
    I(f'v_lshlrev_b32 v{vLS}, 4, v{vLS}')
    C('swizzled lane offset inside a row, transposing-read address')
    I(f'v_bfe_u32 v{vT}, v0, 4, 1')
    I(f'v_lshlrev_b32 v{vT}, 6, v{vT}')
    I(f'v_xor_b32 v{vLS}, v{vT}, v{vLS}')
    I(f'v_bfe_u32 v{vT}, v0, 4, 2')
    I(f'v_and_b32 v{vT+3}, 3, v0')
    I(f'v_lshlrev_b32 v{vT+3}, 3, v{vT+3}')
    I(f'v_lshl_add_u32 v{vT}, v{vT}, 5, v{vT+3}')
    I(f'v_bfe_u32 v{vT+3}, v0, 3, 1')
    I(f'v_lshlrev_b32 v{vT+3}, 6, v{vT+3}')
    I(f'v_xor_b32 v{vT}, v{vT}, v{vT+3}')
    I(f'v_bfe_u32 v{vT+3}, v0, 2, 2')
    I(f'v_lshl_add_u32 v{vT}, v{vT+3}, 7, v{vT}')
    I(f's_mul_i32 s3, s{sW}, 6144')
    I(f's_add_u32 s3, s3, {L_RING}')
    for d in range(3):
        I(f's_add_u32 s{sRG+d}, s3, {2048*d}')
        I(f'v_add_u32 v{vRD+d}, s{sRG+d}, v{vT}')
    stamp(4, VST)
    I(f's_cmp_lg_u32 s{sW}, 0')
    I('s_cbranch_scc1 L_polledA')
    poll('A', 0)
    I(f's_waitcnt vmcnt({(opt.xpf and opt.x1 == 99)+(opt.xpf and opt.x2 == 99)}) lgkmcnt(0)')
    I('s_barrier')
    stamp(5, VST)
    C('==== phase B: every chunk has published its keys; this chunk\'s features are in LDS')
    F = vT + 16
    I(f'buffer_load_dword v{F}, v{vOFA}, {sr(sOFF,4)}, 0 offen sc1')
    for j in range(13):
        I(f'ds_read_b128 {vr(vED+4*j,4)}, v{vIA+j}')
    xpf(0)
    ea_out(opt.s0b, '0b', lg=True)
    I(f's_waitcnt vmcnt({nst[0]+(opt.xpf and opt.x1 == 0)+(opt.xpf and opt.x2 == 0)})')
    C('run lengths -> prefix')
    I(f'v_lshrrev_b32 v{vLEN}, 16, v{F}')
    I(f'v_and_b32 v{F}, 0xffff, v{F}')
    I(f'v_mov_b32 v{vT}, v{vLEN}')
    I(f'v_add_u32 v{vG0}, v{vG0}, v{F}')
    wave_scan(vT)
    I(f's_lshl_b32 s{sA}, s{sW}, 2')
    I(f's_add_u32 s{sA}, s{sA}, {L_WT}')
    I(f'v_mov_b32 v{vT+1}, s{sA}')
    I(f'v_sub_u32 v{vPRE}, v{vT}, v{vLEN}')
    I('s_mov_b32 exec_lo, 0')
    I('s_brev_b32 exec_hi, 1')
    I(f'ds_write_b32 v{vT+1}, v{vT}')
    I('s_mov_b64 exec, -1')
    I(f'v_and_b32 v{vT+1}, 7, v0')
    I(f'v_lshlrev_b32 v{vT+1}, 2, v{vT+1}')
    I(f'v_add_u32 v{vT+1}, {L_WT}, v{vT+1}')
    I('s_waitcnt lgkmcnt(0)')
    I('s_barrier')
    I(f'ds_read_b32 v{vT+2}, v{vT+1}')
    I('s_waitcnt lgkmcnt(0)')
    I(f'v_mov_b32 v{vT+3}, v{vT+2}')
    for sh in (1, 2, 4):
        I('s_nop 1')
        I(f'v_add_u32_dpp v{vT+3}, v{vT+3}, v{vT+3} row_shr:{sh} row_mask:0xf bank_mask:0xf')
    I(f'v_sub_u32 v{vT+2}, v{vT+3}, v{vT+2}')
    I(f'v_readlane_b32 s{sTOT}, v{vT+3}, 7')
    I(f'v_readlane_b32 s{sA}, v{vT+2}, s{sW}')
    I(f'v_readlane_b32 s{sT0}, v{vT+3}, 3')
    I('s_nop 0')
    I(f'v_add_u32 v{vPRE}, s{sA}, v{vPRE}')
    ea_out(opt.sx, 'x')
    L('L2_round')
    I(f's_sub_u32 s{sCNT}, s{sTOT}, s{sR0}')
    I(f's_min_u32 s{sCNT}, s{sCNT}, s{sRC}')
    I(f'v_and_b32 v{vLANE}, 63, v0')
    C('expand: GIDX[pre+k-r0] = g0+k for k in window')
    I(f'v_sub_u32 v{vT+1}, s{sR0}, v{vPRE}')
    I(f'v_max_i32 v{vT+2}, 0, v{vT+1}')
    I(f'v_add_u32 v{vT+3}, s{sRC}, v{vT+1}')
    I(f'v_min_i32 v{vT+3}, v{vT+3}, v{vLEN}')
    I(f'v_sub_u32 v{vT+4}, v{vT+2}, v{vT+1}')
    I(f'v_lshlrev_b32 v{vT+4}, 2, v{vT+4}')
    I(f'v_add_u32 v{vT+4}, {L_GI}, v{vT+4}')
    I(f'v_add_u32 v{vT+5}, v{vG0}, v{vT+2}')
    I(f'v_add_u32 v{vT+3}, v{vG0}, v{vT+3}')
    L('L2_exp')
    for j in range(4):
        I(f'v_cmpx_lt_i32 vcc, v{vT+5}, v{vT+3}')
        I(f'ds_write_b32 v{vT+4}, v{vT+5} offset:{4*j}')
        I(f'v_add_u32 v{vT+5}, 1, v{vT+5}')
    I(f'v_add_u32 v{vT+4}, 16, v{vT+4}')
    I('s_cbranch_execnz L2_exp')
    I('s_mov_b64 exec, -1')
    ea_out(opt.sy, 'y')
    C('slots past the end of the window get an out-of-range record number')
    I(f'v_lshlrev_b32 v{vT}, 2, v0')
    I(f'v_add_u32 v{vT}, {L_GI}, v{vT}')
    I(f'v_mov_b32 v{vT+2}, 0x1000000')
    for m in range(7):
        I(f'v_add_u32 v{vT+1}, {512*m}, v0')
        I(f'v_cmp_gt_u32 {sr(sVM+2*m,2)}, s{sCNT}, v{vT+1}')
    for m in range(7):
        I(f's_not_b64 exec, {sr(sVM+2*m,2)}')
        I(f's_cbranch_scc0 L2_nomark{m}')
        I(f'ds_write_b32 v{vT}, v{vT+2} offset:{2048*m}')
        L(f'L2_nomark{m}')
    I('s_mov_b64 exec, -1')
    I(f'v_lshrrev_b32 v{vT+3}, 1, v0')
    I(f'v_lshlrev_b32 v{vT+3}, 2, v{vT+3}')
    I(f'v_add_u32 v{vT+3}, {L_GI}, v{vT+3}')
    I(f'v_and_b32 v{vT+4}, 1, v0')
    I(f'v_lshlrev_b32 v{vT+4}, 4, v{vT+4}')
    I('s_waitcnt lgkmcnt(0)')
    I('s_barrier')
    stamp(6, VST)
    C('record loads')
    G = vT + 6
    for m in range(7):
        I(f'ds_read_b32 v{G+m}, v{vT} offset:{2048*m}')
    for j in range(0, 14, 2):
        I(f'ds_read2st64_b32 {vr(vGA+j,2)}, v{vT+3} offset0:{4*j} offset1:{4*j+4}')
    ea_out(opt.sz, 'z')
    for m in range(7):
        I(f's_waitcnt lgkmcnt({13-m})')
        I(f'v_lshlrev_b32 v{vT+1}, 2, v{G+m}')
        I(f'v_lshl_add_u32 v{vT+1}, v{G+m}, 3, v{vT+1}')
        I(f'buffer_load_dwordx3 {vr(vME+4*m,3)}, v{vT+1}, {sr(sMO,4)}, 0 offen sc1')
    I('s_waitcnt lgkmcnt(0)')
    for j in range(14):
        I(f'v_lshl_add_u32 v{vGA+j}, v{vGA+j}, 5, v{vT+4}')
    n0 = nst[0]
    if opt.s0c:
        I(f's_cmp_eq_u32 s{sFIRST}, 1')
        I('s_cbranch_scc1 L2_more')
        I('s_waitcnt vmcnt(0)')
        L('L2_more')
        ea_out(opt.s0c, '0c')
    nc = nst[0] - n0
    I(f'v_mov_b32 v{vGT}, 0x80000000')
    if opt.arb == 6: bar_b(6)
    for reg, pos in ((vPF1, opt.x1), (vPF2, opt.x2)):
        if opt.xpf and pos == 6:
            C('pull a share of x towards the chip (one dword per line; later rounds: a harmless range-checked read)')
            I(f'buffer_load_dword v{vNUL}, v{reg}, {sr(sX,4)}, 0 offen')
            nc += 1
    C('even split of the window: wave(q) = q*M >> 20 with M = 2^23/(count+1), q = position in node order')
    I(f's_add_u32 s{sA}, s{sCNT}, 1')
    I(f'v_cvt_f32_u32 v{vT}, s{sA}')
    I(f'v_rcp_f32 v{vT}, v{vT}')
    I(f'v_mov_b32 v{vT+2}, 1')
    I(f'v_mul_f32 v{vT}, 0x4b000000, v{vT}')
    I(f'v_cvt_u32_f32 v{vT}, v{vT}')
    I(f'v_lshlrev_b32 v{vT+1}, 3, v{vLANE}')
    I(f'v_readfirstlane_b32 s{sMG}, v{vT}')
    I(f'v_add_u32 v{vT+1}, {L_NC}, v{vT+1}')
    C('lane parts of the read-back addresses')
    vRA = vT + 24
    I(f'v_bfe_u32 v{vT+3}, v0, 3, 1')
    I(f'v_bfe_u32 v{vT+4}, v0, 5, 1')
    I(f'v_lshl_add_u32 v{vT+3}, v{vT+3}, 1, v{vT+4}')
    I(f'v_and_b32 v{vT+4}, 7, v0')
    I(f'v_cmp_eq_u32 {sr(sL7,2)}, 7, v{vT+4}')
    I(f'v_lshl_add_u32 v{vT+3}, v{vT+3}, 3, v{vT+4}')
    I(f'v_lshlrev_b32 v{vRA}, 2, v{vT+3}')
    I(f'v_and_b32 v{vT+4}, 3, v0')
    I(f'v_lshrrev_b32 v{vT+3}, 2, v{vLANE}')
    I(f'v_lshl_add_u32 v{vT+3}, v{vT+4}, 4, v{vT+3}')
    I(f'v_lshlrev_b32 v{vRA+1}, 3, v{vT+3}')
    I(f'v_lshlrev_b32 v{vRA+2}, 3, v{vLANE}')
    I(f'v_bfe_u32 v{vT+3}, v0, 3, 2')
    I(f'v_lshl_add_u32 v{vT+3}, v{vT+3}, 2, v{vT+4}')
    I(f'v_lshlrev_b32 v{vRA+3}, 2, v{vT+3}')
    I(f'v_lshlrev_b32 v{vT}, 4, v{vLANE}')
    I(f'v_add_u32 v{vT}, {L_CNT}, v{vT}')
    I(f'v_lshlrev_b32 v{vT+4}, 17, v0')
    I(f's_mov_b32 s{sC}, {L_CNT}')
    C('rank inside the destination node')
    vBA_ = vT + 30
    for m in range(7):
        I(f's_waitcnt vmcnt({6-m+nc})')
        I(f'v_and_b32 v{vCL+m}, 0x1fc, v{vME+4*m}')
        I(f'v_add_u32 v{vCL+m}, {L_NC}, v{vCL+m}')
        I(f's_mov_b64 exec, {sr(sVM+2*m,2)}')
        I(f'ds_add_rtn_u32 v{vRK+m}, v{vCL+m}, v{vT+2}')
        I('s_mov_b64 exec, -1')
        I(f'v_bfe_u32 v{vT+3}, v{vME+4*m}, 9, 15')
        I(f'v_or_b32 v{vME+4*m+3}, v{vT+3}, v{vT+4}')
        I(f'v_lshrrev_b32 v{vT+3}, 27, v{vME+4*m}')
        I(f'v_lshl_add_u32 v{vBA_+m}, v{vT+3}, 2, s{sC}')
        I(f'v_and_b32 v{vME+4*m}, 0x0700003c, v{vME+4*m}')
        if m < 6: I(f'v_add_u32 v{vT+4}, {512<<17}, v{vT+4}')
    ea_out(opt.s1, 1)
    bar_b(7)
    C('node scan (every wave)')
    c0, s0, sn, sf = vT + 4, vT + 6, vT + 8, vT + 10
    I(f'ds_read_b64 {vr(c0,2)}, v{vT+1}')
    xpf(7)
    for m in range(7):
        I(f'v_mul_u32_u24 v{vRK+m}, s{sMG}, v{vRK+m}')
    I('s_waitcnt lgkmcnt(0)')
    I(f'v_add_u32 v{vT+3}, v{c0}, v{c0+1}')
    I(f'v_mov_b32 v{sn}, v{vT+3}')
    wave_scan(sn)
    I(f'v_sub_u32 v{s0}, v{sn}, v{vT+3}')
    I(f'v_add_u32 v{s0+1}, v{s0}, v{c0}')
    C('publish start*M, so that wave = (start*M + rank*M) >> 20')
    for r in (s0, s0 + 1, sn): I(f'v_mul_u32_u24 v{r}, s{sMG}, v{r}')
    I(f'ds_write_b64 v{vT+1}, {vr(s0,2)} offset:{L_NS-L_NC}')
    I(f'v_add_u32 v{vT+1}, {L_NS-L_NC}, v{vT+1}')
    I(f'ds_read2_b32 {vr(sf,2)}, v{vT+1} offset0:15 offset1:16')
    for m in range(7):
        I(f'ds_read_b32 v{vCL+m}, v{vCL+m} offset:{L_NS-L_NC}')
    for r in (s0, s0 + 1, sn): I(f'v_lshrrev_b32 v{r}, 20, v{r}')
    C('the even split needs: one round, every wave owns 1..15 nodes')
    I(f'v_sub_u32 v{vT+3}, v{s0+1}, v{s0}')
    I(f'v_sub_u32 v{sn}, v{sn}, v{s0+1}')
    I(f'v_max_u32 v{vT+3}, v{vT+3}, v{sn}')
    I(f'v_cmp_lt_u32 {sr(sA,2)}, 1, v{vT+3}')
    I(f'v_readlane_b32 s{sNB}, v{s0+1}, 48')
    I('s_waitcnt lgkmcnt(7)')
    for r in (sf, sf + 1): I(f'v_lshrrev_b32 v{r}, 20, v{r}')
    I(f'v_cmp_ge_u32 vcc, v{s0}, v{sf}')
    I(f'v_cmp_ge_u32 {sr(sC,2)}, v{s0+1}, v{sf+1}')
    I('s_and_b32 vcc_hi, vcc_hi, 0x3ff')
    I(f's_and_b32 s{sD}, s{sD}, 0x1ff')
    I(f's_or_b64 {sr(sA,2)}, {sr(sA,2)}, vcc')
    I(f's_or_b64 {sr(sA,2)}, {sr(sA,2)}, {sr(sC,2)}')
    I('s_cbranch_scc1 L2_static')
    I(f's_cmp_lg_u32 s{sNB}, 7')
    I('s_cbranch_scc1 L2_static')
    I(f's_cmp_lg_u32 s{sCNT}, s{sTOT}')
    I('s_cbranch_scc1 L2_static')
    if not opt.dyn: I('s_branch L2_static')
    I('s_waitcnt lgkmcnt(0)')
    for m in range(7):
        I(f'v_add_u32 v{vRK+m}, v{vRK+m}, v{vCL+m}')
        I(f'v_lshrrev_b32 v{vRK+m}, 20, v{vRK+m}')
        I(f'v_lshl_add_u32 v{vCL+m}, v{vRK+m}, 7, v{vBA_+m}')
    def cell_atomics():
        for m in range(7):
            I(f's_mov_b64 exec, {sr(sVM+2*m,2)}')
            I(f'ds_add_rtn_u32 v{vRK+m}, v{vCL+m}, v{vT+2}')
        I('s_mov_b64 exec, -1')
    cell_atomics()
    C('owned node range of this wave')
    I(f's_mov_b32 exec_hi, 0x1ffff')
    I(f'v_cmp_gt_u32 vcc, s{sW}, v{s0}')
    I(f's_bcnt1_i32_b64 s{sOF}, vcc')
    I(f'v_cmp_gt_u32 vcc, s{sW}, v{s0+1}')
    I(f's_bcnt1_i32_b64 s{sA}, vcc')
    I(f's_add_u32 s{sOF}, s{sOF}, s{sA}')
    I(f'v_cmp_ge_u32 vcc, s{sW}, v{s0}')
    I(f's_bcnt1_i32_b64 s{sON}, vcc')
    I(f'v_cmp_ge_u32 vcc, s{sW}, v{s0+1}')
    I(f's_bcnt1_i32_b64 s{sA}, vcc')
    I(f's_add_u32 s{sON}, s{sON}, s{sA}')
    I('s_mov_b64 exec, -1')
    I('s_branch L2_cells')
    L('L2_static')
    I(f's_mul_i32 s{sOF}, s{sW}, {NB}')
    I(f's_add_u32 s{sON}, s{sOF}, {NB+7}')
    I(f's_add_u32 s{sOF}, s{sOF}, 7')
    I(f's_lshr_b32 s{sOF}, s{sOF}, 3')
    I(f's_lshr_b32 s{sON}, s{sON}, 3')
    I('s_waitcnt lgkmcnt(0)')
    for m in range(7):
        I(f'v_lshrrev_b32 v{vRK+m}, 24, v{vME+4*m}')
        I(f'v_lshl_add_u32 v{vCL+m}, v{vRK+m}, 7, v{vBA_+m}')
    cell_atomics()
    L('L2_cells')
    ea_out(opt.s2, 2)
    bar_b(8)
    C('cell scan (every wave), lists padded to 16')
    cnt, st = vT + 14, vT + 18
    I(f'ds_read_b128 {vr(cnt,4)}, v{vT}')
    xpf(8)
    I(f's_mov_b32 s{sC}, {(L_KI - 4*L_SLOT) & 0xffffffff}')
    I(f's_mov_b32 s{sD}, {(L_SH - 8*L_SLOT) & 0xffffffff}')
    for m in range(7):
        I(f'v_add_u32 v{vRK+m}, {L_SLOT}, v{vRK+m}')
    I('s_waitcnt lgkmcnt(0)')
    I(f'v_add_u32 v{st+1}, v{cnt}, v{cnt+1}')
    I(f'v_add_u32 v{st+2}, v{st+1}, v{cnt+2}')
    I(f'v_add_u32 v{vT+1}, v{st+2}, v{cnt+3}')
    I('s_nop 1')
    I(f'v_add_u32_dpp v{vT+2}, v{vT+1}, v{vT+1} quad_perm:[1,0,3,2] row_mask:0xf bank_mask:0xf')
    I('s_nop 1')
    I(f'v_add_u32_dpp v{vT+2}, v{vT+2}, v{vT+2} quad_perm:[2,3,0,1] row_mask:0xf bank_mask:0xf')
    I('s_nop 1')
    I(f'v_add_u32_dpp v{vT+2}, v{vT+2}, v{vT+2} row_half_mirror row_mask:0xf bank_mask:0xf')
    I(f'v_add_u32 v{vT+3}, 15, v{vT+2}')
    I(f'v_and_b32 v{vT+3}, -16, v{vT+3}')
    I(f'v_sub_u32 v{vT+2}, v{vT+3}, v{vT+2}')
    I(f'v_cndmask_b32 v{vT+2}, 0, v{vT+2}, {sr(sL7,2)}')
    I(f'v_add_u32 v{vT+1}, v{vT+1}, v{vT+2}')
    I(f'v_mov_b32 v{vT+2}, v{vT+1}')
    wave_scan(vT + 2)
    I(f'v_sub_u32 v{st}, v{vT+2}, v{vT+1}')
    I(f'v_add_u32 v{st+3}, v{st}, v{st+2}')
    I(f'v_add_u32 v{st+2}, v{st}, v{st+1}')
    I(f'v_add_u32 v{st+1}, v{st}, v{cnt}')
    I(f'ds_write_b128 v{vT}, {vr(st,4)} offset:{L_ST-L_CNT}')
    for m in range(7):
        I(f'ds_read_b32 v{vCL+m}, v{vCL+m} offset:{L_ST-L_CNT}')
    early_static(opt.u2)
    C('early-phase length of every list: start of bin SPLIT minus list start (in lane 8*wave)')
    sl_lane, sl_reg = opt.split >> 2, opt.split & 3
    if sl_lane: I(f'v_sub_u32_dpp v{vT+5}, v{st+sl_reg}, v{st} row_shl:{sl_lane} row_mask:0xf bank_mask:0xf')
    else: I(f'v_sub_u32 v{vT+5}, v{st+sl_reg}, v{st}')
    I(f's_lshl_b32 s{sA}, s{sW}, 3')
    I(f'v_readlane_b32 s{sNB}, v{vT+3}, s{sA}')
    I(f'v_readlane_b32 s{sI}, v{st}, s{sA}')
    for m in range(7):
        I(f's_waitcnt lgkmcnt({6-m})')
        I(f'v_add_u32 v{vRK+m}, v{vRK+m}, v{vCL+m}')
        I(f'v_lshl_add_u32 v{vCL+m}, v{vRK+m}, 2, s{sC}')
        I(f'v_lshl_add_u32 v{vBA_+m}, v{vRK+m}, 3, s{sD}')
    for m in range(7):
        I(f's_mov_b64 exec, {sr(sVM+2*m,2)}')
        I(f'ds_write_b32 v{vCL+m}, v{vME+4*m+3}')
        I(f'ds_write_b8 v{vRK+m}, v{vME+4*m}')
        I(f'ds_write2_b32 v{vBA_+m}, v{vME+4*m+1}, v{vME+4*m+2} offset0:0 offset1:1')
    I('s_mov_b64 exec, -1')
    C('longest list, shortest early part')
    I(f'v_max_u32_dpp v{vT+3}, v{vT+3}, v{vT+3} row_shl:8 row_mask:0xf bank_mask:0xf')
    I(f'v_min_u32_dpp v{vT+5}, v{vT+5}, v{vT+5} row_shl:8 row_mask:0xf bank_mask:0xf')
    I(f's_lshr_b32 s{sNB}, s{sNB}, 4')
    I(f'v_readlane_b32 s{sNBM}, v{vT+3}, 0')
    I(f'v_readlane_b32 s{sK0}, v{vT+5}, 0')
    for g in range(1, 4):
        I(f'v_readlane_b32 s{sA}, v{vT+3}, {16*g}')
        I(f'v_readlane_b32 s{sB}, v{vT+5}, {16*g}')
        I(f's_max_u32 s{sNBM}, s{sNBM}, s{sA}')
        I(f's_min_u32 s{sK0}, s{sK0}, s{sB}')
    C('a list longer than the register copies hold: redo this round with a small window')
    I(f's_cmp_le_u32 s{sNBM}, 512')
    I('s_cbranch_scc1 L2_fits')
    I(f's_mov_b32 s{sRC}, {RSMALL}')
    I('s_waitcnt vmcnt(0) lgkmcnt(0)')
    I('s_branch L2_again')
    L('L2_fits')
    ea_out(13, 3)
    early_static(opt.u3)
    U = opt.u + opt.u2 + opt.u3
    assert opt.pob <= 8 or opt.u2 + opt.u3 == 0
    assert 4 <= U <= 13
    C('read-back addresses')
    I(f's_lshl_b32 s{sA}, s{sI}, 2')
    I(f's_add_u32 s{sA}, s{sA}, {L_KI}')
    I(f'v_add_u32 v{vT}, s{sA}, v{vRA}')
    I(f'v_add_u32 v{vT+5}, s{sA}, v{vRA+3}')
    I(f's_lshl_b32 s{sA}, s{sI}, 3')
    I(f's_add_u32 s{sA}, s{sA}, {L_SH}')
    I(f'v_add_u32 v{vT+3}, s{sA}, v{vRA+1}')
    I(f's_add_u32 s{sA}, s{sI}, {L_SLOT}')
    I(f'v_add_u32 v{vT+4}, s{sA}, v{vRA+2}')
    I(f'v_add_u32 v{vT+6}, 1024, v{vT}')
    I(f'v_add_u32 v{vT+7}, 1024, v{vT+5}')
    bar_b(9)
    xpf(9)
    IT = vT + 8
    for g in range(0, 16, 2):
        I(f'ds_read2_b32 {vr(vKQ+g,2)}, v{vT+(6 if g >= 8 else 0)} offset0:{32*g%256} offset1:{32*(g+1)%256}')
    I(f'ds_read_b64 {vr(vSL,2)}, v{vT+4}')
    for g in range(16):
        if g in (4, 10): I('s_waitcnt lgkmcnt(7)')
        I(f'ds_read2_b32 {vr(IT+2*g,2)}, v{vT+(7 if g >= 8 else 5)} offset0:{32*g%256} offset1:{32*g%256+16}')
    I('s_waitcnt lgkmcnt(6)')
    for g in range(8):
        I(f'ds_read_b64 {vr(vSQ+2*g,2)}, v{vT+3} offset:{512*g}')
    if opt.dl and opt.pob == 9: early_static()
    assert opt.pob <= 9 and opt.x1 != 10 and opt.x2 != 10
    C('which feature passes must land before the main loop')
    I(f's_sub_i32 s{sA}, s{sT0}, s{sR0}')
    I(f's_max_i32 s{sA}, s{sA}, 0')
    I(f's_add_u32 s{sA}, s{sA}, 255')
    I(f's_lshr_b32 s{sA}, s{sA}, 8')
    I(f's_max_u32 s{sA}, s{sA}, {U}')
    I(f's_add_u32 s{sB}, s{sCNT}, 255')
    I(f's_lshr_b32 s{sB}, s{sB}, 8')
    I(f's_lshr_b32 s{sK0}, s{sK0}, 4')
    I(f's_sub_i32 s{sK0}, s{sK0}, 1')
    I(f's_sub_i32 s{sB}, s{sB}, s{sA}')
    I(f's_mul_i32 s{sC}, s{sK0}, {opt.lpb}')
    I(f's_cmp_le_i32 s{sB}, s{sC}')
    I(f's_cselect_b32 s{sPJ}, s{sA}, 14')
    I(f's_cselect_b32 s{sK0}, s{sK0}, -1')
    I(f's_cmp_gt_i32 s{sB}, 0')
    I(f's_cselect_b32 s{sK0}, s{sK0}, -1')
    if not opt.late:
        I(f's_mov_b32 s{sPJ}, 14'); I(f's_mov_b32 s{sK0}, -1')
    I(f's_lshl_b32 s{sA}, s{sW}, 5')
    I(f's_sub_i32 s{sNP}, s{sCNT}, s{sA}')
    I(f's_add_i32 s{sNP}, s{sNP}, 255')
    I(f's_lshr_b32 s{sNP}, s{sNP}, 8')
    I(f's_mov_b32 s{sA}, {U}')
    I(f's_min_u32 s{sB}, s{sPJ}, s{sNP}')
    L('L2_early')
    I(f's_cmp_ge_u32 s{sA}, s{sB}')
    I('s_cbranch_scc1 L2_early_done')
    I(f's_set_gpr_idx_on s{sA}, gpr_idx(SRC0)')
    I(f'v_mov_b32 v{vGT}, v{vGA}')
    I('s_set_gpr_idx_off')
    I(f's_lshl_b32 m0, s{sA}, 13')
    I(f's_add_u32 m0, m0, s{sEB}')
    I(f's_add_u32 s{sA}, s{sA}, 1')
    I(f'buffer_load_dwordx4 v{vGT}, {sr(sEAO,4)}, 0 offen sc1 lds')
    I('s_branch L2_early')
    L('L2_early_done')
    for g in range(16):
        I(f'v_lshlrev_b32_sdwa v{vKQ+g}, 9, v{vKQ+g} dst_sel:DWORD dst_unused:UNUSED_PAD src0_sel:DWORD src1_sel:WORD_0')
    I(f'v_mov_b32 v{vK}, v{vKQ}')
    def fetch(sig, lane):
        I(f'v_add_u32_dpp v{vAD}, v{vK}, v{vLS} row_newbcast:{lane} row_mask:0xf bank_mask:0xf')

    bar_b(10)
    I(f's_cmp_lg_u32 s{sNB}, 0')
    I(f's_cselect_b32 s{sX+2}, s{sXSZ}, 0')
    for sig in range(6):
        I(f's_add_u32 m0, s{sRG+(sig>>1)}, {1024*(sig&1)}')
        fetch(sig, sig)
        I(f'buffer_load_dwordx4 v{vAD}, {sr(sX,4)}, 0 offen lds')
    I(f's_mov_b32 s{sA}, 0x07060302')
    for g in range(16):
        I(f'v_perm_b32 v{vIQ+g}, v{IT+2*g+1}, v{IT+2*g}, s{sA}')
    def ea_reads(word):
        I(f'v_lshlrev_b32_sdwa v{vEAA}, 4, v{vIC} dst_sel:DWORD dst_unused:UNUSED_PAD src0_sel:DWORD src1_sel:WORD_{word}')
        I(f's_mov_b64 exec, {sr(sM0,2)}')
        I(f'ds_read_b128 {vr(vA1,4)}, v{vEAA}')
        I(f's_mov_b64 exec, {sr(sM1,2)}')
        I(f'ds_read_b128 {vr(vA2,4)}, v{vEAA}')
        I('s_mov_b64 exec, -1')
    def rw_mfma(p):
        I(f'v_mfma_f32_32x32x16_bf16 {vr(vRW+16*p,16)}, {vr(vA1,4)}, {vr(vBE,4)}, 0')
        I(f'v_mfma_f32_32x32x16_bf16 {vr(vRW+16*p,16)}, {vr(vA2,4)}, {vr(vBO,4)}, {vr(vRW+16*p,16)}')
    def sh_bcast(i):
        for j in range(2):
            I(f'v_mov_b32_dpp v{vSHR+j}, v{vSHC+j} quad_perm:[{i},{i},{i},{i}] row_mask:0xf bank_mask:0xf')
    def ae_dots():
        for u in range(4):
            I(f'v_dot2_f32_bf16 v{vTT+u}, v{vSHR}, v{vCG+2*u}, 0')
        for u in range(4):
            I(f'v_dot2_f32_bf16 v{vTT+u}, v{vSHR+1}, v{vCG+2*u+1}, v{vTT+u}')
    def ae_cvt(p):
        I(f'v_cvt_pk_bf16_f32 v{vAE+2*p}, v{vTT}, v{vTT+1}')
        I(f'v_cvt_pk_bf16_f32 v{vAE+2*p+1}, v{vTT+2}, v{vTT+3}')
    def mfmas(p, s):
        d = vDT; b = vB
        I(f'v_mfma_f32_4x4x4_16b_bf16 {vr(d,4)}, {vr(vAE+2*p,2)}, {vr(b,2)}, 0 cbsz:4 abid:{s}')
        I(f'v_mfma_f32_4x4x4_16b_bf16 {vr(d+4,4)}, {vr(vAE+2*p,2)}, {vr(b+2,2)}, 0 cbsz:4 abid:{8+s}')
    def fmas(p, s):
        d = vDT
        for h, e in ((0, s), (1, 8 + s)):
            sl = (sSB0 if h else sSA0) + (s >> 2)
            I(f's_set_gpr_idx_on s{sl}, gpr_idx(SRC2,DST)' if h == 0 else f's_set_gpr_idx_idx s{sl}')
            r = vRW + 16 * p + (e & ~1)
            mod = 'op_sel:[0,1,0] op_sel_hi:[1,1,1]' if e & 1 else 'op_sel_hi:[1,0,1]'
            I(f'v_pk_fma_f32 {vr(vACC,2)}, {vr(d+4*h,2)}, {vr(r,2)}, {vr(vACC,2)} {mod}')
            if (s & 3) != 3: I(f's_lshr_b32 s{sl}, s{sl}, 8')
            I(f'v_pk_fma_f32 {vr(vACC+2,2)}, {vr(d+4*h+2,2)}, {vr(r,2)}, {vr(vACC+2,2)} {mod}')
        I('s_set_gpr_idx_off')

    C('operands of batch 0 that do not need the edge features')
    I(f'v_or_b32 v{vIC}, v{vIQ}, v{vKG11}')
    I(f'v_mov_b32 v{vSHC}, v{vSQ}')
    I(f'v_mov_b32 v{vSHC+1}, v{vSQ+1}')
    I(f'v_readlane_b32 s{sSA0}, v{vSL}, 0')
    I(f'v_readlane_b32 s{sSB0}, v{vSL}, 1')
    sh_bcast(0)
    ae_dots()
    I(f's_mov_b32 s{sSA1}, {DUMMY}')
    I(f's_mov_b32 s{sSB1}, {DUMMY}')
    I(f's_mov_b32 s{sI}, 0')
    I(f's_mov_b32 s{sLN}, 0')
    I(f's_mov_b32 s{sKI}, 0')
    I(f's_mov_b32 s{sSI}, 0')
    ae_cvt(0)
    I(f's_cmp_eq_u32 s{sFIRST}, 0')
    I('s_cbranch_scc1 L2_haveB')
    xpf(10)
    I(f's_mov_b32 s{sFIRST}, 0')
    for r in range(57): I(f'v_mov_b32 v{vACC+r}, 0')
    if opt.pob == 11:
        I(f's_cmp_lg_u32 s{sW}, 0')
        I('s_cbranch_scc1 L_polledB')
        poll('B', 16384)
    for r in range(57, 68): I(f'v_mov_b32 v{vACC+r}, 0')
    if opt.pob == 11: I('s_barrier')
    L('L2_haveB')
    stamp(11, VST)
    C('early feature passes, then the first row fetches')
    if opt.pob == 11: early_static()
    I('s_waitcnt vmcnt(6)')
    I('s_barrier')
    stamp(12, VST)
    I(f's_cmp_eq_u32 s{sNB}, 0')
    I('s_cbranch_scc1 L2_drain')
    ea_reads(0)
    I('s_waitcnt lgkmcnt(0)')
    rw_mfma(0)
    L('L2_loop')
    for p in range(2):
        C(f'batch parity {p}')
        if opt.prio and p == 0:
            I(f's_cmp_lt_u32 s{sW}, 4')
            I('s_cbranch_scc1 L2_prio')
            I('s_setprio 1')
            L('L2_prio')
        if opt.prio and p == 1: I('s_setprio 0')
        I(f's_add_u32 s{sI}, s{sI}, 1')
        for s in range(8):
            sig = 8 * p + s
            d = (sig >> 1) % 3
            so = 1024 * (sig & 1)
            if s == 2:
                I(f's_cmp_lt_u32 s{sI}, s{sNB}')
                I(f's_cselect_b32 s{sX+2}, s{sXSZ}, 0')
            I('s_waitcnt vmcnt(5)')
            I(f'ds_read_b64_tr_b16 {vr(vB,2)}, v{vRD+d} offset:{so}')
            I(f'ds_read_b64_tr_b16 {vr(vB+2,2)}, v{vRD+d} offset:{so+512}')
            k = 0
            if s == 2:
                ea_reads(p ^ 1); k = 2
            fetch(sig, (sig + 6) % 16)
            if s == 0: fmas(p ^ 1, 7)
            else: fmas(p, s - 1)
            if s == 0:
                I(f's_add_u32 s{sA}, s{sLN}, 1')
                I(f'v_readlane_b32 s{sSA1}, v{vSL+1}, s{sLN}')
                I(f'v_readlane_b32 s{sSB1}, v{vSL+1}, s{sA}')
            if s == 5:
                I(f's_add_u32 s{sLN}, s{sLN}, 2')
                I(f's_add_u32 s{sA}, s{sLN}, 1')
                I(f'v_readlane_b32 s{sSA0}, v{vSL}, s{sLN}')
                I(f'v_readlane_b32 s{sSB0}, v{vSL}, s{sA}')
            if sig == 9:
                I(f's_add_u32 s{sKI}, s{sKI}, 1')
                I(f's_set_gpr_idx_on s{sKI}, gpr_idx(SRC0)')
                I(f'v_mov_b32 v{vK}, v{vKQ}')
                I(f'v_or_b32 v{vIC}, v{vIQ}, v{vKG11}')
                I('s_set_gpr_idx_off')
            if s == 2 and p == 1:
                I(f's_bitcmp1_b32 s{sI}, 1')
                I('s_cbranch_scc1 L2_shrot')
                I(f's_add_u32 s{sSI}, s{sSI}, 2')
                I(f's_set_gpr_idx_on s{sSI}, gpr_idx(SRC0)')
                I(f'v_mov_b32 v{vSHC}, v{vSQ}')
                I(f'v_mov_b32 v{vSHC+1}, v{vSQ+1}')
                I('s_set_gpr_idx_off')
                I('s_branch L2_shdone')
                L('L2_shrot')
                for j in range(2):
                    I(f'v_mov_b32_dpp v{vSHC+j}, v{vSHC+j} quad_perm:[2,3,0,1] row_mask:0xf bank_mask:0xf')
                L('L2_shdone')
            if s == 3: sh_bcast(p ^ 1)
            I(f's_add_u32 m0, s{sRG+d}, {so}')
            I(f's_waitcnt lgkmcnt({k})')
            I(f'buffer_load_dwordx4 v{vAD}, {sr(sX,4)}, 0 offen lds')
            mfmas(p, s)
            if s < opt.lpb:
                C('late feature pass')
                I(f's_cmp_ge_u32 s{sPJ}, s{sNP}')
                I(f's_cbranch_scc1 L2_nolate{p}{s}')
                I(f's_set_gpr_idx_on s{sPJ}, gpr_idx(SRC0)')
                I(f'v_mov_b32 v{vGT}, v{vGA}')
                I('s_set_gpr_idx_off')
                I(f's_lshl_b32 m0, s{sPJ}, 13')
                I(f's_add_u32 m0, m0, s{sEB}')
                I(f's_add_u32 s{sPJ}, s{sPJ}, 1')
                I(f'buffer_load_dwordx4 v{vGT}, {sr(sEAO,4)}, 0 offen sc1 lds')
                L(f'L2_nolate{p}{s}')
            if s == 3: rw_mfma(p ^ 1)
            if s == 4: ae_dots()
            if s == 5: ae_cvt(p ^ 1)
        if p == 1:
            I(f'v_mov_b32 v{vGT}, v{vRD+2}'); I(f'v_mov_b32 v{vRD+2}, v{vRD+1}'); I(f'v_mov_b32 v{vRD+1}, v{vRD}'); I(f'v_mov_b32 v{vRD}, v{vGT}')
            I(f's_mov_b32 s{sRG+3}, s{sRG+2}'); I(f's_mov_b32 s{sRG+2}, s{sRG+1}'); I(f's_mov_b32 s{sRG+1}, s{sRG}'); I(f's_mov_b32 s{sRG}, s{sRG+3}')
        I(f's_cmp_lg_u32 s{sI}, s{sK0}')
        I(f's_cbranch_scc1 L2_nosync{p}')
        C('all late features have landed (every wave waited for its own passes above)')
        I('s_barrier')
        L(f'L2_nosync{p}')
        I(f's_cmp_lt_u32 s{sI}, s{sNB}')
        if p == 0: I('s_cbranch_scc0 L2_tail0')
        else: I('s_cbranch_scc1 L2_loop')
    for p in (1, 0):
        if p == 0: L('L2_tail0')
        I('s_nop 4')
        fmas(p, 7)
        if p == 1: I('s_branch L2_drain')
    L('L2_drain')
    I('s_waitcnt vmcnt(0) lgkmcnt(0)')
    stamp(13, VST)
    I(f's_add_u32 s{sR0}, s{sR0}, s{sRC}')
    I(f's_cmp_ge_u32 s{sR0}, s{sTOT}')
    I('s_cbranch_scc1 L2_epi')
    L('L2_again')
    I('s_barrier')
    prefill()
    I('s_branch L2_round')

    L('L2_epi')
    C('---- epilogue: out = agg @ w_out, two tiles of 8 slots; the partial sums of a shared node go to')
    C('     its owner (the previous wave), whose tile with the receiving slot is done second')
    vP = 76
    vDN = 92
    vBB = 132
    vD = 164
    vT = 228
    vLANE = vT + 16
    vBA, vO = vT + 2, vT + 8
    sF, sS = sSA0, sSA1
    I(f'v_and_b32 v{vLANE}, 63, v0')
    I(f's_sub_u32 s{sA}, s{sOF}, 1')
    I(f's_and_b32 s{sA}, s{sA}, 15')
    I(f's_lshl_b32 s{sA}, s{sA}, 2')
    I(f'v_lshl_add_u32 v{vT}, v{vLANE}, 4, s3')
    I(f's_set_gpr_idx_on s{sA}, gpr_idx(SRC0)')
    for k in range(4): I(f'v_mov_b32 v{vDN+k}, v{vACC+k}')
    I('s_set_gpr_idx_off')
    I(f'ds_write_b128 v{vT}, {vr(vDN,4)} offset:5120')
    I(f's_sub_u32 s{sA}, s{sON}, 1')
    I(f's_and_b32 s{sA}, s{sA}, 15')
    I(f's_lshl_b32 s{sA}, s{sA}, 2')
    I(f's_and_b32 s{sS}, s{sA}, 32')
    I(f's_xor_b32 s{sF}, s{sS}, 32')
    I(f's_cmp_eq_u32 s{sW}, 7')
    I(f's_cselect_b32 s{sA}, {DUMMY}, s{sA}')
    I(f'v_mul_u32_u24 v{vT+1}, {TC}, v{vLANE}')
    I(f'v_add_u32 v{vT+1}, s3, v{vT+1}')
    def t_write(sidx, i):
        I(f's_set_gpr_idx_on s{sidx}, gpr_idx(SRC0,SRC1)')
        for k in range(4):
            I(f'v_cvt_pk_bf16_f32 v{vP+4*i+k}, v{vACC+8*i+2*k}, v{vACC+8*i+2*k+1}')
        I('s_set_gpr_idx_off')
        I(f'ds_write_b128 v{vT+1}, {vr(vP+4*i,4)} offset:{16*i}')
    def t_reads(ct):
        for s in range(4):
            for i in range(2):
                I(f'ds_read_b64_tr_b16 {vr(vBB+16*ct+4*s+2*i,2)}, v{vBA} offset:{(16*s+4*i)*TC}')
    def mf(ct, n):
        tile, s = n & 1, n >> 1
        d = vD + 32 * ct + 16 * tile
        I(f'v_mfma_f32_32x32x16_bf16 {vr(d,16)}, {vr(vBB+16*ct+4*s,4)}, {vr(vWA+16*tile+4*s,4)}, {vr(d,16) if s else 0}')
    for i in range(4): t_write(sF, i)
    I(f'v_bfe_u32 v{vT+5}, v0, 5, 1')
    I(f'v_bfe_u32 v{vT+6}, v0, 2, 2')
    I(f'v_lshl_add_u32 v{vBA}, v{vT+5}, 3, v{vT+6}')
    I(f'v_mul_u32_u24 v{vBA}, {TC}, v{vBA}')
    I(f'v_bfe_u32 v{vT+6}, v0, 4, 1')
    I(f'v_lshl_add_u32 v{vBA}, v{vT+6}, 5, v{vBA}')
    I(f'v_and_b32 v{vT+6}, 3, v0')
    I(f'v_lshl_add_u32 v{vBA}, v{vT+6}, 3, v{vBA}')
    I(f'v_add_u32 v{vBA}, s3, v{vBA}')
    t_reads(0)
    C('the output descriptor covers exactly the nodes this wave owns')
    I(f's_mul_i32 s{sB}, s{sBK}, {NB}')
    I(f's_sub_u32 s{sC}, {N}, s{sB}')
    I(f's_min_u32 s{sC}, s{sC}, s{sON}')
    I(f's_sub_i32 s{sC}, s{sC}, s{sOF}')
    I(f's_max_i32 s{sC}, s{sC}, 0')
    I(f's_lshl_b32 s{sC}, s{sC}, 9')
    I(f's_add_u32 s{sB}, s{sB}, s{sOF}')
    I(f's_lshl_b32 s{sB}, s{sB}, 9')
    srd(sOUT, 20, off_s=sB, size_s=sC)
    I(f's_lshr_b32 s{sB}, s{sF}, 2')
    I(f's_sub_u32 s{sB}, s{sB}, s{sOF}')
    I(f'v_add_u32 v{vT+6}, s{sB}, v{vT+5}')
    I(f'v_and_b32 v{vT+7}, 31, v0')
    I(f'v_lshlrev_b32 v{vT+7}, 2, v{vT+7}')
    I(f'v_lshl_add_u32 v{vT+6}, v{vT+6}, 9, v{vT+7}')
    def o_addr(it):
        I(f'v_add_u32 v{vO+it}, {1024*it}, v{vT+6}')
        I(f'v_and_b32 v{vO+it}, 0x1fff, v{vO+it}')
    stamp(101, VST)
    I('s_waitcnt lgkmcnt(0)')
    for n in range(3): mf(0, n)
    I('s_barrier')
    I(f'ds_read_b128 {vr(vDN,4)}, v{vT} offset:{6144+5120}')
    mf(0, 3)
    for it in range(8): o_addr(it)
    I('s_waitcnt lgkmcnt(0)')
    stamp(102, VST)
    I(f's_set_gpr_idx_on s{sA}, gpr_idx(SRC0,DST)')
    for k in range(4): I(f'v_add_f32 v{vACC+k}, v{vACC+k}, v{vDN+k}')
    I('s_set_gpr_idx_off')
    for n in range(4):
        mf(0, 4 + n)
        t_write(sS, n)
    t_reads(1)
    vPK = 8
    def o_store(ct, r):
        I(f'v_cvt_pk_bf16_f32 v{vPK+16*ct+r}, v{vD+32*ct+r}, v{vD+32*ct+16+r}')
        I(f'buffer_store_dword v{vPK+16*ct+r}, v{vO+4*ct+(r>>2)}, {sr(sOUT,4)}, 0 offen offset:{128*(r&3)}' + ('', ' sc1', ' nt', ' sc1 nt', ' sc0 sc1')[opt.ofl])
    stamp(103, VST)
    for r in range(4): o_store(0, r)
    I('s_waitcnt lgkmcnt(0)')
    for n in range(8):
        mf(1, n)
        if n >= 2: o_store(0, 2 * n); o_store(0, 2 * n + 1)
    I('s_nop 7')
    stamp(105, VST)
    for r in range(16): o_store(1, r)
    stamp(14, VST)
    if opt.stamps: I('s_waitcnt vmcnt(0)')
    stamp(15, VST); stamp_flush(VST, vGT)
    if opt.dbg:
        I(f's_cmp_lg_u32 s2, {opt.dbg}')
        I('s_cbranch_scc1 L2_end')
        I(f's_cmp_lg_u32 s{sW}, 0')
        I('s_cbranch_scc1 L2_end')
        I(f'v_readlane_b32 s{sA}, v{VST}, 0')
        if opt.tfirst: I(f's_mov_b32 s{sA}, s94')
        srd(Q0, 22, size=64)
        I(f'v_subrev_u32 v{vAD}, s{sA}, v{VST}')
        I(f'v_lshlrev_b32 v{vGT}, 2, v0')
        I('s_mov_b64 exec, 0xfffe')
        I(f'buffer_store_dword v{vAD}, v{vGT}, {sr(Q0,4)}, 0 offen' + (' sc1' if opt.nodbgst else ''))
        if opt.amp:
            I(f'v_readlane_b32 s{sB}, v{VST}, {opt.amp}')
            I(f's_sub_u32 s{sB}, s{sB}, s{sA}')
            I(f's_mul_i32 s{sB}, s{sB}, {opt.ampk}')
            I(f's_min_u32 s{sB}, s{sB}, 100000')
            I(f's_add_u32 s{sB}, s{sB}, 5000')
            L('L2_amp')
            I('s_memrealtime s[100:101]')
            I('s_waitcnt lgkmcnt(0)')
            I(f's_sub_u32 s100, s100, s{sA}')
            I(f's_cmp_lt_u32 s100, s{sB}')
            I('s_cbranch_scc1 L2_amp')
    L('L2_end')
    I('s_endpgm')

emit1(NAME, gen, 256, 512, K2_LDS, 256, 102)
```

```python
import sys
N, E = 25000, 800000
out = []
class Opt: pass
opt = Opt()
def parse(defaults):
    for k, v in defaults.items(): setattr(opt, k, v)
    for a in sys.argv[2:]:
        k, v = a.split('=')
        assert k in defaults, k
        setattr(opt, k, int(v))
def I(s): out.append('    ' + s)
def L(s): out.append(s + ':')
def C(s): out.append('    ; ' + s)
def vr(b, n): return f'v[{b}:{b+n-1}]' if n > 1 else f'v{b}'
def sr(b, n): return f's[{b}:{b+n-1}]' if n > 1 else f's{b}'

def srd(d, base, off_s=None, off_imm=0, size=None, size_s=None):
    if off_imm:
        I(f's_add_u32 s{d}, s{base}, 0x{off_imm:x}')
        I(f's_addc_u32 s{d+1}, s{base+1}, 0')
        if off_s is not None:
            I(f's_add_u32 s{d}, s{d}, s{off_s}')
            I(f's_addc_u32 s{d+1}, s{d+1}, 0')
    elif off_s is not None:
        I(f's_add_u32 s{d}, s{base}, s{off_s}')
        I(f's_addc_u32 s{d+1}, s{base+1}, 0')
    else:
        I(f's_mov_b32 s{d}, s{base}')
        I(f's_mov_b32 s{d+1}, s{base+1}')
    if size_s is not None:
        I(f's_mov_b32 s{d+2}, s{size_s}')
    else:
        I(f's_mov_b32 s{d+2}, 0x{size:x}')
    I(f's_mov_b32 s{d+3}, 0x20000')

def wave_scan(v):
    for sh in (1, 2, 4, 8):
        I('s_nop 1')
        I(f'v_add_u32_dpp v{v}, v{v}, v{v} row_shr:{sh} row_mask:0xf bank_mask:0xf')
    I('s_nop 1')
    I(f'v_add_u32_dpp v{v}, v{v}, v{v} row_bcast:15 row_mask:0xa bank_mask:0xf')
    I('s_nop 1')
    I(f'v_add_u32_dpp v{v}, v{v}, v{v} row_bcast:31 row_mask:0xc bank_mask:0xf')

STAMP_OFF = 240 << 20
def stamp_init(kk, va, vtmp, wsreg=14):
    if not opt.stamps: return
    I(f'v_mov_b32 v{va}, 0'); I(f'v_mov_b32 v{va+1}, 0')
    I(f'v_lshrrev_b32 v{vtmp}, 6, v0')
    I('s_nop 0')
    I(f'v_readfirstlane_b32 s100, v{vtmp}')
    I('s_lshl_b32 s101, s2, 4')
    I('s_add_u32 s100, s100, s101')
    I('s_lshl_b32 s100, s100, 7')
    srd(96, wsreg, off_s=100, off_imm=STAMP_OFF + kk * 256 * 16 * 128, size=128)
def stamp(i, va):
    if not opt.stamps: return
    if opt.stamps == 2 and i not in (0, 15): return
    if opt.stamps in (3, 4, 5) and i < 12 and i != 0: return
    if i >= 100:
        if opt.stamps != 3: return
        i -= 100
    I('s_memrealtime s[100:101]')
    I('s_waitcnt lgkmcnt(0)')
    I(f'v_writelane_b32 v{va}, s100, {i}')
    I(f'v_writelane_b32 v{va+1}, s101, {i}')
    if opt.stamps == 5 and i in (0, 12, 13):
        I('s_memtime s[100:101]')
        I('s_waitcnt lgkmcnt(0)')
        I(f'v_writelane_b32 v{va}, s100, {(3, 1, 2)[max(i-11, 0)]}')
        I('s_bitset1_b32 s101, 30')
        I(f'v_writelane_b32 v{va+1}, s101, {(3, 1, 2)[max(i-11, 0)]}')
def stamp_flush(va, vtmp):
    if not opt.stamps: return
    I(f'v_and_b32 v{vtmp}, 63, v0')
    I(f'v_lshlrev_b32 v{vtmp}, 3, v{vtmp}')
    I(f'buffer_store_dwordx2 v[{va}:{va+1}], v{vtmp}, s[96:99], 0 offen sc1')

def desc(name, vg, sg):
    out.append('.p2align 6')
    out.append(f'.amdhsa_kernel {name}')
    out.append(f'  .amdhsa_next_free_vgpr {vg}')
    out.append(f'  .amdhsa_next_free_sgpr {sg}')
    out.append(f'  .amdhsa_accum_offset {(vg+3)//4*4}')
    out.append('  .amdhsa_group_segment_fixed_size 0')
    out.append('  .amdhsa_kernarg_size 88')
    out.append('  .amdhsa_user_sgpr_count 2')
    out.append('  .amdhsa_user_sgpr_kernarg_segment_ptr 1')
    out.append('  .amdhsa_system_sgpr_workgroup_id_x 1')
    out.append('  .amdhsa_float_denorm_mode_32 3')
    out.append('.end_amdhsa_kernel')

def emit(kernels):
    hdr = open('standalone__tensor_product_equiv_mace__graph.s.ref').read().split('\n')
    for l in hdr:
        if l.startswith('; Override'): break
        out.append(l)
    for name, g, grid, block, lds, vg, sg in kernels:
        out.append(f'; @launch kernel={name} grid=({grid},1,1) block=({block},1,1) lds={lds}')
    out.append('.amdgcn_target "amdgcn-amd-amdhsa--gfx950"')
    out.append('.text')
    for name, g, grid, block, lds, vg, sg in kernels:
        out.append(f'.globl {name}')
        out.append('.p2align 8')
        out.append(f'.type {name},@function')
        L(name)
        g()
    out.append('.section .rodata,"a"')
    for name, g, grid, block, lds, vg, sg in kernels:
        desc(name, vg, sg)
    open(sys.argv[1], 'w').write('\n'.join(out) + '\n')

def emit1(name, g, grid, block, lds, vg, sg):
    hdr = open('standalone__tensor_product_equiv_mace__graph.s.ref').read().split('\n')
    for l in hdr:
        if l.startswith('; Override'): break
        out.append(l)
    out.append(f'; @launch grid=({grid},1,1) block=({block},1,1) lds={lds}')
    out.append('.amdgcn_target "amdgcn-amd-amdhsa--gfx950"')
    out.append('.text')
    out.append(f'.globl {name}')
    out.append('.p2align 8')
    out.append(f'.type {name},@function')
    L(name)
    g()
    out.append('.section .rodata,"a"')
    desc(name, vg, sg)
    open(sys.argv[1], 'w').write('\n'.join(out) + '\n')
```

```python
from common import *
parse(dict(stamps=0, nt=1, a0=2, a1=1, a2=1, a3=1, a4=4, s1=0, s2=0, split=12, lpb=1, late=1, la=0, lb=392, dyn=1, prio=1, xpf=1, s0b=13, arb=6, x1=99, x2=7, pob=9, u=6, s0c=0, slp=2, dl=0, u2=0, u3=0, pace=0, sx=0, sy=0, sz=0, offl=0, rot=1, ord=0, exp=0, ofl=2, dbg=0, amp=0, ampk=4, tfirst=0, nodbgst=0))
NAME = 'standalone__tensor_product_equiv_mace__graph_kernel'
CH = 3136
NB = 98
RCAP = 3520
CAPX = 3640
WS_EA = 0
WS_MO = WS_EA + 256 * CH * 32
WS_OFF = WS_MO + 256 * CH * 12
WS_SYNC = WS_OFF + 524288
SPLIT = opt.split * 1024
SPIN = 1 << 20
L_RING = RCAP * 32
L_SH = L_RING
L_KI = L_SH + CAPX * 8
L_SLOT = L_KI + CAPX * 4
L_CNT = L_SLOT + 3648
L_NC = L_CNT + 1024
L_ST = L_NC + 512
L_NS = L_ST + 1024
L_WT = L_NS + 640
K2_LDS = max(L_RING + 49152, L_WT + 32)
assert K2_LDS <= 163840
NULLKI = 0x7fff
DUMMY = 16 * 4
RSMALL = 496
TP = 144
TC = 80
L_GI = L_SH
L_WO = L_GI + 3584 * 4
L_WR = L_WO + 64 * TP
L_CG = L_WR + 16 * TP
assert L_CG + 128 <= L_KI

L_MI = L_RING
L_INV = L_MI + CH * 12
L_HIST = L_INV + CH * 2
assert L_HIST + 4096 <= K2_LDS

def gen():
    nt = ' nt' if opt.nt else ''
    if opt.tfirst: I('s_memrealtime s[94:95]')
    I('s_cmp_ge_u32 s2, 0x100')
    I('s_cbranch_scc1 L2_end')
    I('s_load_dwordx16 s[4:19], s[0:1], 0')
    I('s_load_dwordx4 s[20:23], s[0:1], 64')
    I('s_load_dwordx2 s[24:25], s[0:1], 80')
    vPRE, vGL, vLS, vK, vIC = 1, 2, 3, 4, 5
    vACC = 8
    vBE, vBO, vCG, vA1, vA2, vWA = 76, 80, 84, 92, 96, 100
    vKQ, vSQ, vIQ, vSL = 132, 148, 164, 236
    vRD, vAD, vGT, vNUL = 182, 185, 186, 187
    vEAA = vGT
    vDT, vRW, vAE, vB = 188, 196, 228, 240
    vGA = 242
    vME, vCL, vRK, vT = 132, 160, 188, 196
    vLANE = 167
    VST = 6
    vLEN, vG0 = vT + 40, vT + 41
    vDST, vSRC, vSH, vBK, vCON, vMO, vIA = 132, 139, 146, 160, 168, 8, 240
    vED, vSO, vPF2, vEO, vPF1, vOFA, vSY = 8, 60, 61, 62, 63, 64, 65
    Q0, Q1, Q2, Q3, Q4, Q5, Q6 = 28, 32, 36, 40, 44, 48, 52
    sMO, sEAO, sOUT, sX, sEAS, sOFF, sSYN = Q0, Q1, Q2, Q3, Q4, Q5, Q6
    sVM = 6
    sBK, sW = 26, 27
    sTOT, sR0, sCNT, sNB, sNBM, sI, sRC, sXSZ = 56, 57, 58, 59, 60, 61, 62, 63
    sM0, sM1 = 64, 66
    sSA0, sSB0, sSA1, sSB1 = 68, 69, 70, 71
    sRG = 72
    sLN, sKI, sSI = 76, 77, 78
    sT0, sPJ, sNP, sK0, sEB, sMG, sOF, sON = 79, 80, 81, 82, 83, 84, 85, 86
    sE0, sNE, sFIRST, sC, sD, sL7 = 87, 88, 89, 90, 91, 92
    sA, sB = 0, 1
    C('==== phase A: partition this workgroup\'s chunk of edges by (src phase, dst bucket)')
    I(f'v_lshlrev_b32 v{vT}, 2, v0')
    I(f'v_add_u32 v{vT+1}, {L_HIST}, v{vT}')
    I(f'v_mov_b32 v{vT+2}, 0')
    I(f'ds_write_b32 v{vT+1}, v{vT+2}')
    I(f'v_lshrrev_b32 v{vT+3}, 6, v0')
    I(f's_and_b32 s{sBK}, s2, 7')
    I(f's_lshl_b32 s{sBK}, s{sBK}, 5')
    I('s_lshr_b32 s3, s2, 3')
    I(f's_add_u32 s{sBK}, s{sBK}, s3')
    I(f'v_readfirstlane_b32 s{sW}, v{vT+3}')
    I(f's_mul_i32 s{sE0}, s{sBK}, {CH}')
    I(f's_sub_u32 s{sNE}, {E}, s{sE0}')
    I(f's_min_u32 s{sNE}, s{sNE}, {CH}')
    for i in range(1, 4): I(f'v_add_u32 v{vT+3+i}, {4096*i}, v{vT}')
    I(f'v_lshlrev_b32 v{vT+8}, 3, v0')
    I(f'v_lshlrev_b32 v{vEO}, 4, v0')
    I(f'v_and_b32 v{vLANE}, 63, v0')
    I(f's_lshl_b32 s{sC}, s{sE0}, 2'); I(f's_lshl_b32 s{sD}, s{sNE}, 2')
    I(f's_lshl_b32 s{sEB}, s{sW}, 10')
    I('s_waitcnt lgkmcnt(0)')
    srd(Q0, 8, off_s=sC, size_s=sD)
    for m in range(7):
        I(f'buffer_load_dword v{vDST+m}, v{vT+3+(m>>1) if m > 1 else vT}, {sr(Q0,4)}, 0 offen offset:{2048*(m&1)}{nt}')
    srd(Q1, 6, off_s=sC, size_s=sD)
    for m in range(7):
        I(f'buffer_load_dword v{vSRC+m}, v{vT+3+(m>>1) if m > 1 else vT}, {sr(Q1,4)}, 0 offen offset:{2048*(m&1)}{nt}')
    stamp_init(1, VST, vGT, 24); stamp(0, VST)
    srd(sSYN, 24, off_imm=WS_SYNC, size=32768)
    C('workgroup 0 clears the hand-off counters, then raises the flag in d_debug')
    I(f's_or_b32 s{sA}, s2, s{sW}')
    I('s_cbranch_scc1 L1_noinit')
    srd(Q2, 22, size=256)
    I(f'v_lshlrev_b32 v{vT+9}, 8, v0')
    I(f'buffer_store_dword v{vT+2}, v{vT+9}, {sr(sSYN,4)}, 0 offen sc1')
    I(f'v_add_u32 v{vT+10}, 16384, v{vT+9}')
    I(f'buffer_store_dword v{vT+2}, v{vT+10}, {sr(sSYN,4)}, 0 offen sc1')
    I(f'v_mov_b32 v{vT+10}, 1')
    I('s_waitcnt vmcnt(0)')
    I(f'buffer_store_dword v{vT+10}, v{vT+9}, {sr(Q2,4)}, 0 offen sc1')
    L('L1_noinit')
    I('s_barrier')
    I(f's_lshl_b32 s{sC}, s{sE0}, 3'); I(f's_lshl_b32 s{sD}, s{sNE}, 3')
    srd(Q2, 10, off_s=sC, size_s=sD)
    for m in range(7):
        I(f'buffer_load_dwordx2 {vr(vSH+2*m,2)}, v{vT+8}, {sr(Q2,4)}, 0 offen{nt}')
        if m < 6: I(f'v_add_u32 v{vT+8}, 4096, v{vT+8}')
    srd(Q1, 18, size=8192)
    I(f'buffer_load_dwordx4 {vr(vCON,4)}, v{vEO}, {sr(Q1,4)}, 0 offen')
    srd(Q1, 16, size=2048)
    I(f'buffer_load_dwordx4 {vr(vCON+4,4)}, v{vEO}, {sr(Q1,4)}, 0 offen')
    srd(Q1, 14, size=128)
    I(f'buffer_load_dwordx4 {vr(vCON+8,4)}, v{vEO}, {sr(Q1,4)}, 0 offen')
    I(f's_lshl_b32 s{sC}, s{sE0}, 5'); I(f's_lshl_b32 s{sD}, s{sNE}, 5')
    srd(Q3, 12, off_s=sC, size_s=sD)
    nin = [0]
    def ea_in(k):
        for _ in range(k):
            j = nin[0]
            if j >= 13: return
            I(f's_add_u32 m0, s{sEB}, {8192*j}')
            if j: I(f'v_add_u32 v{vEO}, 8192, v{vEO}')
            else: I('s_nop 0')
            I(f'buffer_load_dwordx4 v{vEO}, {sr(Q3,4)}, 0 offen{nt} lds')
            nin[0] += 1
    ea_in(opt.a0)
    srd(sEAS, 24, off_s=sC, off_imm=WS_EA, size_s=sD)
    I(f's_mul_i32 s{sC}, s{sE0}, 12'); I(f's_mul_i32 s{sD}, s{sNE}, 12')
    srd(Q0, 24, off_s=sC, off_imm=WS_MO, size_s=sD)
    srd(sOFF, 24, off_imm=WS_OFF, size=524288)
    srd(Q2, 22, size=256)
    for m in range(7):
        I(f'v_add_u32 v{vT+10}, {512*m}, v0')
        I(f'v_cmp_gt_u32 {sr(sVM+2*m,2)}, s{sNE}, v{vT+10}')
    I(f'v_mov_b32 v{vT+9}, 1')
    I(f's_mov_b32 s{sC}, {SPLIT}')
    I(f's_mov_b32 s{sD}, {-32*NB if opt.rot else 0}')
    vBN = vT + 20
    I(f'v_mov_b32 v{vT+12}, {L_HIST}')
    I(f'v_mov_b32 v{vT+13}, {L_HIST+1024}')
    I(f's_waitcnt vmcnt({10+nin[0]})')
    for m in range(7):
        I(f'v_mul_u32_u24 v{vBK+m}, 42800, v{vDST+m}')
        I(f'v_lshrrev_b32 v{vT+10}, 27, v{vBK+m}')
        I(f'v_mad_i32_i24 v{vT+10}, v{vT+10}, s{sD}, v{vSRC+m}')
        I(f'v_add_u32 v{vT+11}, {N}, v{vT+10}')
        I(f'v_min_u32 v{vBN+m}, v{vT+10}, v{vT+11}')
        I(f'v_cmp_le_u32 {sr(sA,2)}, s{sC}, v{vBN+m}')
        I(f'v_lshrrev_b32 v{vBK+m}, 22, v{vBK+m}')
        I(f'v_mul_u32_u24 v{vT+10}, {NB}, v{vBK+m}')
        I(f'v_sub_u32 v{vDST+m}, v{vDST+m}, v{vT+10}')
        I(f'v_cndmask_b32 v{vT+11}, v{vT+12}, v{vT+13}, {sr(sA,2)}')
        I(f'v_lshl_add_u32 v{vBK+m}, v{vBK+m}, 2, v{vT+11}')
        I(f's_mov_b64 exec, {sr(sVM+2*m,2)}')
        I(f'ds_add_rtn_u32 v{vRK+m}, v{vBK+m}, v{vT+9}')
        I('s_mov_b64 exec, -1')
    ea_in(opt.a1)
    C('key = bin<<27 | static wave<<24 | src<<9 | dlocal<<2')
    for m in range(7):
        I(f'v_mul_u32_u24 v{vT+11}, 5350, v{vDST+m}')
        I(f'v_and_b32 v{vT+11}, 0x70000, v{vT+11}')
        I(f'v_lshrrev_b32 v{vBN+m}, 10, v{vBN+m}')
        I(f'v_lshl_or_b32 v{vT+11}, v{vBN+m}, 19, v{vT+11}')
        I(f'v_lshlrev_b32 v{vT+11}, 8, v{vT+11}')
        I(f'v_lshl_add_u32 v{vT+11}, v{vDST+m}, 2, v{vT+11}')
        I(f'v_lshl_add_u32 v{vSRC+m}, v{vSRC+m}, 9, v{vT+11}')
    I(f'v_lshlrev_b32 v{vT+16}, 4, v{vLANE}')
    I(f'v_add_u32 v{vT+16}, {L_HIST}, v{vT+16}')
    I('s_waitcnt lgkmcnt(0)')
    I('s_barrier')
    stamp(1, VST)
    C('every wave scans the histogram and writes the (identical) start table')
    cnt, st = vT + 28, vT + 20
    I(f'ds_read_b128 {vr(cnt,4)}, v{vT+16}')
    I(f'ds_read_b128 {vr(cnt+4,4)}, v{vT+16} offset:1024')
    I('s_waitcnt lgkmcnt(0)')
    for h in range(2):
        I(f'v_add_u32 v{st+4*h+1}, v{cnt+4*h}, v{cnt+4*h+1}')
        I(f'v_add_u32 v{st+4*h+2}, v{st+4*h+1}, v{cnt+4*h+2}')
        I(f'v_add_u32 v{vT+12+h}, v{st+4*h+2}, v{cnt+4*h+3}')
    I(f'v_lshl_add_u32 v{vT+17}, v{vT+13}, 16, v{vT+12}')
    I(f'v_mov_b32 v{vT+18}, v{vT+17}')
    wave_scan(vT + 18)
    I(f'v_sub_u32 v{vT+17}, v{vT+18}, v{vT+17}')
    I(f'v_readlane_b32 s{sA}, v{vT+18}, 63')
    I(f'v_and_b32 v{st}, 0xffff, v{vT+17}')
    I(f'v_lshrrev_b32 v{st+4}, 16, v{vT+17}')
    I(f's_and_b32 s{sA}, s{sA}, 0xffff')
    I(f'v_add_u32 v{st+4}, s{sA}, v{st+4}')
    for h in range(2):
        I(f'v_add_u32 v{st+4*h+3}, v{st+4*h}, v{st+4*h+2}')
        I(f'v_add_u32 v{st+4*h+2}, v{st+4*h}, v{st+4*h+1}')
        I(f'v_add_u32 v{st+4*h+1}, v{st+4*h}, v{cnt+4*h}')
        I(f'ds_write_b128 v{vT+16}, {vr(st+4*h,4)} offset:{2048+1024*h}')
    for m in range(7):
        I(f'ds_read_b32 v{vBK+m}, v{vBK+m} offset:2048')
    ea_in(opt.a2)
    I(f's_mov_b32 s{sC}, {L_MI}')
    I(f's_mov_b32 s{sD}, {L_INV}')
    I(f's_waitcnt vmcnt({3+nin[0]}) lgkmcnt(0)')
    for m in range(7):
        I(f'v_add_u32 v{vRK+m}, v{vRK+m}, v{vBK+m}')
        I(f'v_mad_u32_u24 v{vBK+m}, v{vRK+m}, 12, s{sC}')
        I(f'v_lshl_add_u32 v{vRK+m}, v{vRK+m}, 1, s{sD}')
        I(f'v_add_u32 v{vDST+m}, {512*m}, v0')
    for m in range(7):
        I(f's_mov_b64 exec, {sr(sVM+2*m,2)}')
        I(f'ds_write_b16 v{vRK+m}, v{vDST+m}')
        I(f'ds_write2_b32 v{vBK+m}, v{vSRC+m}, v{vSH+2*m} offset0:0 offset1:1')
        I(f'ds_write_b32 v{vBK+m}, v{vSH+2*m+1} offset:8')
    I('s_mov_b64 exec, -1')
    ea_in(opt.a3)
    I(f'v_lshlrev_b32 v{vSO}, 4, v0')
    I(f'v_add_u32 v{vT+10}, {L_MI}, v{vSO}')
    I(f'v_and_b32 v{vT+8}, 0x1fe, v0')
    I(f'v_add_u32 v{vT+8}, {L_INV}, v{vT+8}')
    I('s_waitcnt lgkmcnt(0)')
    I('s_barrier')
    stamp(2, VST)
    C('meta image and run table -> global')
    for j in range(5):
        I(f'ds_read_b128 {vr(vMO+4*j,4)}, v{vT+10} offset:{8192*j}')
    for j in range(5):
        I(f's_waitcnt lgkmcnt({4-j})')
        I(f'buffer_store_dwordx4 {vr(vMO+4*j,4)}, v{vSO}, {sr(Q0,4)}, 0 offen sc1')
        if j < 4: I(f'v_add_u32 v{vSO}, 8192, v{vSO}')
    for j in range(13):
        I(f'ds_read_u16 v{vIA+j}, v{vT+8} offset:{512*j}')
    I(f's_cmp_lg_u32 s{sW}, 7')
    I('s_cbranch_scc1 L1_nooff')
    C('OFF[bucket/4][chunk][phase][bucket%4] = start | len<<16')
    I(f's_lshl_b32 s{sA}, s{sBK}, {11 if opt.offl else 5}')
    I(f'v_lshlrev_b32 v{vT+17}, {4 if opt.offl else 13}, v{vLANE}')
    I(f'v_add_u32 v{vT+17}, s{sA}, v{vT+17}')
    for i in range(8):
        I(f'v_lshl_add_u32 v{cnt+i}, v{cnt+i}, 16, v{st+i}')
    for h in range(2):
        I(f'buffer_store_dwordx4 {vr(cnt+4*h,4)}, v{vT+17}, {sr(sOFF,4)}, 0 offen offset:{(1024 if opt.offl else 16)*h} sc1')
    L('L1_nooff')
    I(f'v_mov_b32 v{vT+2}, 0')
    I(f's_cmp_lg_u32 s{sW}, 0')
    I('s_cbranch_scc1 L1_noflag')
    I(f'buffer_load_dword v{vT+3}, v{vT+2}, {sr(Q2,4)}, 0 offen sc1')
    L('L1_noflag')
    n0 = nin[0]
    ea_in(opt.a4)
    n4 = nin[0] - n0
    I(f'v_and_b32 v{vT+9}, 1, v0')
    I(f'v_lshlrev_b32 v{vT+9}, 4, v{vT+9}')
    I('s_waitcnt lgkmcnt(0)')
    for j in range(13):
        I(f'v_lshl_add_u32 v{vIA+j}, v{vIA+j}, 5, v{vT+9}')
    I(f's_waitcnt vmcnt({n4})')
    I('s_barrier')
    stamp(3, VST)
    def arrive(tag, base):
        I(f's_bfe_u32 s{sA}, s2, 0x30003')
        I(f's_lshl_b32 s{sA}, s{sA}, 8')
        I(f's_add_u32 s{sA}, s{sA}, {base}')
        I(f'v_lshl_add_u32 v{vGT}, v0, 11, s{sA}')
        I(f'v_mov_b32 v{vAD}, 1')
        I('s_mov_b64 exec, 0xff')
        I(f'buffer_atomic_add v{vAD}, v{vGT}, {sr(sSYN,4)}, 0 offen sc1')
        I('s_mov_b64 exec, -1')
    def poll(tag, base):
        I(f's_and_b32 s{sA}, s2, 7')
        I(f's_lshl_b32 s{sA}, s{sA}, 11')
        I(f's_add_u32 s{sA}, s{sA}, {base}')
        I(f'v_and_b32 v{vGT}, 7, v0')
        I(f'v_lshl_add_u32 v{vGT}, v{vGT}, 8, s{sA}')
        I(f's_mov_b32 s{sB}, 0')
        L(f'L_poll{tag}')
        I(f'buffer_load_dword v{vAD}, v{vGT}, {sr(sSYN,4)}, 0 offen sc1')
        I(f's_add_u32 s{sB}, s{sB}, 1')
        I('s_waitcnt vmcnt(0)')
        I(f'v_cmp_ne_u32 vcc, 32, v{vAD}')
        I('s_cmp_eq_u64 vcc, 0')
        I(f's_cbranch_scc1 L_polled{tag}')
        I(f's_sleep {opt.slp}')
        I(f's_cmp_lt_u32 s{sB}, {SPIN}')
        I(f's_cbranch_scc1 L_poll{tag}')
        L(f'L_polled{tag}')
    I(f's_cmp_lg_u32 s{sW}, 0')
    I('s_cbranch_scc1 L1_arrived')
    I(f's_mov_b32 s{sB}, 0')
    L('L1_flag')
    I(f'v_readfirstlane_b32 s{sA}, v{vT+3}')
    I(f's_cmp_eq_u32 s{sA}, 1')
    I('s_cbranch_scc1 L1_flagok')
    I(f'buffer_load_dword v{vT+3}, v{vT+2}, {sr(Q2,4)}, 0 offen sc1')
    I(f's_add_u32 s{sB}, s{sB}, 1')
    I('s_waitcnt vmcnt(0)')
    I(f's_cmp_lt_u32 s{sB}, {SPIN}')
    I('s_cbranch_scc1 L1_flag')
    L('L1_flagok')
    arrive('A', 0)
    L('L1_arrived')
    ea_in(13)
    def prefill():
        C('prefill KI with null entries, SLOT with the dummy slot, zero CNT')
        for i in range(4): I(f'v_mov_b32 v{vT+4+i}, 0x{NULLKI:x}')
        I(f'v_lshlrev_b32 v{vT}, 4, v0')
        I(f'v_add_u32 v{vT}, {L_KI}, v{vT}')
        I(f'ds_write_b128 v{vT}, {vr(vT+4,4)}')
        I(f'v_cmp_gt_u32 vcc, {(CAPX*4-8192)//16}, v0')
        I('s_and_b64 exec, exec, vcc')
        I(f'ds_write_b128 v{vT}, {vr(vT+4,4)} offset:8192')
        I('s_mov_b64 exec, -1')
        I(f'v_mov_b32 v{vT+8}, 0x{DUMMY*0x01010101:x}')
        I(f'v_cmp_gt_u32 vcc, {3648//16}, v0')
        I(f'v_add_u32 v{vT}, {L_SLOT-L_KI}, v{vT}')
        I('s_nop 0')
        I(f'v_cndmask_b32 v{vT+8}, 0, v{vT+8}, vcc')
        for i in range(1, 4): I(f'v_mov_b32 v{vT+8+i}, v{vT+8}')
        I(f'v_cmp_gt_u32 vcc, {3648//16+96}, v0')
        I('s_and_b64 exec, exec, vcc')
        I(f'ds_write_b128 v{vT}, {vr(vT+8,4)}')
        I('s_mov_b64 exec, -1')
    prefill()
    C('stage the constants')
    I(f'v_lshrrev_b32 v{vT+12}, 3, v0')
    I(f'v_mul_u32_u24 v{vT+12}, {TP}, v{vT+12}')
    I(f'v_and_b32 v{vT+3}, 7, v0')
    I(f'v_lshl_add_u32 v{vT+12}, v{vT+3}, 4, v{vT+12}')
    I(f'v_add_u32 v{vT+12}, {L_WO}, v{vT+12}')
    I(f's_mov_b32 s{sA}, 0x05040100')
    I(f's_mov_b32 s{sB}, 0x07060302')
    I(f'v_perm_b32 v{vT+4}, v{vCON+1}, v{vCON}, s{sA}')
    I(f'v_perm_b32 v{vT+5}, v{vCON+3}, v{vCON+2}, s{sA}')
    I(f'v_perm_b32 v{vT+6}, v{vCON+1}, v{vCON}, s{sB}')
    I(f'v_perm_b32 v{vT+7}, v{vCON+3}, v{vCON+2}, s{sB}')
    I(f'ds_write_b128 v{vT+12}, {vr(vT+4,4)}')
    I('v_cmp_gt_u32 vcc, 0x80, v0')
    I('s_and_b64 exec, exec, vcc')
    I(f'ds_write_b128 v{vT+12}, {vr(vCON+4,4)} offset:{L_WR-L_WO}')
    I('v_cmp_gt_u32 vcc, 8, v0')
    I('s_and_b64 exec, exec, vcc')
    I(f'ds_write_b128 v{vT+12}, {vr(vCON+8,4)} offset:{L_CG-L_WO}')
    I('s_mov_b64 exec, -1')
    srd(sMO, 24, off_imm=WS_MO, size=E * 12)
    srd(sEAO, 24, off_imm=WS_EA, size=E * 32)
    srd(sOUT, 20, size=N * 512)
    srd(sX, 4, size=N * 512)
    I(f's_mov_b32 s{sXSZ}, 0x{0 if opt.exp == 1 else N*512:x}')
    I(f's_mov_b32 s{sRC}, {RCAP}')
    I(f's_mov_b32 s{sR0}, 0')
    I(f's_mov_b32 s{sFIRST}, 1')
    C('run table address, x prefetch offsets')
    I(f'v_and_b32 v{vT+1}, 0xff, v0')
    I(f's_lshr_b32 s{sA}, s{sBK}, 2')
    I(f's_lshl_b32 s{sA}, s{sA}, 11')
    I(f's_and_b32 s{sB}, s{sBK}, 3')
    I(f's_add_u32 s{sA}, s{sA}, s{sB}')
    I(f's_lshl_b32 s{sA}, s{sA}, 2')
    I(f'v_mul_u32_u24 v{vG0}, {CH}, v{vT+1}')
    if opt.offl: I(f's_lshl_b32 s{sA}, s{sBK}, 2')
    I(f'v_lshl_add_u32 v{vOFA}, v{vT+1}, {11 if opt.offl else 5}, s{sA}')
    I(f'v_lshrrev_b32 v{vT+3}, 8, v0')
    I(f'v_lshl_add_u32 v{vOFA}, v{vT+3}, {10 if opt.offl else 4}, v{vOFA}')
    LA = opt.la; LB = opt.lb
    I(f'v_mov_b32 v{vT+14}, 0x80000000')
    if opt.rot:
        I(f's_lshr_b32 s{sC}, s{sBK}, 5')
        I(f's_mul_i32 s{sC}, s{sC}, {32*NB*512}')
        I(f's_and_b32 s{sD}, s{sBK}, 31')
        NG = 32
    else:
        I(f's_mov_b32 s{sC}, 0')
        I(f's_mov_b32 s{sD}, s{sBK}')
        NG = 256
    I(f's_mul_i32 s{sA}, s{sD}, {LB*128}')
    I(f's_add_u32 s{sA}, s{sA}, {NG*LA*128}')
    I(f's_add_u32 s{sA}, s{sA}, s{sC}')
    I(f'v_sub_u32 v{vT+15}, 511, v0')
    I(f'v_cmp_gt_u32 vcc, {LB}, v{vT+15}')
    I(f'v_lshlrev_b32 v{vT+13}, 7, v{vT+15}')
    I(f'v_add_u32 v{vPF2}, s{sA}, v{vT+13}')
    I(f'v_cndmask_b32 v{vPF2}, v{vT+14}, v{vPF2}, vcc')
    I(f'v_cmp_gt_u32 vcc, {LA}, v{vT+15}')
    I(f's_mul_i32 s{sA}, s{sD}, {LA*128}')
    I(f's_add_u32 s{sA}, s{sA}, s{sC}')
    I(f'v_add_u32 v{vPF1}, s{sA}, v{vT+13}')
    I(f'v_cndmask_b32 v{vPF1}, v{vT+14}, v{vPF1}, vcc')
    nst = [0]
    def ea_out(k, tag, lg=False):
        if k == 0: return
        if nst[0] >= 13: return
        I(f's_cmp_lg_u32 s{sFIRST}, 1')
        I(f's_cbranch_scc1 L2_noout{tag}')
        I(f'v_lshlrev_b32 v{vSO}, 4, v0')
        first = True
        for _ in range(k):
            j = nst[0]
            if j >= 13: break
            if j: I(f'v_add_u32 v{vSO}, {8192*j if first else 8192}, v{vSO}')
            first = False
            if lg: I(f's_waitcnt lgkmcnt({12-j})')
            if opt.pace and j >= opt.pace: I(f's_waitcnt vmcnt({opt.pace-1})')
            I(f'buffer_store_dwordx4 {vr(vED+4*j,4)}, v{vSO}, {sr(sEAS,4)}, 0 offen sc1')
            nst[0] += 1
        L(f'L2_noout{tag}')
    def xpf(at):
        for reg, pos in ((vPF1, opt.x1), (vPF2, opt.x2)):
            if opt.xpf and pos == at:
                C('pull a share of x towards the chip (one dword per line)')
                I(f's_cmp_eq_u32 s{sFIRST}, 0')
                I(f's_cbranch_scc1 L2_nopf{reg}')
                I(f'buffer_load_dword v{vNUL}, v{reg}, {sr(sX,4)}, 0 offen')
                L(f'L2_nopf{reg}')
    nea = [0]
    def early_static(k=None):
        for _ in range(opt.u if k is None else k):
            j = nea[0]; nea[0] += 1
            I(f's_add_u32 m0, s{sEB}, {8192*j}')
            I('s_nop 0')
            I(f'buffer_load_dwordx4 v{vGA+j}, {sr(sEAO,4)}, 0 offen sc1 lds')
    def bar_b(at):
        if opt.pob == at:
            assert opt.arb < at
            I(f's_cmp_eq_u32 s{sFIRST}, 0')
            I('s_cbranch_scc1 L_polledB')
            I(f's_cmp_lg_u32 s{sW}, 0')
            I('s_cbranch_scc1 L_polledB')
            poll('B', 16384)
        if opt.arb == at:
            assert nst[0] >= 13
            I(f's_waitcnt vmcnt({7 if at == 6 else 0}) lgkmcnt(0)')
        else:
            I('s_waitcnt lgkmcnt(0)')
        I('s_barrier')
        if at != 6: stamp(at, VST)
        if opt.pob == at and not (opt.dl and at == 9): early_static()
        if opt.arb == at:
            I(f's_cmp_lg_u32 s{sFIRST}, 1')
            I('s_cbranch_scc1 L2_arrivedB')
            I(f's_mov_b32 s{sFIRST}, 2')
            I(f's_cmp_lg_u32 s{sW}, 0')
            I('s_cbranch_scc1 L2_arrivedB')
            arrive('B', 16384)
            L('L2_arrivedB')
    xpf(99)
    I('s_waitcnt lgkmcnt(0)')
    I('s_barrier')
    C('constant operands and one-time setup')
    I(f'v_bfe_u32 v{vT}, v0, 5, 1')
    I(f'v_bfe_u32 v{vT+1}, v0, 2, 2')
    I(f'v_lshl_add_u32 v{vT}, v{vT}, 3, v{vT+1}')
    I(f'v_mul_u32_u24 v{vT}, {TP}, v{vT}')
    I(f'v_add_u32 v{vT}, {L_WO}, v{vT}')
    I(f'v_bfe_u32 v{vT+2}, v0, 4, 1')
    I(f'v_and_b32 v{vT+3}, 3, v0')
    I(f'v_lshl_add_u32 v{vT+4}, v{vT+2}, 5, v{vT}')
    I(f'v_lshl_add_u32 v{vT+4}, v{vT+3}, 3, v{vT+4}')
    I(f'v_lshl_add_u32 v{vT+5}, v{vT+2}, 6, v{vT}')
    I(f'v_lshl_add_u32 v{vT+5}, v{vT+3}, 4, v{vT+5}')
    I(f'v_lshlrev_b32 v{vT+1}, 3, v{vT+1}')
    I(f'v_add_u32 v{vT+1}, {L_CG}, v{vT+1}')
    for h in range(2):
        for i in range(2):
            I(f'ds_read_b64_tr_b16 {vr(vBE+4*h+2*i,2)}, v{vT+4} offset:{L_WR-L_WO+4*i*TP+64*h}')
    for u in range(4):
        I(f'ds_read_b64_tr_b16 {vr(vCG+2*u,2)}, v{vT+1} offset:{32*u}')
    for tile in range(2):
        I('s_waitcnt lgkmcnt(4)')
        for s in range(4):
            for i in range(2):
                I(f'ds_read_b64_tr_b16 {vr(vWA+16*tile+4*s+2*i,2)}, v{vT+5} offset:{(16*s+4*i)*TP+8*tile}')
    I(f's_mov_b32 s{sM0}, 0x0f0f0f0f'); I(f's_mov_b32 s{sM0+1}, 0x0f0f0f0f')
    I(f's_mov_b32 s{sM1}, 0xf0f0f0f0'); I(f's_mov_b32 s{sM1+1}, 0xf0f0f0f0')
    for r in range(8): I(f'v_mov_b32 v{vA1+r}, 0')
    I(f'v_and_b32 v{vLS}, 31, v0')
    I(f'v_lshlrev_b32 v{vLS}, 4, v{vLS}')
    C('swizzled lane offset inside a row, transposing-read address')
    I(f'v_bfe_u32 v{vT}, v0, 4, 1')
    I(f'v_lshlrev_b32 v{vT}, 6, v{vT}')
    I(f'v_xor_b32 v{vLS}, v{vT}, v{vLS}')
    I(f'v_bfe_u32 v{vT}, v0, 4, 2')
    I(f'v_and_b32 v{vT+3}, 3, v0')
    I(f'v_lshlrev_b32 v{vT+3}, 3, v{vT+3}')
    I(f'v_lshl_add_u32 v{vT}, v{vT}, 5, v{vT+3}')
    I(f'v_bfe_u32 v{vT+3}, v0, 3, 1')
    I(f'v_lshlrev_b32 v{vT+3}, 6, v{vT+3}')
    I(f'v_xor_b32 v{vT}, v{vT}, v{vT+3}')
    I(f'v_bfe_u32 v{vT+3}, v0, 2, 2')
    I(f'v_lshl_add_u32 v{vT}, v{vT+3}, 7, v{vT}')
    I(f's_mul_i32 s3, s{sW}, 6144')
    I(f's_add_u32 s3, s3, {L_RING}')
    for d in range(3):
        I(f's_add_u32 s{sRG+d}, s3, {2048*d}')
        I(f'v_add_u32 v{vRD+d}, s{sRG+d}, v{vT}')
    stamp(4, VST)
    I(f's_cmp_lg_u32 s{sW}, 0')
    I('s_cbranch_scc1 L_polledA')
    poll('A', 0)
    I(f's_waitcnt vmcnt({(opt.xpf and opt.x1 == 99)+(opt.xpf and opt.x2 == 99)}) lgkmcnt(0)')
    I('s_barrier')
    stamp(5, VST)
    C('==== phase B: every chunk has published its keys; this chunk\'s features are in LDS')
    F = vT + 16
    I(f'buffer_load_dword v{F}, v{vOFA}, {sr(sOFF,4)}, 0 offen sc1')
    for j in range(13):
        I(f'ds_read_b128 {vr(vED+4*j,4)}, v{vIA+j}')
    xpf(0)
    ea_out(opt.s0b, '0b', lg=True)
    I(f's_waitcnt vmcnt({nst[0]+(opt.xpf and opt.x1 == 0)+(opt.xpf and opt.x2 == 0)})')
    C('run lengths -> prefix')
    I(f'v_lshrrev_b32 v{vLEN}, 16, v{F}')
    I(f'v_and_b32 v{F}, 0xffff, v{F}')
    I(f'v_mov_b32 v{vT}, v{vLEN}')
    I(f'v_add_u32 v{vG0}, v{vG0}, v{F}')
    I(f'v_lshl_or_b32 v{vGL}, v{vLEN}, 20, v{vG0}')
    wave_scan(vT)
    I(f's_lshl_b32 s{sA}, s{sW}, 2')
    I(f's_add_u32 s{sA}, s{sA}, {L_WT}')
    I(f'v_mov_b32 v{vT+1}, s{sA}')
    I(f'v_sub_u32 v{vPRE}, v{vT}, v{vLEN}')
    I('s_mov_b32 exec_lo, 0')
    I('s_brev_b32 exec_hi, 1')
    I(f'ds_write_b32 v{vT+1}, v{vT}')
    I('s_mov_b64 exec, -1')
    I(f'v_and_b32 v{vT+1}, 7, v0')
    I(f'v_lshlrev_b32 v{vT+1}, 2, v{vT+1}')
    I(f'v_add_u32 v{vT+1}, {L_WT}, v{vT+1}')
    I('s_waitcnt lgkmcnt(0)')
    I('s_barrier')
    I(f'ds_read_b32 v{vT+2}, v{vT+1}')
    I('s_waitcnt lgkmcnt(0)')
    I(f'v_mov_b32 v{vT+3}, v{vT+2}')
    for sh in (1, 2, 4):
        I('s_nop 1')
        I(f'v_add_u32_dpp v{vT+3}, v{vT+3}, v{vT+3} row_shr:{sh} row_mask:0xf bank_mask:0xf')
    I(f'v_sub_u32 v{vT+2}, v{vT+3}, v{vT+2}')
    I(f'v_readlane_b32 s{sTOT}, v{vT+3}, 7')
    I(f'v_readlane_b32 s{sA}, v{vT+2}, s{sW}')
    I(f'v_readlane_b32 s{sT0}, v{vT+3}, 3')
    I('s_nop 0')
    I(f'v_add_u32 v{vPRE}, s{sA}, v{vPRE}')
    ea_out(opt.sx, 'x')
    L('L2_round')
    I(f's_sub_u32 s{sCNT}, s{sTOT}, s{sR0}')
    I(f's_min_u32 s{sCNT}, s{sCNT}, s{sRC}')
    I(f'v_and_b32 v{vLANE}, 63, v0')
    I(f'v_lshrrev_b32 v{vLEN}, 20, v{vGL}')
    I(f'v_and_b32 v{vG0}, 0xfffff, v{vGL}')
    C('expand: GIDX[pre+k-r0] = g0+k for k in window')
    I(f'v_sub_u32 v{vT+1}, s{sR0}, v{vPRE}')
    I(f'v_max_i32 v{vT+2}, 0, v{vT+1}')
    I(f'v_add_u32 v{vT+3}, s{sRC}, v{vT+1}')
    I(f'v_min_i32 v{vT+3}, v{vT+3}, v{vLEN}')
    I(f'v_sub_u32 v{vT+4}, v{vT+2}, v{vT+1}')
    I(f'v_lshlrev_b32 v{vT+4}, 2, v{vT+4}')
    I(f'v_add_u32 v{vT+4}, {L_GI}, v{vT+4}')
    I(f'v_add_u32 v{vT+5}, v{vG0}, v{vT+2}')
    I(f'v_add_u32 v{vT+3}, v{vG0}, v{vT+3}')
    L('L2_exp')
    for j in range(4):
        I(f'v_cmpx_lt_i32 vcc, v{vT+5}, v{vT+3}')
        I(f'ds_write_b32 v{vT+4}, v{vT+5} offset:{4*j}')
        I(f'v_add_u32 v{vT+5}, 1, v{vT+5}')
    I(f'v_add_u32 v{vT+4}, 16, v{vT+4}')
    I('s_cbranch_execnz L2_exp')
    I('s_mov_b64 exec, -1')
    ea_out(opt.sy, 'y')
    C('slots past the end of the window get an out-of-range record number')
    I(f'v_lshlrev_b32 v{vT}, 2, v0')
    I(f'v_add_u32 v{vT}, {L_GI}, v{vT}')
    I(f'v_mov_b32 v{vT+2}, 0x1000000')
    for m in range(7):
        I(f'v_add_u32 v{vT+1}, {512*m}, v0')
        I(f'v_cmp_gt_u32 {sr(sVM+2*m,2)}, s{sCNT}, v{vT+1}')
    for m in range(7):
        I(f's_not_b64 exec, {sr(sVM+2*m,2)}')
        I(f's_cbranch_scc0 L2_nomark{m}')
        I(f'ds_write_b32 v{vT}, v{vT+2} offset:{2048*m}')
        L(f'L2_nomark{m}')
    I('s_mov_b64 exec, -1')
    I(f'v_lshrrev_b32 v{vT+3}, 1, v0')
    I(f'v_lshlrev_b32 v{vT+3}, 2, v{vT+3}')
    I(f'v_add_u32 v{vT+3}, {L_GI}, v{vT+3}')
    I(f'v_and_b32 v{vT+4}, 1, v0')
    I(f'v_lshlrev_b32 v{vT+4}, 4, v{vT+4}')
    I('s_waitcnt lgkmcnt(0)')
    I('s_barrier')
    stamp(6, VST)
    C('record loads')
    G = vT + 6
    for m in range(7):
        I(f'ds_read_b32 v{G+m}, v{vT} offset:{2048*m}')
    for j in range(0, 14, 2):
        I(f'ds_read2st64_b32 {vr(vGA+j,2)}, v{vT+3} offset0:{4*j} offset1:{4*j+4}')
    ea_out(opt.sz, 'z')
    for m in range(7):
        I(f's_waitcnt lgkmcnt({13-m})')
        I(f'v_lshlrev_b32 v{vT+1}, 2, v{G+m}')
        I(f'v_lshl_add_u32 v{vT+1}, v{G+m}, 3, v{vT+1}')
        I(f'buffer_load_dwordx3 {vr(vME+4*m,3)}, v{vT+1}, {sr(sMO,4)}, 0 offen sc1')
    I('s_waitcnt lgkmcnt(0)')
    for j in range(14):
        I(f'v_lshl_add_u32 v{vGA+j}, v{vGA+j}, 5, v{vT+4}')
    n0 = nst[0]
    if opt.s0c:
        I(f's_cmp_eq_u32 s{sFIRST}, 1')
        I('s_cbranch_scc1 L2_more')
        I('s_waitcnt vmcnt(0)')
        L('L2_more')
        ea_out(opt.s0c, '0c')
    nc = nst[0] - n0
    I(f'v_mov_b32 v{vGT}, 0x80000000')
    if opt.arb == 6: bar_b(6)
    for reg, pos in ((vPF1, opt.x1), (vPF2, opt.x2)):
        if opt.xpf and pos == 6:
            C('pull a share of x towards the chip (one dword per line; later rounds: a harmless range-checked read)')
            I(f'buffer_load_dword v{vNUL}, v{reg}, {sr(sX,4)}, 0 offen')
            nc += 1
    C('even split of the window: wave(q) = q*M >> 20 with M = 2^23/(count+1), q = position in node order')
    I(f's_add_u32 s{sA}, s{sCNT}, 1')
    I(f'v_cvt_f32_u32 v{vT}, s{sA}')
    I(f'v_rcp_f32 v{vT}, v{vT}')
    I(f'v_mov_b32 v{vT+2}, 1')
    I(f'v_mul_f32 v{vT}, 0x4b000000, v{vT}')
    I(f'v_cvt_u32_f32 v{vT}, v{vT}')
    I(f'v_lshlrev_b32 v{vT+1}, 3, v{vLANE}')
    I(f'v_readfirstlane_b32 s{sMG}, v{vT}')
    I(f'v_add_u32 v{vT+1}, {L_NC}, v{vT+1}')
    C('lane parts of the read-back addresses')
    vRA = vT + 24
    I(f'v_bfe_u32 v{vT+3}, v0, 3, 1')
    I(f'v_bfe_u32 v{vT+4}, v0, 5, 1')
    I(f'v_lshl_add_u32 v{vT+3}, v{vT+3}, 1, v{vT+4}')
    I(f'v_and_b32 v{vT+4}, 7, v0')
    I(f'v_cmp_eq_u32 {sr(sL7,2)}, 7, v{vT+4}')
    I(f'v_lshl_add_u32 v{vT+3}, v{vT+3}, 3, v{vT+4}')
    I(f'v_lshlrev_b32 v{vRA}, 2, v{vT+3}')
    I(f'v_and_b32 v{vT+4}, 3, v0')
    I(f'v_lshrrev_b32 v{vT+3}, 2, v{vLANE}')
    I(f'v_lshl_add_u32 v{vT+3}, v{vT+4}, 4, v{vT+3}')
    I(f'v_lshlrev_b32 v{vRA+1}, 3, v{vT+3}')
    I(f'v_lshlrev_b32 v{vRA+2}, 4, v{vLANE}')
    I(f'v_bfe_u32 v{vT+3}, v0, 3, 2')
    I(f'v_lshl_add_u32 v{vT+3}, v{vT+3}, 2, v{vT+4}')
    I(f'v_lshlrev_b32 v{vRA+3}, 2, v{vT+3}')
    I(f'v_lshlrev_b32 v{vT}, 4, v{vLANE}')
    I(f'v_add_u32 v{vT}, {L_CNT}, v{vT}')
    I(f'v_lshlrev_b32 v{vT+4}, 17, v0')
    I(f's_mov_b32 s{sC}, {L_CNT}')
    C('rank inside the destination node')
    vBA_ = vT + 30
    for m in range(7):
        I(f's_waitcnt vmcnt({6-m+nc})')
        I(f'v_and_b32 v{vCL+m}, 0x1fc, v{vME+4*m}')
        I(f'v_add_u32 v{vCL+m}, {L_NC}, v{vCL+m}')
        I(f's_mov_b64 exec, {sr(sVM+2*m,2)}')
        I(f'ds_add_rtn_u32 v{vRK+m}, v{vCL+m}, v{vT+2}')
        I('s_mov_b64 exec, -1')
        I(f'v_bfe_u32 v{vT+3}, v{vME+4*m}, 9, {15 if opt.exp not in (2, 3) else (11 if opt.exp == 2 else 4)}')
        I(f'v_or_b32 v{vME+4*m+3}, v{vT+3}, v{vT+4}')
        I(f'v_lshrrev_b32 v{vT+3}, 27, v{vME+4*m}')
        I(f'v_lshl_add_u32 v{vBA_+m}, v{vT+3}, 2, s{sC}')
        I(f'v_and_b32 v{vME+4*m}, 0x0700003c, v{vME+4*m}')
        if m < 6: I(f'v_add_u32 v{vT+4}, {512<<17}, v{vT+4}')
    ea_out(opt.s1, 1)
    bar_b(7)
    C('node scan (every wave)')
    c0, s0, sn, sf = vT + 4, vT + 6, vT + 8, vT + 10
    I(f'ds_read_b64 {vr(c0,2)}, v{vT+1}')
    xpf(7)
    for m in range(7):
        I(f'v_mul_u32_u24 v{vRK+m}, s{sMG}, v{vRK+m}')
    I('s_waitcnt lgkmcnt(0)')
    I(f'v_add_u32 v{vT+3}, v{c0}, v{c0+1}')
    I(f'v_mov_b32 v{sn}, v{vT+3}')
    wave_scan(sn)
    I(f'v_sub_u32 v{s0}, v{sn}, v{vT+3}')
    I(f'v_add_u32 v{s0+1}, v{s0}, v{c0}')
    C('publish start*M, so that wave = (start*M + rank*M) >> 20')
    for r in (s0, s0 + 1, sn): I(f'v_mul_u32_u24 v{r}, s{sMG}, v{r}')
    I(f'ds_write_b64 v{vT+1}, {vr(s0,2)} offset:{L_NS-L_NC}')
    I(f'v_add_u32 v{vT+1}, {L_NS-L_NC}, v{vT+1}')
    I(f'ds_read2_b32 {vr(sf,2)}, v{vT+1} offset0:15 offset1:16')
    for m in range(7):
        I(f'ds_read_b32 v{vCL+m}, v{vCL+m} offset:{L_NS-L_NC}')
    for r in (s0, s0 + 1, sn): I(f'v_lshrrev_b32 v{r}, 20, v{r}')
    C('the even split needs: one round, every wave owns 1..15 nodes')
    I(f'v_sub_u32 v{vT+3}, v{s0+1}, v{s0}')
    I(f'v_sub_u32 v{sn}, v{sn}, v{s0+1}')
    I(f'v_max_u32 v{vT+3}, v{vT+3}, v{sn}')
    I(f'v_cmp_lt_u32 {sr(sA,2)}, 1, v{vT+3}')
    I(f'v_readlane_b32 s{sNB}, v{s0+1}, 48')
    I('s_waitcnt lgkmcnt(7)')
    for r in (sf, sf + 1): I(f'v_lshrrev_b32 v{r}, 20, v{r}')
    I(f'v_cmp_ge_u32 vcc, v{s0}, v{sf}')
    I(f'v_cmp_ge_u32 {sr(sC,2)}, v{s0+1}, v{sf+1}')
    I('s_and_b32 vcc_hi, vcc_hi, 0x3ff')
    I(f's_and_b32 s{sD}, s{sD}, 0x1ff')
    I(f's_or_b64 {sr(sA,2)}, {sr(sA,2)}, vcc')
    I(f's_or_b64 {sr(sA,2)}, {sr(sA,2)}, {sr(sC,2)}')
    I('s_cbranch_scc1 L2_static')
    I(f's_cmp_lg_u32 s{sNB}, 7')
    I('s_cbranch_scc1 L2_static')
    I(f's_cmp_lg_u32 s{sCNT}, s{sTOT}')
    I('s_cbranch_scc1 L2_static')
    if not opt.dyn: I('s_branch L2_static')
    I('s_waitcnt lgkmcnt(0)')
    for m in range(7):
        I(f'v_add_u32 v{vRK+m}, v{vRK+m}, v{vCL+m}')
        I(f'v_lshrrev_b32 v{vRK+m}, 20, v{vRK+m}')
        I(f'v_lshl_add_u32 v{vCL+m}, v{vRK+m}, 7, v{vBA_+m}')
    def cell_atomics():
        for m in range(7):
            I(f's_mov_b64 exec, {sr(sVM+2*m,2)}')
            I(f'ds_add_rtn_u32 v{vRK+m}, v{vCL+m}, v{vT+2}')
        I('s_mov_b64 exec, -1')
    cell_atomics()
    C('owned node range of this wave')
    I(f's_mov_b32 exec_hi, 0x1ffff')
    I(f'v_cmp_gt_u32 vcc, s{sW}, v{s0}')
    I(f's_bcnt1_i32_b64 s{sOF}, vcc')
    I(f'v_cmp_gt_u32 vcc, s{sW}, v{s0+1}')
    I(f's_bcnt1_i32_b64 s{sA}, vcc')
    I(f's_add_u32 s{sOF}, s{sOF}, s{sA}')
    I(f'v_cmp_ge_u32 vcc, s{sW}, v{s0}')
    I(f's_bcnt1_i32_b64 s{sON}, vcc')
    I(f'v_cmp_ge_u32 vcc, s{sW}, v{s0+1}')
    I(f's_bcnt1_i32_b64 s{sA}, vcc')
    I(f's_add_u32 s{sON}, s{sON}, s{sA}')
    I('s_mov_b64 exec, -1')
    I('s_branch L2_cells')
    L('L2_static')
    I(f's_mul_i32 s{sOF}, s{sW}, {NB}')
    I(f's_add_u32 s{sON}, s{sOF}, {NB+7}')
    I(f's_add_u32 s{sOF}, s{sOF}, 7')
    I(f's_lshr_b32 s{sOF}, s{sOF}, 3')
    I(f's_lshr_b32 s{sON}, s{sON}, 3')
    I('s_waitcnt lgkmcnt(0)')
    for m in range(7):
        I(f'v_lshrrev_b32 v{vRK+m}, 24, v{vME+4*m}')
        I(f'v_lshl_add_u32 v{vCL+m}, v{vRK+m}, 7, v{vBA_+m}')
    cell_atomics()
    L('L2_cells')
    ea_out(opt.s2, 2)
    bar_b(8)
    C('cell scan (every wave), lists padded to 16')
    cnt, st = vT + 14, vT + 18
    I(f'ds_read_b128 {vr(cnt,4)}, v{vT}')
    xpf(8)
    I(f's_mov_b32 s{sC}, {(L_KI - 4*L_SLOT) & 0xffffffff}')
    I(f's_mov_b32 s{sD}, {(L_SH - 8*L_SLOT) & 0xffffffff}')
    for m in range(7):
        I(f'v_add_u32 v{vRK+m}, {L_SLOT}, v{vRK+m}')
    I('s_waitcnt lgkmcnt(0)')
    I(f'v_add_u32 v{st+1}, v{cnt}, v{cnt+1}')
    I(f'v_add_u32 v{st+2}, v{st+1}, v{cnt+2}')
    I(f'v_add_u32 v{vT+1}, v{st+2}, v{cnt+3}')
    I('s_nop 1')
    I(f'v_add_u32_dpp v{vT+2}, v{vT+1}, v{vT+1} quad_perm:[1,0,3,2] row_mask:0xf bank_mask:0xf')
    I('s_nop 1')
    I(f'v_add_u32_dpp v{vT+2}, v{vT+2}, v{vT+2} quad_perm:[2,3,0,1] row_mask:0xf bank_mask:0xf')
    I('s_nop 1')
    I(f'v_add_u32_dpp v{vT+2}, v{vT+2}, v{vT+2} row_half_mirror row_mask:0xf bank_mask:0xf')
    I(f'v_add_u32 v{vT+3}, 15, v{vT+2}')
    I(f'v_and_b32 v{vT+3}, -16, v{vT+3}')
    I(f'v_sub_u32 v{vT+2}, v{vT+3}, v{vT+2}')
    I(f'v_cndmask_b32 v{vT+2}, 0, v{vT+2}, {sr(sL7,2)}')
    I(f'v_add_u32 v{vT+1}, v{vT+1}, v{vT+2}')
    I(f'v_mov_b32 v{vT+2}, v{vT+1}')
    wave_scan(vT + 2)
    I(f'v_sub_u32 v{st}, v{vT+2}, v{vT+1}')
    I(f'v_add_u32 v{st+3}, v{st}, v{st+2}')
    I(f'v_add_u32 v{st+2}, v{st}, v{st+1}')
    I(f'v_add_u32 v{st+1}, v{st}, v{cnt}')
    I(f'ds_write_b128 v{vT}, {vr(st,4)} offset:{L_ST-L_CNT}')
    for m in range(7):
        I(f'ds_read_b32 v{vCL+m}, v{vCL+m} offset:{L_ST-L_CNT}')
    early_static(opt.u2)
    C('early-phase length of every list: start of bin SPLIT minus list start (in lane 8*wave)')
    sl_lane, sl_reg = opt.split >> 2, opt.split & 3
    if sl_lane: I(f'v_sub_u32_dpp v{vT+5}, v{st+sl_reg}, v{st} row_shl:{sl_lane} row_mask:0xf bank_mask:0xf')
    else: I(f'v_sub_u32 v{vT+5}, v{st+sl_reg}, v{st}')
    I(f's_lshl_b32 s{sA}, s{sW}, 3')
    I(f'v_readlane_b32 s{sNB}, v{vT+3}, s{sA}')
    I(f'v_readlane_b32 s{sI}, v{st}, s{sA}')
    for m in range(7):
        I(f's_waitcnt lgkmcnt({6-m})')
        I(f'v_add_u32 v{vRK+m}, v{vRK+m}, v{vCL+m}')
        I(f'v_lshl_add_u32 v{vCL+m}, v{vRK+m}, 2, s{sC}')
        I(f'v_lshl_add_u32 v{vBA_+m}, v{vRK+m}, 3, s{sD}')
    for m in range(7):
        I(f's_mov_b64 exec, {sr(sVM+2*m,2)}')
        I(f'ds_write_b32 v{vCL+m}, v{vME+4*m+3}')
        I(f'ds_write_b8 v{vRK+m}, v{vME+4*m}')
        I(f'ds_write2_b32 v{vBA_+m}, v{vME+4*m+1}, v{vME+4*m+2} offset0:0 offset1:1')
    I('s_mov_b64 exec, -1')
    C('longest list, shortest early part')
    I(f'v_max_u32_dpp v{vT+3}, v{vT+3}, v{vT+3} row_shl:8 row_mask:0xf bank_mask:0xf')
    I(f'v_min_u32_dpp v{vT+5}, v{vT+5}, v{vT+5} row_shl:8 row_mask:0xf bank_mask:0xf')
    I(f's_lshr_b32 s{sNB}, s{sNB}, 4')
    I(f'v_readlane_b32 s{sNBM}, v{vT+3}, 0')
    I(f'v_readlane_b32 s{sK0}, v{vT+5}, 0')
    for g in range(1, 4):
        I(f'v_readlane_b32 s{sA}, v{vT+3}, {16*g}')
        I(f'v_readlane_b32 s{sB}, v{vT+5}, {16*g}')
        I(f's_max_u32 s{sNBM}, s{sNBM}, s{sA}')
        I(f's_min_u32 s{sK0}, s{sK0}, s{sB}')
    C('a list longer than the register copies hold: redo this round with a small window')
    I(f's_cmp_le_u32 s{sNBM}, 512')
    I('s_cbranch_scc1 L2_fits')
    I(f's_mov_b32 s{sRC}, {RSMALL}')
    I('s_waitcnt vmcnt(0) lgkmcnt(0)')
    I('s_branch L2_again')
    L('L2_fits')
    ea_out(13, 3)
    early_static(opt.u3)
    U = opt.u + opt.u2 + opt.u3
    assert opt.pob <= 8 or opt.u2 + opt.u3 == 0
    assert 6 <= U <= 13
    C('read-back addresses')
    I(f's_lshl_b32 s{sA}, s{sI}, 2')
    I(f's_add_u32 s{sA}, s{sA}, {L_KI}')
    I(f'v_add_u32 v{vT}, s{sA}, v{vRA}')
    I(f'v_add_u32 v{vT+5}, s{sA}, v{vRA+3}')
    I(f's_lshl_b32 s{sA}, s{sI}, 3')
    I(f's_add_u32 s{sA}, s{sA}, {L_SH}')
    I(f'v_add_u32 v{vT+3}, s{sA}, v{vRA+1}')
    I(f's_add_u32 s{sA}, s{sI}, {L_SLOT}')
    I(f'v_add_u32 v{vT+4}, s{sA}, v{vRA+2}')
    I(f'v_add_u32 v{vT+6}, 1024, v{vT}')
    I(f'v_add_u32 v{vT+7}, 1024, v{vT+5}')
    bar_b(9)
    xpf(9)
    IT = vT + 8
    for g in range(0, 16, 2):
        I(f'ds_read2_b32 {vr(vKQ+g,2)}, v{vT+(6 if g >= 8 else 0)} offset0:{32*g%256} offset1:{32*(g+1)%256}')
    I(f'ds_read_b128 {vr(vSL,4)}, v{vT+4}')
    for g in range(16):
        if g in (4, 10): I('s_waitcnt lgkmcnt(7)')
        I(f'ds_read2_b32 {vr(IT+2*g,2)}, v{vT+(7 if g >= 8 else 5)} offset0:{32*g%256} offset1:{32*g%256+16}')
    I('s_waitcnt lgkmcnt(6)')
    for g in range(8):
        I(f'ds_read_b64 {vr(vSQ+2*g,2)}, v{vT+3} offset:{512*g}')
    if opt.dl and opt.pob == 9: early_static()
    assert opt.pob <= 9 and opt.x1 != 10 and opt.x2 != 10
    C('which feature passes must land before the main loop')
    I(f's_sub_i32 s{sA}, s{sT0}, s{sR0}')
    I(f's_max_i32 s{sA}, s{sA}, 0')
    I(f's_add_u32 s{sA}, s{sA}, 255')
    I(f's_lshr_b32 s{sA}, s{sA}, 8')
    I(f's_max_u32 s{sA}, s{sA}, {U}')
    I(f's_add_u32 s{sB}, s{sCNT}, 255')
    I(f's_lshr_b32 s{sB}, s{sB}, 8')
    I(f's_lshr_b32 s{sK0}, s{sK0}, 4')
    I(f's_sub_i32 s{sK0}, s{sK0}, 1')
    I(f's_sub_i32 s{sB}, s{sB}, s{sA}')
    I(f's_sub_i32 s{sC}, s{sK0}, 1')
    I(f's_mul_i32 s{sC}, s{sC}, {opt.lpb}')
    I(f's_cmp_le_i32 s{sB}, s{sC}')
    I(f's_cselect_b32 s{sPJ}, s{sA}, 14')
    I(f's_cselect_b32 s{sK0}, s{sK0}, -1')
    I(f's_cmp_gt_i32 s{sB}, 0')
    I(f's_cselect_b32 s{sK0}, s{sK0}, -1')
    if not opt.late:
        I(f's_mov_b32 s{sPJ}, 14'); I(f's_mov_b32 s{sK0}, -1')
    I(f's_lshl_b32 s{sA}, s{sW}, 5')
    I(f's_sub_i32 s{sNP}, s{sCNT}, s{sA}')
    I(f's_add_i32 s{sNP}, s{sNP}, 255')
    I(f's_lshr_b32 s{sNP}, s{sNP}, 8')
    I(f's_mov_b32 s{sA}, {U}')
    I(f's_min_u32 s{sB}, s{sPJ}, s{sNP}')
    L('L2_early')
    I(f's_cmp_ge_u32 s{sA}, s{sB}')
    I('s_cbranch_scc1 L2_early_done')
    I(f's_set_gpr_idx_on s{sA}, gpr_idx(SRC0)')
    I(f'v_mov_b32 v{vGT}, v{vGA}')
    I('s_set_gpr_idx_off')
    I(f's_lshl_b32 m0, s{sA}, 13')
    I(f's_add_u32 m0, m0, s{sEB}')
    I(f's_add_u32 s{sA}, s{sA}, 1')
    I(f'buffer_load_dwordx4 v{vGT}, {sr(sEAO,4)}, 0 offen sc1 lds')
    I('s_branch L2_early')
    L('L2_early_done')
    for g in range(16):
        I(f'v_lshlrev_b32_sdwa v{vKQ+g}, 9, v{vKQ+g} dst_sel:DWORD dst_unused:UNUSED_PAD src0_sel:DWORD src1_sel:WORD_0')
    C('no row fetches past the list end: null keys in the group the look-ahead runs into')
    I(f's_lshr_b32 s{sA}, s{sNB}, 1')
    I(f's_bitcmp1_b32 s{sNB}, 0')
    I('s_cselect_b32 exec_lo, 0xff00ff00, -1')
    I(f's_cmp_lt_u32 s{sNB}, 32')
    I('s_cselect_b32 exec_lo, exec_lo, 0')
    I('s_mov_b32 exec_hi, exec_lo')
    I(f's_set_gpr_idx_on s{sA}, gpr_idx(DST)')
    I(f'v_mov_b32 v{vKQ}, 0x{NULLKI<<9:x}')
    I('s_set_gpr_idx_off')
    I('s_mov_b64 exec, -1')
    I(f'v_mov_b32 v{vK}, v{vKQ}')
    def fetch(sig, lane):
        I(f'v_add_u32_dpp v{vAD}, v{vK}, v{vLS} row_newbcast:{lane} row_mask:0xf bank_mask:0xf')

    bar_b(10)
    if opt.exp == 1: I(f's_mov_b32 s{sX+2}, 0')
    for sig in range(5):
        I(f's_add_u32 m0, s{sRG+(sig>>1)}, {1024*(sig&1)}')
        fetch(sig, sig)
        I(f'buffer_load_dwordx4 v{vAD}, {sr(sX,4)}, 0 offen lds')
    I(f's_mov_b32 s{sA}, 0x07060302')
    for g in range(16):
        I(f'v_perm_b32 v{vIQ+g}, v{IT+2*g+1}, v{IT+2*g}, s{sA}')
    I(f'v_bfe_u32 v{vGT}, v0, 5, 1')
    I(f'v_mul_u32_u24 v{vGT}, 0x10001, v{vGT}')
    for g in range(16):
        I(f'v_or_b32 v{vIQ+g}, v{vIQ+g}, v{vGT}')
    def ea_reads(word):
        I(f'v_lshlrev_b32_sdwa v{vEAA}, 4, v{vIC} dst_sel:DWORD dst_unused:UNUSED_PAD src0_sel:DWORD src1_sel:WORD_{word}')
        I(f's_mov_b64 exec, {sr(sM0,2)}')
        I(f'ds_read_b128 {vr(vA1,4)}, v{vEAA}')
        I(f's_mov_b64 exec, {sr(sM1,2)}')
        I(f'ds_read_b128 {vr(vA2,4)}, v{vEAA}')
        I('s_mov_b64 exec, -1')
    def rw_mfma(p):
        I(f'v_mfma_f32_32x32x16_bf16 {vr(vRW+16*p,16)}, {vr(vA1,4)}, {vr(vBE,4)}, 0')
        I(f'v_mfma_f32_32x32x16_bf16 {vr(vRW+16*p,16)}, {vr(vA2,4)}, {vr(vBO,4)}, {vr(vRW+16*p,16)}')
    def ae_mfma():
        for u in range(4):
            I(f'v_mfma_f32_4x4x4_16b_bf16 {vr(vRW+4*u,4)}, {vr(vSQ,2)}, {vr(vCG+2*u,2)}, 0')
    def ae_cvt():
        for i, d in ((0, vAE), (1, vAE + 4)):
            I(f'v_cvt_pk_bf16_f32 v{d}, v{vRW+i}, v{vRW+4+i}')
            I(f'v_cvt_pk_bf16_f32 v{d+1}, v{vRW+8+i}, v{vRW+12+i}')
    def mfmas(p, s):
        if opt.exp in (5, 7): return
        d = vDT; b = vB + 4 * (s & 1)
        I(f'v_mfma_f32_4x4x4_16b_bf16 {vr(d,4)}, {vr(vAE+2*p,2)}, {vr(b,2)}, 0 cbsz:4 abid:{s}')
        I(f'v_mfma_f32_4x4x4_16b_bf16 {vr(d+4,4)}, {vr(vAE+2*p,2)}, {vr(b+2,2)}, 0 cbsz:4 abid:{8+s}')
    def fmas(p, s):
        if opt.exp in (4, 7): return
        d = vDT
        for h, e in ((0, s), (1, 8 + s)):
            sl = sSA0 + 2 * (s >> 2) + h
            I(f's_set_gpr_idx_on s{sl}, gpr_idx(SRC2,DST)' if h == 0 else f's_set_gpr_idx_idx s{sl}')
            r = vRW + 16 * p + (e & ~1)
            mod = 'op_sel:[0,1,0] op_sel_hi:[1,1,1]' if e & 1 else 'op_sel_hi:[1,0,1]'
            I(f'v_pk_fma_f32 {vr(vACC,2)}, {vr(d+4*h,2)}, {vr(r,2)}, {vr(vACC,2)} {mod}')
            I(f'v_pk_fma_f32 {vr(vACC+2,2)}, {vr(d+4*h+2,2)}, {vr(r,2)}, {vr(vACC+2,2)} {mod}')
    def shift(s):
        sl = sSA0 + 2 * (s >> 2)
        I(f's_lshr_b64 {sr(sl,2)}, {sr(sl,2)}, 8')

    C('operands of batches 0 and 1 that do not need the edge features')
    ae_mfma()
    I(f'v_mov_b32 v{vIC}, v{vIQ}')
    I(f'v_readlane_b32 s{sSA0}, v{vSL}, 0')
    I(f'v_readlane_b32 s{sSB0}, v{vSL+2}, 0')
    I(f's_mov_b32 s{sSA1}, {DUMMY*0x101}')
    I(f's_mov_b32 s{sSB1}, {DUMMY*0x101}')
    I(f's_mov_b32 s{sI}, 0')
    I(f's_mov_b32 s{sKI}, 0')
    ae_cvt()
    I(f's_cmp_eq_u32 s{sFIRST}, 0')
    I('s_cbranch_scc1 L2_haveB')
    xpf(10)
    I(f's_mov_b32 s{sFIRST}, 0')
    for r in range(57): I(f'v_mov_b32 v{vACC+r}, 0')
    if opt.pob == 11:
        I(f's_cmp_lg_u32 s{sW}, 0')
        I('s_cbranch_scc1 L_polledB')
        poll('B', 16384)
    for r in range(57, 68): I(f'v_mov_b32 v{vACC+r}, 0')
    if opt.pob == 11: I('s_barrier')
    L('L2_haveB')
    stamp(11, VST)
    C('early feature passes, then the first row fetches')
    if opt.pob == 11: early_static()
    I('s_waitcnt vmcnt(5)')
    I('s_barrier')
    stamp(12, VST)
    I(f's_cmp_eq_u32 s{sNB}, 0')
    I('s_cbranch_scc1 L2_drain')
    ea_reads(0)
    I('s_waitcnt lgkmcnt(0)')
    rw_mfma(0)
    fetch(0, 5)
    I(f's_add_u32 m0, s{sRG+2}, 1024')
    C('inside the loop the register-index mode stays on: M0 alternates between an accumulator index')
    C('and the LDS address of the next row fetch, whose low byte (the index) is zero')
    L('L2_loop')
    for p in range(2):
        C(f'batch parity {p}')
        for s in range(8):
            sig = 8 * p + s
            d = (sig >> 1) % 3
            so = 1024 * (sig & 1)
            b = vB + 4 * (s & 1)
            I('s_waitcnt vmcnt(4) lgkmcnt(0)')
            I(f'buffer_load_dwordx4 v{vAD}, {sr(sX,4)}, 0 offen lds')
            I(f'ds_read_b64_tr_b16 {vr(b,2)}, v{vRD+d} offset:{so}')
            I(f'ds_read_b64_tr_b16 {vr(b+2,2)}, v{vRD+d} offset:{so+512}')
            if s == 3: ea_reads(p ^ 1)
            fs = (s - 2) % 8
            fmas(p ^ 1 if s < 2 else p, fs)
            if sig == 10:
                I(f's_set_gpr_idx_on s{sKI}, gpr_idx(SRC0)')
                I(f'v_mov_b32 v{vK}, v{vKQ}')
                I(f'v_mov_b32 v{vIC}, v{vIQ}')
                I(f's_set_gpr_idx_idx s{sSI}')
                ae_mfma()
            if sig == 11:
                I(f's_set_gpr_idx_on s{sLN}, gpr_idx(SRC0,SRC1)')
                ae_cvt()
            I(f's_add_u32 m0, s{sRG+d}, {so}')
            if (fs & 3) != 3: shift(fs)
            elif sig == 9: I(f's_add_u32 s{sKI}, s{sKI}, 1')
            elif s == 5 and opt.prio == 2: I(f's_setprio {p}')
            elif s == 5 and opt.prio == 1 and p == 1: I('s_setprio 0')
            else: I('s_nop 0')
            mfmas(p ^ 1 if s == 0 else p, (s - 1) % 8)
            fetch(sig, (sig + 6) % 16)
            if sig == 1: I(f'v_mov_b64 {vr(vAE+2,2)}, {vr(vAE+4,2)}')
            if s == 1:
                I(f'v_readlane_b32 s{sSA1}, v{vSL+1}, s{sI}')
                I(f'v_readlane_b32 s{sSB1}, v{vSL+3}, s{sI}')
                I(f's_add_u32 s{sI}, s{sI}, 1')
            if sig == 9:
                I(f's_and_b32 s{sSI}, s{sKI}, 0xfe')
                I(f's_and_b32 s{sLN}, s{sI}, 2')
            if s == 4: rw_mfma(p ^ 1)
            if sig == 5 and opt.prio == 1:
                I(f's_cmp_lt_u32 s{sW}, 4')
                I('s_cbranch_scc1 L2_prio')
                I('s_setprio 1')
                L('L2_prio')
            if s == 6:
                I(f'v_readlane_b32 s{sSA0}, v{vSL}, s{sI}')
                I(f'v_readlane_b32 s{sSB0}, v{vSL+2}, s{sI}')
        if p == 1:
            I(f'v_swap_b32 v{vRD}, v{vRD+2}'); I(f'v_swap_b32 v{vRD+1}, v{vRD+2}')
            I(f's_mov_b32 s{sRG+3}, s{sRG+2}'); I(f's_mov_b32 s{sRG+2}, s{sRG+1}'); I(f's_mov_b32 s{sRG+1}, s{sRG}'); I(f's_mov_b32 s{sRG}, s{sRG+3}')
        if opt.stamps == 4 and p == 1:
            I(f's_lshr_b32 s{sA}, s{sI}, 1')
            I(f's_cmp_gt_u32 s{sA}, 11')
            I('s_cbranch_scc1 L2_nost')
            I('s_set_gpr_idx_off')
            I(f's_mov_b32 s{sB}, m0')
            I('s_memrealtime s[100:101]')
            I(f's_mov_b32 m0, s{sA}')
            I('s_waitcnt lgkmcnt(0)')
            I(f'v_writelane_b32 v{VST}, s100, m0')
            I(f'v_writelane_b32 v{VST+1}, s101, m0')
            I(f's_mov_b32 m0, s{sB}')
            L('L2_nost')
        I(f's_cmp_le_i32 s{sI}, s{sK0}')
        I(f's_cbranch_scc1 L2_ev{p}')
        L(f'L2_evdone{p}')
        I(f's_cmp_lt_u32 s{sI}, s{sNB}')
        if p == 0: I('s_cbranch_scc0 L2_tail0')
        else: I('s_cbranch_scc1 L2_loop')
    for p in (1, 0):
        if p == 0: L('L2_tail0')
        I('s_waitcnt lgkmcnt(0)')
        fmas(p, 6)
        I('s_set_gpr_idx_off')
        shift(6)
        mfmas(p, 7)
        I('s_nop 4')
        fmas(p, 7)
        I('s_set_gpr_idx_off')
        I('s_branch L2_drain')
    for p in range(2):
        L(f'L2_ev{p}')
        I(f's_cmp_lg_u32 s{sI}, s{sK0}')
        I(f's_cbranch_scc1 L2_late{p}')
        C('all late features have landed (every wave waited for younger loads since its last pass)')
        I('s_barrier')
        I(f's_branch L2_evdone{p}')
        L(f'L2_late{p}')
        I(f's_mov_b32 s{sB}, m0')
        for k in range(opt.lpb):
            I(f's_cmp_ge_u32 s{sPJ}, s{sNP}')
            I(f's_cbranch_scc1 L2_nolate{p}')
            I(f's_set_gpr_idx_on s{sPJ}, gpr_idx(SRC0)')
            I(f'v_mov_b32 v{vGT}, v{vGA}')
            I(f's_lshl_b32 m0, s{sPJ}, 13')
            I(f's_add_u32 m0, m0, s{sEB}')
            I(f's_add_u32 s{sPJ}, s{sPJ}, 1')
            I(f'buffer_load_dwordx4 v{vGT}, {sr(sEAO,4)}, 0 offen sc1 lds')
        L(f'L2_nolate{p}')
        I(f's_mov_b32 m0, s{sB}')
        I(f's_branch L2_evdone{p}')
    L('L2_drain')
    I('s_waitcnt vmcnt(0) lgkmcnt(0)')
    stamp(13, VST)
    I(f's_add_u32 s{sR0}, s{sR0}, s{sRC}')
    I(f's_cmp_ge_u32 s{sR0}, s{sTOT}')
    I('s_cbranch_scc1 L2_epi')
    L('L2_again')
    I('s_barrier')
    prefill()
    I('s_branch L2_round')

    L('L2_epi')
    C('---- epilogue: out = agg @ w_out, two tiles of 8 slots; the partial sums of a shared node go to')
    C('     its owner (the previous wave), whose tile with the receiving slot is done second')
    vP = 76
    vDN = 92
    vBB = 132
    vD = 164
    vT = 228
    vLANE = vT + 16
    vBA, vO = vT + 2, vT + 8
    sF, sS = sSA0, sSB0
    I(f'v_and_b32 v{vLANE}, 63, v0')
    I(f's_sub_u32 s{sA}, s{sOF}, 1')
    I(f's_and_b32 s{sA}, s{sA}, 15')
    I(f's_lshl_b32 s{sA}, s{sA}, 2')
    I(f'v_lshl_add_u32 v{vT}, v{vLANE}, 4, s3')
    I(f's_set_gpr_idx_on s{sA}, gpr_idx(SRC0)')
    for k in range(4): I(f'v_mov_b32 v{vDN+k}, v{vACC+k}')
    I('s_set_gpr_idx_off')
    I(f'ds_write_b128 v{vT}, {vr(vDN,4)} offset:5120')
    I(f's_sub_u32 s{sA}, s{sON}, 1')
    I(f's_and_b32 s{sA}, s{sA}, 15')
    I(f's_lshl_b32 s{sA}, s{sA}, 2')
    I(f's_and_b32 s{sS}, s{sA}, 32')
    I(f's_xor_b32 s{sF}, s{sS}, 32')
    I(f's_cmp_eq_u32 s{sW}, 7')
    I(f's_cselect_b32 s{sA}, {DUMMY}, s{sA}')
    I(f'v_mul_u32_u24 v{vT+1}, {TC}, v{vLANE}')
    I(f'v_add_u32 v{vT+1}, s3, v{vT+1}')
    def t_write(sidx, i):
        I(f's_set_gpr_idx_on s{sidx}, gpr_idx(SRC0,SRC1)')
        for k in range(4):
            I(f'v_cvt_pk_bf16_f32 v{vP+4*i+k}, v{vACC+8*i+2*k}, v{vACC+8*i+2*k+1}')
        I('s_set_gpr_idx_off')
        I(f'ds_write_b128 v{vT+1}, {vr(vP+4*i,4)} offset:{16*i}')
    def t_reads(ct):
        for s in range(4):
            for i in range(2):
                I(f'ds_read_b64_tr_b16 {vr(vBB+16*ct+4*s+2*i,2)}, v{vBA} offset:{(16*s+4*i)*TC}')
    def mf(ct, n):
        tile, s = n & 1, n >> 1
        d = vD + 32 * ct + 16 * tile
        I(f'v_mfma_f32_32x32x16_bf16 {vr(d,16)}, {vr(vBB+16*ct+4*s,4)}, {vr(vWA+16*tile+4*s,4)}, {vr(d,16) if s else 0}')
    for i in range(4): t_write(sF, i)
    I(f'v_bfe_u32 v{vT+5}, v0, 5, 1')
    I(f'v_bfe_u32 v{vT+6}, v0, 2, 2')
    I(f'v_lshl_add_u32 v{vBA}, v{vT+5}, 3, v{vT+6}')
    I(f'v_mul_u32_u24 v{vBA}, {TC}, v{vBA}')
    I(f'v_bfe_u32 v{vT+6}, v0, 4, 1')
    I(f'v_lshl_add_u32 v{vBA}, v{vT+6}, 5, v{vBA}')
    I(f'v_and_b32 v{vT+6}, 3, v0')
    I(f'v_lshl_add_u32 v{vBA}, v{vT+6}, 3, v{vBA}')
    I(f'v_add_u32 v{vBA}, s3, v{vBA}')
    t_reads(0)
    C('the output descriptor covers exactly the nodes this wave owns')
    I(f's_mul_i32 s{sB}, s{sBK}, {NB}')
    I(f's_sub_u32 s{sC}, {N}, s{sB}')
    I(f's_min_u32 s{sC}, s{sC}, s{sON}')
    I(f's_sub_i32 s{sC}, s{sC}, s{sOF}')
    I(f's_max_i32 s{sC}, s{sC}, 0')
    I(f's_lshl_b32 s{sC}, s{sC}, 9')
    I(f's_add_u32 s{sB}, s{sB}, s{sOF}')
    I(f's_lshl_b32 s{sB}, s{sB}, 9')
    srd(sOUT, 20, off_s=sB, size_s=sC)
    I(f's_lshr_b32 s{sB}, s{sF}, 2')
    I(f's_sub_u32 s{sB}, s{sB}, s{sOF}')
    I(f'v_add_u32 v{vT+6}, s{sB}, v{vT+5}')
    I(f'v_and_b32 v{vT+7}, 31, v0')
    I(f'v_lshlrev_b32 v{vT+7}, 2, v{vT+7}')
    I(f'v_lshl_add_u32 v{vT+6}, v{vT+6}, 9, v{vT+7}')
    def o_addr(it):
        I(f'v_add_u32 v{vO+it}, {1024*it}, v{vT+6}')
        I(f'v_and_b32 v{vO+it}, 0x1fff, v{vO+it}')
    stamp(101, VST)
    I('s_waitcnt lgkmcnt(0)')
    for n in range(3): mf(0, n)
    I('s_barrier')
    I(f'ds_read_b128 {vr(vDN,4)}, v{vT} offset:{6144+5120}')
    mf(0, 3)
    for it in range(8): o_addr(it)
    I('s_waitcnt lgkmcnt(0)')
    stamp(102, VST)
    I(f's_set_gpr_idx_on s{sA}, gpr_idx(SRC0,DST)')
    for k in range(4): I(f'v_add_f32 v{vACC+k}, v{vACC+k}, v{vDN+k}')
    I('s_set_gpr_idx_off')
    for n in range(4):
        mf(0, 4 + n)
        t_write(sS, n)
    t_reads(1)
    vPK = 8
    def o_store(ct, r):
        I(f'v_cvt_pk_bf16_f32 v{vPK+16*ct+r}, v{vD+32*ct+r}, v{vD+32*ct+16+r}')
        I(f'buffer_store_dword v{vPK+16*ct+r}, v{vO+4*ct+(r>>2)}, {sr(sOUT,4)}, 0 offen offset:{128*(r&3)}' + ('', ' sc1', ' nt', ' sc1 nt', ' sc0 sc1')[opt.ofl])
    stamp(103, VST)
    for r in range(4): o_store(0, r)
    I('s_waitcnt lgkmcnt(0)')
    for n in range(8):
        mf(1, n)
        if n >= 2: o_store(0, 2 * n); o_store(0, 2 * n + 1)
    I('s_nop 7')
    stamp(105, VST)
    for r in range(16): o_store(1, r)
    stamp(14, VST)
    if opt.stamps: I('s_waitcnt vmcnt(0)')
    stamp(15, VST); stamp_flush(VST, vGT)
    if opt.dbg:
        I(f's_cmp_lg_u32 s2, {opt.dbg}')
        I('s_cbranch_scc1 L2_end')
        I(f's_cmp_lg_u32 s{sW}, 0')
        I('s_cbranch_scc1 L2_end')
        I(f'v_readlane_b32 s{sA}, v{VST}, 0')
        if opt.tfirst: I(f's_mov_b32 s{sA}, s94')
        srd(Q0, 22, size=64)
        I(f'v_subrev_u32 v{vAD}, s{sA}, v{VST}')
        I(f'v_lshlrev_b32 v{vGT}, 2, v0')
        I('s_mov_b64 exec, 0xfffe')
        I(f'buffer_store_dword v{vAD}, v{vGT}, {sr(Q0,4)}, 0 offen' + (' sc1' if opt.nodbgst else ''))
        if opt.amp:
            I(f'v_readlane_b32 s{sB}, v{VST}, {opt.amp}')
            I(f's_sub_u32 s{sB}, s{sB}, s{sA}')
            I(f's_mul_i32 s{sB}, s{sB}, {opt.ampk}')
            I(f's_min_u32 s{sB}, s{sB}, 100000')
            I(f's_add_u32 s{sB}, s{sB}, 5000')
            L('L2_amp')
            I('s_memrealtime s[100:101]')
            I('s_waitcnt lgkmcnt(0)')
            I(f's_sub_u32 s100, s100, s{sA}')
            I(f's_cmp_lt_u32 s100, s{sB}')
            I('s_cbranch_scc1 L2_amp')
    L('L2_end')
    I('s_endpgm')

emit1(NAME, gen, 256, 512, K2_LDS, 256, 102)
```

```python
from common import *
parse(dict(stamps=0, nt=1, a0=3, a1=2, a2=1, a3=1, a4=2, s1=0, s2=0, split=12, lpb=1, late=1, la=0, lb=392, dyn=1, prio=1, xpf=1, s0b=13, arb=6, x1=99, x2=7, pob=9, u=6, s0c=0, slp=2, dl=0, u2=0, u3=0, pace=0, sx=0, sy=0, sz=0, offl=0, rot=1, ord=0, iw=255, spread=1, epi=1, k0e=0, pfs=7, xfl=0, bw=1024, exp=0, ofl=1, dbg=0, amp=0, ampk=4, tfirst=0, nodbgst=0))
NAME = 'standalone__tensor_product_equiv_mace__graph_kernel'
CH = 3136
NB = 98
RCAP = 3520
CAPX = 3640
WS_EA = 0
WS_MO = WS_EA + 256 * CH * 32
WS_OFF = WS_MO + 256 * CH * 12
WS_SYNC = WS_OFF + 524288
SPLIT = opt.split * opt.bw
BM = -(-(1 << 24) // opt.bw)
assert all((t * BM >> 24) == t // opt.bw and t // opt.bw < 32 for t in range(N))
SPIN = 1 << 20
L_RING = RCAP * 32
L_SH = L_RING
L_KI = L_SH + CAPX * 8
L_SLOT = L_KI + CAPX * 4
L_CNT = L_SLOT + 3648
L_NC = L_CNT + 1024
L_ST = L_NC + 512
L_NS = L_ST + 1024
L_WT = L_NS + 640
K2_LDS = max(L_RING + 49152, L_WT + 32)
assert K2_LDS <= 163840
NULLKI = 0x7fff
DUMMY = 16 * 4
RSMALL = 496
TP = 144
TC = 80
L_GI = L_SH
L_WO = L_GI + 3584 * 4
L_WR = L_WO + 64 * TP
L_CG = L_WR + 16 * TP
assert L_CG + 128 <= L_KI

L_MI = L_RING
L_INV = L_MI + CH * 12
L_HIST = L_INV + CH * 2
assert L_HIST + 4096 <= K2_LDS

def gen():
    nt = ' nt' if opt.nt else ''
    if opt.tfirst: I('s_memrealtime s[94:95]')
    I('s_cmp_ge_u32 s2, 0x100')
    I('s_cbranch_scc1 L2_end')
    I('s_load_dwordx16 s[4:19], s[0:1], 0')
    I('s_load_dwordx4 s[20:23], s[0:1], 64')
    I('s_load_dwordx2 s[24:25], s[0:1], 80')
    vPRE, vGL, vLS, vK, vIC = 1, 2, 3, 4, 5
    vACC = 8
    vBE, vBO, vCG, vA1, vA2, vWA = 76, 80, 84, 92, 96, 100
    vKQ, vSQ, vIQ, vSL = 132, 148, 164, 236
    vRD, vAD, vGT, vNUL = 182, 185, 186, 187
    vEAA = vGT
    vDT, vRW, vAE, vB = 188, 196, 228, 240
    vGA = 242
    vME, vCL, vRK, vT = 132, 160, 188, 196
    vLANE = 167
    VST = 6
    vLEN, vG0 = vT + 40, vT + 41
    vDST, vSRC, vSH, vBK, vCON, vMO, vIA = 132, 139, 146, 160, 168, 8, 240
    vED, vSO, vPF2, vEO, vPF1, vOFA, vSY = 8, 60, 61, 62, 63, 64, 65
    Q0, Q1, Q2, Q3, Q4, Q5, Q6 = 28, 32, 36, 40, 44, 48, 52
    sMO, sEAO, sOUT, sX, sEAS, sOFF, sSYN = Q0, Q1, Q2, Q3, Q4, Q5, Q6
    sVM = 6
    sBK, sW = 26, 27
    sTOT, sR0, sCNT, sNB, sNBM, sI, sRC, sXSZ = 56, 57, 58, 59, 60, 61, 62, 63
    sM0, sM1 = 64, 66
    sSA0, sSB0, sSA1, sSB1 = 68, 69, 70, 71
    sRG = 72
    sLN, sKI, sSI = 76, 77, 78
    sT0, sPJ, sNP, sK0, sEB, sMG, sOF, sON = 79, 80, 81, 82, 83, 84, 85, 86
    sE0, sNE, sFIRST, sC, sD, sL7 = 87, 88, 89, 90, 91, 92
    sA, sB = 0, 1
    C('==== phase A: partition this workgroup\'s chunk of edges by (src phase, dst bucket)')
    I(f'v_lshlrev_b32 v{vT}, 2, v0')
    I(f'v_add_u32 v{vT+1}, {L_HIST}, v{vT}')
    I(f'v_mov_b32 v{vT+2}, 0')
    I(f'ds_write_b32 v{vT+1}, v{vT+2}')
    I(f'v_lshrrev_b32 v{vT+3}, 6, v0')
    I(f's_and_b32 s{sBK}, s2, 7')
    I(f's_lshl_b32 s{sBK}, s{sBK}, 5')
    I('s_lshr_b32 s3, s2, 3')
    I(f's_add_u32 s{sBK}, s{sBK}, s3')
    I(f'v_readfirstlane_b32 s{sW}, v{vT+3}')
    I(f's_mul_i32 s{sE0}, s{sBK}, {CH}')
    I(f's_sub_u32 s{sNE}, {E}, s{sE0}')
    I(f's_min_u32 s{sNE}, s{sNE}, {CH}')
    for i in range(1, 4): I(f'v_add_u32 v{vT+3+i}, {4096*i}, v{vT}')
    I(f'v_lshlrev_b32 v{vT+8}, 3, v0')
    I(f'v_lshlrev_b32 v{vEO}, 4, v0')
    I(f'v_and_b32 v{vLANE}, 63, v0')
    I(f's_lshl_b32 s{sC}, s{sE0}, 2'); I(f's_lshl_b32 s{sD}, s{sNE}, 2')
    I(f's_lshl_b32 s{sEB}, s{sW}, 10')
    I('s_waitcnt lgkmcnt(0)')
    srd(Q0, 8, off_s=sC, size_s=sD)
    for m in range(7):
        I(f'buffer_load_dword v{vDST+m}, v{vT+3+(m>>1) if m > 1 else vT}, {sr(Q0,4)}, 0 offen offset:{2048*(m&1)}{nt}')
    srd(Q1, 6, off_s=sC, size_s=sD)
    for m in range(7):
        I(f'buffer_load_dword v{vSRC+m}, v{vT+3+(m>>1) if m > 1 else vT}, {sr(Q1,4)}, 0 offen offset:{2048*(m&1)}{nt}')
    stamp_init(1, VST, vGT, 24); stamp(0, VST)
    srd(sSYN, 24, off_imm=WS_SYNC, size=32768)
    C('workgroup 255 (the short chunk) clears the hand-off counters, then raises the flag in d_debug')
    I(f's_xor_b32 s{sA}, s2, {opt.iw}')
    I(f's_or_b32 s{sA}, s{sA}, s{sW}')
    I('s_cbranch_scc1 L1_noinit')
    srd(Q2, 22, size=256)
    I(f'v_lshlrev_b32 v{vT+9}, 8, v0')
    I(f'buffer_store_dword v{vT+2}, v{vT+9}, {sr(sSYN,4)}, 0 offen sc1')
    I(f'v_add_u32 v{vT+10}, 16384, v{vT+9}')
    I(f'buffer_store_dword v{vT+2}, v{vT+10}, {sr(sSYN,4)}, 0 offen sc1')
    I(f'v_mov_b32 v{vT+10}, 1')
    I('s_waitcnt vmcnt(0)')
    I(f'buffer_store_dword v{vT+10}, v{vT+9}, {sr(Q2,4)}, 0 offen sc1')
    L('L1_noinit')
    I('s_barrier')
    I(f's_lshl_b32 s{sC}, s{sE0}, 3'); I(f's_lshl_b32 s{sD}, s{sNE}, 3')
    srd(Q2, 10, off_s=sC, size_s=sD)
    for m in range(7):
        I(f'buffer_load_dwordx2 {vr(vSH+2*m,2)}, v{vT+8}, {sr(Q2,4)}, 0 offen{nt}')
        if m < 6: I(f'v_add_u32 v{vT+8}, 4096, v{vT+8}')
    srd(Q1, 18, size=8192)
    I(f'buffer_load_dwordx4 {vr(vCON,4)}, v{vEO}, {sr(Q1,4)}, 0 offen')
    srd(Q1, 16, size=2048)
    I(f'buffer_load_dwordx4 {vr(vCON+4,4)}, v{vEO}, {sr(Q1,4)}, 0 offen')
    srd(Q1, 14, size=128)
    I(f'buffer_load_dwordx4 {vr(vCON+8,4)}, v{vEO}, {sr(Q1,4)}, 0 offen')
    I(f's_lshl_b32 s{sC}, s{sE0}, 5'); I(f's_lshl_b32 s{sD}, s{sNE}, 5')
    srd(Q3, 12, off_s=sC, size_s=sD)
    nin = [0]
    def ea_in(k):
        for _ in range(k):
            j = nin[0]
            if j >= 13: return
            I(f's_add_u32 m0, s{sEB}, {8192*j}')
            if j: I(f'v_add_u32 v{vEO}, 8192, v{vEO}')
            else: I('s_nop 0')
            I(f'buffer_load_dwordx4 v{vEO}, {sr(Q3,4)}, 0 offen{nt} lds')
            nin[0] += 1
    ea_in(opt.a0)
    srd(sEAS, 24, off_s=sC, off_imm=WS_EA, size_s=sD)
    I(f's_mul_i32 s{sC}, s{sE0}, 12'); I(f's_mul_i32 s{sD}, s{sNE}, 12')
    srd(Q0, 24, off_s=sC, off_imm=WS_MO, size_s=sD)
    srd(sOFF, 24, off_imm=WS_OFF, size=524288)
    srd(Q2, 22, size=256)
    for m in range(7):
        I(f'v_add_u32 v{vT+10}, {512*m}, v0')
        I(f'v_cmp_gt_u32 {sr(sVM+2*m,2)}, s{sNE}, v{vT+10}')
    I(f'v_mov_b32 v{vT+9}, 1')
    I(f's_mov_b32 s{sC}, {SPLIT}')
    I(f's_mov_b32 s{sD}, {-32*NB if opt.rot else 0}')
    vBN = vT + 20
    I(f'v_mov_b32 v{vT+12}, {L_HIST}')
    I(f'v_mov_b32 v{vT+13}, {L_HIST+1024}')
    I(f's_waitcnt vmcnt({10+nin[0]})')
    for m in range(7):
        I(f'v_mul_u32_u24 v{vBK+m}, 42800, v{vDST+m}')
        I(f'v_lshrrev_b32 v{vT+10}, 27, v{vBK+m}')
        I(f'v_mad_i32_i24 v{vT+10}, v{vT+10}, s{sD}, v{vSRC+m}')
        I(f'v_add_u32 v{vT+11}, {N}, v{vT+10}')
        I(f'v_min_u32 v{vBN+m}, v{vT+10}, v{vT+11}')
        I(f'v_cmp_le_u32 {sr(sA,2)}, s{sC}, v{vBN+m}')
        I(f'v_lshrrev_b32 v{vBK+m}, 22, v{vBK+m}')
        I(f'v_mul_u32_u24 v{vT+10}, {NB}, v{vBK+m}')
        I(f'v_sub_u32 v{vDST+m}, v{vDST+m}, v{vT+10}')
        I(f'v_cndmask_b32 v{vT+11}, v{vT+12}, v{vT+13}, {sr(sA,2)}')
        I(f'v_lshl_add_u32 v{vBK+m}, v{vBK+m}, 2, v{vT+11}')
        I(f's_mov_b64 exec, {sr(sVM+2*m,2)}')
        I(f'ds_add_rtn_u32 v{vRK+m}, v{vBK+m}, v{vT+9}')
        I('s_mov_b64 exec, -1')
    ea_in(opt.a1)
    C('key = bin<<27 | static wave<<24 | src<<9 | dlocal<<2')
    for m in range(7):
        I(f'v_mul_u32_u24 v{vT+11}, 5350, v{vDST+m}')
        I(f'v_and_b32 v{vT+11}, 0x70000, v{vT+11}')
        if opt.bw == 1024: I(f'v_lshrrev_b32 v{vBN+m}, 10, v{vBN+m}')
        else:
            I(f'v_mul_u32_u24 v{vBN+m}, {BM}, v{vBN+m}')
            I(f'v_lshrrev_b32 v{vBN+m}, 24, v{vBN+m}')
        I(f'v_lshl_or_b32 v{vT+11}, v{vBN+m}, 19, v{vT+11}')
        I(f'v_lshlrev_b32 v{vT+11}, 8, v{vT+11}')
        I(f'v_lshl_add_u32 v{vT+11}, v{vDST+m}, 2, v{vT+11}')
        I(f'v_lshl_add_u32 v{vSRC+m}, v{vSRC+m}, 9, v{vT+11}')
    I(f'v_lshlrev_b32 v{vT+16}, 4, v{vLANE}')
    I(f'v_add_u32 v{vT+16}, {L_HIST}, v{vT+16}')
    I('s_waitcnt lgkmcnt(0)')
    I('s_barrier')
    stamp(1, VST)
    C('every wave scans the histogram and writes the (identical) start table')
    cnt, st = vT + 28, vT + 20
    I(f'ds_read_b128 {vr(cnt,4)}, v{vT+16}')
    I(f'ds_read_b128 {vr(cnt+4,4)}, v{vT+16} offset:1024')
    I('s_waitcnt lgkmcnt(0)')
    for h in range(2):
        I(f'v_add_u32 v{st+4*h+1}, v{cnt+4*h}, v{cnt+4*h+1}')
        I(f'v_add_u32 v{st+4*h+2}, v{st+4*h+1}, v{cnt+4*h+2}')
        I(f'v_add_u32 v{vT+12+h}, v{st+4*h+2}, v{cnt+4*h+3}')
    I(f'v_lshl_add_u32 v{vT+17}, v{vT+13}, 16, v{vT+12}')
    I(f'v_mov_b32 v{vT+18}, v{vT+17}')
    wave_scan(vT + 18)
    I(f'v_sub_u32 v{vT+17}, v{vT+18}, v{vT+17}')
    I(f'v_readlane_b32 s{sA}, v{vT+18}, 63')
    I(f'v_and_b32 v{st}, 0xffff, v{vT+17}')
    I(f'v_lshrrev_b32 v{st+4}, 16, v{vT+17}')
    I(f's_and_b32 s{sA}, s{sA}, 0xffff')
    I(f'v_add_u32 v{st+4}, s{sA}, v{st+4}')
    for h in range(2):
        I(f'v_add_u32 v{st+4*h+3}, v{st+4*h}, v{st+4*h+2}')
        I(f'v_add_u32 v{st+4*h+2}, v{st+4*h}, v{st+4*h+1}')
        I(f'v_add_u32 v{st+4*h+1}, v{st+4*h}, v{cnt+4*h}')
        I(f'ds_write_b128 v{vT+16}, {vr(st+4*h,4)} offset:{2048+1024*h}')
    for m in range(7):
        I(f'ds_read_b32 v{vBK+m}, v{vBK+m} offset:2048')
    ea_in(opt.a2)
    I(f's_mov_b32 s{sC}, {L_MI}')
    I(f's_mov_b32 s{sD}, {L_INV}')
    I(f's_waitcnt vmcnt({3+nin[0]}) lgkmcnt(0)')
    for m in range(7):
        I(f'v_add_u32 v{vRK+m}, v{vRK+m}, v{vBK+m}')
        I(f'v_mad_u32_u24 v{vBK+m}, v{vRK+m}, 12, s{sC}')
        I(f'v_lshl_add_u32 v{vRK+m}, v{vRK+m}, 1, s{sD}')
        I(f'v_add_u32 v{vDST+m}, {512*m}, v0')
    for m in range(7):
        I(f's_mov_b64 exec, {sr(sVM+2*m,2)}')
        I(f'ds_write_b16 v{vRK+m}, v{vDST+m}')
        I(f'ds_write2_b32 v{vBK+m}, v{vSRC+m}, v{vSH+2*m} offset0:0 offset1:1')
        I(f'ds_write_b32 v{vBK+m}, v{vSH+2*m+1} offset:8')
    I('s_mov_b64 exec, -1')
    ea_in(opt.a3)
    I(f'v_lshlrev_b32 v{vSO}, 4, v0')
    I(f'v_add_u32 v{vT+10}, {L_MI}, v{vSO}')
    I(f'v_and_b32 v{vT+8}, 0x1fe, v0')
    I(f'v_add_u32 v{vT+8}, {L_INV}, v{vT+8}')
    I('s_waitcnt lgkmcnt(0)')
    I('s_barrier')
    stamp(2, VST)
    C('meta image and run table -> global')
    for j in range(5):
        I(f'ds_read_b128 {vr(vMO+4*j,4)}, v{vT+10} offset:{8192*j}')
    for j in range(5):
        I(f's_waitcnt lgkmcnt({4-j})')
        I(f'buffer_store_dwordx4 {vr(vMO+4*j,4)}, v{vSO}, {sr(Q0,4)}, 0 offen sc1')
        if j < 4: I(f'v_add_u32 v{vSO}, 8192, v{vSO}')
    for j in range(13):
        I(f'ds_read_u16 v{vIA+j}, v{vT+8} offset:{512*j}')
    I(f's_cmp_lg_u32 s{sW}, 7')
    I('s_cbranch_scc1 L1_nooff')
    C('OFF[bucket/4][chunk][phase][bucket%4] = start | len<<16')
    I(f's_lshl_b32 s{sA}, s{sBK}, {11 if opt.offl else 5}')
    I(f'v_lshlrev_b32 v{vT+17}, {4 if opt.offl else 13}, v{vLANE}')
    I(f'v_add_u32 v{vT+17}, s{sA}, v{vT+17}')
    for i in range(8):
        I(f'v_lshl_add_u32 v{cnt+i}, v{cnt+i}, 16, v{st+i}')
    for h in range(2):
        I(f'buffer_store_dwordx4 {vr(cnt+4*h,4)}, v{vT+17}, {sr(sOFF,4)}, 0 offen offset:{(1024 if opt.offl else 16)*h} sc1')
    L('L1_nooff')
    I(f'v_mov_b32 v{vT+2}, 0')
    I(f's_cmp_lg_u32 s{sW}, 0')
    I('s_cbranch_scc1 L1_noflag')
    I(f'buffer_load_dword v{vT+3}, v{vT+2}, {sr(Q2,4)}, 0 offen sc1')
    L('L1_noflag')
    n0 = nin[0]
    ea_in(opt.a4)
    n4 = nin[0] - n0
    I(f'v_and_b32 v{vT+9}, 1, v0')
    I(f'v_lshlrev_b32 v{vT+9}, 4, v{vT+9}')
    I('s_waitcnt lgkmcnt(0)')
    for j in range(13):
        I(f'v_lshl_add_u32 v{vIA+j}, v{vIA+j}, 5, v{vT+9}')
    I(f's_waitcnt vmcnt({n4})')
    I('s_barrier')
    stamp(3, VST)
    def arrive(tag, base):
        I(f's_bfe_u32 s{sA}, s2, 0x30003')
        I(f's_lshl_b32 s{sA}, s{sA}, 8')
        I(f's_add_u32 s{sA}, s{sA}, {base}')
        I(f'v_lshl_add_u32 v{vGT}, v0, 11, s{sA}')
        I(f'v_mov_b32 v{vAD}, 1')
        I('s_mov_b64 exec, 0xff')
        I(f'buffer_atomic_add v{vAD}, v{vGT}, {sr(sSYN,4)}, 0 offen sc1')
        I('s_mov_b64 exec, -1')
    def poll(tag, base):
        I(f's_and_b32 s{sA}, s2, 7')
        I(f's_lshl_b32 s{sA}, s{sA}, 11')
        I(f's_add_u32 s{sA}, s{sA}, {base}')
        I(f'v_and_b32 v{vGT}, 7, v0')
        I(f'v_lshl_add_u32 v{vGT}, v{vGT}, 8, s{sA}')
        I(f's_mov_b32 s{sB}, 0')
        L(f'L_poll{tag}')
        I(f'buffer_load_dword v{vAD}, v{vGT}, {sr(sSYN,4)}, 0 offen sc1')
        I(f's_add_u32 s{sB}, s{sB}, 1')
        I('s_waitcnt vmcnt(0)')
        I(f'v_cmp_ne_u32 vcc, 32, v{vAD}')
        I('s_cmp_eq_u64 vcc, 0')
        I(f's_cbranch_scc1 L_polled{tag}')
        I(f's_sleep {opt.slp}')
        I(f's_cmp_lt_u32 s{sB}, {SPIN}')
        I(f's_cbranch_scc1 L_poll{tag}')
        L(f'L_polled{tag}')
    I(f's_cmp_lg_u32 s{sW}, 0')
    I('s_cbranch_scc1 L1_arrived')
    I(f's_mov_b32 s{sB}, 0')
    L('L1_flag')
    I(f'v_readfirstlane_b32 s{sA}, v{vT+3}')
    I(f's_cmp_eq_u32 s{sA}, 1')
    I('s_cbranch_scc1 L1_flagok')
    I(f'buffer_load_dword v{vT+3}, v{vT+2}, {sr(Q2,4)}, 0 offen sc1')
    I(f's_add_u32 s{sB}, s{sB}, 1')
    I('s_waitcnt vmcnt(0)')
    I(f's_cmp_lt_u32 s{sB}, {SPIN}')
    I('s_cbranch_scc1 L1_flag')
    L('L1_flagok')
    arrive('A', 0)
    L('L1_arrived')
    ea_in(13)
    def prefill():
        C('prefill KI with null entries, SLOT with the dummy slot, zero CNT')
        for i in range(4): I(f'v_mov_b32 v{vT+4+i}, 0x{NULLKI:x}')
        I(f'v_lshlrev_b32 v{vT}, 4, v0')
        I(f'v_add_u32 v{vT}, {L_KI}, v{vT}')
        I(f'ds_write_b128 v{vT}, {vr(vT+4,4)}')
        I(f'v_cmp_gt_u32 vcc, {(CAPX*4-8192)//16}, v0')
        I('s_and_b64 exec, exec, vcc')
        I(f'ds_write_b128 v{vT}, {vr(vT+4,4)} offset:8192')
        I('s_mov_b64 exec, -1')
        I(f'v_mov_b32 v{vT+8}, 0x{DUMMY*0x01010101:x}')
        I(f'v_cmp_gt_u32 vcc, {3648//16}, v0')
        I(f'v_add_u32 v{vT}, {L_SLOT-L_KI}, v{vT}')
        I('s_nop 0')
        I(f'v_cndmask_b32 v{vT+8}, 0, v{vT+8}, vcc')
        for i in range(1, 4): I(f'v_mov_b32 v{vT+8+i}, v{vT+8}')
        I(f'v_cmp_gt_u32 vcc, {3648//16+96}, v0')
        I('s_and_b64 exec, exec, vcc')
        I(f'ds_write_b128 v{vT}, {vr(vT+8,4)}')
        I('s_mov_b64 exec, -1')
    prefill()
    C('stage the constants')
    I(f'v_lshrrev_b32 v{vT+12}, 3, v0')
    I(f'v_mul_u32_u24 v{vT+12}, {TP}, v{vT+12}')
    I(f'v_and_b32 v{vT+3}, 7, v0')
    I(f'v_lshl_add_u32 v{vT+12}, v{vT+3}, 4, v{vT+12}')
    I(f'v_add_u32 v{vT+12}, {L_WO}, v{vT+12}')
    I(f's_mov_b32 s{sA}, 0x05040100')
    I(f's_mov_b32 s{sB}, 0x07060302')
    I(f'v_perm_b32 v{vT+4}, v{vCON+1}, v{vCON}, s{sA}')
    I(f'v_perm_b32 v{vT+5}, v{vCON+3}, v{vCON+2}, s{sA}')
    I(f'v_perm_b32 v{vT+6}, v{vCON+1}, v{vCON}, s{sB}')
    I(f'v_perm_b32 v{vT+7}, v{vCON+3}, v{vCON+2}, s{sB}')
    I(f'ds_write_b128 v{vT+12}, {vr(vT+4,4)}')
    I('v_cmp_gt_u32 vcc, 0x80, v0')
    I('s_and_b64 exec, exec, vcc')
    I(f'ds_write_b128 v{vT+12}, {vr(vCON+4,4)} offset:{L_WR-L_WO}')
    I('v_cmp_gt_u32 vcc, 8, v0')
    I('s_and_b64 exec, exec, vcc')
    I(f'ds_write_b128 v{vT+12}, {vr(vCON+8,4)} offset:{L_CG-L_WO}')
    I('s_mov_b64 exec, -1')
    srd(sMO, 24, off_imm=WS_MO, size=E * 12)
    srd(sEAO, 24, off_imm=WS_EA, size=E * 32)
    srd(sOUT, 20, size=N * 512)
    srd(sX, 4, size=N * 512)
    I(f's_mov_b32 s{sXSZ}, 0x{0 if opt.exp == 1 else N*512:x}')
    I(f's_mov_b32 s{sRC}, {RCAP}')
    I(f's_mov_b32 s{sR0}, 0')
    I(f's_mov_b32 s{sFIRST}, 1')
    C('run table address, x prefetch offsets')
    I(f'v_and_b32 v{vT+1}, 0xff, v0')
    I(f's_lshr_b32 s{sA}, s{sBK}, 2')
    I(f's_lshl_b32 s{sA}, s{sA}, 11')
    I(f's_and_b32 s{sB}, s{sBK}, 3')
    I(f's_add_u32 s{sA}, s{sA}, s{sB}')
    I(f's_lshl_b32 s{sA}, s{sA}, 2')
    I(f'v_mul_u32_u24 v{vG0}, {CH}, v{vT+1}')
    if opt.offl: I(f's_lshl_b32 s{sA}, s{sBK}, 2')
    I(f'v_lshl_add_u32 v{vOFA}, v{vT+1}, {11 if opt.offl else 5}, s{sA}')
    I(f'v_lshrrev_b32 v{vT+3}, 8, v0')
    I(f'v_lshl_add_u32 v{vOFA}, v{vT+3}, {10 if opt.offl else 4}, v{vOFA}')
    LA = opt.la; LB = opt.lb
    I(f'v_mov_b32 v{vT+14}, 0x80000000')
    if opt.rot:
        I(f's_lshr_b32 s{sC}, s{sBK}, 5')
        I(f's_mul_i32 s{sC}, s{sC}, {32*NB*512}')
        I(f's_and_b32 s{sD}, s{sBK}, 31')
        NG = 32
    else:
        I(f's_mov_b32 s{sC}, 0')
        I(f's_mov_b32 s{sD}, s{sBK}')
        NG = 256
    I(f's_mul_i32 s{sA}, s{sD}, {LB<<opt.pfs}')
    I(f's_add_u32 s{sA}, s{sA}, {NG*LA*128}')
    I(f's_add_u32 s{sA}, s{sA}, s{sC}')
    I(f'v_sub_u32 v{vT+15}, 511, v0')
    I(f'v_cmp_gt_u32 vcc, {LB}, v{vT+15}')
    I(f'v_lshlrev_b32 v{vT+13}, {opt.pfs}, v{vT+15}')
    I(f'v_add_u32 v{vPF2}, s{sA}, v{vT+13}')
    I(f'v_cndmask_b32 v{vPF2}, v{vT+14}, v{vPF2}, vcc')
    I(f'v_cmp_gt_u32 vcc, {LA}, v{vT+15}')
    I(f's_mul_i32 s{sA}, s{sD}, {LA*128}')
    I(f's_add_u32 s{sA}, s{sA}, s{sC}')
    I(f'v_add_u32 v{vPF1}, s{sA}, v{vT+13}')
    I(f'v_cndmask_b32 v{vPF1}, v{vT+14}, v{vPF1}, vcc')
    nst = [0]
    def ea_out(k, tag, lg=False):
        if k == 0: return
        if nst[0] >= 13: return
        I(f's_cmp_lg_u32 s{sFIRST}, 1')
        I(f's_cbranch_scc1 L2_noout{tag}')
        I(f'v_lshlrev_b32 v{vSO}, 4, v0')
        first = True
        for _ in range(k):
            j = nst[0]
            if j >= 13: break
            if j: I(f'v_add_u32 v{vSO}, {8192*j if first else 8192}, v{vSO}')
            first = False
            if lg: I(f's_waitcnt lgkmcnt({12-j})')
            if opt.pace and j >= opt.pace: I(f's_waitcnt vmcnt({opt.pace-1})')
            I(f'buffer_store_dwordx4 {vr(vED+4*j,4)}, v{vSO}, {sr(sEAS,4)}, 0 offen sc1')
            nst[0] += 1
        L(f'L2_noout{tag}')
    def xpf(at):
        for reg, pos in ((vPF1, opt.x1), (vPF2, opt.x2)):
            if opt.xpf and pos == at:
                C('pull a share of x towards the chip (one dword per line)')
                I(f's_cmp_eq_u32 s{sFIRST}, 0')
                I(f's_cbranch_scc1 L2_nopf{reg}')
                I(f'buffer_load_dword v{vNUL}, v{reg}, {sr(sX,4)}, 0 offen')
                L(f'L2_nopf{reg}')
    nea = [0]
    def early_static(k=None):
        for _ in range(opt.u if k is None else k):
            j = nea[0]; nea[0] += 1
            I(f's_add_u32 m0, s{sEB}, {8192*j}')
            I('s_nop 0')
            I(f'buffer_load_dwordx4 v{vGA+j}, {sr(sEAO,4)}, 0 offen sc1 lds')
    def bar_b(at):
        if opt.pob == at:
            assert opt.arb < at
            I(f's_cmp_eq_u32 s{sFIRST}, 0')
            I('s_cbranch_scc1 L_polledB')
            I(f's_cmp_lg_u32 s{sW}, 0')
            I('s_cbranch_scc1 L_polledB')
            poll('B', 16384)
        if opt.arb == at:
            assert nst[0] >= 13
            I(f's_waitcnt vmcnt({7 if at == 6 else 0}) lgkmcnt(0)')
        else:
            I('s_waitcnt lgkmcnt(0)')
        I('s_barrier')
        if at != 6: stamp(at, VST)
        if opt.pob == at and not (opt.dl and at == 9): early_static()
        if opt.arb == at:
            I(f's_cmp_lg_u32 s{sFIRST}, 1')
            I('s_cbranch_scc1 L2_arrivedB')
            I(f's_mov_b32 s{sFIRST}, 2')
            I(f's_cmp_lg_u32 s{sW}, 0')
            I('s_cbranch_scc1 L2_arrivedB')
            arrive('B', 16384)
            L('L2_arrivedB')
    xpf(99)
    I('s_waitcnt lgkmcnt(0)')
    I('s_barrier')
    C('constant operands and one-time setup')
    I(f'v_bfe_u32 v{vT}, v0, 5, 1')
    I(f'v_bfe_u32 v{vT+1}, v0, 2, 2')
    I(f'v_lshl_add_u32 v{vT}, v{vT}, 3, v{vT+1}')
    I(f'v_mul_u32_u24 v{vT}, {TP}, v{vT}')
    I(f'v_add_u32 v{vT}, {L_WO}, v{vT}')
    I(f'v_bfe_u32 v{vT+2}, v0, 4, 1')
    I(f'v_and_b32 v{vT+3}, 3, v0')
    I(f'v_lshl_add_u32 v{vT+4}, v{vT+2}, 5, v{vT}')
    I(f'v_lshl_add_u32 v{vT+4}, v{vT+3}, 3, v{vT+4}')
    I(f'v_lshl_add_u32 v{vT+5}, v{vT+2}, 6, v{vT}')
    I(f'v_lshl_add_u32 v{vT+5}, v{vT+3}, 4, v{vT+5}')
    I(f'v_lshlrev_b32 v{vT+1}, 3, v{vT+1}')
    I(f'v_add_u32 v{vT+1}, {L_CG}, v{vT+1}')
    for h in range(2):
        for i in range(2):
            I(f'ds_read_b64_tr_b16 {vr(vBE+4*h+2*i,2)}, v{vT+4} offset:{L_WR-L_WO+4*i*TP+64*h}')
    for u in range(4):
        I(f'ds_read_b64_tr_b16 {vr(vCG+2*u,2)}, v{vT+1} offset:{32*u}')
    for tile in range(2):
        I('s_waitcnt lgkmcnt(4)')
        for s in range(4):
            for i in range(2):
                I(f'ds_read_b64_tr_b16 {vr(vWA+16*tile+4*s+2*i,2)}, v{vT+5} offset:{(16*s+4*i)*TP+8*tile}')
    I(f's_mov_b32 s{sM0}, 0x0f0f0f0f'); I(f's_mov_b32 s{sM0+1}, 0x0f0f0f0f')
    I(f's_mov_b32 s{sM1}, 0xf0f0f0f0'); I(f's_mov_b32 s{sM1+1}, 0xf0f0f0f0')
    for r in range(8): I(f'v_mov_b32 v{vA1+r}, 0')
    I(f'v_and_b32 v{vLS}, 31, v0')
    I(f'v_lshlrev_b32 v{vLS}, 4, v{vLS}')
    C('swizzled lane offset inside a row, transposing-read address')
    I(f'v_bfe_u32 v{vT}, v0, 4, 1')
    I(f'v_lshlrev_b32 v{vT}, 6, v{vT}')
    I(f'v_xor_b32 v{vLS}, v{vT}, v{vLS}')
    I(f'v_bfe_u32 v{vT}, v0, 4, 2')
    I(f'v_and_b32 v{vT+3}, 3, v0')
    I(f'v_lshlrev_b32 v{vT+3}, 3, v{vT+3}')
    I(f'v_lshl_add_u32 v{vT}, v{vT}, 5, v{vT+3}')
    I(f'v_bfe_u32 v{vT+3}, v0, 3, 1')
    I(f'v_lshlrev_b32 v{vT+3}, 6, v{vT+3}')
    I(f'v_xor_b32 v{vT}, v{vT}, v{vT+3}')
    I(f'v_bfe_u32 v{vT+3}, v0, 2, 2')
    I(f'v_lshl_add_u32 v{vT}, v{vT+3}, 7, v{vT}')
    I(f's_mul_i32 s3, s{sW}, 6144')
    I(f's_add_u32 s3, s3, {L_RING}')
    for d in range(3):
        I(f's_add_u32 s{sRG+d}, s3, {2048*d}')
        I(f'v_add_u32 v{vRD+d}, s{sRG+d}, v{vT}')
    C('epilogue staging addresses')
    vTW, vTR = 180, 181
    I(f'v_mul_u32_u24 v{vTW}, {TC}, v{vLANE}')
    I(f'v_add_u32 v{vTW}, s3, v{vTW}')
    I(f'v_bfe_u32 v{vT}, v0, 5, 1')
    I(f'v_bfe_u32 v{vT+3}, v0, 2, 2')
    I(f'v_lshl_add_u32 v{vTR}, v{vT}, 3, v{vT+3}')
    I(f'v_mul_u32_u24 v{vTR}, {TC}, v{vTR}')
    I(f'v_bfe_u32 v{vT+3}, v0, 4, 1')
    I(f'v_lshl_add_u32 v{vTR}, v{vT+3}, 5, v{vTR}')
    I(f'v_and_b32 v{vT+3}, 3, v0')
    I(f'v_lshl_add_u32 v{vTR}, v{vT+3}, 3, v{vTR}')
    I(f'v_add_u32 v{vTR}, s3, v{vTR}')
    stamp(4, VST)
    I(f's_cmp_lg_u32 s{sW}, 0')
    I('s_cbranch_scc1 L_polledA')
    poll('A', 0)
    I(f's_waitcnt vmcnt({(opt.xpf and opt.x1 == 99)+(opt.xpf and opt.x2 == 99)}) lgkmcnt(0)')
    I('s_barrier')
    stamp(5, VST)
    C('==== phase B: every chunk has published its keys; this chunk\'s features are in LDS')
    F = vT + 16
    I(f'buffer_load_dword v{F}, v{vOFA}, {sr(sOFF,4)}, 0 offen sc1')
    for j in range(13):
        I(f'ds_read_b128 {vr(vED+4*j,4)}, v{vIA+j}')
    xpf(0)
    ea_out(opt.s0b, '0b', lg=True)
    I(f's_waitcnt vmcnt({nst[0]+(opt.xpf and opt.x1 == 0)+(opt.xpf and opt.x2 == 0)})')
    C('run lengths -> prefix')
    I(f'v_lshrrev_b32 v{vLEN}, 16, v{F}')
    I(f'v_and_b32 v{F}, 0xffff, v{F}')
    I(f'v_mov_b32 v{vT}, v{vLEN}')
    I(f'v_add_u32 v{vG0}, v{vG0}, v{F}')
    I(f'v_lshl_or_b32 v{vGL}, v{vLEN}, 20, v{vG0}')
    wave_scan(vT)
    I(f's_lshl_b32 s{sA}, s{sW}, 2')
    I(f's_add_u32 s{sA}, s{sA}, {L_WT}')
    I(f'v_mov_b32 v{vT+1}, s{sA}')
    I(f'v_sub_u32 v{vPRE}, v{vT}, v{vLEN}')
    I('s_mov_b32 exec_lo, 0')
    I('s_brev_b32 exec_hi, 1')
    I(f'ds_write_b32 v{vT+1}, v{vT}')
    I('s_mov_b64 exec, -1')
    I(f'v_and_b32 v{vT+1}, 7, v0')
    I(f'v_lshlrev_b32 v{vT+1}, 2, v{vT+1}')
    I(f'v_add_u32 v{vT+1}, {L_WT}, v{vT+1}')
    I('s_waitcnt lgkmcnt(0)')
    I('s_barrier')
    I(f'ds_read_b32 v{vT+2}, v{vT+1}')
    I('s_waitcnt lgkmcnt(0)')
    I(f'v_mov_b32 v{vT+3}, v{vT+2}')
    for sh in (1, 2, 4):
        I('s_nop 1')
        I(f'v_add_u32_dpp v{vT+3}, v{vT+3}, v{vT+3} row_shr:{sh} row_mask:0xf bank_mask:0xf')
    I(f'v_sub_u32 v{vT+2}, v{vT+3}, v{vT+2}')
    I(f'v_readlane_b32 s{sTOT}, v{vT+3}, 7')
    I(f'v_readlane_b32 s{sA}, v{vT+2}, s{sW}')
    I(f'v_readlane_b32 s{sT0}, v{vT+3}, 3')
    I('s_nop 0')
    I(f'v_add_u32 v{vPRE}, s{sA}, v{vPRE}')
    ea_out(opt.sx, 'x')
    L('L2_round')
    I(f's_sub_u32 s{sCNT}, s{sTOT}, s{sR0}')
    I(f's_min_u32 s{sCNT}, s{sCNT}, s{sRC}')
    I(f'v_and_b32 v{vLANE}, 63, v0')
    I(f'v_lshrrev_b32 v{vLEN}, 20, v{vGL}')
    I(f'v_and_b32 v{vG0}, 0xfffff, v{vGL}')
    C('expand: GIDX[pre+k-r0] = g0+k for k in window')
    I(f'v_sub_u32 v{vT+1}, s{sR0}, v{vPRE}')
    I(f'v_max_i32 v{vT+2}, 0, v{vT+1}')
    I(f'v_add_u32 v{vT+3}, s{sRC}, v{vT+1}')
    I(f'v_min_i32 v{vT+3}, v{vT+3}, v{vLEN}')
    I(f'v_sub_u32 v{vT+4}, v{vT+2}, v{vT+1}')
    I(f'v_lshlrev_b32 v{vT+4}, 2, v{vT+4}')
    I(f'v_add_u32 v{vT+4}, {L_GI}, v{vT+4}')
    I(f'v_add_u32 v{vT+5}, v{vG0}, v{vT+2}')
    I(f'v_add_u32 v{vT+3}, v{vG0}, v{vT+3}')
    L('L2_exp')
    for j in range(4):
        I(f'v_cmpx_lt_i32 vcc, v{vT+5}, v{vT+3}')
        I(f'ds_write_b32 v{vT+4}, v{vT+5} offset:{4*j}')
        I(f'v_add_u32 v{vT+5}, 1, v{vT+5}')
    I(f'v_add_u32 v{vT+4}, 16, v{vT+4}')
    I('s_cbranch_execnz L2_exp')
    I('s_mov_b64 exec, -1')
    ea_out(opt.sy, 'y')
    C('slots past the end of the window get an out-of-range record number')
    I(f'v_lshlrev_b32 v{vT}, 2, v0')
    I(f'v_add_u32 v{vT}, {L_GI}, v{vT}')
    I(f'v_mov_b32 v{vT+2}, 0x1000000')
    for m in range(7):
        I(f'v_add_u32 v{vT+1}, {512*m}, v0')
        I(f'v_cmp_gt_u32 {sr(sVM+2*m,2)}, s{sCNT}, v{vT+1}')
    for m in range(7):
        I(f's_not_b64 exec, {sr(sVM+2*m,2)}')
        I(f's_cbranch_scc0 L2_nomark{m}')
        I(f'ds_write_b32 v{vT}, v{vT+2} offset:{2048*m}')
        L(f'L2_nomark{m}')
    I('s_mov_b64 exec, -1')
    I(f'v_lshrrev_b32 v{vT+3}, 1, v0')
    I(f'v_lshlrev_b32 v{vT+3}, 2, v{vT+3}')
    I(f'v_add_u32 v{vT+3}, {L_GI}, v{vT+3}')
    I(f'v_and_b32 v{vT+4}, 1, v0')
    I(f'v_lshlrev_b32 v{vT+4}, 4, v{vT+4}')
    I('s_waitcnt lgkmcnt(0)')
    I('s_barrier')
    stamp(6, VST)
    C('record loads')
    G = vT + 6
    for m in range(7):
        I(f'ds_read_b32 v{G+m}, v{vT} offset:{2048*m}')
    for j in range(0, 14, 2):
        I(f'ds_read2st64_b32 {vr(vGA+j,2)}, v{vT+3} offset0:{4*j} offset1:{4*j+4}')
    ea_out(opt.sz, 'z')
    for m in range(7):
        I(f's_waitcnt lgkmcnt({13-m})')
        I(f'v_lshlrev_b32 v{vT+1}, 2, v{G+m}')
        I(f'v_lshl_add_u32 v{vT+1}, v{G+m}, 3, v{vT+1}')
        I(f'buffer_load_dwordx3 {vr(vME+4*m,3)}, v{vT+1}, {sr(sMO,4)}, 0 offen sc1')
    I('s_waitcnt lgkmcnt(0)')
    for j in range(14):
        I(f'v_lshl_add_u32 v{vGA+j}, v{vGA+j}, 5, v{vT+4}')
    n0 = nst[0]
    if opt.s0c:
        I(f's_cmp_eq_u32 s{sFIRST}, 1')
        I('s_cbranch_scc1 L2_more')
        I('s_waitcnt vmcnt(0)')
        L('L2_more')
        ea_out(opt.s0c, '0c')
    nc = nst[0] - n0
    I(f'v_mov_b32 v{vGT}, 0x80000000')
    if opt.arb == 6: bar_b(6)
    for reg, pos in ((vPF1, opt.x1), (vPF2, opt.x2)):
        if opt.xpf and pos == 6:
            C('pull a share of x towards the chip (one dword per line; later rounds: a harmless range-checked read)')
            I(f'buffer_load_dword v{vNUL}, v{reg}, {sr(sX,4)}, 0 offen')
            nc += 1
    C('even split of the window: wave(q) = q*M >> 20 with M = 2^23/(count+1), q = position in node order')
    I(f's_add_u32 s{sA}, s{sCNT}, 1')
    I(f'v_cvt_f32_u32 v{vT}, s{sA}')
    I(f'v_rcp_f32 v{vT}, v{vT}')
    I(f'v_mov_b32 v{vT+2}, 1')
    I(f'v_mul_f32 v{vT}, 0x4b000000, v{vT}')
    I(f'v_cvt_u32_f32 v{vT}, v{vT}')
    I(f'v_lshlrev_b32 v{vT+1}, 3, v{vLANE}')
    I(f'v_readfirstlane_b32 s{sMG}, v{vT}')
    I(f'v_add_u32 v{vT+1}, {L_NC}, v{vT+1}')
    C('lane parts of the read-back addresses')
    vRA = vT + 24
    I(f'v_bfe_u32 v{vT+3}, v0, 3, 1')
    I(f'v_bfe_u32 v{vT+4}, v0, 5, 1')
    I(f'v_lshl_add_u32 v{vT+3}, v{vT+3}, 1, v{vT+4}')
    I(f'v_and_b32 v{vT+4}, 7, v0')
    I(f'v_add_u32 v{vRA+4}, -1, v{vT+4}')
    if opt.spread: I(f'v_cmp_gt_u32 {sr(sL7,2)}, 4, v{vRA+4}')
    else: I(f'v_cmp_eq_u32 {sr(sL7,2)}, 7, v{vT+4}')
    I(f'v_lshl_add_u32 v{vT+3}, v{vT+3}, 3, v{vT+4}')
    I(f'v_lshlrev_b32 v{vRA}, 2, v{vT+3}')
    I(f'v_and_b32 v{vT+4}, 3, v0')
    I(f'v_lshrrev_b32 v{vT+3}, 2, v{vLANE}')
    I(f'v_lshl_add_u32 v{vT+3}, v{vT+4}, 4, v{vT+3}')
    I(f'v_lshlrev_b32 v{vRA+1}, 3, v{vT+3}')
    I(f'v_lshlrev_b32 v{vRA+2}, 4, v{vLANE}')
    I(f'v_bfe_u32 v{vT+3}, v0, 3, 2')
    I(f'v_lshl_add_u32 v{vT+3}, v{vT+3}, 2, v{vT+4}')
    I(f'v_lshlrev_b32 v{vRA+3}, 2, v{vT+3}')
    I(f'v_lshlrev_b32 v{vT}, 4, v{vLANE}')
    I(f'v_add_u32 v{vT}, {L_CNT}, v{vT}')
    I(f'v_lshlrev_b32 v{vT+4}, 17, v0')
    I(f's_mov_b32 s{sC}, {L_CNT}')
    C('rank inside the destination node')
    vBA_ = vT + 30
    for m in range(7):
        I(f's_waitcnt vmcnt({6-m+nc})')
        I(f'v_and_b32 v{vCL+m}, 0x1fc, v{vME+4*m}')
        I(f'v_add_u32 v{vCL+m}, {L_NC}, v{vCL+m}')
        I(f's_mov_b64 exec, {sr(sVM+2*m,2)}')
        I(f'ds_add_rtn_u32 v{vRK+m}, v{vCL+m}, v{vT+2}')
        I('s_mov_b64 exec, -1')
        I(f'v_bfe_u32 v{vT+3}, v{vME+4*m}, 9, {15 if opt.exp not in (2, 3) else (11 if opt.exp == 2 else 4)}')
        I(f'v_or_b32 v{vME+4*m+3}, v{vT+3}, v{vT+4}')
        I(f'v_lshrrev_b32 v{vT+3}, 27, v{vME+4*m}')
        I(f'v_lshl_add_u32 v{vBA_+m}, v{vT+3}, 2, s{sC}')
        I(f'v_and_b32 v{vME+4*m}, 0x0700003c, v{vME+4*m}')
        if m < 6: I(f'v_add_u32 v{vT+4}, {512<<17}, v{vT+4}')
    ea_out(opt.s1, 1)
    bar_b(7)
    C('node scan (every wave)')
    c0, s0, sn, sf = vT + 4, vT + 6, vT + 8, vT + 10
    I(f'ds_read_b64 {vr(c0,2)}, v{vT+1}')
    xpf(7)
    for m in range(7):
        I(f'v_mul_u32_u24 v{vRK+m}, s{sMG}, v{vRK+m}')
    I('s_waitcnt lgkmcnt(0)')
    I(f'v_add_u32 v{vT+3}, v{c0}, v{c0+1}')
    I(f'v_mov_b32 v{sn}, v{vT+3}')
    wave_scan(sn)
    I(f'v_sub_u32 v{s0}, v{sn}, v{vT+3}')
    I(f'v_add_u32 v{s0+1}, v{s0}, v{c0}')
    C('publish start*M, so that wave = (start*M + rank*M) >> 20')
    for r in (s0, s0 + 1, sn): I(f'v_mul_u32_u24 v{r}, s{sMG}, v{r}')
    I(f'ds_write_b64 v{vT+1}, {vr(s0,2)} offset:{L_NS-L_NC}')
    I(f'v_add_u32 v{vT+1}, {L_NS-L_NC}, v{vT+1}')
    I(f'ds_read2_b32 {vr(sf,2)}, v{vT+1} offset0:15 offset1:16')
    for m in range(7):
        I(f'ds_read_b32 v{vCL+m}, v{vCL+m} offset:{L_NS-L_NC}')
    for r in (s0, s0 + 1, sn): I(f'v_lshrrev_b32 v{r}, 20, v{r}')
    C('the even split needs: one round, every wave owns 1..15 nodes')
    I(f'v_sub_u32 v{vT+3}, v{s0+1}, v{s0}')
    I(f'v_sub_u32 v{sn}, v{sn}, v{s0+1}')
    I(f'v_max_u32 v{vT+3}, v{vT+3}, v{sn}')
    I(f'v_cmp_lt_u32 {sr(sA,2)}, 1, v{vT+3}')
    I(f'v_readlane_b32 s{sNB}, v{s0+1}, 48')
    I('s_waitcnt lgkmcnt(7)')
    for r in (sf, sf + 1): I(f'v_lshrrev_b32 v{r}, 20, v{r}')
    I(f'v_cmp_ge_u32 vcc, v{s0}, v{sf}')
    I(f'v_cmp_ge_u32 {sr(sC,2)}, v{s0+1}, v{sf+1}')
    I('s_and_b32 vcc_hi, vcc_hi, 0x3ff')
    I(f's_and_b32 s{sD}, s{sD}, 0x1ff')
    I(f's_or_b64 {sr(sA,2)}, {sr(sA,2)}, vcc')
    I(f's_or_b64 {sr(sA,2)}, {sr(sA,2)}, {sr(sC,2)}')
    I('s_cbranch_scc1 L2_static')
    I(f's_cmp_lg_u32 s{sNB}, 7')
    I('s_cbranch_scc1 L2_static')
    I(f's_cmp_lg_u32 s{sCNT}, s{sTOT}')
    I('s_cbranch_scc1 L2_static')
    if not opt.dyn: I('s_branch L2_static')
    I('s_waitcnt lgkmcnt(0)')
    for m in range(7):
        I(f'v_add_u32 v{vRK+m}, v{vRK+m}, v{vCL+m}')
        I(f'v_lshrrev_b32 v{vRK+m}, 20, v{vRK+m}')
        I(f'v_lshl_add_u32 v{vCL+m}, v{vRK+m}, 7, v{vBA_+m}')
    def cell_atomics():
        for m in range(7):
            I(f's_mov_b64 exec, {sr(sVM+2*m,2)}')
            I(f'ds_add_rtn_u32 v{vRK+m}, v{vCL+m}, v{vT+2}')
        I('s_mov_b64 exec, -1')
    cell_atomics()
    C('owned node range of this wave')
    I(f's_mov_b32 exec_hi, 0x1ffff')
    I(f'v_cmp_gt_u32 vcc, s{sW}, v{s0}')
    I(f's_bcnt1_i32_b64 s{sOF}, vcc')
    I(f'v_cmp_gt_u32 vcc, s{sW}, v{s0+1}')
    I(f's_bcnt1_i32_b64 s{sA}, vcc')
    I(f's_add_u32 s{sOF}, s{sOF}, s{sA}')
    I(f'v_cmp_ge_u32 vcc, s{sW}, v{s0}')
    I(f's_bcnt1_i32_b64 s{sON}, vcc')
    I(f'v_cmp_ge_u32 vcc, s{sW}, v{s0+1}')
    I(f's_bcnt1_i32_b64 s{sA}, vcc')
    I(f's_add_u32 s{sON}, s{sON}, s{sA}')
    I('s_mov_b64 exec, -1')
    I('s_branch L2_cells')
    L('L2_static')
    I(f's_mul_i32 s{sOF}, s{sW}, {NB}')
    I(f's_add_u32 s{sON}, s{sOF}, {NB+7}')
    I(f's_add_u32 s{sOF}, s{sOF}, 7')
    I(f's_lshr_b32 s{sOF}, s{sOF}, 3')
    I(f's_lshr_b32 s{sON}, s{sON}, 3')
    I('s_waitcnt lgkmcnt(0)')
    for m in range(7):
        I(f'v_lshrrev_b32 v{vRK+m}, 24, v{vME+4*m}')
        I(f'v_lshl_add_u32 v{vCL+m}, v{vRK+m}, 7, v{vBA_+m}')
    cell_atomics()
    L('L2_cells')
    ea_out(opt.s2, 2)
    bar_b(8)
    C('cell scan (every wave), lists padded to 16')
    cnt, st = vT + 14, vT + 18
    I(f'ds_read_b128 {vr(cnt,4)}, v{vT}')
    xpf(8)
    I(f's_mov_b32 s{sC}, {(L_KI - 4*L_SLOT) & 0xffffffff}')
    I(f's_mov_b32 s{sD}, {(L_SH - 8*L_SLOT) & 0xffffffff}')
    for m in range(7):
        I(f'v_add_u32 v{vRK+m}, {L_SLOT}, v{vRK+m}')
    I('s_waitcnt lgkmcnt(0)')
    I(f'v_add_u32 v{st+1}, v{cnt}, v{cnt+1}')
    I(f'v_add_u32 v{st+2}, v{st+1}, v{cnt+2}')
    I(f'v_add_u32 v{vT+1}, v{st+2}, v{cnt+3}')
    I('s_nop 1')
    I(f'v_add_u32_dpp v{vT+2}, v{vT+1}, v{vT+1} quad_perm:[1,0,3,2] row_mask:0xf bank_mask:0xf')
    I('s_nop 1')
    I(f'v_add_u32_dpp v{vT+2}, v{vT+2}, v{vT+2} quad_perm:[2,3,0,1] row_mask:0xf bank_mask:0xf')
    I('s_nop 1')
    I(f'v_add_u32_dpp v{vT+2}, v{vT+2}, v{vT+2} row_half_mirror row_mask:0xf bank_mask:0xf')
    I(f'v_add_u32 v{vT+3}, 15, v{vT+2}')
    I(f'v_and_b32 v{vT+3}, -16, v{vT+3}')
    I(f'v_sub_u32 v{vT+2}, v{vT+3}, v{vT+2}')
    if opt.spread:
        I(f'v_add_u32 v{vT+2}, v{vT+2}, v{vRA+4}')
        I(f'v_lshrrev_b32 v{vT+2}, 2, v{vT+2}')
    I(f'v_cndmask_b32 v{vT+2}, 0, v{vT+2}, {sr(sL7,2)}')
    I(f'v_add_u32 v{vT+1}, v{vT+1}, v{vT+2}')
    I(f'v_mov_b32 v{vT+2}, v{vT+1}')
    wave_scan(vT + 2)
    I(f'v_sub_u32 v{st}, v{vT+2}, v{vT+1}')
    I(f'v_add_u32 v{st+3}, v{st}, v{st+2}')
    I(f'v_add_u32 v{st+2}, v{st}, v{st+1}')
    I(f'v_add_u32 v{st+1}, v{st}, v{cnt}')
    I(f'ds_write_b128 v{vT}, {vr(st,4)} offset:{L_ST-L_CNT}')
    for m in range(7):
        I(f'ds_read_b32 v{vCL+m}, v{vCL+m} offset:{L_ST-L_CNT}')
    early_static(opt.u2)
    C('early-phase length of every list: start of bin SPLIT minus list start (in lane 8*wave)')
    sl_lane, sl_reg = opt.split >> 2, opt.split & 3
    if sl_lane: I(f'v_sub_u32_dpp v{vT+5}, v{st+sl_reg}, v{st} row_shl:{sl_lane} row_mask:0xf bank_mask:0xf')
    else: I(f'v_sub_u32 v{vT+5}, v{st+sl_reg}, v{st}')
    I(f's_lshl_b32 s{sA}, s{sW}, 3')
    I(f'v_readlane_b32 s{sNB}, v{vT+3}, s{sA}')
    I(f'v_readlane_b32 s{sI}, v{st}, s{sA}')
    for m in range(7):
        I(f's_waitcnt lgkmcnt({6-m})')
        I(f'v_add_u32 v{vRK+m}, v{vRK+m}, v{vCL+m}')
        I(f'v_lshl_add_u32 v{vCL+m}, v{vRK+m}, 2, s{sC}')
        I(f'v_lshl_add_u32 v{vBA_+m}, v{vRK+m}, 3, s{sD}')
    for m in range(7):
        I(f's_mov_b64 exec, {sr(sVM+2*m,2)}')
        I(f'ds_write_b32 v{vCL+m}, v{vME+4*m+3}')
        I(f'ds_write_b8 v{vRK+m}, v{vME+4*m}')
        I(f'ds_write2_b32 v{vBA_+m}, v{vME+4*m+1}, v{vME+4*m+2} offset0:0 offset1:1')
    I('s_mov_b64 exec, -1')
    C('longest list, shortest early part')
    I(f'v_max_u32_dpp v{vT+3}, v{vT+3}, v{vT+3} row_shl:8 row_mask:0xf bank_mask:0xf')
    I(f'v_min_u32_dpp v{vT+5}, v{vT+5}, v{vT+5} row_shl:8 row_mask:0xf bank_mask:0xf')
    I(f's_lshr_b32 s{sNB}, s{sNB}, 4')
    I(f'v_readlane_b32 s{sNBM}, v{vT+3}, 0')
    I(f'v_readlane_b32 s{sK0}, v{vT+5}, 0')
    for g in range(1, 4):
        I(f'v_readlane_b32 s{sA}, v{vT+3}, {16*g}')
        I(f'v_readlane_b32 s{sB}, v{vT+5}, {16*g}')
        I(f's_max_u32 s{sNBM}, s{sNBM}, s{sA}')
        I(f's_min_u32 s{sK0}, s{sK0}, s{sB}')
    C('a list longer than the register copies hold: redo this round with a small window')
    I(f's_cmp_le_u32 s{sNBM}, 512')
    I('s_cbranch_scc1 L2_fits')
    I(f's_mov_b32 s{sRC}, {RSMALL}')
    I('s_waitcnt vmcnt(0) lgkmcnt(0)')
    I('s_branch L2_again')
    L('L2_fits')
    ea_out(13, 3)
    early_static(opt.u3)
    U = opt.u + opt.u2 + opt.u3
    assert opt.pob <= 8 or opt.u2 + opt.u3 == 0
    assert 6 <= U <= 13
    C('read-back addresses')
    I(f's_lshl_b32 s{sA}, s{sI}, 2')
    I(f's_add_u32 s{sA}, s{sA}, {L_KI}')
    I(f'v_add_u32 v{vT}, s{sA}, v{vRA}')
    I(f'v_add_u32 v{vT+5}, s{sA}, v{vRA+3}')
    I(f's_lshl_b32 s{sA}, s{sI}, 3')
    I(f's_add_u32 s{sA}, s{sA}, {L_SH}')
    I(f'v_add_u32 v{vT+3}, s{sA}, v{vRA+1}')
    I(f's_add_u32 s{sA}, s{sI}, {L_SLOT}')
    I(f'v_add_u32 v{vT+4}, s{sA}, v{vRA+2}')
    I(f'v_add_u32 v{vT+6}, 1024, v{vT}')
    I(f'v_add_u32 v{vT+7}, 1024, v{vT+5}')
    bar_b(9)
    xpf(9)
    IT = vT + 8
    for g in range(0, 16, 2):
        I(f'ds_read2_b32 {vr(vKQ+g,2)}, v{vT+(6 if g >= 8 else 0)} offset0:{32*g%256} offset1:{32*(g+1)%256}')
    I(f'ds_read_b128 {vr(vSL,4)}, v{vT+4}')
    for g in range(16):
        if g in (4, 10): I('s_waitcnt lgkmcnt(7)')
        I(f'ds_read2_b32 {vr(IT+2*g,2)}, v{vT+(7 if g >= 8 else 5)} offset0:{32*g%256} offset1:{32*g%256+16}')
    I('s_waitcnt lgkmcnt(6)')
    for g in range(8):
        I(f'ds_read_b64 {vr(vSQ+2*g,2)}, v{vT+3} offset:{512*g}')
    if opt.dl and opt.pob == 9: early_static()
    assert opt.pob <= 9 and opt.x1 != 10 and opt.x2 != 10
    C('which feature passes must land before the main loop')
    I(f's_sub_i32 s{sA}, s{sT0}, s{sR0}')
    I(f's_max_i32 s{sA}, s{sA}, 0')
    I(f's_add_u32 s{sA}, s{sA}, 255')
    I(f's_lshr_b32 s{sA}, s{sA}, 8')
    I(f's_max_u32 s{sA}, s{sA}, {U}')
    I(f's_add_u32 s{sB}, s{sCNT}, 255')
    I(f's_lshr_b32 s{sB}, s{sB}, 8')
    I(f's_lshr_b32 s{sK0}, s{sK0}, 4')
    I(f's_sub_i32 s{sK0}, s{sK0}, 1')
    I(f's_sub_i32 s{sB}, s{sB}, s{sA}')
    I(f's_sub_i32 s{sC}, s{sK0}, 1')
    I(f's_mul_i32 s{sC}, s{sC}, {opt.lpb}')
    I(f's_cmp_le_i32 s{sB}, s{sC}')
    I(f's_cselect_b32 s{sPJ}, s{sA}, 14')
    I(f's_cselect_b32 s{sK0}, s{sK0}, -1')
    if opt.k0e:
        I(f's_add_i32 s{sC}, s{sB}, {opt.k0e}')
        I(f's_min_i32 s{sK0}, s{sK0}, s{sC}')
    I(f's_cmp_gt_i32 s{sB}, 0')
    I(f's_cselect_b32 s{sK0}, s{sK0}, -1')
    if not opt.late:
        I(f's_mov_b32 s{sPJ}, 14'); I(f's_mov_b32 s{sK0}, -1')
    I(f's_lshl_b32 s{sA}, s{sW}, 5')
    I(f's_sub_i32 s{sNP}, s{sCNT}, s{sA}')
    I(f's_add_i32 s{sNP}, s{sNP}, 255')
    I(f's_lshr_b32 s{sNP}, s{sNP}, 8')
    I(f's_mov_b32 s{sA}, {U}')
    I(f's_min_u32 s{sB}, s{sPJ}, s{sNP}')
    L('L2_early')
    I(f's_cmp_ge_u32 s{sA}, s{sB}')
    I('s_cbranch_scc1 L2_early_done')
    I(f's_set_gpr_idx_on s{sA}, gpr_idx(SRC0)')
    I(f'v_mov_b32 v{vGT}, v{vGA}')
    I('s_set_gpr_idx_off')
    I(f's_lshl_b32 m0, s{sA}, 13')
    I(f's_add_u32 m0, m0, s{sEB}')
    I(f's_add_u32 s{sA}, s{sA}, 1')
    I(f'buffer_load_dwordx4 v{vGT}, {sr(sEAO,4)}, 0 offen sc1 lds')
    I('s_branch L2_early')
    L('L2_early_done')
    for g in range(16):
        I(f'v_lshlrev_b32_sdwa v{vKQ+g}, 9, v{vKQ+g} dst_sel:DWORD dst_unused:UNUSED_PAD src0_sel:DWORD src1_sel:WORD_0')
    C('no row fetches past the list end: null keys in the group the look-ahead runs into')
    I(f's_lshr_b32 s{sA}, s{sNB}, 1')
    I(f's_bitcmp1_b32 s{sNB}, 0')
    I('s_cselect_b32 exec_lo, 0xff00ff00, -1')
    I(f's_cmp_lt_u32 s{sNB}, 32')
    I('s_cselect_b32 exec_lo, exec_lo, 0')
    I('s_mov_b32 exec_hi, exec_lo')
    I(f's_set_gpr_idx_on s{sA}, gpr_idx(DST)')
    I(f'v_mov_b32 v{vKQ}, 0x{NULLKI<<9:x}')
    I('s_set_gpr_idx_off')
    I('s_mov_b64 exec, -1')
    I(f'v_mov_b32 v{vK}, v{vKQ}')
    def fetch(sig, lane):
        I(f'v_add_u32_dpp v{vAD}, v{vK}, v{vLS} row_newbcast:{lane} row_mask:0xf bank_mask:0xf')

    bar_b(10)
    if opt.exp == 1: I(f's_mov_b32 s{sX+2}, 0')
    for sig in range(5):
        I(f's_add_u32 m0, s{sRG+(sig>>1)}, {1024*(sig&1)}')
        fetch(sig, sig)
        I(f'buffer_load_dwordx4 v{vAD}, {sr(sX,4)}, 0 offen lds')
    I(f's_mov_b32 s{sA}, 0x07060302')
    for g in range(16):
        I(f'v_perm_b32 v{vIQ+g}, v{IT+2*g+1}, v{IT+2*g}, s{sA}')
    I(f'v_bfe_u32 v{vGT}, v0, 5, 1')
    I(f'v_mul_u32_u24 v{vGT}, 0x10001, v{vGT}')
    for g in range(16):
        I(f'v_or_b32 v{vIQ+g}, v{vIQ+g}, v{vGT}')
    def ea_reads(word):
        I(f'v_lshlrev_b32_sdwa v{vEAA}, 4, v{vIC} dst_sel:DWORD dst_unused:UNUSED_PAD src0_sel:DWORD src1_sel:WORD_{word}')
        I(f's_mov_b64 exec, {sr(sM0,2)}')
        I(f'ds_read_b128 {vr(vA1,4)}, v{vEAA}')
        I(f's_mov_b64 exec, {sr(sM1,2)}')
        I(f'ds_read_b128 {vr(vA2,4)}, v{vEAA}')
        I('s_mov_b64 exec, -1')
    def rw_mfma(p):
        I(f'v_mfma_f32_32x32x16_bf16 {vr(vRW+16*p,16)}, {vr(vA1,4)}, {vr(vBE,4)}, 0')
        I(f'v_mfma_f32_32x32x16_bf16 {vr(vRW+16*p,16)}, {vr(vA2,4)}, {vr(vBO,4)}, {vr(vRW+16*p,16)}')
    def ae_mfma():
        for u in range(4):
            I(f'v_mfma_f32_4x4x4_16b_bf16 {vr(vRW+4*u,4)}, {vr(vSQ,2)}, {vr(vCG+2*u,2)}, 0')
    def ae_cvt():
        for i, d in ((0, vAE), (1, vAE + 4)):
            I(f'v_cvt_pk_bf16_f32 v{d}, v{vRW+i}, v{vRW+4+i}')
            I(f'v_cvt_pk_bf16_f32 v{d+1}, v{vRW+8+i}, v{vRW+12+i}')
    def mfmas(p, s):
        if opt.exp in (5, 7): return
        d = vDT; b = vB + 4 * (s & 1)
        I(f'v_mfma_f32_4x4x4_16b_bf16 {vr(d,4)}, {vr(vAE+2*p,2)}, {vr(b,2)}, 0 cbsz:4 abid:{s}')
        I(f'v_mfma_f32_4x4x4_16b_bf16 {vr(d+4,4)}, {vr(vAE+2*p,2)}, {vr(b+2,2)}, 0 cbsz:4 abid:{8+s}')
    def fmas(p, s):
        if opt.exp in (4, 7): return
        d = vDT
        for h, e in ((0, s), (1, 8 + s)):
            sl = sSA0 + 2 * (s >> 2) + h
            I(f's_set_gpr_idx_on s{sl}, gpr_idx(SRC2,DST)' if h == 0 else f's_set_gpr_idx_idx s{sl}')
            r = vRW + 16 * p + (e & ~1)
            mod = 'op_sel:[0,1,0] op_sel_hi:[1,1,1]' if e & 1 else 'op_sel_hi:[1,0,1]'
            I(f'v_pk_fma_f32 {vr(vACC,2)}, {vr(d+4*h,2)}, {vr(r,2)}, {vr(vACC,2)} {mod}')
            I(f'v_pk_fma_f32 {vr(vACC+2,2)}, {vr(d+4*h+2,2)}, {vr(r,2)}, {vr(vACC+2,2)} {mod}')
    def shift(s):
        sl = sSA0 + 2 * (s >> 2)
        I(f's_lshr_b64 {sr(sl,2)}, {sr(sl,2)}, 8')

    C('operands of batches 0 and 1 that do not need the edge features')
    ae_mfma()
    I(f'v_mov_b32 v{vIC}, v{vIQ}')
    I(f'v_readlane_b32 s{sSA0}, v{vSL}, 0')
    I(f'v_readlane_b32 s{sSB0}, v{vSL+2}, 0')
    I(f's_mov_b32 s{sSA1}, {DUMMY*0x101}')
    I(f's_mov_b32 s{sSB1}, {DUMMY*0x101}')
    I(f's_mov_b32 s{sI}, 0')
    I(f's_mov_b32 s{sKI}, 0')
    ae_cvt()
    I(f's_cmp_eq_u32 s{sFIRST}, 0')
    I('s_cbranch_scc1 L2_haveB')
    xpf(10)
    I(f's_mov_b32 s{sFIRST}, 0')
    for r in range(57): I(f'v_mov_b32 v{vACC+r}, 0')
    if opt.pob == 11:
        I(f's_cmp_lg_u32 s{sW}, 0')
        I('s_cbranch_scc1 L_polledB')
        poll('B', 16384)
    for r in range(57, 68): I(f'v_mov_b32 v{vACC+r}, 0')
    if opt.pob == 11: I('s_barrier')
    L('L2_haveB')
    stamp(11, VST)
    C('early feature passes, then the first row fetches')
    if opt.pob == 11: early_static()
    I('s_waitcnt vmcnt(5)')
    I('s_barrier')
    stamp(12, VST)
    I(f's_cmp_eq_u32 s{sNB}, 0')
    I('s_cbranch_scc1 L2_drain')
    ea_reads(0)
    I('s_waitcnt lgkmcnt(0)')
    rw_mfma(0)
    fetch(0, 5)
    I(f's_add_u32 m0, s{sRG+2}, 1024')
    C('inside the loop the register-index mode stays on: M0 alternates between an accumulator index')
    C('and the LDS address of the next row fetch, whose low byte (the index) is zero')
    L('L2_loop')
    for p in range(2):
        C(f'batch parity {p}')
        for s in range(8):
            sig = 8 * p + s
            d = (sig >> 1) % 3
            so = 1024 * (sig & 1)
            b = vB + 4 * (s & 1)
            I('s_waitcnt vmcnt(4) lgkmcnt(0)')
            I(f'buffer_load_dwordx4 v{vAD}, {sr(sX,4)}, 0 offen' + ('', ' sc1', ' sc0')[opt.xfl] + ' lds')
            if opt.exp != 6:
                I(f'ds_read_b64_tr_b16 {vr(b,2)}, v{vRD+d} offset:{so}')
                I(f'ds_read_b64_tr_b16 {vr(b+2,2)}, v{vRD+d} offset:{so+512}')
            if s == 3: ea_reads(p ^ 1)
            fs = (s - 2) % 8
            fmas(p ^ 1 if s < 2 else p, fs)
            if sig == 10:
                I(f's_set_gpr_idx_on s{sKI}, gpr_idx(SRC0)')
                I(f'v_mov_b32 v{vK}, v{vKQ}')
                I(f'v_mov_b32 v{vIC}, v{vIQ}')
                I(f's_set_gpr_idx_idx s{sSI}')
                ae_mfma()
            if sig == 11:
                I(f's_set_gpr_idx_on s{sLN}, gpr_idx(SRC0,SRC1)')
                ae_cvt()
            I(f's_add_u32 m0, s{sRG+d}, {so}')
            if (fs & 3) != 3: shift(fs)
            elif sig == 9: I(f's_add_u32 s{sKI}, s{sKI}, 1')
            elif s == 5 and opt.prio == 2: I(f's_setprio {p}')
            elif s == 5 and opt.prio == 1 and p == 1: I('s_setprio 0')
            else: I('s_nop 0')
            mfmas(p ^ 1 if s == 0 else p, (s - 1) % 8)
            fetch(sig, (sig + 6) % 16)
            if sig == 1: I(f'v_mov_b64 {vr(vAE+2,2)}, {vr(vAE+4,2)}')
            if s == 1:
                I(f'v_readlane_b32 s{sSA1}, v{vSL+1}, s{sI}')
                I(f'v_readlane_b32 s{sSB1}, v{vSL+3}, s{sI}')
                I(f's_add_u32 s{sI}, s{sI}, 1')
            if sig == 9:
                I(f's_and_b32 s{sSI}, s{sKI}, 0xfe')
                I(f's_and_b32 s{sLN}, s{sI}, 2')
            if s == 4 and opt.exp != 8: rw_mfma(p ^ 1)
            if sig == 5 and opt.prio == 1:
                I(f's_cmp_lt_u32 s{sW}, 4')
                I('s_cbranch_scc1 L2_prio')
                I('s_setprio 1')
                L('L2_prio')
            if s == 6:
                I(f'v_readlane_b32 s{sSA0}, v{vSL}, s{sI}')
                I(f'v_readlane_b32 s{sSB0}, v{vSL+2}, s{sI}')
        if p == 1:
            I(f'v_swap_b32 v{vRD}, v{vRD+2}'); I(f'v_swap_b32 v{vRD+1}, v{vRD+2}')
            I(f's_mov_b32 s{sRG+3}, s{sRG+2}'); I(f's_mov_b32 s{sRG+2}, s{sRG+1}'); I(f's_mov_b32 s{sRG+1}, s{sRG}'); I(f's_mov_b32 s{sRG}, s{sRG+3}')
        if opt.stamps == 4 and p == 1:
            I(f's_lshr_b32 s{sA}, s{sI}, 1')
            I(f's_cmp_gt_u32 s{sA}, 11')
            I('s_cbranch_scc1 L2_nost')
            I('s_set_gpr_idx_off')
            I(f's_mov_b32 s{sB}, m0')
            I('s_memrealtime s[100:101]')
            I(f's_mov_b32 m0, s{sA}')
            I('s_waitcnt lgkmcnt(0)')
            I(f'v_writelane_b32 v{VST}, s100, m0')
            I(f'v_writelane_b32 v{VST+1}, s101, m0')
            I(f's_mov_b32 m0, s{sB}')
            L('L2_nost')
        I(f's_cmp_le_i32 s{sI}, s{sK0}')
        I(f's_cbranch_scc1 L2_ev{p}')
        L(f'L2_evdone{p}')
        I(f's_cmp_lt_u32 s{sI}, s{sNB}')
        if p == 0: I('s_cbranch_scc0 L2_tail0')
        else: I('s_cbranch_scc1 L2_loop')
    for p in (1, 0):
        if p == 0: L('L2_tail0')
        I('s_waitcnt lgkmcnt(0)')
        fmas(p, 6)
        I('s_set_gpr_idx_off')
        shift(6)
        mfmas(p, 7)
        I('s_nop 4')
        fmas(p, 7)
        I('s_set_gpr_idx_off')
        I('s_branch L2_drain')
    for p in range(2):
        L(f'L2_ev{p}')
        I(f's_cmp_lg_u32 s{sI}, s{sK0}')
        I(f's_cbranch_scc1 L2_late{p}')
        C('all late features have landed (every wave waited for younger loads since its last pass)')
        I('s_barrier')
        I(f's_branch L2_evdone{p}')
        L(f'L2_late{p}')
        I(f's_mov_b32 s{sB}, m0')
        for k in range(opt.lpb):
            I(f's_cmp_ge_u32 s{sPJ}, s{sNP}')
            I(f's_cbranch_scc1 L2_nolate{p}')
            I(f's_set_gpr_idx_on s{sPJ}, gpr_idx(SRC0)')
            I(f'v_mov_b32 v{vGT}, v{vGA}')
            I(f's_lshl_b32 m0, s{sPJ}, 13')
            I(f's_add_u32 m0, m0, s{sEB}')
            I(f's_add_u32 s{sPJ}, s{sPJ}, 1')
            I(f'buffer_load_dwordx4 v{vGT}, {sr(sEAO,4)}, 0 offen sc1 lds')
        L(f'L2_nolate{p}')
        I(f's_mov_b32 m0, s{sB}')
        I(f's_branch L2_evdone{p}')
    L('L2_drain')
    I('s_waitcnt vmcnt(0) lgkmcnt(0)')
    stamp(13, VST)
    I(f's_add_u32 s{sR0}, s{sR0}, s{sRC}')
    I(f's_cmp_ge_u32 s{sR0}, s{sTOT}')
    I('s_cbranch_scc1 L2_epi')
    L('L2_again')
    I('s_barrier')
    prefill()
    I('s_branch L2_round')

    if opt.epi:
        L('L2_epi')
        C('---- epilogue: out = agg @ w_out, two tiles of 8 slots; the partial sums of a shared node go to')
        C('     its owner (the previous wave), whose tile with the receiving slot is done second')
        vP = 76
        vDN = 92
        vBB = 132
        vD = 184
        vO = 164
        vT = 172
        sF, sS = sSA0, sSB0
        I(f's_sub_u32 s{sA}, s{sON}, 1')
        I(f's_and_b32 s{sA}, s{sA}, 15')
        I(f's_lshl_b32 s{sA}, s{sA}, 2')
        I(f's_and_b32 s{sS}, s{sA}, 32')
        I(f's_xor_b32 s{sF}, s{sS}, 32')
        def t_cvt(i):
            for k in range(4):
                I(f'v_cvt_pk_bf16_f32 v{vP+4*i+k}, v{vACC+8*i+2*k}, v{vACC+8*i+2*k+1}')
            I(f'ds_write_b128 v{vTW}, {vr(vP+4*i,4)} offset:{16*i}')
        def t_reads(ct):
            for s in range(4):
                for i in range(2):
                    I(f'ds_read_b64_tr_b16 {vr(vBB+16*ct+4*s+2*i,2)}, v{vTR} offset:{(16*s+4*i)*TC}')
        def mf(ct, n):
            tile, s = n & 1, n >> 1
            d = vD + 32 * ct + 16 * tile
            I(f'v_mfma_f32_32x32x16_bf16 {vr(d,16)}, {vr(vBB+16*ct+4*s,4)}, {vr(vWA+16*tile+4*s,4)}, {vr(d,16) if s else 0}')
        I(f's_set_gpr_idx_on s{sF}, gpr_idx(SRC0,SRC1)')
        for i in range(4): t_cvt(i)
        t_reads(0)
        I(f's_sub_u32 s{sB}, s{sOF}, 1')
        I(f's_and_b32 s{sB}, s{sB}, 15')
        I(f's_lshl_b32 s{sB}, s{sB}, 2')
        I(f's_set_gpr_idx_on s{sB}, gpr_idx(SRC0)')
        for k in range(4): I(f'v_mov_b32 v{vDN+k}, v{vACC+k}')
        I('s_set_gpr_idx_off')
        I(f'v_and_b32 v{vT}, 63, v0')
        I(f'v_lshl_add_u32 v{vT}, v{vT}, 4, s3')
        I(f'ds_write_b128 v{vT}, {vr(vDN,4)} offset:5120')
        I(f's_cmp_eq_u32 s{sW}, 7')
        I(f's_cselect_b32 s{sA}, {DUMMY}, s{sA}')
        C('the output descriptor covers exactly the nodes this wave owns')
        I(f's_mul_i32 s{sB}, s{sBK}, {NB}')
        I(f's_sub_u32 s{sC}, {N}, s{sB}')
        I(f's_min_u32 s{sC}, s{sC}, s{sON}')
        I(f's_sub_i32 s{sC}, s{sC}, s{sOF}')
        I(f's_max_i32 s{sC}, s{sC}, 0')
        I(f's_lshl_b32 s{sC}, s{sC}, 9')
        I(f's_add_u32 s{sB}, s{sB}, s{sOF}')
        I(f's_lshl_b32 s{sB}, s{sB}, 9')
        stamp(101, VST)
        I('s_waitcnt lgkmcnt(7)')
        mf(0, 0); mf(0, 1)
        srd(sOUT, 20, off_s=sB, size_s=sC)
        I(f's_lshr_b32 s{sB}, s{sF}, 2')
        I(f's_sub_u32 s{sB}, s{sB}, s{sOF}')
        I('s_waitcnt lgkmcnt(5)')
        mf(0, 2)
        I(f'v_bfe_u32 v{vT+1}, v0, 5, 1')
        I(f'v_add_u32 v{vT+1}, s{sB}, v{vT+1}')
        I(f'v_and_b32 v{vT+2}, 31, v0')
        I(f'v_lshlrev_b32 v{vT+2}, 2, v{vT+2}')
        I(f'v_lshl_add_u32 v{vT+1}, v{vT+1}, 9, v{vT+2}')
        mf(0, 3)
        def o_addr(it):
            I(f'v_add_u32 v{vO+it}, {1024*it}, v{vT+1}')
            I(f'v_and_b32 v{vO+it}, 0x1fff, v{vO+it}')
        I('s_waitcnt lgkmcnt(0)')
        for n in range(4, 8):
            mf(0, n)
            o_addr(2 * n - 8); o_addr(2 * n - 7)
        def o_store(ct, r):
            I(f'v_cvt_pk_bf16_f32 v{vD+32*ct+r}, v{vD+32*ct+r}, v{vD+32*ct+16+r}')
            I(f'buffer_store_dword v{vD+32*ct+r}, v{vO+4*ct+(r>>2)}, {sr(sOUT,4)}, 0 offen offset:{128*(r&3)}' + ('', ' sc1', ' nt', ' sc1 nt', ' sc0 sc1')[opt.ofl])
        I('s_nop 7')
        stamp(102, VST)
        for r in range(8): o_store(0, r)
        I('s_barrier')
        I(f'ds_read_b128 {vr(vDN,4)}, v{vT} offset:{6144+5120}')
        for r in range(8, 12): o_store(0, r)
        I('s_waitcnt lgkmcnt(0)')
        I(f's_set_gpr_idx_on s{sA}, gpr_idx(SRC0,DST)')
        for k in range(4): I(f'v_add_f32 v{vACC+k}, v{vACC+k}, v{vDN+k}')
        I(f's_set_gpr_idx_on s{sS}, gpr_idx(SRC0,SRC1)')
        for i in range(4): t_cvt(i)
        I('s_set_gpr_idx_off')
        t_reads(1)
        for r in range(12, 16): o_store(0, r)
        stamp(103, VST)
        for n in range(8):
            if not n & 1: I(f's_waitcnt lgkmcnt({6-n})')
            mf(1, n)
        I('s_nop 11')
        stamp(105, VST)
        for r in range(16): o_store(1, r)
    else:
        L('L2_epi')
        C('---- epilogue: out = agg @ w_out, two tiles of 8 slots; the partial sums of a shared node go to')
        C('     its owner (the previous wave), whose tile with the receiving slot is done second')
        vP = 76
        vDN = 92
        vBB = 132
        vD = 164
        vT = 228
        vLANE = vT + 16
        vBA, vO = vT + 2, vT + 8
        sF, sS = sSA0, sSB0
        I(f'v_and_b32 v{vLANE}, 63, v0')
        I(f's_sub_u32 s{sA}, s{sOF}, 1')
        I(f's_and_b32 s{sA}, s{sA}, 15')
        I(f's_lshl_b32 s{sA}, s{sA}, 2')
        I(f'v_lshl_add_u32 v{vT}, v{vLANE}, 4, s3')
        I(f's_set_gpr_idx_on s{sA}, gpr_idx(SRC0)')
        for k in range(4): I(f'v_mov_b32 v{vDN+k}, v{vACC+k}')
        I('s_set_gpr_idx_off')
        I(f'ds_write_b128 v{vT}, {vr(vDN,4)} offset:5120')
        I(f's_sub_u32 s{sA}, s{sON}, 1')
        I(f's_and_b32 s{sA}, s{sA}, 15')
        I(f's_lshl_b32 s{sA}, s{sA}, 2')
        I(f's_and_b32 s{sS}, s{sA}, 32')
        I(f's_xor_b32 s{sF}, s{sS}, 32')
        I(f's_cmp_eq_u32 s{sW}, 7')
        I(f's_cselect_b32 s{sA}, {DUMMY}, s{sA}')
        I(f'v_mul_u32_u24 v{vT+1}, {TC}, v{vLANE}')
        I(f'v_add_u32 v{vT+1}, s3, v{vT+1}')
        def t_write(sidx, i):
            I(f's_set_gpr_idx_on s{sidx}, gpr_idx(SRC0,SRC1)')
            for k in range(4):
                I(f'v_cvt_pk_bf16_f32 v{vP+4*i+k}, v{vACC+8*i+2*k}, v{vACC+8*i+2*k+1}')
            I('s_set_gpr_idx_off')
            I(f'ds_write_b128 v{vT+1}, {vr(vP+4*i,4)} offset:{16*i}')
        def t_reads(ct):
            for s in range(4):
                for i in range(2):
                    I(f'ds_read_b64_tr_b16 {vr(vBB+16*ct+4*s+2*i,2)}, v{vBA} offset:{(16*s+4*i)*TC}')
        def mf(ct, n):
            tile, s = n & 1, n >> 1
            d = vD + 32 * ct + 16 * tile
            I(f'v_mfma_f32_32x32x16_bf16 {vr(d,16)}, {vr(vBB+16*ct+4*s,4)}, {vr(vWA+16*tile+4*s,4)}, {vr(d,16) if s else 0}')
        for i in range(4): t_write(sF, i)
        I(f'v_bfe_u32 v{vT+5}, v0, 5, 1')
        I(f'v_bfe_u32 v{vT+6}, v0, 2, 2')
        I(f'v_lshl_add_u32 v{vBA}, v{vT+5}, 3, v{vT+6}')
        I(f'v_mul_u32_u24 v{vBA}, {TC}, v{vBA}')
        I(f'v_bfe_u32 v{vT+6}, v0, 4, 1')
        I(f'v_lshl_add_u32 v{vBA}, v{vT+6}, 5, v{vBA}')
        I(f'v_and_b32 v{vT+6}, 3, v0')
        I(f'v_lshl_add_u32 v{vBA}, v{vT+6}, 3, v{vBA}')
        I(f'v_add_u32 v{vBA}, s3, v{vBA}')
        t_reads(0)
        C('the output descriptor covers exactly the nodes this wave owns')
        I(f's_mul_i32 s{sB}, s{sBK}, {NB}')
        I(f's_sub_u32 s{sC}, {N}, s{sB}')
        I(f's_min_u32 s{sC}, s{sC}, s{sON}')
        I(f's_sub_i32 s{sC}, s{sC}, s{sOF}')
        I(f's_max_i32 s{sC}, s{sC}, 0')
        I(f's_lshl_b32 s{sC}, s{sC}, 9')
        I(f's_add_u32 s{sB}, s{sB}, s{sOF}')
        I(f's_lshl_b32 s{sB}, s{sB}, 9')
        srd(sOUT, 20, off_s=sB, size_s=sC)
        I(f's_lshr_b32 s{sB}, s{sF}, 2')
        I(f's_sub_u32 s{sB}, s{sB}, s{sOF}')
        I(f'v_add_u32 v{vT+6}, s{sB}, v{vT+5}')
        I(f'v_and_b32 v{vT+7}, 31, v0')
        I(f'v_lshlrev_b32 v{vT+7}, 2, v{vT+7}')
        I(f'v_lshl_add_u32 v{vT+6}, v{vT+6}, 9, v{vT+7}')
        def o_addr(it):
            I(f'v_add_u32 v{vO+it}, {1024*it}, v{vT+6}')
            I(f'v_and_b32 v{vO+it}, 0x1fff, v{vO+it}')
        stamp(101, VST)
        I('s_waitcnt lgkmcnt(0)')
        for n in range(3): mf(0, n)
        I('s_barrier')
        I(f'ds_read_b128 {vr(vDN,4)}, v{vT} offset:{6144+5120}')
        mf(0, 3)
        for it in range(8): o_addr(it)
        I('s_waitcnt lgkmcnt(0)')
        stamp(102, VST)
        I(f's_set_gpr_idx_on s{sA}, gpr_idx(SRC0,DST)')
        for k in range(4): I(f'v_add_f32 v{vACC+k}, v{vACC+k}, v{vDN+k}')
        I('s_set_gpr_idx_off')
        for n in range(4):
            mf(0, 4 + n)
            t_write(sS, n)
        t_reads(1)
        vPK = 8
        def o_store(ct, r):
            I(f'v_cvt_pk_bf16_f32 v{vPK+16*ct+r}, v{vD+32*ct+r}, v{vD+32*ct+16+r}')
            I(f'buffer_store_dword v{vPK+16*ct+r}, v{vO+4*ct+(r>>2)}, {sr(sOUT,4)}, 0 offen offset:{128*(r&3)}' + ('', ' sc1', ' nt', ' sc1 nt', ' sc0 sc1')[opt.ofl])
        stamp(103, VST)
        for r in range(4): o_store(0, r)
        I('s_waitcnt lgkmcnt(0)')
        for n in range(8):
            mf(1, n)
            if n >= 2: o_store(0, 2 * n); o_store(0, 2 * n + 1)
        I('s_nop 7')
        stamp(105, VST)
        for r in range(16): o_store(1, r)
    stamp(14, VST)
    if opt.stamps: I('s_waitcnt vmcnt(0)')
    stamp(15, VST); stamp_flush(VST, 1)
    if opt.dbg:
        I(f's_cmp_lg_u32 s2, {opt.dbg}')
        I('s_cbranch_scc1 L2_end')
        I(f's_cmp_lg_u32 s{sW}, 0')
        I('s_cbranch_scc1 L2_end')
        I(f'v_readlane_b32 s{sA}, v{VST}, 0')
        if opt.tfirst: I(f's_mov_b32 s{sA}, s94')
        srd(Q0, 22, size=64)
        I(f'v_subrev_u32 v{vAD}, s{sA}, v{VST}')
        I(f'v_lshlrev_b32 v{vGT}, 2, v0')
        I('s_mov_b64 exec, 0xfffe')
        I(f'buffer_store_dword v{vAD}, v{vGT}, {sr(Q0,4)}, 0 offen' + (' sc1' if opt.nodbgst else ''))
        if opt.amp:
            I(f'v_readlane_b32 s{sB}, v{VST}, {opt.amp}')
            I(f's_sub_u32 s{sB}, s{sB}, s{sA}')
            I(f's_mul_i32 s{sB}, s{sB}, {opt.ampk}')
            I(f's_min_u32 s{sB}, s{sB}, 100000')
            I(f's_add_u32 s{sB}, s{sB}, 5000')
            L('L2_amp')
            I('s_memrealtime s[100:101]')
            I('s_waitcnt lgkmcnt(0)')
            I(f's_sub_u32 s100, s100, s{sA}')
            I(f's_cmp_lt_u32 s100, s{sB}')
            I('s_cbranch_scc1 L2_amp')
    L('L2_end')
    I('s_endpgm')

emit1(NAME, gen, 256, 512, K2_LDS, 256, 102)
```

```python
from common import *
parse(dict(stamps=0, nt=1, a0=3, a1=2, a2=1, a3=1, a4=2, s1=0, s2=0, split=12, lpb=1, late=1, la=0, lb=392, dyn=1, prio=1, xpf=1, s0b=13, arb=6, x1=99, x2=7, pob=9, u=6, s0c=0, slp=2, dl=0, u2=0, u3=0, pace=0, sx=0, sy=0, sz=0, offl=0, rot=1, ord=0, iw=255, spread=1, epi=1, k0e=0, cpf=1, pre=1, pfs=7, xfl=0, bw=1024, exp=0, ofl=1, dbg=0, amp=0, ampk=4, tfirst=0, nodbgst=0))
NAME = 'standalone__tensor_product_equiv_mace__graph_kernel'
CH = 3136
NB = 98
RCAP = 3520
CAPX = 3640
WS_EA = 0
WS_MO = WS_EA + 256 * CH * 32
WS_OFF = WS_MO + 256 * CH * 12
WS_SYNC = WS_OFF + 524288
SPLIT = opt.split * opt.bw
BM = -(-(1 << 24) // opt.bw)
assert all((t * BM >> 24) == t // opt.bw and t // opt.bw < 32 for t in range(N))
SPIN = 1 << 20
L_RING = RCAP * 32
L_SH = L_RING
L_KI = L_SH + CAPX * 8
L_SLOT = L_KI + CAPX * 4
L_CNT = L_SLOT + 3648
L_NC = L_CNT + 1024
L_ST = L_NC + 512
L_NS = L_ST + 1024
L_WT = L_NS + 640
K2_LDS = max(L_RING + 49152, L_WT + 32)
assert K2_LDS <= 163840
NULLKI = 0x7fff
DUMMY = 16 * 4
RSMALL = 496
TP = 144
TC = 80
L_GI = L_SH
L_WO = L_GI + 3584 * 4
L_WR = L_WO + 64 * TP
L_CG = L_WR + 16 * TP
assert L_CG + 128 <= L_KI

L_MI = L_RING
L_INV = L_MI + CH * 12
L_HIST = L_INV + CH * 2
assert L_HIST + 4096 <= K2_LDS

def gen():
    nt = ' nt' if opt.nt else ''
    if opt.tfirst: I('s_memrealtime s[94:95]')
    I('s_cmp_ge_u32 s2, 0x100')
    I('s_cbranch_scc1 L2_end')
    I('s_load_dwordx16 s[4:19], s[0:1], 0')
    I('s_load_dwordx4 s[20:23], s[0:1], 64')
    I('s_load_dwordx2 s[24:25], s[0:1], 80')
    vPRE, vGL, vLS, vK, vIC = 1, 2, 3, 4, 5
    vACC = 8
    vBE, vBO, vCG, vA1, vA2, vWA = 76, 80, 84, 92, 96, 100
    vKQ, vSQ, vIQ, vSL = 132, 148, 164, 236
    vRD, vAD, vGT, vNUL = 182, 185, 186, 187
    vEAA = vGT
    vDT, vRW, vAE, vB = 188, 196, 228, 240
    vGA = 242
    vME, vCL, vRK, vT = 132, 160, 188, 196
    vLANE = 167
    VST = 6
    vLEN, vG0 = vT + 40, vT + 41
    vDST, vSRC, vSH, vBK, vCON, vMO, vIA = 132, 139, 146, 160, 168, 8, 240
    vED, vSO, vPF2, vEO, vPF1, vOFA = 8, 60, 234, 62, 235, 64
    Q0, Q1, Q2, Q3, Q4, Q5, Q6 = 28, 32, 36, 40, 44, 48, 52
    sMO, sEAO, sOUT, sX, sEAS, sOFF, sSYN = Q0, Q1, Q2, Q3, Q4, Q5, Q6
    sVM = 6
    sBK, sW = 26, 27
    sTOT, sR0, sCNT, sNB, sNBM, sI, sRC, sXSZ = 56, 57, 58, 59, 60, 61, 62, 63
    sM0, sM1 = 64, 66
    sSA0, sSB0, sSA1, sSB1 = 68, 69, 70, 71
    sRG = 72
    sLN, sKI, sSI = 76, 77, 78
    sT0, sPJ, sNP, sK0, sEB, sMG, sOF, sON = 79, 80, 81, 82, 83, 84, 85, 86
    sE0, sNE, sFIRST, sC, sD, sL7 = 87, 88, 89, 90, 91, 92
    sA, sB = 0, 1
    if opt.cpf:
        C('pull the kernel\'s own code towards this die while the arguments are being fetched')
        I(f's_getpc_b64 {sr(sC,2)}')
        L('L_pc')
        I(f'v_lshlrev_b32 v{vT+38}, 7, v0')
        I(f'v_min_u32 v{vT+38}, L2_end-L_pc, v{vT+38}')
        I(f'v_add_co_u32 v{vT+38}, vcc, s{sC}, v{vT+38}')
        I(f'v_mov_b32 v{vT+39}, s{sD}')
        I(f'v_lshlrev_b32 v{vT}, 2, v0')
        I(f'v_addc_co_u32 v{vT+39}, vcc, 0, v{vT+39}, vcc')
        I(f'global_load_dword v{vNUL}, {vr(vT+38,2)}, off')
    else:
        I(f'v_lshlrev_b32 v{vT}, 2, v0')
    C('==== phase A: partition this workgroup\'s chunk of edges by (src phase, dst bucket)')
    I(f's_and_b32 s{sBK}, s2, 7')
    I(f's_lshl_b32 s{sBK}, s{sBK}, 5')
    I('s_lshr_b32 s3, s2, 3')
    I(f's_add_u32 s{sBK}, s{sBK}, s3')
    I(f's_mul_i32 s{sE0}, s{sBK}, {CH}')
    I(f's_sub_u32 s{sNE}, {E}, s{sE0}')
    I(f's_min_u32 s{sNE}, s{sNE}, {CH}')
    I(f's_lshl_b32 s{sC}, s{sE0}, 2'); I(f's_lshl_b32 s{Q0+2}, s{sNE}, 2')
    I(f's_mov_b32 s{Q0+3}, 0x20000')
    I('s_waitcnt lgkmcnt(0)')
    I(f's_add_u32 s{Q0}, s8, s{sC}')
    I(f's_addc_u32 s{Q0+1}, s9, 0')
    for m in range(7):
        if m in (2, 4, 6): I(f'v_add_u32 v{vT+3+(m>>1)}, {2048*m}, v{vT}')
        I(f'buffer_load_dword v{vDST+m}, v{vT+3+(m>>1) if m > 1 else vT}, {sr(Q0,4)}, 0 offen offset:{2048*(m&1)}{nt}')
    srd(Q1, 6, off_s=sC, size_s=Q0+2)
    for m in range(7):
        I(f'buffer_load_dword v{vSRC+m}, v{vT+3+(m>>1) if m > 1 else vT}, {sr(Q1,4)}, 0 offen offset:{2048*(m&1)}{nt}')
    I(f'v_add_u32 v{vT+1}, {L_HIST}, v{vT}')
    I(f'v_mov_b32 v{vT+2}, 0')
    I(f'ds_write_b32 v{vT+1}, v{vT+2}')
    I(f'v_lshrrev_b32 v{vT+3}, 6, v0')
    I(f'v_lshlrev_b32 v{vT+8}, 3, v0')
    I(f'v_readfirstlane_b32 s{sW}, v{vT+3}')
    I(f'v_lshlrev_b32 v{vEO}, 4, v0')
    I(f'v_and_b32 v{vLANE}, 63, v0')
    I(f's_lshl_b32 s{sEB}, s{sW}, 10')
    stamp_init(1, VST, vGT, 24); stamp(0, VST)
    srd(sSYN, 24, off_imm=WS_SYNC, size=32768)
    C('workgroup 255 (the short chunk) clears the hand-off counters, then raises the flag in d_debug')
    I(f's_xor_b32 s{sA}, s2, {opt.iw}')
    I(f's_or_b32 s{sA}, s{sA}, s{sW}')
    I('s_cbranch_scc1 L1_noinit')
    srd(Q2, 22, size=256)
    I(f'v_lshlrev_b32 v{vT+9}, 8, v0')
    I(f'buffer_store_dword v{vT+2}, v{vT+9}, {sr(sSYN,4)}, 0 offen sc1')
    I(f'v_add_u32 v{vT+10}, 16384, v{vT+9}')
    I(f'buffer_store_dword v{vT+2}, v{vT+10}, {sr(sSYN,4)}, 0 offen sc1')
    I(f'v_mov_b32 v{vT+10}, 1')
    I('s_waitcnt vmcnt(0)')
    I(f'buffer_store_dword v{vT+10}, v{vT+9}, {sr(Q2,4)}, 0 offen sc1')
    L('L1_noinit')
    I('s_waitcnt lgkmcnt(0)')
    I('s_barrier')
    I(f's_lshl_b32 s{sC}, s{sE0}, 3'); I(f's_lshl_b32 s{sD}, s{sNE}, 3')
    srd(Q2, 10, off_s=sC, size_s=sD)
    for m in range(7):
        I(f'buffer_load_dwordx2 {vr(vSH+2*m,2)}, v{vT+8}, {sr(Q2,4)}, 0 offen{nt}')
        if m < 6: I(f'v_add_u32 v{vT+8}, 4096, v{vT+8}')
    srd(Q1, 18, size=8192)
    I(f'buffer_load_dwordx4 {vr(vCON,4)}, v{vEO}, {sr(Q1,4)}, 0 offen')
    srd(Q1, 16, size=2048)
    I(f'buffer_load_dwordx4 {vr(vCON+4,4)}, v{vEO}, {sr(Q1,4)}, 0 offen')
    srd(Q1, 14, size=128)
    I(f'buffer_load_dwordx4 {vr(vCON+8,4)}, v{vEO}, {sr(Q1,4)}, 0 offen')
    I(f's_lshl_b32 s{sC}, s{sE0}, 5'); I(f's_lshl_b32 s{sD}, s{sNE}, 5')
    srd(Q3, 12, off_s=sC, size_s=sD)
    nin = [0]
    def ea_in(k):
        for _ in range(k):
            j = nin[0]
            if j >= 13: return
            I(f's_add_u32 m0, s{sEB}, {8192*j}')
            if j: I(f'v_add_u32 v{vEO}, 8192, v{vEO}')
            else: I('s_nop 0')
            I(f'buffer_load_dwordx4 v{vEO}, {sr(Q3,4)}, 0 offen{nt} lds')
            nin[0] += 1
    ea_in(opt.a0)
    srd(sEAS, 24, off_s=sC, off_imm=WS_EA, size_s=sD)
    I(f's_mul_i32 s{sC}, s{sE0}, 12'); I(f's_mul_i32 s{sD}, s{sNE}, 12')
    srd(Q0, 24, off_s=sC, off_imm=WS_MO, size_s=sD)
    srd(sOFF, 24, off_imm=WS_OFF, size=524288)
    srd(Q2, 22, size=256)
    for m in range(7):
        I(f'v_add_u32 v{vT+10}, {512*m}, v0')
        I(f'v_cmp_gt_u32 {sr(sVM+2*m,2)}, s{sNE}, v{vT+10}')
    I(f'v_mov_b32 v{vT+9}, 1')
    I(f's_mov_b32 s{sC}, {SPLIT}')
    I(f's_mov_b32 s{sD}, {-32*NB if opt.rot else 0}')
    vBN = vT + 20
    I(f'v_mov_b32 v{vT+12}, {L_HIST}')
    I(f'v_mov_b32 v{vT+13}, {L_HIST+1024}')
    I(f's_waitcnt vmcnt({10+nin[0]})')
    for m in range(7):
        I(f'v_mul_u32_u24 v{vBK+m}, 42800, v{vDST+m}')
        I(f'v_lshrrev_b32 v{vT+10}, 27, v{vBK+m}')
        I(f'v_mad_i32_i24 v{vT+10}, v{vT+10}, s{sD}, v{vSRC+m}')
        I(f'v_add_u32 v{vT+11}, {N}, v{vT+10}')
        I(f'v_min_u32 v{vBN+m}, v{vT+10}, v{vT+11}')
        I(f'v_cmp_le_u32 {sr(sA,2)}, s{sC}, v{vBN+m}')
        I(f'v_lshrrev_b32 v{vBK+m}, 22, v{vBK+m}')
        I(f'v_mul_u32_u24 v{vT+10}, {NB}, v{vBK+m}')
        I(f'v_sub_u32 v{vDST+m}, v{vDST+m}, v{vT+10}')
        I(f'v_cndmask_b32 v{vT+11}, v{vT+12}, v{vT+13}, {sr(sA,2)}')
        I(f'v_lshl_add_u32 v{vBK+m}, v{vBK+m}, 2, v{vT+11}')
        I(f's_mov_b64 exec, {sr(sVM+2*m,2)}')
        I(f'ds_add_rtn_u32 v{vRK+m}, v{vBK+m}, v{vT+9}')
        I('s_mov_b64 exec, -1')
    ea_in(opt.a1)
    C('key = bin<<27 | static wave<<24 | src<<9 | dlocal<<2')
    for m in range(7):
        I(f'v_mul_u32_u24 v{vT+11}, 5350, v{vDST+m}')
        I(f'v_and_b32 v{vT+11}, 0x70000, v{vT+11}')
        if opt.bw == 1024: I(f'v_lshrrev_b32 v{vBN+m}, 10, v{vBN+m}')
        else:
            I(f'v_mul_u32_u24 v{vBN+m}, {BM}, v{vBN+m}')
            I(f'v_lshrrev_b32 v{vBN+m}, 24, v{vBN+m}')
        I(f'v_lshl_or_b32 v{vT+11}, v{vBN+m}, 19, v{vT+11}')
        I(f'v_lshlrev_b32 v{vT+11}, 8, v{vT+11}')
        I(f'v_lshl_add_u32 v{vT+11}, v{vDST+m}, 2, v{vT+11}')
        I(f'v_lshl_add_u32 v{vSRC+m}, v{vSRC+m}, 9, v{vT+11}')
    I(f'v_lshlrev_b32 v{vT+16}, 4, v{vLANE}')
    I(f'v_add_u32 v{vT+16}, {L_HIST}, v{vT+16}')
    I('s_waitcnt lgkmcnt(0)')
    I('s_barrier')
    stamp(1, VST)
    C('every wave scans the histogram and writes the (identical) start table')
    cnt, st = vT + 28, vT + 20
    I(f'ds_read_b128 {vr(cnt,4)}, v{vT+16}')
    I(f'ds_read_b128 {vr(cnt+4,4)}, v{vT+16} offset:1024')
    I('s_waitcnt lgkmcnt(0)')
    for h in range(2):
        I(f'v_add_u32 v{st+4*h+1}, v{cnt+4*h}, v{cnt+4*h+1}')
        I(f'v_add_u32 v{st+4*h+2}, v{st+4*h+1}, v{cnt+4*h+2}')
        I(f'v_add_u32 v{vT+12+h}, v{st+4*h+2}, v{cnt+4*h+3}')
    I(f'v_lshl_add_u32 v{vT+17}, v{vT+13}, 16, v{vT+12}')
    I(f'v_mov_b32 v{vT+18}, v{vT+17}')
    wave_scan(vT + 18)
    I(f'v_sub_u32 v{vT+17}, v{vT+18}, v{vT+17}')
    I(f'v_readlane_b32 s{sA}, v{vT+18}, 63')
    I(f'v_and_b32 v{st}, 0xffff, v{vT+17}')
    I(f'v_lshrrev_b32 v{st+4}, 16, v{vT+17}')
    I(f's_and_b32 s{sA}, s{sA}, 0xffff')
    I(f'v_add_u32 v{st+4}, s{sA}, v{st+4}')
    for h in range(2):
        I(f'v_add_u32 v{st+4*h+3}, v{st+4*h}, v{st+4*h+2}')
        I(f'v_add_u32 v{st+4*h+2}, v{st+4*h}, v{st+4*h+1}')
        I(f'v_add_u32 v{st+4*h+1}, v{st+4*h}, v{cnt+4*h}')
        I(f'ds_write_b128 v{vT+16}, {vr(st+4*h,4)} offset:{2048+1024*h}')
    for m in range(7):
        I(f'ds_read_b32 v{vBK+m}, v{vBK+m} offset:2048')
    ea_in(opt.a2)
    I(f's_mov_b32 s{sC}, {L_MI}')
    I(f's_mov_b32 s{sD}, {L_INV}')
    I(f's_waitcnt vmcnt({3+nin[0]}) lgkmcnt(0)')
    for m in range(7):
        I(f'v_add_u32 v{vRK+m}, v{vRK+m}, v{vBK+m}')
        I(f'v_mad_u32_u24 v{vBK+m}, v{vRK+m}, 12, s{sC}')
        I(f'v_lshl_add_u32 v{vRK+m}, v{vRK+m}, 1, s{sD}')
        I(f'v_add_u32 v{vDST+m}, {512*m}, v0')
    for m in range(7):
        I(f's_mov_b64 exec, {sr(sVM+2*m,2)}')
        I(f'ds_write_b16 v{vRK+m}, v{vDST+m}')
        I(f'ds_write2_b32 v{vBK+m}, v{vSH+2*m}, v{vSH+2*m+1} offset0:0 offset1:1')
        I(f'ds_write_b32 v{vBK+m}, v{vSRC+m} offset:8')
    I('s_mov_b64 exec, -1')
    ea_in(opt.a3)
    I(f'v_lshlrev_b32 v{vSO}, 4, v0')
    I(f'v_add_u32 v{vT+10}, {L_MI}, v{vSO}')
    I(f'v_and_b32 v{vT+8}, 0x1fe, v0')
    I(f'v_add_u32 v{vT+8}, {L_INV}, v{vT+8}')
    I('s_waitcnt lgkmcnt(0)')
    I('s_barrier')
    stamp(2, VST)
    C('meta image and run table -> global')
    for j in range(5):
        I(f'ds_read_b128 {vr(vMO+4*j,4)}, v{vT+10} offset:{8192*j}')
    for j in range(5):
        I(f's_waitcnt lgkmcnt({4-j})')
        I(f'buffer_store_dwordx4 {vr(vMO+4*j,4)}, v{vSO}, {sr(Q0,4)}, 0 offen sc1')
        if j < 4: I(f'v_add_u32 v{vSO}, 8192, v{vSO}')
    for j in range(13):
        I(f'ds_read_u16 v{vIA+j}, v{vT+8} offset:{512*j}')
    I(f's_cmp_lg_u32 s{sW}, 7')
    I('s_cbranch_scc1 L1_nooff')
    C('OFF[bucket/4][chunk][phase][bucket%4] = start | len<<16')
    I(f's_lshl_b32 s{sA}, s{sBK}, {11 if opt.offl else 5}')
    I(f'v_lshlrev_b32 v{vT+17}, {4 if opt.offl else 13}, v{vLANE}')
    I(f'v_add_u32 v{vT+17}, s{sA}, v{vT+17}')
    for i in range(8):
        I(f'v_lshl_add_u32 v{cnt+i}, v{cnt+i}, 16, v{st+i}')
    for h in range(2):
        I(f'buffer_store_dwordx4 {vr(cnt+4*h,4)}, v{vT+17}, {sr(sOFF,4)}, 0 offen offset:{(1024 if opt.offl else 16)*h} sc1')
    L('L1_nooff')
    I(f'v_mov_b32 v{vT+2}, 0')
    I(f's_cmp_lg_u32 s{sW}, 0')
    I('s_cbranch_scc1 L1_noflag')
    I(f'buffer_load_dword v{vT+3}, v{vT+2}, {sr(Q2,4)}, 0 offen sc1')
    L('L1_noflag')
    n0 = nin[0]
    ea_in(opt.a4)
    n4 = nin[0] - n0
    I(f'v_and_b32 v{vT+9}, 1, v0')
    I(f'v_lshlrev_b32 v{vT+9}, 4, v{vT+9}')
    I('s_waitcnt lgkmcnt(0)')
    for j in range(13):
        I(f'v_lshl_add_u32 v{vIA+j}, v{vIA+j}, 5, v{vT+9}')
    I(f's_waitcnt vmcnt({n4})')
    I('s_barrier')
    stamp(3, VST)
    def arrive(tag, base):
        I(f's_bfe_u32 s{sA}, s2, 0x30003')
        I(f's_lshl_b32 s{sA}, s{sA}, 8')
        I(f's_add_u32 s{sA}, s{sA}, {base}')
        I(f'v_lshl_add_u32 v{vGT}, v0, 11, s{sA}')
        I(f'v_mov_b32 v{vAD}, 1')
        I('s_mov_b64 exec, 0xff')
        I(f'buffer_atomic_add v{vAD}, v{vGT}, {sr(sSYN,4)}, 0 offen sc1')
        I('s_mov_b64 exec, -1')
    def poll(tag, base, part=3):
        if part & 1: poll_addr(base)
        if part == 1:
            I(f'buffer_load_dword v{vAD}, v{vGT}, {sr(sSYN,4)}, 0 offen sc1')
            return
        poll_loop(tag, part == 2)
    def poll_addr(base):
        I(f's_and_b32 s{sA}, s2, 7')
        I(f's_lshl_b32 s{sA}, s{sA}, 11')
        I(f's_add_u32 s{sA}, s{sA}, {base}')
        I(f'v_and_b32 v{vGT}, 7, v0')
        I(f'v_lshl_add_u32 v{vGT}, v{vGT}, 8, s{sA}')
    def poll_loop(tag, issued):
        I(f's_mov_b32 s{sB}, 0')
        if issued: I(f's_branch L_pollw{tag}')
        L(f'L_poll{tag}')
        I(f'buffer_load_dword v{vAD}, v{vGT}, {sr(sSYN,4)}, 0 offen sc1')
        L(f'L_pollw{tag}')
        I(f's_add_u32 s{sB}, s{sB}, 1')
        I('s_waitcnt vmcnt(0)')
        I(f'v_cmp_ne_u32 vcc, 32, v{vAD}')
        I('s_cmp_eq_u64 vcc, 0')
        I(f's_cbranch_scc1 L_polled{tag}')
        I(f's_sleep {opt.slp}')
        I(f's_cmp_lt_u32 s{sB}, {SPIN}')
        I(f's_cbranch_scc1 L_poll{tag}')
        L(f'L_polled{tag}')
    I(f's_cmp_lg_u32 s{sW}, 0')
    I('s_cbranch_scc1 L1_arrived')
    I(f's_mov_b32 s{sB}, 0')
    L('L1_flag')
    I(f'v_readfirstlane_b32 s{sA}, v{vT+3}')
    I(f's_cmp_eq_u32 s{sA}, 1')
    I('s_cbranch_scc1 L1_flagok')
    I(f'buffer_load_dword v{vT+3}, v{vT+2}, {sr(Q2,4)}, 0 offen sc1')
    I(f's_add_u32 s{sB}, s{sB}, 1')
    I('s_waitcnt vmcnt(0)')
    I(f's_cmp_lt_u32 s{sB}, {SPIN}')
    I('s_cbranch_scc1 L1_flag')
    L('L1_flagok')
    arrive('A', 0)
    L('L1_arrived')
    ea_in(13)
    def prefill():
        C('prefill KI with null entries, SLOT with the dummy slot, zero CNT')
        for i in range(4): I(f'v_mov_b32 v{vT+4+i}, 0x{NULLKI:x}')
        I(f'v_lshlrev_b32 v{vT}, 4, v0')
        I(f'v_add_u32 v{vT}, {L_KI}, v{vT}')
        I(f'ds_write_b128 v{vT}, {vr(vT+4,4)}')
        I(f'v_cmp_gt_u32 vcc, {(CAPX*4-8192)//16}, v0')
        I('s_and_b64 exec, exec, vcc')
        I(f'ds_write_b128 v{vT}, {vr(vT+4,4)} offset:8192')
        I('s_mov_b64 exec, -1')
        I(f'v_mov_b32 v{vT+8}, 0x{DUMMY*0x01010101:x}')
        I(f'v_cmp_gt_u32 vcc, {3648//16}, v0')
        I(f'v_add_u32 v{vT}, {L_SLOT-L_KI}, v{vT}')
        I('s_nop 0')
        I(f'v_cndmask_b32 v{vT+8}, 0, v{vT+8}, vcc')
        for i in range(1, 4): I(f'v_mov_b32 v{vT+8+i}, v{vT+8}')
        I(f'v_cmp_gt_u32 vcc, {3648//16+96}, v0')
        I('s_and_b64 exec, exec, vcc')
        I(f'ds_write_b128 v{vT}, {vr(vT+8,4)}')
        I('s_mov_b64 exec, -1')
    prefill()
    C('stage the constants')
    I(f'v_lshrrev_b32 v{vT+12}, 3, v0')
    I(f'v_mul_u32_u24 v{vT+12}, {TP}, v{vT+12}')
    I(f'v_and_b32 v{vT+3}, 7, v0')
    I(f'v_lshl_add_u32 v{vT+12}, v{vT+3}, 4, v{vT+12}')
    I(f'v_add_u32 v{vT+12}, {L_WO}, v{vT+12}')
    I(f's_mov_b32 s{sA}, 0x05040100')
    I(f's_mov_b32 s{sB}, 0x07060302')
    I(f'v_perm_b32 v{vT+4}, v{vCON+1}, v{vCON}, s{sA}')
    I(f'v_perm_b32 v{vT+5}, v{vCON+3}, v{vCON+2}, s{sA}')
    I(f'v_perm_b32 v{vT+6}, v{vCON+1}, v{vCON}, s{sB}')
    I(f'v_perm_b32 v{vT+7}, v{vCON+3}, v{vCON+2}, s{sB}')
    I(f'ds_write_b128 v{vT+12}, {vr(vT+4,4)}')
    I('v_cmp_gt_u32 vcc, 0x80, v0')
    I('s_and_b64 exec, exec, vcc')
    I(f'ds_write_b128 v{vT+12}, {vr(vCON+4,4)} offset:{L_WR-L_WO}')
    I('v_cmp_gt_u32 vcc, 8, v0')
    I('s_and_b64 exec, exec, vcc')
    I(f'ds_write_b128 v{vT+12}, {vr(vCON+8,4)} offset:{L_CG-L_WO}')
    I('s_mov_b64 exec, -1')
    srd(sMO, 24, off_imm=WS_MO, size=E * 12)
    srd(sEAO, 24, off_imm=WS_EA, size=E * 32)
    srd(sOUT, 20, size=N * 512)
    srd(sX, 4, size=N * 512)
    I(f's_mov_b32 s{sXSZ}, 0x{0 if opt.exp == 1 else N*512:x}')
    I(f's_mov_b32 s{sRC}, {RCAP}')
    I(f's_mov_b32 s{sR0}, 0')
    I(f's_mov_b32 s{sFIRST}, 1')
    C('run table address, x prefetch offsets')
    I(f'v_and_b32 v{vT+1}, 0xff, v0')
    I(f's_lshr_b32 s{sA}, s{sBK}, 2')
    I(f's_lshl_b32 s{sA}, s{sA}, 11')
    I(f's_and_b32 s{sB}, s{sBK}, 3')
    I(f's_add_u32 s{sA}, s{sA}, s{sB}')
    I(f's_lshl_b32 s{sA}, s{sA}, 2')
    I(f'v_mul_u32_u24 v{vG0}, {CH}, v{vT+1}')
    if opt.offl: I(f's_lshl_b32 s{sA}, s{sBK}, 2')
    I(f'v_lshl_add_u32 v{vOFA}, v{vT+1}, {11 if opt.offl else 5}, s{sA}')
    I(f'v_lshrrev_b32 v{vT+3}, 8, v0')
    I(f'v_lshl_add_u32 v{vOFA}, v{vT+3}, {10 if opt.offl else 4}, v{vOFA}')
    LA = opt.la; LB = opt.lb
    I(f'v_mov_b32 v{vT+14}, 0x80000000')
    if opt.rot:
        I(f's_lshr_b32 s{sC}, s{sBK}, 5')
        I(f's_mul_i32 s{sC}, s{sC}, {32*NB*512}')
        I(f's_and_b32 s{sD}, s{sBK}, 31')
        NG = 32
    else:
        I(f's_mov_b32 s{sC}, 0')
        I(f's_mov_b32 s{sD}, s{sBK}')
        NG = 256
    I(f's_mul_i32 s{sA}, s{sD}, {LB<<opt.pfs}')
    I(f's_add_u32 s{sA}, s{sA}, {NG*LA*128}')
    I(f's_add_u32 s{sA}, s{sA}, s{sC}')
    I(f'v_sub_u32 v{vT+15}, 511, v0')
    I(f'v_cmp_gt_u32 vcc, {LB}, v{vT+15}')
    I(f'v_lshlrev_b32 v{vT+13}, {opt.pfs}, v{vT+15}')
    I(f'v_add_u32 v{vPF2}, s{sA}, v{vT+13}')
    I(f'v_cndmask_b32 v{vPF2}, v{vT+14}, v{vPF2}, vcc')
    I(f'v_cmp_gt_u32 vcc, {LA}, v{vT+15}')
    I(f's_mul_i32 s{sA}, s{sD}, {LA*128}')
    I(f's_add_u32 s{sA}, s{sA}, s{sC}')
    I(f'v_add_u32 v{vPF1}, s{sA}, v{vT+13}')
    I(f'v_cndmask_b32 v{vPF1}, v{vT+14}, v{vPF1}, vcc')
    nst = [0]
    def ea_out(k, tag, lg=False):
        if k == 0: return
        if nst[0] >= 13: return
        I(f's_cmp_lg_u32 s{sFIRST}, 1')
        I(f's_cbranch_scc1 L2_noout{tag}')
        I(f'v_lshlrev_b32 v{vSO}, 4, v0')
        first = True
        for _ in range(k):
            j = nst[0]
            if j >= 13: break
            if j: I(f'v_add_u32 v{vSO}, {8192*j if first else 8192}, v{vSO}')
            first = False
            if lg: I(f's_waitcnt lgkmcnt({12-j})')
            if opt.pace and j >= opt.pace: I(f's_waitcnt vmcnt({opt.pace-1})')
            I(f'buffer_store_dwordx4 {vr(vED+4*j,4)}, v{vSO}, {sr(sEAS,4)}, 0 offen sc1')
            nst[0] += 1
        L(f'L2_noout{tag}')
    def xpf(at):
        for reg, pos in ((vPF1, opt.x1), (vPF2, opt.x2)):
            if opt.xpf and pos == at:
                C('pull a share of x towards the chip (one dword per line)')
                I(f's_cmp_eq_u32 s{sFIRST}, 0')
                I(f's_cbranch_scc1 L2_nopf{reg}')
                I(f'buffer_load_dword v{vNUL}, v{reg}, {sr(sX,4)}, 0 offen')
                L(f'L2_nopf{reg}')
    nea = [0]
    def early_static(k=None):
        for _ in range(opt.u if k is None else k):
            j = nea[0]; nea[0] += 1
            I(f's_add_u32 m0, s{sEB}, {8192*j}')
            I('s_nop 0')
            I(f'buffer_load_dwordx4 v{vGA+j}, {sr(sEAO,4)}, 0 offen sc1 lds')
    def bar_b(at):
        if opt.pob == at:
            assert opt.arb < at
            I(f's_cmp_eq_u32 s{sFIRST}, 0')
            I('s_cbranch_scc1 L_polledB')
            I(f's_cmp_lg_u32 s{sW}, 0')
            I('s_cbranch_scc1 L_polledB')
            poll('B', 16384, 2 if opt.pre else 3)
        if opt.arb == at:
            assert nst[0] >= 13
            I(f's_waitcnt vmcnt({7 if at == 6 else 0}) lgkmcnt(0)')
        else:
            I('s_waitcnt lgkmcnt(0)')
        I('s_barrier')
        if at != 6: stamp(at, VST)
        if opt.pob == at and not (opt.dl and at == 9): early_static()
        if opt.arb == at:
            I(f's_cmp_lg_u32 s{sFIRST}, 1')
            I('s_cbranch_scc1 L2_arrivedB')
            I(f's_mov_b32 s{sFIRST}, 2')
            I(f's_cmp_lg_u32 s{sW}, 0')
            I('s_cbranch_scc1 L2_arrivedB')
            arrive('B', 16384)
            L('L2_arrivedB')
    xpf(99)
    I('s_waitcnt lgkmcnt(0)')
    I('s_barrier')
    C('constant operands and one-time setup')
    I(f'v_bfe_u32 v{vT}, v0, 5, 1')
    I(f'v_bfe_u32 v{vT+1}, v0, 2, 2')
    I(f'v_lshl_add_u32 v{vT}, v{vT}, 3, v{vT+1}')
    I(f'v_mul_u32_u24 v{vT}, {TP}, v{vT}')
    I(f'v_add_u32 v{vT}, {L_WO}, v{vT}')
    I(f'v_bfe_u32 v{vT+2}, v0, 4, 1')
    I(f'v_and_b32 v{vT+3}, 3, v0')
    I(f'v_lshl_add_u32 v{vT+4}, v{vT+2}, 5, v{vT}')
    I(f'v_lshl_add_u32 v{vT+4}, v{vT+3}, 3, v{vT+4}')
    I(f'v_lshl_add_u32 v{vT+5}, v{vT+2}, 6, v{vT}')
    I(f'v_lshl_add_u32 v{vT+5}, v{vT+3}, 4, v{vT+5}')
    I(f'v_lshlrev_b32 v{vT+1}, 3, v{vT+1}')
    I(f'v_add_u32 v{vT+1}, {L_CG}, v{vT+1}')
    for h in range(2):
        for i in range(2):
            I(f'ds_read_b64_tr_b16 {vr(vBE+4*h+2*i,2)}, v{vT+4} offset:{L_WR-L_WO+4*i*TP+64*h}')
    for u in range(4):
        I(f'ds_read_b64_tr_b16 {vr(vCG+2*u,2)}, v{vT+1} offset:{32*u}')
    for tile in range(2):
        I('s_waitcnt lgkmcnt(4)')
        for s in range(4):
            for i in range(2):
                I(f'ds_read_b64_tr_b16 {vr(vWA+16*tile+4*s+2*i,2)}, v{vT+5} offset:{(16*s+4*i)*TP+8*tile}')
    I(f's_mov_b32 s{sM0}, 0x0f0f0f0f'); I(f's_mov_b32 s{sM0+1}, 0x0f0f0f0f')
    I(f's_mov_b32 s{sM1}, 0xf0f0f0f0'); I(f's_mov_b32 s{sM1+1}, 0xf0f0f0f0')
    for r in range(8): I(f'v_mov_b32 v{vA1+r}, 0')
    I(f'v_and_b32 v{vLS}, 31, v0')
    I(f'v_lshlrev_b32 v{vLS}, 4, v{vLS}')
    C('swizzled lane offset inside a row, transposing-read address')
    I(f'v_bfe_u32 v{vT}, v0, 4, 1')
    I(f'v_lshlrev_b32 v{vT}, 6, v{vT}')
    I(f'v_xor_b32 v{vLS}, v{vT}, v{vLS}')
    I(f'v_bfe_u32 v{vT}, v0, 4, 2')
    I(f'v_and_b32 v{vT+3}, 3, v0')
    I(f'v_lshlrev_b32 v{vT+3}, 3, v{vT+3}')
    I(f'v_lshl_add_u32 v{vT}, v{vT}, 5, v{vT+3}')
    I(f'v_bfe_u32 v{vT+3}, v0, 3, 1')
    I(f'v_lshlrev_b32 v{vT+3}, 6, v{vT+3}')
    I(f'v_xor_b32 v{vT}, v{vT}, v{vT+3}')
    I(f'v_bfe_u32 v{vT+3}, v0, 2, 2')
    I(f'v_lshl_add_u32 v{vT}, v{vT+3}, 7, v{vT}')
    I(f's_mul_i32 s3, s{sW}, 6144')
    I(f's_add_u32 s3, s3, {L_RING}')
    for d in range(3):
        I(f's_add_u32 s{sRG+d}, s3, {2048*d}')
        I(f'v_add_u32 v{vRD+d}, s{sRG+d}, v{vT}')
    C('epilogue staging addresses')
    vTW, vTR = 180, 181
    I(f'v_mul_u32_u24 v{vTW}, {TC}, v{vLANE}')
    I(f'v_add_u32 v{vTW}, s3, v{vTW}')
    I(f'v_bfe_u32 v{vT}, v0, 5, 1')
    I(f'v_bfe_u32 v{vT+3}, v0, 2, 2')
    I(f'v_lshl_add_u32 v{vTR}, v{vT}, 3, v{vT+3}')
    I(f'v_mul_u32_u24 v{vTR}, {TC}, v{vTR}')
    I(f'v_bfe_u32 v{vT+3}, v0, 4, 1')
    I(f'v_lshl_add_u32 v{vTR}, v{vT+3}, 5, v{vTR}')
    I(f'v_and_b32 v{vT+3}, 3, v0')
    I(f'v_lshl_add_u32 v{vTR}, v{vT+3}, 3, v{vTR}')
    I(f'v_add_u32 v{vTR}, s3, v{vTR}')
    stamp(4, VST)
    I(f's_cmp_lg_u32 s{sW}, 0')
    I('s_cbranch_scc1 L_polledA')
    poll('A', 0)
    I(f's_waitcnt vmcnt({(opt.xpf and opt.x1 == 99)+(opt.xpf and opt.x2 == 99)}) lgkmcnt(0)')
    I('s_barrier')
    stamp(5, VST)
    C('==== phase B: every chunk has published its keys; this chunk\'s features are in LDS')
    F = vT + 16
    I(f'buffer_load_dword v{F}, v{vOFA}, {sr(sOFF,4)}, 0 offen sc1')
    for j in range(13):
        I(f'ds_read_b128 {vr(vED+4*j,4)}, v{vIA+j}')
    xpf(0)
    ea_out(opt.s0b, '0b', lg=True)
    I(f's_waitcnt vmcnt({nst[0]+(opt.xpf and opt.x1 == 0)+(opt.xpf and opt.x2 == 0)})')
    C('run lengths -> prefix')
    I(f'v_lshrrev_b32 v{vLEN}, 16, v{F}')
    I(f'v_and_b32 v{F}, 0xffff, v{F}')
    I(f'v_mov_b32 v{vT}, v{vLEN}')
    I(f'v_add_u32 v{vG0}, v{vG0}, v{F}')
    I(f'v_lshl_or_b32 v{vGL}, v{vLEN}, 20, v{vG0}')
    wave_scan(vT)
    I(f's_lshl_b32 s{sA}, s{sW}, 2')
    I(f's_add_u32 s{sA}, s{sA}, {L_WT}')
    I(f'v_mov_b32 v{vT+1}, s{sA}')
    I(f'v_sub_u32 v{vPRE}, v{vT}, v{vLEN}')
    I('s_mov_b32 exec_lo, 0')
    I('s_brev_b32 exec_hi, 1')
    I(f'ds_write_b32 v{vT+1}, v{vT}')
    I('s_mov_b64 exec, -1')
    I(f'v_and_b32 v{vT+1}, 7, v0')
    I(f'v_lshlrev_b32 v{vT+1}, 2, v{vT+1}')
    I(f'v_add_u32 v{vT+1}, {L_WT}, v{vT+1}')
    I('s_waitcnt lgkmcnt(0)')
    I('s_barrier')
    I(f'ds_read_b32 v{vT+2}, v{vT+1}')
    I('s_waitcnt lgkmcnt(0)')
    I(f'v_mov_b32 v{vT+3}, v{vT+2}')
    for sh in (1, 2, 4):
        I('s_nop 1')
        I(f'v_add_u32_dpp v{vT+3}, v{vT+3}, v{vT+3} row_shr:{sh} row_mask:0xf bank_mask:0xf')
    I(f'v_sub_u32 v{vT+2}, v{vT+3}, v{vT+2}')
    I(f'v_readlane_b32 s{sTOT}, v{vT+3}, 7')
    I(f'v_readlane_b32 s{sA}, v{vT+2}, s{sW}')
    I(f'v_readlane_b32 s{sT0}, v{vT+3}, 3')
    I('s_nop 0')
    I(f'v_add_u32 v{vPRE}, s{sA}, v{vPRE}')
    ea_out(opt.sx, 'x')
    L('L2_round')
    I(f's_sub_u32 s{sCNT}, s{sTOT}, s{sR0}')
    I(f's_min_u32 s{sCNT}, s{sCNT}, s{sRC}')
    I(f'v_and_b32 v{vLANE}, 63, v0')
    I(f'v_lshrrev_b32 v{vLEN}, 20, v{vGL}')
    I(f'v_and_b32 v{vG0}, 0xfffff, v{vGL}')
    C('expand: GIDX[pre+k-r0] = g0+k for k in window')
    I(f'v_sub_u32 v{vT+1}, s{sR0}, v{vPRE}')
    I(f'v_max_i32 v{vT+2}, 0, v{vT+1}')
    I(f'v_add_u32 v{vT+3}, s{sRC}, v{vT+1}')
    I(f'v_min_i32 v{vT+3}, v{vT+3}, v{vLEN}')
    I(f'v_sub_u32 v{vT+4}, v{vT+2}, v{vT+1}')
    I(f'v_lshlrev_b32 v{vT+4}, 2, v{vT+4}')
    I(f'v_add_u32 v{vT+4}, {L_GI}, v{vT+4}')
    I(f'v_add_u32 v{vT+5}, v{vG0}, v{vT+2}')
    I(f'v_add_u32 v{vT+3}, v{vG0}, v{vT+3}')
    L('L2_exp')
    for j in range(4):
        I(f'v_cmpx_lt_i32 vcc, v{vT+5}, v{vT+3}')
        I(f'ds_write_b32 v{vT+4}, v{vT+5} offset:{4*j}')
        I(f'v_add_u32 v{vT+5}, 1, v{vT+5}')
    I(f'v_add_u32 v{vT+4}, 16, v{vT+4}')
    I('s_cbranch_execnz L2_exp')
    I('s_mov_b64 exec, -1')
    ea_out(opt.sy, 'y')
    C('slots past the end of the window get an out-of-range record number')
    I(f'v_lshlrev_b32 v{vT}, 2, v0')
    I(f'v_add_u32 v{vT}, {L_GI}, v{vT}')
    I(f'v_mov_b32 v{vT+2}, 0x1000000')
    for m in range(7):
        I(f'v_add_u32 v{vT+1}, {512*m}, v0')
        I(f'v_cmp_gt_u32 {sr(sVM+2*m,2)}, s{sCNT}, v{vT+1}')
    for m in range(7):
        I(f's_not_b64 exec, {sr(sVM+2*m,2)}')
        I(f's_cbranch_scc0 L2_nomark{m}')
        I(f'ds_write_b32 v{vT}, v{vT+2} offset:{2048*m}')
        L(f'L2_nomark{m}')
    I('s_mov_b64 exec, -1')
    I(f'v_lshrrev_b32 v{vT+3}, 1, v0')
    I(f'v_lshlrev_b32 v{vT+3}, 2, v{vT+3}')
    I(f'v_add_u32 v{vT+3}, {L_GI}, v{vT+3}')
    I(f'v_and_b32 v{vT+4}, 1, v0')
    I(f'v_lshlrev_b32 v{vT+4}, 4, v{vT+4}')
    I('s_waitcnt lgkmcnt(0)')
    I('s_barrier')
    stamp(6, VST)
    C('record loads')
    G = vT + 6
    for m in range(7):
        I(f'ds_read_b32 v{G+m}, v{vT} offset:{2048*m}')
    for j in range(0, 14, 2):
        I(f'ds_read2st64_b32 {vr(vGA+j,2)}, v{vT+3} offset0:{4*j} offset1:{4*j+4}')
    ea_out(opt.sz, 'z')
    for m in range(7):
        I(f's_waitcnt lgkmcnt({13-m})')
        I(f'v_lshlrev_b32 v{vT+1}, 2, v{G+m}')
        I(f'v_lshl_add_u32 v{vT+1}, v{G+m}, 3, v{vT+1}')
        I(f'buffer_load_dwordx3 {vr(vME+4*m,3)}, v{vT+1}, {sr(sMO,4)}, 0 offen sc1')
    I('s_waitcnt lgkmcnt(0)')
    for j in range(14):
        I(f'v_lshl_add_u32 v{vGA+j}, v{vGA+j}, 5, v{vT+4}')
    n0 = nst[0]
    if opt.s0c:
        I(f's_cmp_eq_u32 s{sFIRST}, 1')
        I('s_cbranch_scc1 L2_more')
        I('s_waitcnt vmcnt(0)')
        L('L2_more')
        ea_out(opt.s0c, '0c')
    nc = nst[0] - n0
    I(f'v_mov_b32 v{vGT}, 0x80000000')
    if opt.arb == 6: bar_b(6)
    for reg, pos in ((vPF1, opt.x1), (vPF2, opt.x2)):
        if opt.xpf and pos == 6:
            C('pull a share of x towards the chip (one dword per line; later rounds: a harmless range-checked read)')
            I(f'buffer_load_dword v{vNUL}, v{reg}, {sr(sX,4)}, 0 offen')
            nc += 1
    assert opt.arb == 6
    I(f's_cmp_eq_u32 s{sFIRST}, 0')
    I('s_cbranch_scc1 L2_zeroed')
    for r in range(0, 68, 2): I(f'v_mov_b64 {vr(vACC+r,2)}, 0')
    L('L2_zeroed')
    C('even split of the window: wave(q) = q*M >> 20 with M = 2^23/(count+1), q = position in node order')
    I(f's_add_u32 s{sA}, s{sCNT}, 1')
    I(f'v_cvt_f32_u32 v{vT}, s{sA}')
    I(f'v_rcp_f32 v{vT}, v{vT}')
    I(f'v_mov_b32 v{vT+2}, 1')
    I(f'v_mul_f32 v{vT}, 0x4b000000, v{vT}')
    I(f'v_cvt_u32_f32 v{vT}, v{vT}')
    I(f'v_lshlrev_b32 v{vT+1}, 3, v{vLANE}')
    I(f'v_readfirstlane_b32 s{sMG}, v{vT}')
    I(f'v_add_u32 v{vT+1}, {L_NC}, v{vT+1}')
    C('lane parts of the read-back addresses')
    vRA = vT + 24
    I(f'v_bfe_u32 v{vT+3}, v0, 3, 1')
    I(f'v_bfe_u32 v{vT+4}, v0, 5, 1')
    I(f'v_lshl_add_u32 v{vT+3}, v{vT+3}, 1, v{vT+4}')
    I(f'v_and_b32 v{vT+4}, 7, v0')
    I(f'v_add_u32 v{vRA+4}, -1, v{vT+4}')
    if opt.spread: I(f'v_cmp_gt_u32 {sr(sL7,2)}, 4, v{vRA+4}')
    else: I(f'v_cmp_eq_u32 {sr(sL7,2)}, 7, v{vT+4}')
    I(f'v_lshl_add_u32 v{vT+3}, v{vT+3}, 3, v{vT+4}')
    I(f'v_lshlrev_b32 v{vRA}, 2, v{vT+3}')
    I(f'v_and_b32 v{vT+4}, 3, v0')
    I(f'v_lshrrev_b32 v{vT+3}, 2, v{vLANE}')
    I(f'v_lshl_add_u32 v{vT+3}, v{vT+4}, 4, v{vT+3}')
    I(f'v_lshlrev_b32 v{vRA+1}, 3, v{vT+3}')
    I(f'v_lshlrev_b32 v{vRA+2}, 4, v{vLANE}')
    I(f'v_bfe_u32 v{vT+3}, v0, 3, 2')
    I(f'v_lshl_add_u32 v{vT+3}, v{vT+3}, 2, v{vT+4}')
    I(f'v_lshlrev_b32 v{vRA+3}, 2, v{vT+3}')
    I(f'v_lshlrev_b32 v{vT}, 4, v{vLANE}')
    I(f'v_add_u32 v{vT}, {L_CNT}, v{vT}')
    I(f'v_lshlrev_b32 v{vT+4}, 17, v0')
    I(f's_mov_b32 s{sC}, {L_CNT}')
    C('rank inside the destination node')
    vBA_ = vT + 30
    for m in range(7):
        I(f's_waitcnt vmcnt({6-m+nc})')
        I(f'v_and_b32 v{vCL+m}, 0x1fc, v{vME+4*m+2}')
        I(f'v_add_u32 v{vCL+m}, {L_NC}, v{vCL+m}')
        I(f's_mov_b64 exec, {sr(sVM+2*m,2)}')
        I(f'ds_add_rtn_u32 v{vRK+m}, v{vCL+m}, v{vT+2}')
        I('s_mov_b64 exec, -1')
        I(f'v_bfe_u32 v{vT+3}, v{vME+4*m+2}, 9, {15 if opt.exp not in (2, 3) else (11 if opt.exp == 2 else 4)}')
        I(f'v_or_b32 v{vME+4*m+3}, v{vT+3}, v{vT+4}')
        I(f'v_lshrrev_b32 v{vT+3}, 27, v{vME+4*m+2}')
        I(f'v_lshl_add_u32 v{vBA_+m}, v{vT+3}, 2, s{sC}')
        I(f'v_and_b32 v{vME+4*m+2}, 0x0700003c, v{vME+4*m+2}')
        if m < 6: I(f'v_add_u32 v{vT+4}, {512<<17}, v{vT+4}')
    ea_out(opt.s1, 1)
    bar_b(7)
    C('node scan (every wave)')
    c0, s0, sn, sf = vT + 4, vT + 6, vT + 8, vT + 10
    I(f'ds_read_b64 {vr(c0,2)}, v{vT+1}')
    xpf(7)
    for m in range(7):
        I(f'v_mul_u32_u24 v{vRK+m}, s{sMG}, v{vRK+m}')
    I('s_waitcnt lgkmcnt(0)')
    I(f'v_add_u32 v{vT+3}, v{c0}, v{c0+1}')
    I(f'v_mov_b32 v{sn}, v{vT+3}')
    wave_scan(sn)
    I(f'v_sub_u32 v{s0}, v{sn}, v{vT+3}')
    I(f'v_add_u32 v{s0+1}, v{s0}, v{c0}')
    C('publish start*M, so that wave = (start*M + rank*M) >> 20')
    for r in (s0, s0 + 1, sn): I(f'v_mul_u32_u24 v{r}, s{sMG}, v{r}')
    I(f'ds_write_b64 v{vT+1}, {vr(s0,2)} offset:{L_NS-L_NC}')
    I(f'v_add_u32 v{vT+1}, {L_NS-L_NC}, v{vT+1}')
    I(f'ds_read2_b32 {vr(sf,2)}, v{vT+1} offset0:15 offset1:16')
    for m in range(7):
        I(f'ds_read_b32 v{vCL+m}, v{vCL+m} offset:{L_NS-L_NC}')
    for r in (s0, s0 + 1, sn): I(f'v_lshrrev_b32 v{r}, 20, v{r}')
    C('the even split needs: one round, every wave owns 1..15 nodes')
    I(f'v_sub_u32 v{vT+3}, v{s0+1}, v{s0}')
    I(f'v_sub_u32 v{sn}, v{sn}, v{s0+1}')
    I(f'v_max_u32 v{vT+3}, v{vT+3}, v{sn}')
    I(f'v_cmp_lt_u32 {sr(sA,2)}, 1, v{vT+3}')
    I(f'v_readlane_b32 s{sNB}, v{s0+1}, 48')
    I('s_waitcnt lgkmcnt(7)')
    for r in (sf, sf + 1): I(f'v_lshrrev_b32 v{r}, 20, v{r}')
    I(f'v_cmp_ge_u32 vcc, v{s0}, v{sf}')
    I(f'v_cmp_ge_u32 {sr(sC,2)}, v{s0+1}, v{sf+1}')
    I('s_and_b32 vcc_hi, vcc_hi, 0x3ff')
    I(f's_and_b32 s{sD}, s{sD}, 0x1ff')
    I(f's_or_b64 {sr(sA,2)}, {sr(sA,2)}, vcc')
    I(f's_or_b64 {sr(sA,2)}, {sr(sA,2)}, {sr(sC,2)}')
    I('s_cbranch_scc1 L2_static')
    I(f's_cmp_lg_u32 s{sNB}, 7')
    I('s_cbranch_scc1 L2_static')
    I(f's_cmp_lg_u32 s{sCNT}, s{sTOT}')
    I('s_cbranch_scc1 L2_static')
    if not opt.dyn: I('s_branch L2_static')
    I('s_waitcnt lgkmcnt(0)')
    for m in range(7):
        I(f'v_add_u32 v{vRK+m}, v{vRK+m}, v{vCL+m}')
        I(f'v_lshrrev_b32 v{vRK+m}, 20, v{vRK+m}')
        I(f'v_lshl_add_u32 v{vCL+m}, v{vRK+m}, 7, v{vBA_+m}')
    def cell_atomics():
        for m in range(7):
            I(f's_mov_b64 exec, {sr(sVM+2*m,2)}')
            I(f'ds_add_rtn_u32 v{vRK+m}, v{vCL+m}, v{vT+2}')
        I('s_mov_b64 exec, -1')
    cell_atomics()
    C('owned node range of this wave')
    I(f's_mov_b32 exec_hi, 0x1ffff')
    I(f'v_cmp_gt_u32 vcc, s{sW}, v{s0}')
    I(f's_bcnt1_i32_b64 s{sOF}, vcc')
    I(f'v_cmp_gt_u32 vcc, s{sW}, v{s0+1}')
    I(f's_bcnt1_i32_b64 s{sA}, vcc')
    I(f's_add_u32 s{sOF}, s{sOF}, s{sA}')
    I(f'v_cmp_ge_u32 vcc, s{sW}, v{s0}')
    I(f's_bcnt1_i32_b64 s{sON}, vcc')
    I(f'v_cmp_ge_u32 vcc, s{sW}, v{s0+1}')
    I(f's_bcnt1_i32_b64 s{sA}, vcc')
    I(f's_add_u32 s{sON}, s{sON}, s{sA}')
    I('s_mov_b64 exec, -1')
    I('s_branch L2_cells')
    L('L2_static')
    I(f's_mul_i32 s{sOF}, s{sW}, {NB}')
    I(f's_add_u32 s{sON}, s{sOF}, {NB+7}')
    I(f's_add_u32 s{sOF}, s{sOF}, 7')
    I(f's_lshr_b32 s{sOF}, s{sOF}, 3')
    I(f's_lshr_b32 s{sON}, s{sON}, 3')
    I('s_waitcnt lgkmcnt(0)')
    for m in range(7):
        I(f'v_lshrrev_b32 v{vRK+m}, 24, v{vME+4*m+2}')
        I(f'v_lshl_add_u32 v{vCL+m}, v{vRK+m}, 7, v{vBA_+m}')
    cell_atomics()
    L('L2_cells')
    ea_out(opt.s2, 2)
    bar_b(8)
    C('cell scan (every wave), lists padded to 16')
    cnt, st = vT + 14, vT + 18
    I(f'ds_read_b128 {vr(cnt,4)}, v{vT}')
    xpf(8)
    I(f's_mov_b32 s{sC}, {(L_KI - 4*L_SLOT) & 0xffffffff}')
    I(f's_mov_b32 s{sD}, {(L_SH - 8*L_SLOT) & 0xffffffff}')
    for m in range(7):
        I(f'v_add_u32 v{vRK+m}, {L_SLOT}, v{vRK+m}')
    I('s_waitcnt lgkmcnt(0)')
    I(f'v_add_u32 v{st+1}, v{cnt}, v{cnt+1}')
    I(f'v_add_u32 v{st+2}, v{st+1}, v{cnt+2}')
    I(f'v_add_u32 v{vT+1}, v{st+2}, v{cnt+3}')
    I('s_nop 1')
    I(f'v_add_u32_dpp v{vT+2}, v{vT+1}, v{vT+1} quad_perm:[1,0,3,2] row_mask:0xf bank_mask:0xf')
    I('s_nop 1')
    I(f'v_add_u32_dpp v{vT+2}, v{vT+2}, v{vT+2} quad_perm:[2,3,0,1] row_mask:0xf bank_mask:0xf')
    I('s_nop 1')
    I(f'v_add_u32_dpp v{vT+2}, v{vT+2}, v{vT+2} row_half_mirror row_mask:0xf bank_mask:0xf')
    I(f'v_add_u32 v{vT+3}, 15, v{vT+2}')
    I(f'v_and_b32 v{vT+3}, -16, v{vT+3}')
    I(f'v_sub_u32 v{vT+2}, v{vT+3}, v{vT+2}')
    if opt.spread:
        I(f'v_add_u32 v{vT+2}, v{vT+2}, v{vRA+4}')
        I(f'v_lshrrev_b32 v{vT+2}, 2, v{vT+2}')
    I(f'v_cndmask_b32 v{vT+2}, 0, v{vT+2}, {sr(sL7,2)}')
    I(f'v_add_u32 v{vT+1}, v{vT+1}, v{vT+2}')
    I(f'v_mov_b32 v{vT+2}, v{vT+1}')
    wave_scan(vT + 2)
    I(f'v_sub_u32 v{st}, v{vT+2}, v{vT+1}')
    I(f'v_add_u32 v{st+3}, v{st}, v{st+2}')
    I(f'v_add_u32 v{st+2}, v{st}, v{st+1}')
    I(f'v_add_u32 v{st+1}, v{st}, v{cnt}')
    I(f'ds_write_b128 v{vT}, {vr(st,4)} offset:{L_ST-L_CNT}')
    for m in range(7):
        I(f'ds_read_b32 v{vCL+m}, v{vCL+m} offset:{L_ST-L_CNT}')
    def pre_poll():
        if opt.pre:
            I(f's_cmp_eq_u32 s{sFIRST}, 0')
            I('s_cbranch_scc1 L2_nopre')
            I(f's_cmp_lg_u32 s{sW}, 0')
            I('s_cbranch_scc1 L2_nopre')
            poll('B', 16384, 1)
            L('L2_nopre')
    if opt.pob == 9: pre_poll()
    C('early-phase length of every list: start of bin SPLIT minus list start (in lane 8*wave)')
    sl_lane, sl_reg = opt.split >> 2, opt.split & 3
    if sl_lane: I(f'v_sub_u32_dpp v{vT+5}, v{st+sl_reg}, v{st} row_shl:{sl_lane} row_mask:0xf bank_mask:0xf')
    else: I(f'v_sub_u32 v{vT+5}, v{st+sl_reg}, v{st}')
    I(f's_lshl_b32 s{sA}, s{sW}, 3')
    I(f'v_readlane_b32 s{sNB}, v{vT+3}, s{sA}')
    I(f'v_readlane_b32 s{sI}, v{st}, s{sA}')
    for m in range(7):
        I(f's_waitcnt lgkmcnt({6-m})')
        I(f'v_add_u32 v{vRK+m}, v{vRK+m}, v{vCL+m}')
        I(f'v_lshl_add_u32 v{vCL+m}, v{vRK+m}, 2, s{sC}')
        I(f'v_lshl_add_u32 v{vBA_+m}, v{vRK+m}, 3, s{sD}')
    for m in range(7):
        I(f's_mov_b64 exec, {sr(sVM+2*m,2)}')
        I(f'ds_write_b32 v{vCL+m}, v{vME+4*m+3}')
        I(f'ds_write_b8 v{vRK+m}, v{vME+4*m+2}')
        I(f'ds_write_b64 v{vBA_+m}, {vr(vME+4*m,2)}')
    I('s_mov_b64 exec, -1')
    C('longest list, shortest early part')
    I(f'v_max_u32_dpp v{vT+3}, v{vT+3}, v{vT+3} row_shl:8 row_mask:0xf bank_mask:0xf')
    I(f'v_min_u32_dpp v{vT+5}, v{vT+5}, v{vT+5} row_shl:8 row_mask:0xf bank_mask:0xf')
    I(f's_lshr_b32 s{sNB}, s{sNB}, 4')
    I(f'v_readlane_b32 s{sNBM}, v{vT+3}, 0')
    I(f'v_readlane_b32 s{sK0}, v{vT+5}, 0')
    for g in range(1, 4):
        I(f'v_readlane_b32 s{sA}, v{vT+3}, {16*g}')
        I(f'v_readlane_b32 s{sB}, v{vT+5}, {16*g}')
        I(f's_max_u32 s{sNBM}, s{sNBM}, s{sA}')
        I(f's_min_u32 s{sK0}, s{sK0}, s{sB}')
    C('a list longer than the register copies hold: redo this round with a small window')
    I(f's_cmp_le_u32 s{sNBM}, 512')
    I('s_cbranch_scc1 L2_fits')
    I(f's_mov_b32 s{sRC}, {RSMALL}')
    I('s_waitcnt vmcnt(0) lgkmcnt(0)')
    I('s_branch L2_again')
    L('L2_fits')
    ea_out(13, 3)
    early_static(opt.u3)
    U = opt.u + opt.u2 + opt.u3
    assert opt.pob <= 8 or opt.u2 + opt.u3 == 0
    assert 6 <= U <= 13
    C('read-back addresses')
    I(f's_lshl_b32 s{sA}, s{sI}, 2')
    I(f's_add_u32 s{sA}, s{sA}, {L_KI}')
    I(f'v_add_u32 v{vT}, s{sA}, v{vRA}')
    I(f'v_add_u32 v{vT+5}, s{sA}, v{vRA+3}')
    I(f's_lshl_b32 s{sA}, s{sI}, 3')
    I(f's_add_u32 s{sA}, s{sA}, {L_SH}')
    I(f'v_add_u32 v{vT+3}, s{sA}, v{vRA+1}')
    I(f's_add_u32 s{sA}, s{sI}, {L_SLOT}')
    I(f'v_add_u32 v{vT+4}, s{sA}, v{vRA+2}')
    I(f'v_add_u32 v{vT+6}, 1024, v{vT}')
    I(f'v_add_u32 v{vT+7}, 1024, v{vT+5}')
    bar_b(9)
    if opt.pob == 10: pre_poll()
    xpf(9)
    IT = vT + 8
    for g in range(0, 16, 2):
        I(f'ds_read2_b32 {vr(vKQ+g,2)}, v{vT+(6 if g >= 8 else 0)} offset0:{32*g%256} offset1:{32*(g+1)%256}')
    I(f'ds_read_b128 {vr(vSL,4)}, v{vT+4}')
    for g in range(16):
        if g in (4, 10): I('s_waitcnt lgkmcnt(7)')
        I(f'ds_read2_b32 {vr(IT+2*g,2)}, v{vT+(7 if g >= 8 else 5)} offset0:{32*g%256} offset1:{32*g%256+16}')
    I('s_waitcnt lgkmcnt(6)')
    for g in range(8):
        I(f'ds_read_b64 {vr(vSQ+2*g,2)}, v{vT+3} offset:{512*g}')
    if opt.dl and opt.pob == 9: early_static()
    assert opt.pob in (9, 10) and opt.x1 != 10 and opt.x2 != 10
    C('which feature passes must land before the main loop')
    I(f's_sub_i32 s{sA}, s{sT0}, s{sR0}')
    I(f's_max_i32 s{sA}, s{sA}, 0')
    I(f's_add_u32 s{sA}, s{sA}, 255')
    I(f's_lshr_b32 s{sA}, s{sA}, 8')
    I(f's_max_u32 s{sA}, s{sA}, {U}')
    I(f's_add_u32 s{sB}, s{sCNT}, 255')
    I(f's_lshr_b32 s{sB}, s{sB}, 8')
    I(f's_lshr_b32 s{sK0}, s{sK0}, 4')
    I(f's_sub_i32 s{sK0}, s{sK0}, 1')
    I(f's_sub_i32 s{sB}, s{sB}, s{sA}')
    I(f's_sub_i32 s{sC}, s{sK0}, 1')
    I(f's_mul_i32 s{sC}, s{sC}, {opt.lpb}')
    I(f's_cmp_le_i32 s{sB}, s{sC}')
    I(f's_cselect_b32 s{sPJ}, s{sA}, 14')
    I(f's_cselect_b32 s{sK0}, s{sK0}, -1')
    if opt.k0e:
        I(f's_add_i32 s{sC}, s{sB}, {opt.k0e}')
        I(f's_min_i32 s{sK0}, s{sK0}, s{sC}')
    I(f's_cmp_gt_i32 s{sB}, 0')
    I(f's_cselect_b32 s{sK0}, s{sK0}, -1')
    if not opt.late:
        I(f's_mov_b32 s{sPJ}, 14'); I(f's_mov_b32 s{sK0}, -1')
    I(f's_lshl_b32 s{sA}, s{sW}, 5')
    I(f's_sub_i32 s{sNP}, s{sCNT}, s{sA}')
    I(f's_add_i32 s{sNP}, s{sNP}, 255')
    I(f's_lshr_b32 s{sNP}, s{sNP}, 8')
    def dyn_early():
        I(f's_mov_b32 s{sA}, {U}')
        I(f's_min_u32 s{sB}, s{sPJ}, s{sNP}')
        L('L2_early')
        I(f's_cmp_ge_u32 s{sA}, s{sB}')
        I('s_cbranch_scc1 L2_early_done')
        I(f's_set_gpr_idx_on s{sA}, gpr_idx(SRC0)')
        I(f'v_mov_b32 v{vGT}, v{vGA}')
        I('s_set_gpr_idx_off')
        I(f's_lshl_b32 m0, s{sA}, 13')
        I(f's_add_u32 m0, m0, s{sEB}')
        I(f's_add_u32 s{sA}, s{sA}, 1')
        I(f'buffer_load_dwordx4 v{vGT}, {sr(sEAO,4)}, 0 offen sc1 lds')
        I('s_branch L2_early')
        L('L2_early_done')
    if opt.pob == 9: dyn_early()
    for g in range(16):
        I(f'v_lshlrev_b32_sdwa v{vKQ+g}, 9, v{vKQ+g} dst_sel:DWORD dst_unused:UNUSED_PAD src0_sel:DWORD src1_sel:WORD_0')
    C('no row fetches past the list end: null keys in the group the look-ahead runs into')
    I(f's_lshr_b32 s{sA}, s{sNB}, 1')
    I(f's_bitcmp1_b32 s{sNB}, 0')
    I('s_cselect_b32 exec_lo, 0xff00ff00, -1')
    I(f's_cmp_lt_u32 s{sNB}, 32')
    I('s_cselect_b32 exec_lo, exec_lo, 0')
    I('s_mov_b32 exec_hi, exec_lo')
    I(f's_set_gpr_idx_on s{sA}, gpr_idx(DST)')
    I(f'v_mov_b32 v{vKQ}, 0x{NULLKI<<9:x}')
    I('s_set_gpr_idx_off')
    I('s_mov_b64 exec, -1')
    I(f'v_mov_b32 v{vK}, v{vKQ}')
    def fetch(sig, lane):
        I(f'v_add_u32_dpp v{vAD}, v{vK}, v{vLS} row_newbcast:{lane} row_mask:0xf bank_mask:0xf')

    I('s_waitcnt lgkmcnt(0)')
    I(f's_mov_b32 s{sA}, 0x07060302')
    for g in range(16):
        I(f'v_perm_b32 v{vIQ+g}, v{IT+2*g+1}, v{IT+2*g}, s{sA}')
    I(f'v_bfe_u32 v{vIC}, v0, 5, 1')
    I(f'v_mul_u32_u24 v{vIC}, 0x10001, v{vIC}')
    for g in range(16):
        I(f'v_or_b32 v{vIQ+g}, v{vIQ+g}, v{vIC}')
    def ea_reads(word):
        I(f'v_lshlrev_b32_sdwa v{vEAA}, 4, v{vIC} dst_sel:DWORD dst_unused:UNUSED_PAD src0_sel:DWORD src1_sel:WORD_{word}')
        I(f's_mov_b64 exec, {sr(sM0,2)}')
        I(f'ds_read_b128 {vr(vA1,4)}, v{vEAA}')
        I(f's_mov_b64 exec, {sr(sM1,2)}')
        I(f'ds_read_b128 {vr(vA2,4)}, v{vEAA}')
        I('s_mov_b64 exec, -1')
    def rw_mfma(p):
        I(f'v_mfma_f32_32x32x16_bf16 {vr(vRW+16*p,16)}, {vr(vA1,4)}, {vr(vBE,4)}, 0')
        I(f'v_mfma_f32_32x32x16_bf16 {vr(vRW+16*p,16)}, {vr(vA2,4)}, {vr(vBO,4)}, {vr(vRW+16*p,16)}')
    def ae_mfma():
        for u in range(4):
            I(f'v_mfma_f32_4x4x4_16b_bf16 {vr(vRW+4*u,4)}, {vr(vSQ,2)}, {vr(vCG+2*u,2)}, 0')
    def ae_cvt():
        for i, d in ((0, vAE), (1, vAE + 4)):
            I(f'v_cvt_pk_bf16_f32 v{d}, v{vRW+i}, v{vRW+4+i}')
            I(f'v_cvt_pk_bf16_f32 v{d+1}, v{vRW+8+i}, v{vRW+12+i}')
    def mfmas(p, s):
        if opt.exp in (5, 7): return
        d = vDT; b = vB + 4 * (s & 1)
        I(f'v_mfma_f32_4x4x4_16b_bf16 {vr(d,4)}, {vr(vAE+2*p,2)}, {vr(b,2)}, 0 cbsz:4 abid:{s}')
        I(f'v_mfma_f32_4x4x4_16b_bf16 {vr(d+4,4)}, {vr(vAE+2*p,2)}, {vr(b+2,2)}, 0 cbsz:4 abid:{8+s}')
    def fmas(p, s):
        if opt.exp in (4, 7): return
        d = vDT
        for h, e in ((0, s), (1, 8 + s)):
            sl = sSA0 + 2 * (s >> 2) + h
            I(f's_set_gpr_idx_on s{sl}, gpr_idx(SRC2,DST)' if h == 0 else f's_set_gpr_idx_idx s{sl}')
            r = vRW + 16 * p + (e & ~1)
            mod = 'op_sel:[0,1,0] op_sel_hi:[1,1,1]' if e & 1 else 'op_sel_hi:[1,0,1]'
            I(f'v_pk_fma_f32 {vr(vACC,2)}, {vr(d+4*h,2)}, {vr(r,2)}, {vr(vACC,2)} {mod}')
            I(f'v_pk_fma_f32 {vr(vACC+2,2)}, {vr(d+4*h+2,2)}, {vr(r,2)}, {vr(vACC+2,2)} {mod}')
    def shift(s):
        sl = sSA0 + 2 * (s >> 2)
        I(f's_lshr_b64 {sr(sl,2)}, {sr(sl,2)}, 8')

    C('operands of batches 0 and 1 that do not need the edge features')
    ae_mfma()
    I(f'v_mov_b32 v{vIC}, v{vIQ}')
    I(f'v_readlane_b32 s{sSA0}, v{vSL}, 0')
    I(f'v_readlane_b32 s{sSB0}, v{vSL+2}, 0')
    I(f's_mov_b32 s{sSA1}, {DUMMY*0x101}')
    I(f's_mov_b32 s{sSB1}, {DUMMY*0x101}')
    I(f's_mov_b32 s{sI}, 0')
    I(f's_mov_b32 s{sKI}, 0')
    ae_cvt()
    stamp(11, VST)
    bar_b(10)
    I(f's_mov_b32 s{sFIRST}, 0')
    if opt.pob == 10: dyn_early()
    if opt.exp == 1: I(f's_mov_b32 s{sX+2}, 0')
    for sig in range(5):
        I(f's_add_u32 m0, s{sRG+(sig>>1)}, {1024*(sig&1)}')
        fetch(sig, sig)
        I(f'buffer_load_dwordx4 v{vAD}, {sr(sX,4)}, 0 offen lds')
    I('s_waitcnt vmcnt(5)')
    I('s_barrier')
    stamp(12, VST)
    I(f's_cmp_eq_u32 s{sNB}, 0')
    I('s_cbranch_scc1 L2_drain')
    ea_reads(0)
    I('s_waitcnt lgkmcnt(0)')
    rw_mfma(0)
    fetch(0, 5)
    I(f's_add_u32 m0, s{sRG+2}, 1024')
    C('inside the loop the register-index mode stays on: M0 alternates between an accumulator index')
    C('and the LDS address of the next row fetch, whose low byte (the index) is zero')
    L('L2_loop')
    for p in range(2):
        C(f'batch parity {p}')
        for s in range(8):
            sig = 8 * p + s
            d = (sig >> 1) % 3
            so = 1024 * (sig & 1)
            b = vB + 4 * (s & 1)
            I('s_waitcnt vmcnt(4) lgkmcnt(0)')
            I(f'buffer_load_dwordx4 v{vAD}, {sr(sX,4)}, 0 offen' + ('', ' sc1', ' sc0')[opt.xfl] + ' lds')
            if opt.exp != 6:
                I(f'ds_read_b64_tr_b16 {vr(b,2)}, v{vRD+d} offset:{so}')
                I(f'ds_read_b64_tr_b16 {vr(b+2,2)}, v{vRD+d} offset:{so+512}')
            if s == 3: ea_reads(p ^ 1)
            fs = (s - 2) % 8
            fmas(p ^ 1 if s < 2 else p, fs)
            if sig == 10:
                I(f's_set_gpr_idx_on s{sKI}, gpr_idx(SRC0)')
                I(f'v_mov_b32 v{vK}, v{vKQ}')
                I(f'v_mov_b32 v{vIC}, v{vIQ}')
                I(f's_set_gpr_idx_idx s{sSI}')
                ae_mfma()
            if sig == 11:
                I(f's_set_gpr_idx_on s{sLN}, gpr_idx(SRC0,SRC1)')
                ae_cvt()
            I(f's_add_u32 m0, s{sRG+d}, {so}')
            if (fs & 3) != 3: shift(fs)
            elif sig == 9: I(f's_add_u32 s{sKI}, s{sKI}, 1')
            elif s == 5 and opt.prio == 2: I(f's_setprio {p}')
            elif s == 5 and opt.prio == 1 and p == 1: I('s_setprio 0')
            else: I('s_nop 0')
            mfmas(p ^ 1 if s == 0 else p, (s - 1) % 8)
            fetch(sig, (sig + 6) % 16)
            if sig == 1: I(f'v_mov_b64 {vr(vAE+2,2)}, {vr(vAE+4,2)}')
            if s == 1:
                I(f'v_readlane_b32 s{sSA1}, v{vSL+1}, s{sI}')
                I(f'v_readlane_b32 s{sSB1}, v{vSL+3}, s{sI}')
                I(f's_add_u32 s{sI}, s{sI}, 1')
            if sig == 9:
                I(f's_and_b32 s{sSI}, s{sKI}, 0xfe')
                I(f's_and_b32 s{sLN}, s{sI}, 2')
            if s == 4 and opt.exp != 8: rw_mfma(p ^ 1)
            if sig == 5 and opt.prio == 1:
                I(f's_cmp_lt_u32 s{sW}, 4')
                I('s_cbranch_scc1 L2_prio')
                I('s_setprio 1')
                L('L2_prio')
            if s == 6:
                I(f'v_readlane_b32 s{sSA0}, v{vSL}, s{sI}')
                I(f'v_readlane_b32 s{sSB0}, v{vSL+2}, s{sI}')
        if p == 1:
            I(f'v_swap_b32 v{vRD}, v{vRD+2}'); I(f'v_swap_b32 v{vRD+1}, v{vRD+2}')
            I(f's_mov_b32 s{sRG+3}, s{sRG+2}'); I(f's_mov_b32 s{sRG+2}, s{sRG+1}'); I(f's_mov_b32 s{sRG+1}, s{sRG}'); I(f's_mov_b32 s{sRG}, s{sRG+3}')
        if opt.stamps == 4 and p == 1:
            I(f's_lshr_b32 s{sA}, s{sI}, 1')
            I(f's_cmp_gt_u32 s{sA}, 11')
            I('s_cbranch_scc1 L2_nost')
            I('s_set_gpr_idx_off')
            I(f's_mov_b32 s{sB}, m0')
            I('s_memrealtime s[100:101]')
            I(f's_mov_b32 m0, s{sA}')
            I('s_waitcnt lgkmcnt(0)')
            I(f'v_writelane_b32 v{VST}, s100, m0')
            I(f'v_writelane_b32 v{VST+1}, s101, m0')
            I(f's_mov_b32 m0, s{sB}')
            L('L2_nost')
        I(f's_cmp_le_i32 s{sI}, s{sK0}')
        I(f's_cbranch_scc1 L2_ev{p}')
        L(f'L2_evdone{p}')
        I(f's_cmp_lt_u32 s{sI}, s{sNB}')
        if p == 0: I('s_cbranch_scc0 L2_tail0')
        else: I('s_cbranch_scc1 L2_loop')
    for p in (1, 0):
        if p == 0: L('L2_tail0')
        I('s_waitcnt lgkmcnt(0)')
        fmas(p, 6)
        I('s_set_gpr_idx_off')
        shift(6)
        mfmas(p, 7)
        I('s_nop 4')
        fmas(p, 7)
        I('s_set_gpr_idx_off')
        I('s_branch L2_drain')
    for p in range(2):
        L(f'L2_ev{p}')
        I(f's_cmp_lg_u32 s{sI}, s{sK0}')
        I(f's_cbranch_scc1 L2_late{p}')
        C('all late features have landed (every wave waited for younger loads since its last pass)')
        I('s_barrier')
        I(f's_branch L2_evdone{p}')
        L(f'L2_late{p}')
        I(f's_mov_b32 s{sB}, m0')
        for k in range(opt.lpb):
            I(f's_cmp_ge_u32 s{sPJ}, s{sNP}')
            I(f's_cbranch_scc1 L2_nolate{p}')
            I(f's_set_gpr_idx_on s{sPJ}, gpr_idx(SRC0)')
            I(f'v_mov_b32 v{vGT}, v{vGA}')
            I(f's_lshl_b32 m0, s{sPJ}, 13')
            I(f's_add_u32 m0, m0, s{sEB}')
            I(f's_add_u32 s{sPJ}, s{sPJ}, 1')
            I(f'buffer_load_dwordx4 v{vGT}, {sr(sEAO,4)}, 0 offen sc1 lds')
        L(f'L2_nolate{p}')
        I(f's_mov_b32 m0, s{sB}')
        I(f's_branch L2_evdone{p}')
    L('L2_drain')
    I('s_waitcnt vmcnt(0) lgkmcnt(0)')
    stamp(13, VST)
    I(f's_add_u32 s{sR0}, s{sR0}, s{sRC}')
    I(f's_cmp_ge_u32 s{sR0}, s{sTOT}')
    I('s_cbranch_scc1 L2_epi')
    L('L2_again')
    I('s_barrier')
    prefill()
    I('s_branch L2_round')

    if opt.epi:
        L('L2_epi')
        C('---- epilogue: out = agg @ w_out, two tiles of 8 slots; the partial sums of a shared node go to')
        C('     its owner (the previous wave), whose tile with the receiving slot is done second')
        vP = 76
        vDN = 92
        vBB = 132
        vD = 184
        vO = 164
        vT = 172
        sF, sS = sSA0, sSB0
        I(f's_sub_u32 s{sA}, s{sON}, 1')
        I(f's_and_b32 s{sA}, s{sA}, 15')
        I(f's_lshl_b32 s{sA}, s{sA}, 2')
        I(f's_and_b32 s{sS}, s{sA}, 32')
        I(f's_xor_b32 s{sF}, s{sS}, 32')
        def t_cvt(i):
            for k in range(4):
                I(f'v_cvt_pk_bf16_f32 v{vP+4*i+k}, v{vACC+8*i+2*k}, v{vACC+8*i+2*k+1}')
            I(f'ds_write_b128 v{vTW}, {vr(vP+4*i,4)} offset:{16*i}')
        def t_reads(ct):
            for s in range(4):
                for i in range(2):
                    I(f'ds_read_b64_tr_b16 {vr(vBB+16*ct+4*s+2*i,2)}, v{vTR} offset:{(16*s+4*i)*TC}')
        def mf(ct, n):
            tile, s = n & 1, n >> 1
            d = vD + 32 * ct + 16 * tile
            I(f'v_mfma_f32_32x32x16_bf16 {vr(d,16)}, {vr(vBB+16*ct+4*s,4)}, {vr(vWA+16*tile+4*s,4)}, {vr(d,16) if s else 0}')
        I(f's_set_gpr_idx_on s{sF}, gpr_idx(SRC0,SRC1)')
        for i in range(4): t_cvt(i)
        t_reads(0)
        I(f's_sub_u32 s{sB}, s{sOF}, 1')
        I(f's_and_b32 s{sB}, s{sB}, 15')
        I(f's_lshl_b32 s{sB}, s{sB}, 2')
        I(f's_set_gpr_idx_on s{sB}, gpr_idx(SRC0)')
        for k in range(4): I(f'v_mov_b32 v{vDN+k}, v{vACC+k}')
        I('s_set_gpr_idx_off')
        I(f'v_and_b32 v{vT}, 63, v0')
        I(f'v_lshl_add_u32 v{vT}, v{vT}, 4, s3')
        I(f'ds_write_b128 v{vT}, {vr(vDN,4)} offset:5120')
        I(f's_cmp_eq_u32 s{sW}, 7')
        I(f's_cselect_b32 s{sA}, {DUMMY}, s{sA}')
        C('the output descriptor covers exactly the nodes this wave owns')
        I(f's_mul_i32 s{sB}, s{sBK}, {NB}')
        I(f's_sub_u32 s{sC}, {N}, s{sB}')
        I(f's_min_u32 s{sC}, s{sC}, s{sON}')
        I(f's_sub_i32 s{sC}, s{sC}, s{sOF}')
        I(f's_max_i32 s{sC}, s{sC}, 0')
        I(f's_lshl_b32 s{sC}, s{sC}, 9')
        I(f's_add_u32 s{sB}, s{sB}, s{sOF}')
        I(f's_lshl_b32 s{sB}, s{sB}, 9')
        stamp(101, VST)
        I('s_waitcnt lgkmcnt(7)')
        mf(0, 0); mf(0, 1)
        srd(sOUT, 20, off_s=sB, size_s=sC)
        I(f's_lshr_b32 s{sB}, s{sF}, 2')
        I(f's_sub_u32 s{sB}, s{sB}, s{sOF}')
        I('s_waitcnt lgkmcnt(5)')
        mf(0, 2)
        I(f'v_bfe_u32 v{vT+1}, v0, 5, 1')
        I(f'v_add_u32 v{vT+1}, s{sB}, v{vT+1}')
        I(f'v_and_b32 v{vT+2}, 31, v0')
        I(f'v_lshlrev_b32 v{vT+2}, 2, v{vT+2}')
        I(f'v_lshl_add_u32 v{vT+1}, v{vT+1}, 9, v{vT+2}')
        mf(0, 3)
        def o_addr(it):
            I(f'v_add_u32 v{vO+it}, {1024*it}, v{vT+1}')
            I(f'v_and_b32 v{vO+it}, 0x1fff, v{vO+it}')
        I('s_waitcnt lgkmcnt(0)')
        for n in range(4, 8):
            mf(0, n)
            o_addr(2 * n - 8); o_addr(2 * n - 7)
        def o_store(ct, r):
            I(f'v_cvt_pk_bf16_f32 v{vD+32*ct+r}, v{vD+32*ct+r}, v{vD+32*ct+16+r}')
            I(f'buffer_store_dword v{vD+32*ct+r}, v{vO+4*ct+(r>>2)}, {sr(sOUT,4)}, 0 offen offset:{128*(r&3)}' + ('', ' sc1', ' nt', ' sc1 nt', ' sc0 sc1')[opt.ofl])
        I('s_nop 7')
        stamp(102, VST)
        for r in range(8): o_store(0, r)
        I('s_barrier')
        I(f'ds_read_b128 {vr(vDN,4)}, v{vT} offset:{6144+5120}')
        for r in range(8, 12): o_store(0, r)
        I('s_waitcnt lgkmcnt(0)')
        I(f's_set_gpr_idx_on s{sA}, gpr_idx(SRC0,DST)')
        for k in range(4): I(f'v_add_f32 v{vACC+k}, v{vACC+k}, v{vDN+k}')
        I(f's_set_gpr_idx_on s{sS}, gpr_idx(SRC0,SRC1)')
        for i in range(4): t_cvt(i)
        I('s_set_gpr_idx_off')
        t_reads(1)
        for r in range(12, 16): o_store(0, r)
        stamp(103, VST)
        for n in range(8):
            if not n & 1: I(f's_waitcnt lgkmcnt({6-n})')
            mf(1, n)
        I('s_nop 11')
        stamp(105, VST)
        for r in range(16): o_store(1, r)
    else:
        L('L2_epi')
        C('---- epilogue: out = agg @ w_out, two tiles of 8 slots; the partial sums of a shared node go to')
        C('     its owner (the previous wave), whose tile with the receiving slot is done second')
        vP = 76
        vDN = 92
        vBB = 132
        vD = 164
        vT = 228
        vLANE = vT + 16
        vBA, vO = vT + 2, vT + 8
        sF, sS = sSA0, sSB0
        I(f'v_and_b32 v{vLANE}, 63, v0')
        I(f's_sub_u32 s{sA}, s{sOF}, 1')
        I(f's_and_b32 s{sA}, s{sA}, 15')
        I(f's_lshl_b32 s{sA}, s{sA}, 2')
        I(f'v_lshl_add_u32 v{vT}, v{vLANE}, 4, s3')
        I(f's_set_gpr_idx_on s{sA}, gpr_idx(SRC0)')
        for k in range(4): I(f'v_mov_b32 v{vDN+k}, v{vACC+k}')
        I('s_set_gpr_idx_off')
        I(f'ds_write_b128 v{vT}, {vr(vDN,4)} offset:5120')
        I(f's_sub_u32 s{sA}, s{sON}, 1')
        I(f's_and_b32 s{sA}, s{sA}, 15')
        I(f's_lshl_b32 s{sA}, s{sA}, 2')
        I(f's_and_b32 s{sS}, s{sA}, 32')
        I(f's_xor_b32 s{sF}, s{sS}, 32')
        I(f's_cmp_eq_u32 s{sW}, 7')
        I(f's_cselect_b32 s{sA}, {DUMMY}, s{sA}')
        I(f'v_mul_u32_u24 v{vT+1}, {TC}, v{vLANE}')
        I(f'v_add_u32 v{vT+1}, s3, v{vT+1}')
        def t_write(sidx, i):
            I(f's_set_gpr_idx_on s{sidx}, gpr_idx(SRC0,SRC1)')
            for k in range(4):
                I(f'v_cvt_pk_bf16_f32 v{vP+4*i+k}, v{vACC+8*i+2*k}, v{vACC+8*i+2*k+1}')
            I('s_set_gpr_idx_off')
            I(f'ds_write_b128 v{vT+1}, {vr(vP+4*i,4)} offset:{16*i}')
        def t_reads(ct):
            for s in range(4):
                for i in range(2):
                    I(f'ds_read_b64_tr_b16 {vr(vBB+16*ct+4*s+2*i,2)}, v{vBA} offset:{(16*s+4*i)*TC}')
        def mf(ct, n):
            tile, s = n & 1, n >> 1
            d = vD + 32 * ct + 16 * tile
            I(f'v_mfma_f32_32x32x16_bf16 {vr(d,16)}, {vr(vBB+16*ct+4*s,4)}, {vr(vWA+16*tile+4*s,4)}, {vr(d,16) if s else 0}')
        for i in range(4): t_write(sF, i)
        I(f'v_bfe_u32 v{vT+5}, v0, 5, 1')
        I(f'v_bfe_u32 v{vT+6}, v0, 2, 2')
        I(f'v_lshl_add_u32 v{vBA}, v{vT+5}, 3, v{vT+6}')
        I(f'v_mul_u32_u24 v{vBA}, {TC}, v{vBA}')
        I(f'v_bfe_u32 v{vT+6}, v0, 4, 1')
        I(f'v_lshl_add_u32 v{vBA}, v{vT+6}, 5, v{vBA}')
        I(f'v_and_b32 v{vT+6}, 3, v0')
        I(f'v_lshl_add_u32 v{vBA}, v{vT+6}, 3, v{vBA}')
        I(f'v_add_u32 v{vBA}, s3, v{vBA}')
        t_reads(0)
        C('the output descriptor covers exactly the nodes this wave owns')
        I(f's_mul_i32 s{sB}, s{sBK}, {NB}')
        I(f's_sub_u32 s{sC}, {N}, s{sB}')
        I(f's_min_u32 s{sC}, s{sC}, s{sON}')
        I(f's_sub_i32 s{sC}, s{sC}, s{sOF}')
        I(f's_max_i32 s{sC}, s{sC}, 0')
        I(f's_lshl_b32 s{sC}, s{sC}, 9')
        I(f's_add_u32 s{sB}, s{sB}, s{sOF}')
        I(f's_lshl_b32 s{sB}, s{sB}, 9')
        srd(sOUT, 20, off_s=sB, size_s=sC)
        I(f's_lshr_b32 s{sB}, s{sF}, 2')
        I(f's_sub_u32 s{sB}, s{sB}, s{sOF}')
        I(f'v_add_u32 v{vT+6}, s{sB}, v{vT+5}')
        I(f'v_and_b32 v{vT+7}, 31, v0')
        I(f'v_lshlrev_b32 v{vT+7}, 2, v{vT+7}')
        I(f'v_lshl_add_u32 v{vT+6}, v{vT+6}, 9, v{vT+7}')
        def o_addr(it):
            I(f'v_add_u32 v{vO+it}, {1024*it}, v{vT+6}')
            I(f'v_and_b32 v{vO+it}, 0x1fff, v{vO+it}')
        stamp(101, VST)
        I('s_waitcnt lgkmcnt(0)')
        for n in range(3): mf(0, n)
        I('s_barrier')
        I(f'ds_read_b128 {vr(vDN,4)}, v{vT} offset:{6144+5120}')
        mf(0, 3)
        for it in range(8): o_addr(it)
        I('s_waitcnt lgkmcnt(0)')
        stamp(102, VST)
        I(f's_set_gpr_idx_on s{sA}, gpr_idx(SRC0,DST)')
        for k in range(4): I(f'v_add_f32 v{vACC+k}, v{vACC+k}, v{vDN+k}')
        I('s_set_gpr_idx_off')
        for n in range(4):
            mf(0, 4 + n)
            t_write(sS, n)
        t_reads(1)
        vPK = 8
        def o_store(ct, r):
            I(f'v_cvt_pk_bf16_f32 v{vPK+16*ct+r}, v{vD+32*ct+r}, v{vD+32*ct+16+r}')
            I(f'buffer_store_dword v{vPK+16*ct+r}, v{vO+4*ct+(r>>2)}, {sr(sOUT,4)}, 0 offen offset:{128*(r&3)}' + ('', ' sc1', ' nt', ' sc1 nt', ' sc0 sc1')[opt.ofl])
        stamp(103, VST)
        for r in range(4): o_store(0, r)
        I('s_waitcnt lgkmcnt(0)')
        for n in range(8):
            mf(1, n)
            if n >= 2: o_store(0, 2 * n); o_store(0, 2 * n + 1)
        I('s_nop 7')
        stamp(105, VST)
        for r in range(16): o_store(1, r)
    stamp(14, VST)
    if opt.stamps: I('s_waitcnt vmcnt(0)')
    stamp(15, VST); stamp_flush(VST, 1)
    if opt.dbg:
        I(f's_cmp_lg_u32 s2, {opt.dbg}')
        I('s_cbranch_scc1 L2_end')
        I(f's_cmp_lg_u32 s{sW}, 0')
        I('s_cbranch_scc1 L2_end')
        I(f'v_readlane_b32 s{sA}, v{VST}, 0')
        if opt.tfirst: I(f's_mov_b32 s{sA}, s94')
        srd(Q0, 22, size=64)
        I(f'v_subrev_u32 v{vAD}, s{sA}, v{VST}')
        I(f'v_lshlrev_b32 v{vGT}, 2, v0')
        I('s_mov_b64 exec, 0xfffe')
        I(f'buffer_store_dword v{vAD}, v{vGT}, {sr(Q0,4)}, 0 offen' + (' sc1' if opt.nodbgst else ''))
        if opt.amp:
            I(f'v_readlane_b32 s{sB}, v{VST}, {opt.amp}')
            I(f's_sub_u32 s{sB}, s{sB}, s{sA}')
            I(f's_mul_i32 s{sB}, s{sB}, {opt.ampk}')
            I(f's_min_u32 s{sB}, s{sB}, 100000')
            I(f's_add_u32 s{sB}, s{sB}, 5000')
            L('L2_amp')
            I('s_memrealtime s[100:101]')
            I('s_waitcnt lgkmcnt(0)')
            I(f's_sub_u32 s100, s100, s{sA}')
            I(f's_cmp_lt_u32 s100, s{sB}')
            I('s_cbranch_scc1 L2_amp')
    L('L2_end')
    I('s_endpgm')

emit1(NAME, gen, 256, 512, K2_LDS, 256, 102)
```

```python
import sys
N, E = 25000, 800000
out = []
class Opt: pass
opt = Opt()
def parse(defaults):
    for k, v in defaults.items(): setattr(opt, k, v)
    for a in sys.argv[2:]:
        k, v = a.split('=')
        assert k in defaults, k
        setattr(opt, k, int(v))
def I(s): out.append('    ' + s)
def L(s): out.append(s + ':')
def C(s): out.append('    ; ' + s)
def vr(b, n): return f'v[{b}:{b+n-1}]' if n > 1 else f'v{b}'
def sr(b, n): return f's[{b}:{b+n-1}]' if n > 1 else f's{b}'

def srd(d, base, off_s=None, off_imm=0, size=None, size_s=None):
    if off_imm:
        I(f's_add_u32 s{d}, s{base}, 0x{off_imm:x}')
        I(f's_addc_u32 s{d+1}, s{base+1}, 0')
        if off_s is not None:
            I(f's_add_u32 s{d}, s{d}, s{off_s}')
            I(f's_addc_u32 s{d+1}, s{d+1}, 0')
    elif off_s is not None:
        I(f's_add_u32 s{d}, s{base}, s{off_s}')
        I(f's_addc_u32 s{d+1}, s{base+1}, 0')
    else:
        I(f's_mov_b32 s{d}, s{base}')
        I(f's_mov_b32 s{d+1}, s{base+1}')
    if size_s is not None:
        I(f's_mov_b32 s{d+2}, s{size_s}')
    else:
        I(f's_mov_b32 s{d+2}, 0x{size:x}')
    I(f's_mov_b32 s{d+3}, 0x20000')

def wave_scan(v):
    for sh in (1, 2, 4, 8):
        I('s_nop 1')
        I(f'v_add_u32_dpp v{v}, v{v}, v{v} row_shr:{sh} row_mask:0xf bank_mask:0xf')
    I('s_nop 1')
    I(f'v_add_u32_dpp v{v}, v{v}, v{v} row_bcast:15 row_mask:0xa bank_mask:0xf')
    I('s_nop 1')
    I(f'v_add_u32_dpp v{v}, v{v}, v{v} row_bcast:31 row_mask:0xc bank_mask:0xf')

STAMP_OFF = 240 << 20
def stamp_init(kk, va, vtmp, wsreg=14):
    if not opt.stamps: return
    I(f'v_mov_b32 v{va}, 0'); I(f'v_mov_b32 v{va+1}, 0')
    I(f'v_lshrrev_b32 v{vtmp}, 6, v0')
    I('s_nop 0')
    I(f'v_readfirstlane_b32 s100, v{vtmp}')
    I('s_lshl_b32 s101, s2, 4')
    I('s_add_u32 s100, s100, s101')
    I('s_lshl_b32 s100, s100, 7')
    srd(96, wsreg, off_s=100, off_imm=STAMP_OFF + kk * 256 * 16 * 128, size=128)
def stamp(i, va):
    if not opt.stamps: return
    if opt.stamps == 2 and i not in (0, 15): return
    if opt.stamps in (3, 4, 5) and i < 12 and i != 0: return
    if opt.stamps == 6 and i in (1, 2, 3, 4, 5, 6, 11): return
    if i >= 200:
        if opt.stamps != 6: return
        i -= 200
    elif i >= 100:
        if opt.stamps != 3: return
        i -= 100
    I('s_memrealtime s[100:101]')
    I('s_waitcnt lgkmcnt(0)')
    I(f'v_writelane_b32 v{va}, s100, {i}')
    I(f'v_writelane_b32 v{va+1}, s101, {i}')
    if opt.stamps == 5 and i in (0, 12, 13):
        I('s_memtime s[100:101]')
        I('s_waitcnt lgkmcnt(0)')
        I(f'v_writelane_b32 v{va}, s100, {(3, 1, 2)[max(i-11, 0)]}')
        I('s_bitset1_b32 s101, 30')
        I(f'v_writelane_b32 v{va+1}, s101, {(3, 1, 2)[max(i-11, 0)]}')
def stamp_flush(va, vtmp):
    if not opt.stamps: return
    I(f'v_and_b32 v{vtmp}, 63, v0')
    I(f'v_lshlrev_b32 v{vtmp}, 3, v{vtmp}')
    I(f'buffer_store_dwordx2 v[{va}:{va+1}], v{vtmp}, s[96:99], 0 offen sc1')

def desc(name, vg, sg):
    out.append('.p2align 6')
    out.append(f'.amdhsa_kernel {name}')
    out.append(f'  .amdhsa_next_free_vgpr {vg}')
    out.append(f'  .amdhsa_next_free_sgpr {sg}')
    out.append(f'  .amdhsa_accum_offset {(vg+3)//4*4}')
    out.append('  .amdhsa_group_segment_fixed_size 0')
    out.append('  .amdhsa_kernarg_size 88')
    out.append('  .amdhsa_user_sgpr_count 2')
    out.append('  .amdhsa_user_sgpr_kernarg_segment_ptr 1')
    out.append('  .amdhsa_system_sgpr_workgroup_id_x 1')
    out.append('  .amdhsa_float_denorm_mode_32 3')
    out.append('.end_amdhsa_kernel')

def emit(kernels):
    hdr = open('standalone__tensor_product_equiv_mace__graph.s.ref').read().split('\n')
    for l in hdr:
        if l.startswith('; Override'): break
        out.append(l)
    for name, g, grid, block, lds, vg, sg in kernels:
        out.append(f'; @launch kernel={name} grid=({grid},1,1) block=({block},1,1) lds={lds}')
    out.append('.amdgcn_target "amdgcn-amd-amdhsa--gfx950"')
    out.append('.text')
    for name, g, grid, block, lds, vg, sg in kernels:
        out.append(f'.globl {name}')
        out.append('.p2align 8')
        out.append(f'.type {name},@function')
        L(name)
        g()
    out.append('.section .rodata,"a"')
    for name, g, grid, block, lds, vg, sg in kernels:
        desc(name, vg, sg)
    open(sys.argv[1], 'w').write('\n'.join(out) + '\n')

def emit1(name, g, grid, block, lds, vg, sg):
    hdr = open('standalone__tensor_product_equiv_mace__graph.s.ref').read().split('\n')
    for l in hdr:
        if l.startswith('; Override'): break
        out.append(l)
    out.append(f'; @launch grid=({grid},1,1) block=({block},1,1) lds={lds}')
    out.append('.amdgcn_target "amdgcn-amd-amdhsa--gfx950"')
    out.append('.text')
    out.append(f'.globl {name}')
    out.append('.p2align 8')
    out.append(f'.type {name},@function')
    L(name)
    g()
    out.append('.section .rodata,"a"')
    desc(name, vg, sg)
    open(sys.argv[1], 'w').write('\n'.join(out) + '\n')
```

```python
from common import *
parse(dict(stamps=0, nt=1, a0=3, a1=2, a2=1, a3=1, a4=2, s1=0, s2=0, split=12, lpb=1, late=1, la=0, lb=392, dyn=1, prio=1, xpf=1, s0b=13, arb=6, x1=99, x2=7, pob=9, u=6, s0c=0, slp=2, dl=0, u2=0, u3=0, pace=0, sx=0, sy=0, sz=0, offl=0, rot=1, ord=0, iw=255, spread=1, epi=1, k0e=0, cpf=1, tlb=0, numa=1, pol=0, ms=38400, n1=7, n2=0, n3=6, il=3, fl=1, npw=2, skw=0, rgn=1, pre=1, pfs=7, xfl=0, bw=1024, exp=0, ofl=1, dbg=0, amp=0, ampk=4, tfirst=0, nodbgst=0))
NAME = 'standalone__tensor_product_equiv_mace__graph_kernel'
CH = 3136
NB = 98
RCAP = 3520
CAPX = 3640
CS = 4096
CHP = CH + 48
WS_EA = 0
WS_MO = 64 << 20
WS_OFF = 80 << 20
WS_SYNC = WS_OFF + 524288
SPLIT = opt.split * opt.bw
BM = -(-(1 << 24) // opt.bw)
assert all((t * BM >> 24) == t // opt.bw and t // opt.bw < 32 for t in range(N))
SPIN = 1 << 20
L_RING = RCAP * 32
L_SH = L_RING
L_KI = L_SH + CAPX * 8
L_SLOT = L_KI + CAPX * 4
L_CNT = L_SLOT + 3648
L_NC = L_CNT + 1024
L_ST = L_NC + 512
L_NS = L_ST + 1024
L_WT = L_NS + 640
K2_LDS = max(L_RING + 49152, L_WT + 64)
assert K2_LDS <= 163840
NULLKI = 0x7fff
DUMMY = 16 * 4
RSMALL = 496
TP = 144
TC = 80
L_GI = L_SH
L_WO = L_GI + 3584 * 4
L_WR = L_WO + 64 * TP
L_CG = L_WR + 16 * TP
assert L_CG + 128 <= L_KI

L_MI = L_RING
L_INV = L_MI + CHP * 12
L_HIST = L_INV + CHP * 2
assert L_HIST + 4096 <= K2_LDS

def gen():
    nt = ' nt' if opt.nt else ''
    if opt.tfirst: I('s_memrealtime s[94:95]')
    I('s_cmp_ge_u32 s2, 0x100')
    I('s_cbranch_scc1 L2_end')
    I('s_load_dwordx16 s[4:19], s[0:1], 0')
    I('s_load_dwordx4 s[20:23], s[0:1], 64')
    I('s_load_dwordx2 s[24:25], s[0:1], 80')
    vPRE, vGL, vLS, vK, vIC = 1, 2, 3, 4, 5
    vACC = 8
    vBE, vBO, vCG, vA1, vA2, vWA = 76, 80, 84, 92, 96, 100
    vKQ, vSQ, vIQ, vSL = 132, 148, 164, 236
    vRD, vAD, vGT, vNUL = 182, 185, 186, 187
    vEAA = vGT
    vDT, vRW, vAE, vB = 188, 196, 228, 240
    vGA = 242
    vME, vCL, vRK, vT = 132, 160, 188, 196
    vLANE = 167
    VST = 6
    vLEN, vG0 = vT + 40, vT + 41
    vDST, vSRC, vSH, vBK, vCON, vMO, vIA = 132, 139, 146, 160, 168, 8, 240
    vED, vSO, vPF2, vEO, vPF1, vOFA = 8, 60, 234, 62, 235, 64
    Q0, Q1, Q2, Q3, Q4, Q5, Q6 = 28, 32, 36, 40, 44, 48, 52
    sMO, sEAO, sOUT, sX, sEAS, sOFF, sSYN = Q0, Q1, Q2, Q3, Q4, Q5, Q6
    sVM = 6
    sBK, sW = 26, 27
    sTOT, sR0, sCNT, sNB, sNBM, sI, sRC, sXSZ = 56, 57, 58, 59, 60, 61, 62, 63
    sM0, sM1 = 64, 66
    sSA0, sSB0, sSA1, sSB1 = 68, 69, 70, 71
    sRG = 72
    sLN, sKI, sSI = 76, 77, 78
    sT0, sPJ, sNP, sK0, sEB, sMG, sOF, sON = 79, 80, 81, 82, 83, 84, 85, 86
    sE0, sNE, sFIRST, sC, sD, sL7 = 87, 88, 89, 90, 91, 92
    sCLS = 94
    sPB, sPK, sVOTE, sTP, sMK = 68, 69, 70, 71, 76
    vSEL, vPS = 132, 240
    sA, sB = 0, 1
    if opt.cpf:
        C('pull the kernel\'s own code towards this die while the arguments are being fetched')
        I(f's_getpc_b64 {sr(sC,2)}')
        L('L_pc')
        I(f'v_lshlrev_b32 v{vT+38}, 7, v0')
        I(f'v_min_u32 v{vT+38}, L2_end-L_pc, v{vT+38}')
        I(f'v_add_co_u32 v{vT+38}, vcc, s{sC}, v{vT+38}')
        I(f'v_mov_b32 v{vT+39}, s{sD}')
        I(f'v_lshlrev_b32 v{vT}, 2, v0')
        I(f'v_addc_co_u32 v{vT+39}, vcc, 0, v{vT+39}, vcc')
        I(f'global_load_dword v{vNUL}, {vr(vT+38,2)}, off')
    else:
        I(f'v_lshlrev_b32 v{vT}, 2, v0')
    C('==== phase A: partition this workgroup\'s chunk of edges by (src phase, dst bucket)')
    I(f's_and_b32 s{sBK}, s2, 7')
    I(f's_lshl_b32 s{sBK}, s{sBK}, 5')
    I('s_lshr_b32 s3, s2, 3')
    I(f's_add_u32 s{sBK}, s{sBK}, s3')
    I(f's_mul_i32 s{sE0}, s{sBK}, {CH}')
    I(f's_sub_u32 s{sNE}, {E}, s{sE0}')
    I(f's_min_u32 s{sNE}, s{sNE}, {CH}')
    I(f's_lshl_b32 s{sC}, s{sE0}, 2'); I(f's_lshl_b32 s{Q0+2}, s{sNE}, 2')
    I(f's_mov_b32 s{Q0+3}, 0x20000')
    I('s_waitcnt lgkmcnt(0)')
    I(f's_add_u32 s{Q0}, s8, s{sC}')
    I(f's_addc_u32 s{Q0+1}, s9, 0')
    for m in range(7):
        if m in (2, 4, 6): I(f'v_add_u32 v{vT+3+(m>>1)}, {2048*m}, v{vT}')
        I(f'buffer_load_dword v{vDST+m}, v{vT+3+(m>>1) if m > 1 else vT}, {sr(Q0,4)}, 0 offen offset:{2048*(m&1)}{nt}')
    srd(Q1, 6, off_s=sC, size_s=Q0+2)
    for m in range(7):
        I(f'buffer_load_dword v{vSRC+m}, v{vT+3+(m>>1) if m > 1 else vT}, {sr(Q1,4)}, 0 offen offset:{2048*(m&1)}{nt}')
    I(f'v_add_u32 v{vT+1}, {L_HIST}, v{vT}')
    I(f'v_mov_b32 v{vT+2}, 0')
    I(f'ds_write_b32 v{vT+1}, v{vT+2}')
    I(f'v_lshrrev_b32 v{vT+3}, 6, v0')
    I(f'v_lshlrev_b32 v{vT+8}, 3, v0')
    I(f'v_readfirstlane_b32 s{sW}, v{vT+3}')
    I(f'v_lshlrev_b32 v{vEO}, 4, v0')
    I(f'v_and_b32 v{vLANE}, 63, v0')
    I(f's_lshl_b32 s{sEB}, s{sW}, 10')
    stamp_init(1, VST, vGT, 24); stamp(0, VST)
    srd(sSYN, 24, off_imm=WS_SYNC, size=32768)
    C('workgroup 255 (the short chunk) clears the hand-off counters, then raises the flag in d_debug')
    I(f's_xor_b32 s{sA}, s2, {opt.iw}')
    I(f's_or_b32 s{sA}, s{sA}, s{sW}')
    I('s_cbranch_scc1 L1_noinit')
    srd(Q2, 22, size=256)
    I(f'v_lshlrev_b32 v{vT+9}, 8, v0')
    if opt.fl:
        for i in range(4): I(f'v_mov_b32 v{vT+12+i}, 0')
        I(f'v_lshrrev_b32 v{vT+10}, 3, v0')
        I(f'v_lshl_add_u32 v{vT+10}, v{vT+10}, 7, v{vEO}')
        for i in range(16):
            I(f'buffer_store_dwordx4 {vr(vT+12,4)}, v{vT+10}, {sr(sSYN,4)}, 0 offen offset:{2048*(i&1)} sc1')
            if i & 1: I(f'v_add_u32 v{vT+10}, 4096, v{vT+10}')
    else:
        I(f'buffer_store_dword v{vT+2}, v{vT+9}, {sr(sSYN,4)}, 0 offen sc1')
        I(f'v_add_u32 v{vT+10}, 16384, v{vT+9}')
        I(f'buffer_store_dword v{vT+2}, v{vT+10}, {sr(sSYN,4)}, 0 offen sc1')
    I(f'v_mov_b32 v{vT+10}, 1')
    I('s_waitcnt vmcnt(0)')
    I(f'buffer_store_dword v{vT+10}, v{vT+9}, {sr(Q2,4)}, 0 offen sc1')
    L('L1_noinit')
    I('s_waitcnt lgkmcnt(0)')
    I('s_barrier')
    I(f's_lshl_b32 s{sC}, s{sE0}, 3'); I(f's_lshl_b32 s{sD}, s{sNE}, 3')
    srd(Q2, 10, off_s=sC, size_s=sD)
    for m in range(7):
        I(f'buffer_load_dwordx2 {vr(vSH+2*m,2)}, v{vT+8}, {sr(Q2,4)}, 0 offen{nt}')
        if m < 6: I(f'v_add_u32 v{vT+8}, 4096, v{vT+8}')
    srd(Q1, 18, size=8192)
    I(f'buffer_load_dwordx4 {vr(vCON,4)}, v{vEO}, {sr(Q1,4)}, 0 offen')
    srd(Q1, 16, size=2048)
    I(f'buffer_load_dwordx4 {vr(vCON+4,4)}, v{vEO}, {sr(Q1,4)}, 0 offen')
    srd(Q1, 14, size=128)
    I(f'buffer_load_dwordx4 {vr(vCON+8,4)}, v{vEO}, {sr(Q1,4)}, 0 offen')
    I(f's_lshl_b32 s{sC}, s{sE0}, 5'); I(f's_lshl_b32 s{sD}, s{sNE}, 5')
    srd(Q3, 12, off_s=sC, size_s=sD)
    nin = [0]
    def ea_in(k):
        for _ in range(k):
            j = nin[0]
            if j >= 13: return
            I(f's_add_u32 m0, s{sEB}, {8192*j}')
            if j: I(f'v_add_u32 v{vEO}, 8192, v{vEO}')
            else: I('s_nop 0')
            I(f'buffer_load_dwordx4 v{vEO}, {sr(Q3,4)}, 0 offen{nt} lds')
            nin[0] += 1
    ea_in(opt.a0)
    C('exchange region: page wg/8, slot (wg + page) % 8')
    I(f's_lshr_b32 s{sA}, s2, 3')
    I(f's_add_u32 s{sA}, s{sA}, s2')
    I(f's_and_b32 s{sA}, s{sA}, 7')
    I(f's_and_b32 s{sB}, s2, 0xf8')
    I(f's_or_b32 s{sA}, s{sA}, s{sB}')
    I(f's_lshl_b32 s{sC}, s{sA}, 18')
    srd(sEAS, 24, off_s=sC, off_imm=WS_EA, size=16 * 16384)
    I(f's_bfe_u32 s{sPK}, s2, 0x40003')
    I(f's_lshl_b32 s{sPK}, s{sPK}, 14')
    if not opt.skw: I(f's_mov_b32 s{sPK}, 0')
    I(f's_mul_i32 s{sC}, s{sA}, {opt.ms}')
    srd(Q0, 24, off_s=sC, off_imm=WS_MO, size=0)
    srd(sOFF, 24, off_imm=WS_OFF, size=524288)
    srd(Q2, 22, size=256)
    for m in range(7):
        I(f'v_add_u32 v{vT+10}, {512*m}, v0')
        I(f'v_cmp_gt_u32 {sr(sVM+2*m,2)}, s{sNE}, v{vT+10}')
    I(f'v_mov_b32 v{vT+9}, 1')
    I(f's_mov_b32 s{sC}, {SPLIT}')
    I(f's_mov_b32 s{sD}, {-32*NB if opt.rot else 0}')
    vBN = vT + 20
    I(f'v_mov_b32 v{vT+12}, {L_HIST}')
    I(f'v_mov_b32 v{vT+13}, {L_HIST+1024}')
    I(f's_waitcnt vmcnt({10+nin[0]})')
    for m in range(7):
        I(f'v_mul_u32_u24 v{vBK+m}, 42800, v{vDST+m}')
        I(f'v_lshrrev_b32 v{vT+10}, 27, v{vBK+m}')
        I(f'v_mad_i32_i24 v{vT+10}, v{vT+10}, s{sD}, v{vSRC+m}')
        I(f'v_add_u32 v{vT+11}, {N}, v{vT+10}')
        I(f'v_min_u32 v{vBN+m}, v{vT+10}, v{vT+11}')
        I(f'v_cmp_le_u32 {sr(sA,2)}, s{sC}, v{vBN+m}')
        I(f'v_lshrrev_b32 v{vBK+m}, 22, v{vBK+m}')
        I(f'v_mul_u32_u24 v{vT+10}, {NB}, v{vBK+m}')
        I(f'v_sub_u32 v{vDST+m}, v{vDST+m}, v{vT+10}')
        I(f'v_cndmask_b32 v{vT+11}, v{vT+12}, v{vT+13}, {sr(sA,2)}')
        I(f'v_lshl_add_u32 v{vBK+m}, v{vBK+m}, 2, v{vT+11}')
        I(f's_mov_b64 exec, {sr(sVM+2*m,2)}')
        I(f'ds_add_rtn_u32 v{vRK+m}, v{vBK+m}, v{vT+9}')
        I('s_mov_b64 exec, -1')
    ea_in(opt.a1)
    C('memory alternates between the two IO dies every 8 KB, in an order that differs from page to page. Some waves')
    C('write lines of both halves now (unused block of this chunk) and time a read of each later; the 8 chunks of')
    C('a 2 MB page vote which half is near which die. Only the placement of the exchanged features depends on it')
    I(f's_xor_b32 s{sA}, s{sPK}, {14*16384}')
    I(f's_and_b32 s{sA}, s{sA}, {14*16384}')
    I(f's_add_u32 s{sA}, s{sA}, s{sEB}')
    I(f's_and_b32 s{sB}, s{sW}, 1')
    I(f's_mul_i32 s{sB}, s{sB}, {8192 - 1024}')
    I(f's_add_u32 s{sA}, s{sA}, s{sB}')
    srd(Q1, sEAS, off_s=sA, size=16384 + 128)
    I(f's_cmp_ge_u32 s{sW}, {opt.npw}')
    I('s_cbranch_scc1 L1_noprb')
    I(f'v_lshrrev_b32 v{vT+11}, 3, v{vLANE}')
    I(f'v_mul_u32_u24 v{vT+11}, {16384 - 128}, v{vT+11}')
    I(f'v_lshl_add_u32 v{vT+11}, v{vLANE}, 4, v{vT+11}')
    I(f'buffer_store_dwordx4 {vr(vDST,4)}, v{vT+11}, {sr(Q1,4)}, 0 offen sc1')
    I(f'v_mov_b32 v{vT+10}, -1')
    I(f'v_mov_b32 v{vT+11}, {L_WT + 32}')
    I(f'ds_write2_b32 v{vT+11}, v{vT+10}, v{vT+10} offset0:0 offset1:1')
    L('L1_noprb')
    if opt.tlb:
        C('touch the pages the later phases use (unused lines / own rows), so that no address translation')
        C('has to be fetched while the memory system is flooded with writes')
        I(f's_cmp_lg_u32 s{sW}, 1')
        I('s_cbranch_scc1 L1_notlb')
        I('s_mov_b64 exec, 1')
        I(f's_lshr_b32 s{sA}, s2, 3')
        if opt.tlb & 1:
            srd(56, 24, size=WS_OFF)
            for st_, of_ in ((8 << 18, 13 * 16384), (8 * opt.ms, WS_MO + 38272)):
                I(f's_mul_i32 s{sB}, s{sA}, {st_}')
                I(f's_add_u32 s{sB}, s{sB}, {of_}')
                I(f'v_mov_b32 v{vT+11}, s{sB}')
                I(f'buffer_load_dword v{vNUL}, v{vT+11}, s[56:59], 0 offen')
        if opt.tlb & 2:
            srd(56, 4, size=N * 512)
            I(f's_mul_i32 s{sB}, s{sA}, {N * 16}')
            I(f'v_mov_b32 v{vT+11}, s{sB}')
            I(f'buffer_load_dword v{vNUL}, v{vT+11}, s[56:59], 0 offen')
        if opt.tlb & 4:
            srd(56, 20, size=N * 512)
            I(f's_mul_i32 s{sB}, s{sBK}, {NB * 512}')
            I(f'v_mov_b32 v{vT+11}, s{sB}')
            I(f'buffer_load_dword v{vNUL}, v{vT+11}, s[56:59], 0 offen')
        I('s_mov_b64 exec, -1')
        L('L1_notlb')
    C('key = bin<<27 | static wave<<24 | src<<9 | dlocal<<2')
    for m in range(7):
        I(f'v_mul_u32_u24 v{vT+11}, 5350, v{vDST+m}')
        I(f'v_and_b32 v{vT+11}, 0x70000, v{vT+11}')
        if opt.bw == 1024: I(f'v_lshrrev_b32 v{vBN+m}, 10, v{vBN+m}')
        else:
            I(f'v_mul_u32_u24 v{vBN+m}, {BM}, v{vBN+m}')
            I(f'v_lshrrev_b32 v{vBN+m}, 24, v{vBN+m}')
        I(f'v_lshl_or_b32 v{vT+11}, v{vBN+m}, 19, v{vT+11}')
        I(f'v_lshlrev_b32 v{vT+11}, 8, v{vT+11}')
        I(f'v_lshl_add_u32 v{vT+11}, v{vDST+m}, 2, v{vT+11}')
        I(f'v_lshl_add_u32 v{vSRC+m}, v{vSRC+m}, 9, v{vT+11}')
    I(f'v_lshlrev_b32 v{vT+16}, 4, v{vLANE}')
    I(f'v_add_u32 v{vT+16}, {L_HIST}, v{vT+16}')
    I('s_waitcnt lgkmcnt(0)')
    I('s_barrier')
    stamp(1, VST)
    C('every wave scans the histogram and writes the (identical) start table')
    cnt, st = vT + 28, vT + 20
    I(f'ds_read_b128 {vr(cnt,4)}, v{vT+16}')
    I(f'ds_read_b128 {vr(cnt+4,4)}, v{vT+16} offset:1024')
    I('s_waitcnt lgkmcnt(0)')
    for h in range(2):
        I(f'v_add_u32 v{st+4*h+1}, v{cnt+4*h}, v{cnt+4*h+1}')
        I(f'v_add_u32 v{st+4*h+2}, v{st+4*h+1}, v{cnt+4*h+2}')
        I(f'v_add_u32 v{vT+12+h}, v{st+4*h+2}, v{cnt+4*h+3}')
    I(f'v_lshl_add_u32 v{vT+17}, v{vT+13}, 16, v{vT+12}')
    I(f'v_and_b32 v{vT+12}, 7, v0')
    I(f'v_cmp_eq_u32 {sr(sA,2)}, 7, v{vT+12}')
    I(f'v_add_u32_dpp v{vT+18}, v{vT+17}, v{vT+17} quad_perm:[1,0,3,2] row_mask:0xf bank_mask:0xf')
    I('s_nop 1')
    I(f'v_add_u32_dpp v{vT+18}, v{vT+18}, v{vT+18} quad_perm:[2,3,0,1] row_mask:0xf bank_mask:0xf')
    I('s_nop 1')
    I(f'v_add_u32_dpp v{vT+18}, v{vT+18}, v{vT+18} row_half_mirror row_mask:0xf bank_mask:0xf')
    I(f'v_sub_u32 v{vT+18}, 0x40004000, v{vT+18}')
    I(f'v_and_b32 v{vT+18}, 0x00030003, v{vT+18}')
    I(f'v_cndmask_b32 v{vT+18}, 0, v{vT+18}, {sr(sA,2)}')
    I(f'v_add_u32 v{vT+17}, v{vT+17}, v{vT+18}')
    I(f'v_mov_b32 v{vT+18}, v{vT+17}')
    wave_scan(vT + 18)
    I(f'v_sub_u32 v{vT+17}, v{vT+18}, v{vT+17}')
    I(f'v_readlane_b32 s{sA}, v{vT+18}, 63')
    I(f'v_and_b32 v{st}, 0xffff, v{vT+17}')
    I(f'v_lshrrev_b32 v{st+4}, 16, v{vT+17}')
    I(f's_lshr_b32 s{sTP}, s{sA}, 16')
    I(f's_and_b32 s{sA}, s{sA}, 0xffff')
    I(f's_add_u32 s{sTP}, s{sTP}, s{sA}')
    I(f's_mul_i32 s{sB}, s{sTP}, 12')
    I(f's_add_u32 s{sB}, s{sB}, 127')
    I(f's_and_b32 s{Q0+2}, s{sB}, -128')
    I(f'v_add_u32 v{st+4}, s{sA}, v{st+4}')
    for h in range(2):
        I(f'v_add_u32 v{st+4*h+3}, v{st+4*h}, v{st+4*h+2}')
        I(f'v_add_u32 v{st+4*h+2}, v{st+4*h}, v{st+4*h+1}')
        I(f'v_add_u32 v{st+4*h+1}, v{st+4*h}, v{cnt+4*h}')
        I(f'ds_write_b128 v{vT+16}, {vr(st+4*h,4)} offset:{2048+1024*h}')
    for m in range(7):
        I(f'ds_read_b32 v{vPS+m}, v{vBK+m} offset:2048')
    for m in range(7):
        I(f'v_add_u32 v{vT+11}, {(-L_HIST) & 0xffffffff}, v{vBK+m}')
        I(f'v_lshrrev_b32 v{vT+11}, 7, v{vT+11}')
        I(f'v_add_u32 v{vDST+m}, {512*m}, v0')
        I(f'v_lshl_or_b32 v{vDST+m}, v{vT+11}, 12, v{vDST+m}')
    ea_in(opt.a2)
    I(f's_mov_b32 s{sC}, {L_MI}')
    I(f's_mov_b32 s{sD}, {L_INV}')
    I(f's_waitcnt vmcnt({3+nin[0]}) lgkmcnt(0)')
    for m in range(7):
        I(f'v_add_u32 v{vRK+m}, v{vRK+m}, v{vPS+m}')
        I(f'v_mad_u32_u24 v{vBK+m}, v{vRK+m}, 12, s{sC}')
        I(f'v_lshl_add_u32 v{vRK+m}, v{vRK+m}, 1, s{sD}')
    for m in range(7):
        I(f's_mov_b64 exec, {sr(sVM+2*m,2)}')
        I(f'ds_write_b16 v{vRK+m}, v{vDST+m}')
        I(f'ds_write2_b32 v{vBK+m}, v{vSH+2*m}, v{vSH+2*m+1} offset0:0 offset1:1')
        I(f'ds_write_b32 v{vBK+m}, v{vSRC+m} offset:8')
    I('s_mov_b64 exec, -1')
    ea_in(opt.a3)
    I(f'v_lshlrev_b32 v{vSO}, 4, v0')
    I(f'v_add_u32 v{vT+10}, {L_MI}, v{vSO}')
    I(f'v_and_b32 v{vT+8}, 0x1fe, v0')
    I(f'v_add_u32 v{vT+8}, {L_INV}, v{vT+8}')
    I('s_waitcnt lgkmcnt(0)')
    I('s_barrier')
    stamp(2, VST)
    C('meta image and run table -> global')
    for j in range(5):
        I(f'ds_read_b128 {vr(vMO+4*j,4)}, v{vT+10} offset:{8192*j}')
    for j in range(5):
        I(f's_waitcnt lgkmcnt({4-j})')
        I(f'buffer_store_dwordx4 {vr(vMO+4*j,4)}, v{vSO}, {sr(Q0,4)}, 0 offen sc1')
        if j < 4: I(f'v_add_u32 v{vSO}, 8192, v{vSO}')
    for j in range(13):
        I(f'ds_read_u16 v{vIA+j}, v{vT+8} offset:{512*j}')
    I(f'v_and_b32 v{vT+8}, 0x1f8, v0')
    I(f'v_add_u32 v{vT+8}, {L_INV}, v{vT+8}')
    I('s_waitcnt lgkmcnt(2)')
    for j in range(13):
        I(f'ds_read_u16 v{vSEL+j}, v{vT+8} offset:{512*j}')
    I(f's_cmp_lg_u32 s{sW}, 7')
    I('s_cbranch_scc1 L1_nooff')
    C('OFF[bucket/4][chunk][phase][bucket%4] = start | len<<16')
    I(f's_lshl_b32 s{sA}, s{sBK}, {11 if opt.offl else 5}')
    I(f'v_lshlrev_b32 v{vT+17}, {4 if opt.offl else 13}, v{vLANE}')
    I(f'v_add_u32 v{vT+17}, s{sA}, v{vT+17}')
    for i in range(8):
        I(f'v_lshl_add_u32 v{cnt+i}, v{cnt+i}, 16, v{st+i}')
    for h in range(2):
        I(f'buffer_store_dwordx4 {vr(cnt+4*h,4)}, v{vT+17}, {sr(sOFF,4)}, 0 offen offset:{(1024 if opt.offl else 16)*h} sc1')
    L('L1_nooff')
    I(f'v_mov_b32 v{vT+2}, 0')
    I(f's_cmp_lg_u32 s{sW}, 0')
    I('s_cbranch_scc1 L1_noflag')
    I(f'buffer_load_dword v{vT+3}, v{vT+2}, {sr(Q2,4)}, 0 offen sc1')
    L('L1_noflag')
    n0 = nin[0]
    I(f's_cmp_ge_u32 s{sW}, {opt.npw}')
    I('s_cbranch_scc1 L1_nowarm')
    I(f's_load_dword s{sVOTE}, {sr(Q1,2)}, 0x4000')
    L('L1_nowarm')
    ea_in(opt.a4)
    n4 = nin[0] - n0
    I(f'v_and_b32 v{vT+9}, 1, v0')
    I(f'v_lshlrev_b32 v{vT+9}, 4, v{vT+9}')
    I('s_waitcnt lgkmcnt(0)')
    I(f'v_mov_b32 v{vT+11}, {L_WT + 32}')
    I(f's_cmp_ge_u32 s{sW}, {opt.npw}')
    I('s_cbranch_scc1 L1_voted')
    I('s_memtime s[56:57]')
    I('s_waitcnt lgkmcnt(0)')
    I(f's_load_dword s{sVOTE}, {sr(Q1,2)}, 0')
    I('s_waitcnt lgkmcnt(0)')
    I('s_memtime s[58:59]')
    I(f's_and_b32 s{sA}, s{sW}, 1')
    I(f'v_lshl_add_u32 v{vT+13}, s{sA}, 2, v{vT+11}')
    I('s_waitcnt lgkmcnt(0)')
    I('s_sub_u32 s60, s58, s56')
    I('s_mov_b64 exec, 1')
    I(f'v_mov_b32 v{vT+12}, s60')
    I(f'ds_min_u32 v{vT+13}, v{vT+12}')
    I('s_mov_b64 exec, -1')
    L('L1_voted')
    I(f's_waitcnt vmcnt({n4}) lgkmcnt(0)')
    I('s_barrier')
    stamp(3, VST)
    def arrive(tag, base):
        I(f's_bfe_u32 s{sA}, s2, 0x30003')
        I(f's_lshl_b32 s{sA}, s{sA}, 8')
        I(f's_add_u32 s{sA}, s{sA}, {base}')
        I(f'v_lshl_add_u32 v{vGT}, v0, 11, s{sA}')
        I(f'v_mov_b32 v{vAD}, ' + (f's{sVOTE}' if tag == 'A' else '1'))
        I('s_mov_b64 exec, 0xff')
        I(f'buffer_atomic_add v{vAD}, v{vGT}, {sr(sSYN,4)}, 0 offen sc1')
        I('s_mov_b64 exec, -1')
    def poll(tag, base, part=3):
        if part & 1: poll_addr(base)
        if part == 1:
            I(f'buffer_load_dword v{vAD}, v{vGT}, {sr(sSYN,4)}, 0 offen sc1')
            return
        poll_loop(tag, part == 2)
    def poll_addr(base):
        I(f's_and_b32 s{sA}, s2, 7')
        I(f's_lshl_b32 s{sA}, s{sA}, 11')
        I(f's_add_u32 s{sA}, s{sA}, {base}')
        I(f'v_and_b32 v{vGT}, 7, v0')
        I(f'v_lshl_add_u32 v{vGT}, v{vGT}, 8, s{sA}')
    def poll_loop(tag, issued):
        I(f's_mov_b32 s{sB}, 0')
        if issued: I(f's_branch L_pollw{tag}')
        L(f'L_poll{tag}')
        I(f'buffer_load_dword v{vAD}, v{vGT}, {sr(sSYN,4)}, 0 offen sc1')
        L(f'L_pollw{tag}')
        I(f's_add_u32 s{sB}, s{sB}, 1')
        I('s_waitcnt vmcnt(0)')
        I(f'v_cmp_ne_u32_sdwa vcc, v{vAD}, 32 src0_sel:BYTE_0 src1_sel:DWORD')
        I('s_cmp_eq_u64 vcc, 0')
        I(f's_cbranch_scc1 L_polled{tag}')
        I(f's_sleep {opt.slp}')
        I(f's_cmp_lt_u32 s{sB}, {SPIN}')
        I(f's_cbranch_scc1 L_poll{tag}')
        L(f'L_polled{tag}')
    I(f's_cmp_lg_u32 s{sW}, 0')
    I('s_cbranch_scc1 L1_arrived')
    I(f'ds_read_b64 {vr(vT+12,2)}, v{vT+11}')
    I(f's_getreg_b32 s{sC}, hwreg(HW_REG_XCC_ID, 2, 1)')
    I(f's_add_u32 s{sB}, s2, 24')
    I(f's_lshl_b32 s{sVOTE}, s{sC}, s{sB}')
    I('s_cmp_lt_u32 s2, 8')
    I(f's_cselect_b32 s{sVOTE}, s{sVOTE}, 0')
    I(f's_add_u32 s{sVOTE}, s{sVOTE}, 1')
    I(f's_lshr_b32 s{sB}, s2, 6')
    I(f's_lshl_b32 s{sB}, s{sB}, 2')
    I(f's_add_u32 s{sB}, s{sB}, 8')
    I('s_waitcnt lgkmcnt(0)')
    I(f'v_cmp_lt_u32 vcc, v{vT+13}, v{vT+12}')
    I(f's_and_b32 s{sA}, vcc_lo, 1')
    I(f's_xor_b32 s{sA}, s{sA}, s{sC}')
    I(f's_bfe_u32 s{sC}, s2, 0x10003')
    I(f's_xor_b32 s{sA}, s{sA}, s{sC}')
    I(f's_lshl_b32 s{sA}, s{sA}, s{sB}')
    I(f's_add_u32 s{sVOTE}, s{sVOTE}, s{sA}')
    I(f's_mov_b32 s{sB}, 0')
    L('L1_flag')
    I(f'v_readfirstlane_b32 s{sA}, v{vT+3}')
    I(f's_cmp_eq_u32 s{sA}, 1')
    I('s_cbranch_scc1 L1_flagok')
    I(f'buffer_load_dword v{vT+3}, v{vT+2}, {sr(Q2,4)}, 0 offen sc1')
    I(f's_add_u32 s{sB}, s{sB}, 1')
    I('s_waitcnt vmcnt(0)')
    I(f's_cmp_lt_u32 s{sB}, {SPIN}')
    I('s_cbranch_scc1 L1_flag')
    L('L1_flagok')
    arrive('A', 0)
    L('L1_arrived')
    ea_in(13)
    for j in range(13):
        I(f'v_and_b32 v{vIA+j}, 0xfff, v{vIA+j}')
        I(f'v_lshl_add_u32 v{vIA+j}, v{vIA+j}, 5, v{vT+9}')
        I(f'v_lshrrev_b32 v{vSEL+j}, 12, v{vSEL+j}')
    def prefill():
        C('prefill KI with null entries, SLOT with the dummy slot, zero CNT')
        for i in range(4): I(f'v_mov_b32 v{vT+4+i}, 0x{NULLKI:x}')
        I(f'v_lshlrev_b32 v{vT}, 4, v0')
        I(f'v_add_u32 v{vT}, {L_KI}, v{vT}')
        I(f'ds_write_b128 v{vT}, {vr(vT+4,4)}')
        I(f'v_cmp_gt_u32 vcc, {(CAPX*4-8192)//16}, v0')
        I('s_and_b64 exec, exec, vcc')
        I(f'ds_write_b128 v{vT}, {vr(vT+4,4)} offset:8192')
        I('s_mov_b64 exec, -1')
        I(f'v_mov_b32 v{vT+8}, 0x{DUMMY*0x01010101:x}')
        I(f'v_cmp_gt_u32 vcc, {3648//16}, v0')
        I(f'v_add_u32 v{vT}, {L_SLOT-L_KI}, v{vT}')
        I('s_nop 0')
        I(f'v_cndmask_b32 v{vT+8}, 0, v{vT+8}, vcc')
        for i in range(1, 4): I(f'v_mov_b32 v{vT+8+i}, v{vT+8}')
        I(f'v_cmp_gt_u32 vcc, {3648//16+96}, v0')
        I('s_and_b64 exec, exec, vcc')
        I(f'ds_write_b128 v{vT}, {vr(vT+8,4)}')
        I('s_mov_b64 exec, -1')
    prefill()
    C('stage the constants')
    I(f'v_lshrrev_b32 v{vT+12}, 3, v0')
    I(f'v_mul_u32_u24 v{vT+12}, {TP}, v{vT+12}')
    I(f'v_and_b32 v{vT+3}, 7, v0')
    I(f'v_lshl_add_u32 v{vT+12}, v{vT+3}, 4, v{vT+12}')
    I(f'v_add_u32 v{vT+12}, {L_WO}, v{vT+12}')
    I(f's_mov_b32 s{sA}, 0x05040100')
    I(f's_mov_b32 s{sB}, 0x07060302')
    I(f'v_perm_b32 v{vT+4}, v{vCON+1}, v{vCON}, s{sA}')
    I(f'v_perm_b32 v{vT+5}, v{vCON+3}, v{vCON+2}, s{sA}')
    I(f'v_perm_b32 v{vT+6}, v{vCON+1}, v{vCON}, s{sB}')
    I(f'v_perm_b32 v{vT+7}, v{vCON+3}, v{vCON+2}, s{sB}')
    I(f'ds_write_b128 v{vT+12}, {vr(vT+4,4)}')
    I('v_cmp_gt_u32 vcc, 0x80, v0')
    I('s_and_b64 exec, exec, vcc')
    I(f'ds_write_b128 v{vT+12}, {vr(vCON+4,4)} offset:{L_WR-L_WO}')
    I('v_cmp_gt_u32 vcc, 8, v0')
    I('s_and_b64 exec, exec, vcc')
    I(f'ds_write_b128 v{vT+12}, {vr(vCON+8,4)} offset:{L_CG-L_WO}')
    I('s_mov_b64 exec, -1')
    srd(sMO, 24, off_imm=WS_MO, size=256 * CS * 12)
    srd(sEAO, 24, off_imm=WS_EA, size=64 << 20)
    srd(sOUT, 20, size=N * 512)
    srd(sX, 4, size=N * 512)
    I(f's_mov_b32 s{sXSZ}, 0x{0 if opt.exp == 1 else N*512:x}')
    I(f's_mov_b32 s{sRC}, {RCAP}')
    I(f's_mov_b32 s{sR0}, 0')
    I(f's_mov_b32 s{sFIRST}, 1')
    C('run table address, x prefetch offsets')
    I(f'v_and_b32 v{vT+1}, 7, v0')
    I(f'v_bfe_u32 v{vT+2}, v0, 3, 5')
    I(f'v_add_u32 v{vG0}, v{vT+1}, v{vT+2}')
    I(f'v_and_b32 v{vG0}, 7, v{vG0}')
    I(f'v_lshl_add_u32 v{vG0}, v{vT+2}, 3, v{vG0}')
    I(f'v_lshlrev_b32 v{vG0}, 12, v{vG0}')
    I(f'v_lshl_add_u32 v{vT+1}, v{vT+1}, 5, v{vT+2}')
    I(f's_lshr_b32 s{sA}, s{sBK}, 2')
    I(f's_lshl_b32 s{sA}, s{sA}, 11')
    I(f's_and_b32 s{sB}, s{sBK}, 3')
    I(f's_add_u32 s{sA}, s{sA}, s{sB}')
    I(f's_lshl_b32 s{sA}, s{sA}, 2')
    if opt.offl: I(f's_lshl_b32 s{sA}, s{sBK}, 2')
    I(f'v_lshl_add_u32 v{vOFA}, v{vT+1}, {11 if opt.offl else 5}, s{sA}')
    I(f'v_lshrrev_b32 v{vT+3}, 8, v0')
    I(f'v_lshl_add_u32 v{vOFA}, v{vT+3}, {10 if opt.offl else 4}, v{vOFA}')
    LA = opt.la; LB = opt.lb
    I(f'v_mov_b32 v{vT+14}, 0x80000000')
    if opt.rot:
        I(f's_lshr_b32 s{sC}, s{sBK}, 5')
        I(f's_mul_i32 s{sC}, s{sC}, {32*NB*512}')
        I(f's_and_b32 s{sD}, s{sBK}, 31')
        NG = 32
    else:
        I(f's_mov_b32 s{sC}, 0')
        I(f's_mov_b32 s{sD}, s{sBK}')
        NG = 256
    I(f's_mul_i32 s{sA}, s{sD}, {LB<<opt.pfs}')
    I(f's_add_u32 s{sA}, s{sA}, {NG*LA*128}')
    I(f's_add_u32 s{sA}, s{sA}, s{sC}')
    I(f'v_sub_u32 v{vT+15}, 511, v0')
    I(f'v_cmp_gt_u32 vcc, {LB}, v{vT+15}')
    I(f'v_lshlrev_b32 v{vT+13}, {opt.pfs}, v{vT+15}')
    I(f'v_add_u32 v{vPF2}, s{sA}, v{vT+13}')
    I(f'v_cndmask_b32 v{vPF2}, v{vT+14}, v{vPF2}, vcc')
    I(f'v_cmp_gt_u32 vcc, {LA}, v{vT+15}')
    I(f's_mul_i32 s{sA}, s{sD}, {LA*128}')
    I(f's_add_u32 s{sA}, s{sA}, s{sC}')
    I(f'v_add_u32 v{vPF1}, s{sA}, v{vT+13}')
    I(f'v_cndmask_b32 v{vPF1}, v{vT+14}, v{vPF1}, vcc')
    nst = [0]
    def ea_out(k, tag, lg=False):
        if k == 0: return
        if nst[0] >= 13: return
        I(f's_cmp_lg_u32 s{sFIRST}, 1')
        I(f's_cbranch_scc1 L2_noout{tag}')
        I(f'v_lshlrev_b32 v{vSO}, 4, v0')
        first = True
        for _ in range(k):
            j = nst[0]
            if j >= 13: break
            if j: I(f'v_add_u32 v{vSO}, {8192*j if first else 8192}, v{vSO}')
            first = False
            if lg: I(f's_waitcnt lgkmcnt({12-j})')
            if opt.pace and j >= opt.pace: I(f's_waitcnt vmcnt({opt.pace-1})')
            I(f'buffer_store_dwordx4 {vr(vED+4*j,4)}, v{vSO}, {sr(sEAS,4)}, 0 offen sc1')
            nst[0] += 1
        L(f'L2_noout{tag}')
    def xpf(at):
        for reg, pos in ((vPF1, opt.x1), (vPF2, opt.x2)):
            if opt.xpf and pos == at:
                C('pull a share of x towards the chip (one dword per line)')
                I(f's_cmp_eq_u32 s{sFIRST}, 0')
                I(f's_cbranch_scc1 L2_nopf{reg}')
                I(f'buffer_load_dword v{vNUL}, v{reg}, {sr(sX,4)}, 0 offen')
                L(f'L2_nopf{reg}')
    nea = [0]
    def early_static(k=None):
        for _ in range(opt.u if k is None else k):
            j = nea[0]; nea[0] += 1
            I(f's_add_u32 m0, s{sEB}, {8192*j}')
            I('s_nop 0')
            I(f'buffer_load_dwordx4 v{vGA+j}, {sr(sEAO,4)}, 0 offen sc1 lds')
    def bar_b(at):
        if opt.pob == at:
            assert opt.arb < at
            I(f's_cmp_eq_u32 s{sFIRST}, 0')
            I('s_cbranch_scc1 L_polledB')
            I(f's_cmp_lg_u32 s{sW}, 0')
            I('s_cbranch_scc1 L_polledB')
            poll('B', 16384, 2 if opt.pre else 3)
        if opt.arb == at:
            assert nst[0] >= 13
            I(f's_waitcnt vmcnt({7 if at == 6 else 0}) lgkmcnt(0)')
        else:
            I('s_waitcnt lgkmcnt(0)')
        I('s_barrier')
        if at != 6: stamp(at, VST)
        if opt.pob == at: early_static()
        if opt.arb == at:
            I(f's_cmp_lg_u32 s{sFIRST}, 1')
            I('s_cbranch_scc1 L2_arrivedB')
            I(f's_mov_b32 s{sFIRST}, 2')
            I(f's_cmp_lg_u32 s{sW}, 0')
            I('s_cbranch_scc1 L2_arrivedB')
            arrive('B', 16384)
            L('L2_arrivedB')
    xpf(99)
    I('s_waitcnt lgkmcnt(0)')
    I('s_barrier')
    C('constant operands and one-time setup')
    I(f'v_bfe_u32 v{vT}, v0, 5, 1')
    I(f'v_bfe_u32 v{vT+1}, v0, 2, 2')
    I(f'v_lshl_add_u32 v{vT}, v{vT}, 3, v{vT+1}')
    I(f'v_mul_u32_u24 v{vT}, {TP}, v{vT}')
    I(f'v_add_u32 v{vT}, {L_WO}, v{vT}')
    I(f'v_bfe_u32 v{vT+2}, v0, 4, 1')
    I(f'v_and_b32 v{vT+3}, 3, v0')
    I(f'v_lshl_add_u32 v{vT+4}, v{vT+2}, 5, v{vT}')
    I(f'v_lshl_add_u32 v{vT+4}, v{vT+3}, 3, v{vT+4}')
    I(f'v_lshl_add_u32 v{vT+5}, v{vT+2}, 6, v{vT}')
    I(f'v_lshl_add_u32 v{vT+5}, v{vT+3}, 4, v{vT+5}')
    I(f'v_lshlrev_b32 v{vT+1}, 3, v{vT+1}')
    I(f'v_add_u32 v{vT+1}, {L_CG}, v{vT+1}')
    for h in range(2):
        for i in range(2):
            I(f'ds_read_b64_tr_b16 {vr(vBE+4*h+2*i,2)}, v{vT+4} offset:{L_WR-L_WO+4*i*TP+64*h}')
    for u in range(4):
        I(f'ds_read_b64_tr_b16 {vr(vCG+2*u,2)}, v{vT+1} offset:{32*u}')
    for tile in range(2):
        I('s_waitcnt lgkmcnt(4)')
        for s in range(4):
            for i in range(2):
                I(f'ds_read_b64_tr_b16 {vr(vWA+16*tile+4*s+2*i,2)}, v{vT+5} offset:{(16*s+4*i)*TP+8*tile}')
    I(f's_mov_b32 s{sM0}, 0x0f0f0f0f'); I(f's_mov_b32 s{sM0+1}, 0x0f0f0f0f')
    I(f's_mov_b32 s{sM1}, 0xf0f0f0f0'); I(f's_mov_b32 s{sM1+1}, 0xf0f0f0f0')
    for r in range(8): I(f'v_mov_b32 v{vA1+r}, 0')
    I(f'v_and_b32 v{vLS}, 31, v0')
    I(f'v_lshlrev_b32 v{vLS}, 4, v{vLS}')
    C('swizzled lane offset inside a row, transposing-read address')
    I(f'v_bfe_u32 v{vT}, v0, 4, 1')
    I(f'v_lshlrev_b32 v{vT}, 6, v{vT}')
    I(f'v_xor_b32 v{vLS}, v{vT}, v{vLS}')
    I(f'v_bfe_u32 v{vT}, v0, 4, 2')
    I(f'v_and_b32 v{vT+3}, 3, v0')
    I(f'v_lshlrev_b32 v{vT+3}, 3, v{vT+3}')
    I(f'v_lshl_add_u32 v{vT}, v{vT}, 5, v{vT+3}')
    I(f'v_bfe_u32 v{vT+3}, v0, 3, 1')
    I(f'v_lshlrev_b32 v{vT+3}, 6, v{vT+3}')
    I(f'v_xor_b32 v{vT}, v{vT}, v{vT+3}')
    I(f'v_bfe_u32 v{vT+3}, v0, 2, 2')
    I(f'v_lshl_add_u32 v{vT}, v{vT+3}, 7, v{vT}')
    I(f's_mul_i32 s3, s{sW}, 6144')
    I(f's_add_u32 s3, s3, {L_RING}')
    for d in range(3):
        I(f's_add_u32 s{sRG+d}, s3, {2048*d}')
        I(f'v_add_u32 v{vRD+d}, s{sRG+d}, v{vT}')
    C('epilogue staging addresses')
    vTW, vTR = 180, 181
    I(f'v_mul_u32_u24 v{vTW}, {TC}, v{vLANE}')
    I(f'v_add_u32 v{vTW}, s3, v{vTW}')
    I(f'v_bfe_u32 v{vT}, v0, 5, 1')
    I(f'v_bfe_u32 v{vT+3}, v0, 2, 2')
    I(f'v_lshl_add_u32 v{vTR}, v{vT}, 3, v{vT+3}')
    I(f'v_mul_u32_u24 v{vTR}, {TC}, v{vTR}')
    I(f'v_bfe_u32 v{vT+3}, v0, 4, 1')
    I(f'v_lshl_add_u32 v{vTR}, v{vT+3}, 5, v{vTR}')
    I(f'v_and_b32 v{vT+3}, 3, v0')
    I(f'v_lshl_add_u32 v{vTR}, v{vT+3}, 3, v{vTR}')
    I(f'v_add_u32 v{vTR}, s3, v{vTR}')
    stamp(4, VST)
    I(f's_cmp_lg_u32 s{sW}, 0')
    I('s_cbranch_scc1 L1_seenA')
    poll('A', 0)
    I(f'v_lshrrev_b32 v{vGT}, 3, v0')
    I(f'v_lshl_add_u32 v{vGT}, v{vGT}, 2, 8')
    I(f'v_readlane_b32 s{sA}, v{vAD}, 0')
    I(f'v_bfe_u32 v{vGT}, v{vAD}, v{vGT}, 4')
    I(f's_lshr_b32 s{sA}, s{sA}, 24')
    I('s_nop 0')
    I(f'v_add_u32_dpp v{vGT}, v{vGT}, v{vGT} quad_perm:[1,0,3,2] row_mask:0xf bank_mask:0xf')
    I('s_nop 1')
    I(f'v_add_u32_dpp v{vGT}, v{vGT}, v{vGT} quad_perm:[2,3,0,1] row_mask:0xf bank_mask:0xf')
    I(f'v_cmp_lt_u32 vcc, 16, v{vGT}')
    I(f's_xor_b32 s{sB}, vcc_lo, 0xaaaaaaaa')
    if opt.numa == 2: I(f's_xor_b32 s{sA}, s{sA}, 0xff')
    I(f'v_mov_b32 v{vT+12}, s{sA}')
    I(f'v_mov_b32 v{vT+13}, s{sB}')
    I(f'v_mov_b32 v{vGT}, {L_WT + 32}')
    I(f'ds_write_b64 v{vGT}, {vr(vT+12,2)}')
    L('L1_seenA')
    I(f'v_mov_b32 v{vGT}, {L_WT + 32}')
    I(f's_waitcnt vmcnt({(opt.xpf and opt.x1 == 99)+(opt.xpf and opt.x2 == 99)}) lgkmcnt(0)')
    I('s_barrier')
    stamp(5, VST)
    C('==== phase B: every chunk has published its keys; this chunk\'s features are in LDS')
    F = vT + 16
    I(f'buffer_load_dword v{F}, v{vOFA}, {sr(sOFF,4)}, 0 offen sc1')
    I(f'ds_read_b64 {vr(vT+12,2)}, v{vGT}')
    order = (list(range(13)), [0, 7, 1, 8, 2, 9, 3, 10, 4, 11, 5, 12, 6], [7, 8, 9, 10, 11, 12, 0, 1, 2, 3, 4, 5, 6], [0, 3, 7, 8, 4, 1, 9, 10, 2, 5, 11, 6, 12], [0, 3, 4, 1, 2, 5, 6, 7, 8, 9, 10, 11, 12], [0, 3, 6, 9, 4, 1, 10, 7, 2, 5, 8, 11, 12])[opt.il]
    for j in order:
        I(f'ds_read_b128 {vr(vED+4*j,4)}, v{vIA+j}')
    I(f'v_lshlrev_b32 v{vSO}, 4, v0')
    I(f'v_lshrrev_b32 v{vT}, 1, v0')
    I(f's_sub_u32 s{sTP}, s{sTP}, {12*256}')
    I(f'v_cmp_gt_i32 {sr(sC,2)}, s{sTP}, v{vT}')
    I(f'v_mov_b32 v{vT}, 0x80000000')
    I(f's_lshr_b32 s{sB}, s{sBK}, 5')
    I('s_waitcnt lgkmcnt(13)')
    I(f'v_readfirstlane_b32 s{sMK}, v{vT+12}')
    I(f'v_readfirstlane_b32 s{sPB}, v{vT+13}')
    C('early features go to the class near their reader, late ones stay near their writer')
    I(f's_lshr_b32 s{sA}, s{sMK}, s{sB}')
    I(f's_and_b32 s{sVOTE}, s{sA}, 1')
    I(f's_mul_i32 s{sA}, s{sVOTE}, {(0xff00, 0xffff, 0, 0xff)[opt.pol]}')
    if opt.pol in (0, 2): I(f's_or_b32 s{sA}, s{sA}, s{sMK}')
    if opt.pol in (2, 3):
        I(f's_lshl_b32 s{sB}, s{sMK}, 8')
        I(f's_or_b32 s{sA}, s{sA}, s{sB}')
    I(f's_lshr_b32 s{sB}, s2, 3')
    I(f's_bitcmp1_b32 s{sPB}, s{sB}')
    I(f's_cselect_b32 s{sB}, 0xffff, 0')
    I(f's_xor_b32 s{sA}, s{sA}, s{sB}')
    areg = {j: (vSEL + j if i < opt.n1 else vCON + i - opt.n1) for i, j in enumerate(order)}
    def put(j):
        I(f'buffer_store_dwordx4 {vr(vED+4*j,4)}, v{areg[j]}, {sr(sEAS,4)}, 0 offen sc1')
    for i, j in enumerate(order):
        if opt.numa: I(f'v_bfe_u32 v{vSEL+j}, s{sA}, v{vSEL+j}, 1')
        else: I(f'v_mov_b32 v{vSEL+j}, {j&1}')
        I(f'v_lshl_add_u32 v{areg[j]}, v{vSEL+j}, 13, v{vSO}')
        I(f's_xor_b32 s{sB}, s{sPK}, {16384*j}')
        I(f'v_add_u32 v{areg[j]}, s{sB}, v{areg[j]}')
        if j == 12: I(f'v_cndmask_b32 v{areg[j]}, v{vT}, v{areg[j]}, {sr(sC,2)}')
        if i < opt.n1:
            I(f's_waitcnt lgkmcnt({12-i})')
            put(j)
    nst[0] = 13
    C('class of this thread\'s run')
    I(f'v_and_b32 v{vT}, 7, v0')
    I(f'v_lshrrev_b32 v{vT+1}, 8, v0')
    I(f'v_lshl_add_u32 v{vT}, v{vT+1}, 3, v{vT}')
    I(f's_mul_i32 s{sA}, s{sVOTE}, {(0xff, 0, 0xffff, 0xff00)[opt.pol]}')
    if opt.pol in (1, 3): I(f's_or_b32 s{sA}, s{sA}, s{sMK}')
    if opt.pol in (0, 1):
        I(f's_lshl_b32 s{sB}, s{sMK}, 8')
        I(f's_or_b32 s{sA}, s{sA}, s{sB}')
    I(f'v_bfe_u32 v{vT}, s{sA}, v{vT}, 1')
    I(f'v_lshrrev_b32 v{vT+1}, 3, v0')
    I(f'v_bfe_u32 v{vT+1}, s{sPB}, v{vT+1}, 1')
    I(f'v_cmp_ne_u32 {sr(sCLS,2)}, v{vT}, v{vT+1}')
    I(f's_waitcnt vmcnt({opt.n1})')
    C('run lengths -> prefix')
    I(f'v_lshrrev_b32 v{vLEN}, 16, v{F}')
    I(f'v_and_b32 v{F}, 0xffff, v{F}')
    I(f'v_mov_b32 v{vT}, v{vLEN}')
    I(f'v_add_u32 v{vG0}, v{vG0}, v{F}')
    I(f'v_lshl_or_b32 v{vGL}, v{vLEN}, 20, v{vG0}')
    wave_scan(vT)
    I(f's_lshl_b32 s{sA}, s{sW}, 2')
    I(f's_add_u32 s{sA}, s{sA}, {L_WT}')
    I(f'v_mov_b32 v{vT+1}, s{sA}')
    I(f'v_sub_u32 v{vPRE}, v{vT}, v{vLEN}')
    I('s_mov_b32 exec_lo, 0')
    I('s_brev_b32 exec_hi, 1')
    I(f'ds_write_b32 v{vT+1}, v{vT}')
    I('s_mov_b64 exec, -1')
    I(f'v_and_b32 v{vT+1}, 7, v0')
    I(f'v_lshlrev_b32 v{vT+1}, 2, v{vT+1}')
    I(f'v_add_u32 v{vT+1}, {L_WT}, v{vT+1}')
    I('s_waitcnt lgkmcnt(0)')
    I('s_barrier')
    I(f'ds_read_b32 v{vT+2}, v{vT+1}')
    I('s_waitcnt lgkmcnt(0)')
    I(f'v_mov_b32 v{vT+3}, v{vT+2}')
    for sh in (1, 2, 4):
        I('s_nop 1')
        I(f'v_add_u32_dpp v{vT+3}, v{vT+3}, v{vT+3} row_shr:{sh} row_mask:0xf bank_mask:0xf')
    I(f'v_sub_u32 v{vT+2}, v{vT+3}, v{vT+2}')
    I(f'v_readlane_b32 s{sTOT}, v{vT+3}, 7')
    I(f'v_readlane_b32 s{sA}, v{vT+2}, s{sW}')
    I(f'v_readlane_b32 s{sT0}, v{vT+3}, 3')
    I('s_nop 0')
    I(f'v_add_u32 v{vPRE}, s{sA}, v{vPRE}')
    for j in order[opt.n1:opt.n1+opt.n2]: put(j)
    L('L2_round')
    I(f's_sub_u32 s{sCNT}, s{sTOT}, s{sR0}')
    I(f's_min_u32 s{sCNT}, s{sCNT}, s{sRC}')
    I(f'v_and_b32 v{vLANE}, 63, v0')
    I(f'v_lshrrev_b32 v{vLEN}, 20, v{vGL}')
    I(f'v_and_b32 v{vG0}, 0xfffff, v{vGL}')
    I(f'v_or_b32 v{vT+1}, 0x4000000, v{vG0}')
    I(f'v_cndmask_b32 v{vG0}, v{vG0}, v{vT+1}, {sr(sCLS,2)}')
    C('expand: GIDX[pre+k-r0] = g0+k for k in window')
    I(f'v_sub_u32 v{vT+1}, s{sR0}, v{vPRE}')
    I(f'v_max_i32 v{vT+2}, 0, v{vT+1}')
    I(f'v_add_u32 v{vT+3}, s{sRC}, v{vT+1}')
    I(f'v_min_i32 v{vT+3}, v{vT+3}, v{vLEN}')
    I(f'v_sub_u32 v{vT+4}, v{vT+2}, v{vT+1}')
    I(f'v_lshlrev_b32 v{vT+4}, 2, v{vT+4}')
    I(f'v_add_u32 v{vT+4}, {L_GI}, v{vT+4}')
    I(f'v_add_u32 v{vT+5}, v{vG0}, v{vT+2}')
    I(f'v_add_u32 v{vT+3}, v{vG0}, v{vT+3}')
    L('L2_exp')
    for j in range(4):
        I(f'v_cmpx_lt_i32 vcc, v{vT+5}, v{vT+3}')
        I(f'ds_write_b32 v{vT+4}, v{vT+5} offset:{4*j}')
        I(f'v_add_u32 v{vT+5}, 1, v{vT+5}')
    I(f'v_add_u32 v{vT+4}, 16, v{vT+4}')
    I('s_cbranch_execnz L2_exp')
    I('s_mov_b64 exec, -1')
    ea_out(opt.sy, 'y')
    C('slots past the end of the window get an out-of-range record number')
    I(f'v_lshlrev_b32 v{vT}, 2, v0')
    I(f'v_add_u32 v{vT}, {L_GI}, v{vT}')
    I(f'v_mov_b32 v{vT+2}, 0x800000')
    for m in range(7):
        I(f'v_add_u32 v{vT+1}, {512*m}, v0')
        I(f'v_cmp_gt_u32 {sr(sVM+2*m,2)}, s{sCNT}, v{vT+1}')
    for m in range(7):
        I(f's_not_b64 exec, {sr(sVM+2*m,2)}')
        I(f's_cbranch_scc0 L2_nomark{m}')
        I(f'ds_write_b32 v{vT}, v{vT+2} offset:{2048*m}')
        L(f'L2_nomark{m}')
    I('s_mov_b64 exec, -1')
    I(f'v_lshrrev_b32 v{vT+3}, 1, v0')
    I(f'v_lshlrev_b32 v{vT+3}, 2, v{vT+3}')
    I(f'v_add_u32 v{vT+3}, {L_GI}, v{vT+3}')
    I(f'v_and_b32 v{vT+4}, 1, v0')
    I(f'v_lshlrev_b32 v{vT+4}, 4, v{vT+4}')
    I('s_waitcnt lgkmcnt(0)')
    I('s_barrier')
    stamp(6, VST)
    C('record loads')
    I(f's_mov_b32 s{sD}, {opt.ms - CS*12}')
    G = vT + 6
    for m in range(7):
        I(f'ds_read_b32 v{G+m}, v{vT} offset:{2048*m}')
    for j in range(0, 14, 2):
        I(f'ds_read2st64_b32 {vr(vGA+j,2)}, v{vT+3} offset0:{4*j} offset1:{4*j+4}')
    if opt.n3:
        I(f's_cmp_lg_u32 s{sFIRST}, 1')
        I('s_cbranch_scc1 L2_non3')
        for j in order[opt.n1+opt.n2:opt.n1+opt.n2+opt.n3]: put(j)
        L('L2_non3')
    for m in range(7):
        I(f's_waitcnt lgkmcnt({13-m})')
        I(f'v_mul_u32_u24 v{vT+1}, 12, v{G+m}')
        if opt.ms != CS * 12:
            I(f'v_bfe_u32 v{G+m}, v{G+m}, 12, 8')
            I(f'v_mad_i32_i24 v{vT+1}, v{G+m}, s{sD}, v{vT+1}')
        I(f'buffer_load_dwordx3 {vr(vME+4*m,3)}, v{vT+1}, {sr(sMO,4)}, 0 offen sc1')
    rest = order[opt.n1+opt.n2+opt.n3:]
    if rest:
        assert opt.arb in (7, 8)
        I(f's_cmp_eq_u32 s{sFIRST}, 1')
        I('s_cbranch_scc1 L2_rest')
        I('s_waitcnt vmcnt(0)')
        I('s_branch L2_rested')
        L('L2_rest')
        if opt.dl: I('s_barrier')
        for j in rest: put(j)
        L('L2_rested')
    n0 = nst[0]
    if opt.s0c:
        I(f's_cmp_eq_u32 s{sFIRST}, 1')
        I('s_cbranch_scc1 L2_more')
        I('s_waitcnt vmcnt(0)')
        L('L2_more')
        ea_out(opt.s0c, '0c')
    nc = len(rest)
    I(f'v_mov_b32 v{vGT}, 0x80000000')
    if opt.arb == 6: bar_b(6)
    for reg, pos in ((vPF1, opt.x1), (vPF2, opt.x2)):
        if opt.xpf and pos == 6:
            C('pull a share of x towards the chip (one dword per line; later rounds: a harmless range-checked read)')
            I(f'buffer_load_dword v{vNUL}, v{reg}, {sr(sX,4)}, 0 offen')
            nc += 1
    I(f's_mov_b32 s{sC}, 0x2000')
    I('s_waitcnt lgkmcnt(0)')
    for j in range(14):
        if opt.numa: I(f'v_lshrrev_b32 v{vT+1}, 13, v{vGA+j}')
        else: I(f'v_lshlrev_b32 v{vT+1}, 5, v{vGA+j}')
        I(f'v_and_or_b32 v{vT+1}, v{vT+1}, s{sC}, v{vT+4}')
        if opt.skw:
            I(f'v_lshrrev_b32 v{vT+2}, 7, v{vGA+j}')
            I(f'v_and_b32 v{vT+2}, 0xf00, v{vT+2}')
            I(f'v_xor_b32 v{vGA+j}, v{vGA+j}, v{vT+2}')
        I(f'v_lshlrev_b32 v{vGA+j}, 5, v{vGA+j}')
        I(f'v_and_b32 v{vT+2}, 0xffffe000, v{vGA+j}')
        I(f'v_add3_u32 v{vGA+j}, v{vGA+j}, v{vT+2}, v{vT+1}')
    def zero_acc():
        I(f's_cmp_eq_u32 s{sFIRST}, 0')
        I('s_cbranch_scc1 L2_zeroed')
        for r in range(0, 68, 2): I(f'v_mov_b64 {vr(vACC+r,2)}, 0')
        L('L2_zeroed')
    if opt.arb == 6: zero_acc()
    C('even split of the window: wave(q) = q*M >> 20 with M = 2^23/(count+1), q = position in node order')
    I(f's_add_u32 s{sA}, s{sCNT}, 1')
    I(f'v_cvt_f32_u32 v{vT}, s{sA}')
    I(f'v_rcp_f32 v{vT}, v{vT}')
    I(f'v_mov_b32 v{vT+2}, 1')
    I(f'v_mul_f32 v{vT}, 0x4b000000, v{vT}')
    I(f'v_cvt_u32_f32 v{vT}, v{vT}')
    I(f'v_lshlrev_b32 v{vT+1}, 3, v{vLANE}')
    I(f'v_readfirstlane_b32 s{sMG}, v{vT}')
    I(f'v_add_u32 v{vT+1}, {L_NC}, v{vT+1}')
    C('lane parts of the read-back addresses')
    vRA = vT + 24
    I(f'v_bfe_u32 v{vT+3}, v0, 3, 1')
    I(f'v_bfe_u32 v{vT+4}, v0, 5, 1')
    I(f'v_lshl_add_u32 v{vT+3}, v{vT+3}, 1, v{vT+4}')
    I(f'v_and_b32 v{vT+4}, 7, v0')
    I(f'v_add_u32 v{vRA+4}, -1, v{vT+4}')
    if opt.spread: I(f'v_cmp_gt_u32 {sr(sL7,2)}, 4, v{vRA+4}')
    else: I(f'v_cmp_eq_u32 {sr(sL7,2)}, 7, v{vT+4}')
    I(f'v_lshl_add_u32 v{vT+3}, v{vT+3}, 3, v{vT+4}')
    I(f'v_lshlrev_b32 v{vRA}, 2, v{vT+3}')
    I(f'v_and_b32 v{vT+4}, 3, v0')
    I(f'v_lshrrev_b32 v{vT+3}, 2, v{vLANE}')
    I(f'v_lshl_add_u32 v{vT+3}, v{vT+4}, 4, v{vT+3}')
    I(f'v_lshlrev_b32 v{vRA+1}, 3, v{vT+3}')
    I(f'v_lshlrev_b32 v{vRA+2}, 4, v{vLANE}')
    I(f'v_bfe_u32 v{vT+3}, v0, 3, 2')
    I(f'v_lshl_add_u32 v{vT+3}, v{vT+3}, 2, v{vT+4}')
    I(f'v_lshlrev_b32 v{vRA+3}, 2, v{vT+3}')
    I(f'v_lshlrev_b32 v{vT}, 4, v{vLANE}')
    I(f'v_add_u32 v{vT}, {L_CNT}, v{vT}')
    I(f'v_lshlrev_b32 v{vT+4}, 17, v0')
    I(f's_mov_b32 s{sC}, {L_CNT}')
    C('rank inside the destination node')
    vBA_ = vT + 30
    for m in range(7):
        I(f's_waitcnt vmcnt({6-m+nc})')
        I(f'v_and_b32 v{vCL+m}, 0x1fc, v{vME+4*m+2}')
        I(f'v_add_u32 v{vCL+m}, {L_NC}, v{vCL+m}')
        I(f's_mov_b64 exec, {sr(sVM+2*m,2)}')
        I(f'ds_add_rtn_u32 v{vRK+m}, v{vCL+m}, v{vT+2}')
        I('s_mov_b64 exec, -1')
        I(f'v_bfe_u32 v{vT+3}, v{vME+4*m+2}, 9, {15 if opt.exp not in (2, 3) else (11 if opt.exp == 2 else 4)}')
        I(f'v_or_b32 v{vME+4*m+3}, v{vT+3}, v{vT+4}')
        I(f'v_lshrrev_b32 v{vT+3}, 27, v{vME+4*m+2}')
        I(f'v_lshl_add_u32 v{vBA_+m}, v{vT+3}, 2, s{sC}')
        I(f'v_and_b32 v{vME+4*m+2}, 0x0700003c, v{vME+4*m+2}')
        if m < 6: I(f'v_add_u32 v{vT+4}, {512<<17}, v{vT+4}')
    ea_out(opt.s1, 1)
    bar_b(7)
    C('node scan (every wave)')
    c0, s0, sn, sf = vT + 4, vT + 6, vT + 8, vT + 10
    I(f'ds_read_b64 {vr(c0,2)}, v{vT+1}')
    xpf(7)
    for m in range(7):
        I(f'v_mul_u32_u24 v{vRK+m}, s{sMG}, v{vRK+m}')
    I('s_waitcnt lgkmcnt(0)')
    I(f'v_add_u32 v{vT+3}, v{c0}, v{c0+1}')
    I(f'v_mov_b32 v{sn}, v{vT+3}')
    wave_scan(sn)
    I(f'v_sub_u32 v{s0}, v{sn}, v{vT+3}')
    I(f'v_add_u32 v{s0+1}, v{s0}, v{c0}')
    C('publish start*M, so that wave = (start*M + rank*M) >> 20')
    for r in (s0, s0 + 1, sn): I(f'v_mul_u32_u24 v{r}, s{sMG}, v{r}')
    I(f'ds_write_b64 v{vT+1}, {vr(s0,2)} offset:{L_NS-L_NC}')
    I(f'v_add_u32 v{vT+1}, {L_NS-L_NC}, v{vT+1}')
    I(f'ds_read2_b32 {vr(sf,2)}, v{vT+1} offset0:15 offset1:16')
    for m in range(7):
        I(f'ds_read_b32 v{vCL+m}, v{vCL+m} offset:{L_NS-L_NC}')
    for r in (s0, s0 + 1, sn): I(f'v_lshrrev_b32 v{r}, 20, v{r}')
    C('the even split needs: one round, every wave owns 1..15 nodes')
    I(f'v_sub_u32 v{vT+3}, v{s0+1}, v{s0}')
    I(f'v_sub_u32 v{sn}, v{sn}, v{s0+1}')
    I(f'v_max_u32 v{vT+3}, v{vT+3}, v{sn}')
    I(f'v_cmp_lt_u32 {sr(sA,2)}, 1, v{vT+3}')
    I(f'v_readlane_b32 s{sNB}, v{s0+1}, 48')
    I('s_waitcnt lgkmcnt(7)')
    for r in (sf, sf + 1): I(f'v_lshrrev_b32 v{r}, 20, v{r}')
    I(f'v_cmp_ge_u32 vcc, v{s0}, v{sf}')
    I(f'v_cmp_ge_u32 {sr(sC,2)}, v{s0+1}, v{sf+1}')
    I('s_and_b32 vcc_hi, vcc_hi, 0x3ff')
    I(f's_and_b32 s{sD}, s{sD}, 0x1ff')
    I(f's_or_b64 {sr(sA,2)}, {sr(sA,2)}, vcc')
    I(f's_or_b64 {sr(sA,2)}, {sr(sA,2)}, {sr(sC,2)}')
    I('s_cbranch_scc1 L2_static')
    I(f's_cmp_lg_u32 s{sNB}, 7')
    I('s_cbranch_scc1 L2_static')
    I(f's_cmp_lg_u32 s{sCNT}, s{sTOT}')
    I('s_cbranch_scc1 L2_static')
    if not opt.dyn: I('s_branch L2_static')
    I('s_waitcnt lgkmcnt(0)')
    for m in range(7):
        I(f'v_add_u32 v{vRK+m}, v{vRK+m}, v{vCL+m}')
        I(f'v_lshrrev_b32 v{vRK+m}, 20, v{vRK+m}')
        I(f'v_lshl_add_u32 v{vCL+m}, v{vRK+m}, 7, v{vBA_+m}')
    def cell_atomics():
        for m in range(7):
            I(f's_mov_b64 exec, {sr(sVM+2*m,2)}')
            I(f'ds_add_rtn_u32 v{vRK+m}, v{vCL+m}, v{vT+2}')
        I('s_mov_b64 exec, -1')
    cell_atomics()
    C('owned node range of this wave')
    I(f's_mov_b32 exec_hi, 0x1ffff')
    I(f'v_cmp_gt_u32 vcc, s{sW}, v{s0}')
    I(f's_bcnt1_i32_b64 s{sOF}, vcc')
    I(f'v_cmp_gt_u32 vcc, s{sW}, v{s0+1}')
    I(f's_bcnt1_i32_b64 s{sA}, vcc')
    I(f's_add_u32 s{sOF}, s{sOF}, s{sA}')
    I(f'v_cmp_ge_u32 vcc, s{sW}, v{s0}')
    I(f's_bcnt1_i32_b64 s{sON}, vcc')
    I(f'v_cmp_ge_u32 vcc, s{sW}, v{s0+1}')
    I(f's_bcnt1_i32_b64 s{sA}, vcc')
    I(f's_add_u32 s{sON}, s{sON}, s{sA}')
    I('s_mov_b64 exec, -1')
    I('s_branch L2_cells')
    L('L2_static')
    I(f's_mul_i32 s{sOF}, s{sW}, {NB}')
    I(f's_add_u32 s{sON}, s{sOF}, {NB+7}')
    I(f's_add_u32 s{sOF}, s{sOF}, 7')
    I(f's_lshr_b32 s{sOF}, s{sOF}, 3')
    I(f's_lshr_b32 s{sON}, s{sON}, 3')
    I('s_waitcnt lgkmcnt(0)')
    for m in range(7):
        I(f'v_lshrrev_b32 v{vRK+m}, 24, v{vME+4*m+2}')
        I(f'v_lshl_add_u32 v{vCL+m}, v{vRK+m}, 7, v{vBA_+m}')
    cell_atomics()
    L('L2_cells')
    ea_out(opt.s2, 2)
    bar_b(8)
    C('cell scan (every wave), lists padded to 16')
    cnt, st = vT + 14, vT + 18
    I(f'ds_read_b128 {vr(cnt,4)}, v{vT}')
    xpf(8)
    I(f's_mov_b32 s{sC}, {(L_KI - 4*L_SLOT) & 0xffffffff}')
    I(f's_mov_b32 s{sD}, {(L_SH - 8*L_SLOT) & 0xffffffff}')
    for m in range(7):
        I(f'v_add_u32 v{vRK+m}, {L_SLOT}, v{vRK+m}')
    I('s_waitcnt lgkmcnt(0)')
    stamp(201, VST)
    I(f'v_add_u32 v{st+1}, v{cnt}, v{cnt+1}')
    I(f'v_add_u32 v{st+2}, v{st+1}, v{cnt+2}')
    I(f'v_add_u32 v{vT+1}, v{st+2}, v{cnt+3}')
    I('s_nop 1')
    I(f'v_add_u32_dpp v{vT+2}, v{vT+1}, v{vT+1} quad_perm:[1,0,3,2] row_mask:0xf bank_mask:0xf')
    I('s_nop 1')
    I(f'v_add_u32_dpp v{vT+2}, v{vT+2}, v{vT+2} quad_perm:[2,3,0,1] row_mask:0xf bank_mask:0xf')
    I('s_nop 1')
    I(f'v_add_u32_dpp v{vT+2}, v{vT+2}, v{vT+2} row_half_mirror row_mask:0xf bank_mask:0xf')
    I(f'v_add_u32 v{vT+3}, 15, v{vT+2}')
    I(f'v_and_b32 v{vT+3}, -16, v{vT+3}')
    I(f'v_sub_u32 v{vT+2}, v{vT+3}, v{vT+2}')
    if opt.spread:
        I(f'v_add_u32 v{vT+2}, v{vT+2}, v{vRA+4}')
        I(f'v_lshrrev_b32 v{vT+2}, 2, v{vT+2}')
    I(f'v_cndmask_b32 v{vT+2}, 0, v{vT+2}, {sr(sL7,2)}')
    I(f'v_add_u32 v{vT+1}, v{vT+1}, v{vT+2}')
    I(f'v_mov_b32 v{vT+2}, v{vT+1}')
    wave_scan(vT + 2)
    I(f'v_sub_u32 v{st}, v{vT+2}, v{vT+1}')
    I(f'v_add_u32 v{st+3}, v{st}, v{st+2}')
    I(f'v_add_u32 v{st+2}, v{st}, v{st+1}')
    I(f'v_add_u32 v{st+1}, v{st}, v{cnt}')
    stamp(202, VST)
    I(f'ds_write_b128 v{vT}, {vr(st,4)} offset:{L_ST-L_CNT}')
    for m in range(7):
        I(f'ds_read_b32 v{vCL+m}, v{vCL+m} offset:{L_ST-L_CNT}')
    def pre_poll():
        if opt.pre:
            I(f's_cmp_eq_u32 s{sFIRST}, 0')
            I('s_cbranch_scc1 L2_nopre')
            I(f's_cmp_lg_u32 s{sW}, 0')
            I('s_cbranch_scc1 L2_nopre')
            poll('B', 16384, 1)
            L('L2_nopre')
    if opt.pob == 9: pre_poll()
    C('early-phase length of every list: start of bin SPLIT minus list start (in lane 8*wave)')
    sl_lane, sl_reg = opt.split >> 2, opt.split & 3
    if sl_lane: I(f'v_sub_u32_dpp v{vT+5}, v{st+sl_reg}, v{st} row_shl:{sl_lane} row_mask:0xf bank_mask:0xf')
    else: I(f'v_sub_u32 v{vT+5}, v{st+sl_reg}, v{st}')
    I(f's_lshl_b32 s{sA}, s{sW}, 3')
    I(f'v_readlane_b32 s{sNB}, v{vT+3}, s{sA}')
    I(f'v_readlane_b32 s{sI}, v{st}, s{sA}')
    for m in range(7):
        I(f's_waitcnt lgkmcnt({6-m})')
        I(f'v_add_u32 v{vRK+m}, v{vRK+m}, v{vCL+m}')
        I(f'v_lshl_add_u32 v{vCL+m}, v{vRK+m}, 2, s{sC}')
        I(f'v_lshl_add_u32 v{vBA_+m}, v{vRK+m}, 3, s{sD}')
    stamp(203, VST)
    for m in range(7):
        I(f's_mov_b64 exec, {sr(sVM+2*m,2)}')
        I(f'ds_write_b32 v{vCL+m}, v{vME+4*m+3}')
        I(f'ds_write_b8 v{vRK+m}, v{vME+4*m+2}')
        I(f'ds_write_b64 v{vBA_+m}, {vr(vME+4*m,2)}')
    I('s_mov_b64 exec, -1')
    stamp(204, VST)
    C('longest list, shortest early part')
    I(f'v_max_u32_dpp v{vT+3}, v{vT+3}, v{vT+3} row_shl:8 row_mask:0xf bank_mask:0xf')
    I(f'v_min_u32_dpp v{vT+5}, v{vT+5}, v{vT+5} row_shl:8 row_mask:0xf bank_mask:0xf')
    I(f's_lshr_b32 s{sNB}, s{sNB}, 4')
    I(f'v_readlane_b32 s{sNBM}, v{vT+3}, 0')
    I(f'v_readlane_b32 s{sK0}, v{vT+5}, 0')
    for g in range(1, 4):
        I(f'v_readlane_b32 s{sA}, v{vT+3}, {16*g}')
        I(f'v_readlane_b32 s{sB}, v{vT+5}, {16*g}')
        I(f's_max_u32 s{sNBM}, s{sNBM}, s{sA}')
        I(f's_min_u32 s{sK0}, s{sK0}, s{sB}')
    C('a list longer than the register copies hold: redo this round with a small window')
    I(f's_cmp_le_u32 s{sNBM}, 512')
    I('s_cbranch_scc1 L2_fits')
    I(f's_mov_b32 s{sRC}, {RSMALL}')
    I('s_waitcnt vmcnt(0) lgkmcnt(0)')
    I('s_branch L2_again')
    L('L2_fits')
    ea_out(13, 3)
    early_static(opt.u3)
    U = opt.u + opt.u2 + opt.u3
    assert opt.pob <= 8 or opt.u2 + opt.u3 == 0
    assert 6 <= U <= 13
    C('read-back addresses')
    I(f's_lshl_b32 s{sA}, s{sI}, 2')
    I(f's_add_u32 s{sA}, s{sA}, {L_KI}')
    I(f'v_add_u32 v{vT}, s{sA}, v{vRA}')
    I(f'v_add_u32 v{vT+5}, s{sA}, v{vRA+3}')
    I(f's_lshl_b32 s{sA}, s{sI}, 3')
    I(f's_add_u32 s{sA}, s{sA}, {L_SH}')
    I(f'v_add_u32 v{vT+3}, s{sA}, v{vRA+1}')
    I(f's_add_u32 s{sA}, s{sI}, {L_SLOT}')
    I(f'v_add_u32 v{vT+4}, s{sA}, v{vRA+2}')
    I(f'v_add_u32 v{vT+6}, 1024, v{vT}')
    I(f'v_add_u32 v{vT+7}, 1024, v{vT+5}')
    stamp(205, VST)
    bar_b(9)
    stamp(206, VST)
    if opt.pob == 10: pre_poll()
    xpf(9)
    IT = vT + 8
    for g in range(0, 16, 2):
        I(f'ds_read2_b32 {vr(vKQ+g,2)}, v{vT+(6 if g >= 8 else 0)} offset0:{32*g%256} offset1:{32*(g+1)%256}')
    I(f'ds_read_b128 {vr(vSL,4)}, v{vT+4}')
    for g in range(16):
        if g in (4, 10): I('s_waitcnt lgkmcnt(7)')
        I(f'ds_read2_b32 {vr(IT+2*g,2)}, v{vT+(7 if g >= 8 else 5)} offset0:{32*g%256} offset1:{32*g%256+16}')
    I('s_waitcnt lgkmcnt(6)')
    for g in range(8):
        I(f'ds_read_b64 {vr(vSQ+2*g,2)}, v{vT+3} offset:{512*g}')
    assert opt.pob in (9, 10) and opt.x1 != 10 and opt.x2 != 10
    stamp(211, VST)
    C('which feature passes must land before the main loop')
    I(f's_sub_i32 s{sA}, s{sT0}, s{sR0}')
    I(f's_max_i32 s{sA}, s{sA}, 0')
    I(f's_add_u32 s{sA}, s{sA}, 255')
    I(f's_lshr_b32 s{sA}, s{sA}, 8')
    I(f's_max_u32 s{sA}, s{sA}, {U}')
    I(f's_add_u32 s{sB}, s{sCNT}, 255')
    I(f's_lshr_b32 s{sB}, s{sB}, 8')
    I(f's_lshr_b32 s{sK0}, s{sK0}, 4')
    I(f's_sub_i32 s{sK0}, s{sK0}, 1')
    I(f's_sub_i32 s{sB}, s{sB}, s{sA}')
    I(f's_sub_i32 s{sC}, s{sK0}, 1')
    I(f's_mul_i32 s{sC}, s{sC}, {opt.lpb}')
    I(f's_cmp_le_i32 s{sB}, s{sC}')
    I(f's_cselect_b32 s{sPJ}, s{sA}, 14')
    I(f's_cselect_b32 s{sK0}, s{sK0}, -1')
    if opt.k0e:
        I(f's_add_i32 s{sC}, s{sB}, {opt.k0e}')
        I(f's_min_i32 s{sK0}, s{sK0}, s{sC}')
    I(f's_cmp_gt_i32 s{sB}, 0')
    I(f's_cselect_b32 s{sK0}, s{sK0}, -1')
    if not opt.late:
        I(f's_mov_b32 s{sPJ}, 14'); I(f's_mov_b32 s{sK0}, -1')
    I(f's_lshl_b32 s{sA}, s{sW}, 5')
    I(f's_sub_i32 s{sNP}, s{sCNT}, s{sA}')
    I(f's_add_i32 s{sNP}, s{sNP}, 255')
    I(f's_lshr_b32 s{sNP}, s{sNP}, 8')
    def dyn_early():
        I(f's_mov_b32 s{sA}, {U}')
        I(f's_min_u32 s{sB}, s{sPJ}, s{sNP}')
        L('L2_early')
        I(f's_cmp_ge_u32 s{sA}, s{sB}')
        I('s_cbranch_scc1 L2_early_done')
        I(f's_set_gpr_idx_on s{sA}, gpr_idx(SRC0)')
        I(f'v_mov_b32 v{vGT}, v{vGA}')
        I('s_set_gpr_idx_off')
        I(f's_lshl_b32 m0, s{sA}, 13')
        I(f's_add_u32 m0, m0, s{sEB}')
        I(f's_add_u32 s{sA}, s{sA}, 1')
        I(f'buffer_load_dwordx4 v{vGT}, {sr(sEAO,4)}, 0 offen sc1 lds')
        I('s_branch L2_early')
        L('L2_early_done')
    if opt.pob == 9: dyn_early()
    for g in range(16):
        I(f'v_lshlrev_b32_sdwa v{vKQ+g}, 9, v{vKQ+g} dst_sel:DWORD dst_unused:UNUSED_PAD src0_sel:DWORD src1_sel:WORD_0')
    C('no row fetches past the list end: null keys in the group the look-ahead runs into')
    I(f's_lshr_b32 s{sA}, s{sNB}, 1')
    I(f's_bitcmp1_b32 s{sNB}, 0')
    I('s_cselect_b32 exec_lo, 0xff00ff00, -1')
    I(f's_cmp_lt_u32 s{sNB}, 32')
    I('s_cselect_b32 exec_lo, exec_lo, 0')
    I('s_mov_b32 exec_hi, exec_lo')
    I(f's_set_gpr_idx_on s{sA}, gpr_idx(DST)')
    I(f'v_mov_b32 v{vKQ}, 0x{NULLKI<<9:x}')
    I('s_set_gpr_idx_off')
    I('s_mov_b64 exec, -1')
    I(f'v_mov_b32 v{vK}, v{vKQ}')
    def fetch(sig, lane):
        I(f'v_add_u32_dpp v{vAD}, v{vK}, v{vLS} row_newbcast:{lane} row_mask:0xf bank_mask:0xf')

    I('s_waitcnt lgkmcnt(0)')
    I(f's_mov_b32 s{sA}, 0x07060302')
    for g in range(16):
        I(f'v_perm_b32 v{vIQ+g}, v{IT+2*g+1}, v{IT+2*g}, s{sA}')
    I(f'v_bfe_u32 v{vIC}, v0, 5, 1')
    I(f'v_mul_u32_u24 v{vIC}, 0x10001, v{vIC}')
    for g in range(16):
        I(f'v_or_b32 v{vIQ+g}, v{vIQ+g}, v{vIC}')
    def ea_reads(word):
        I(f'v_lshlrev_b32_sdwa v{vEAA}, 4, v{vIC} dst_sel:DWORD dst_unused:UNUSED_PAD src0_sel:DWORD src1_sel:WORD_{word}')
        I(f's_mov_b64 exec, {sr(sM0,2)}')
        I(f'ds_read_b128 {vr(vA1,4)}, v{vEAA}')
        I(f's_mov_b64 exec, {sr(sM1,2)}')
        I(f'ds_read_b128 {vr(vA2,4)}, v{vEAA}')
        I('s_mov_b64 exec, -1')
    def rw_mfma(p):
        I(f'v_mfma_f32_32x32x16_bf16 {vr(vRW+16*p,16)}, {vr(vA1,4)}, {vr(vBE,4)}, 0')
        I(f'v_mfma_f32_32x32x16_bf16 {vr(vRW+16*p,16)}, {vr(vA2,4)}, {vr(vBO,4)}, {vr(vRW+16*p,16)}')
    def ae_mfma():
        for u in range(4):
            I(f'v_mfma_f32_4x4x4_16b_bf16 {vr(vRW+4*u,4)}, {vr(vSQ,2)}, {vr(vCG+2*u,2)}, 0')
    def ae_cvt():
        for i, d in ((0, vAE), (1, vAE + 4)):
            I(f'v_cvt_pk_bf16_f32 v{d}, v{vRW+i}, v{vRW+4+i}')
            I(f'v_cvt_pk_bf16_f32 v{d+1}, v{vRW+8+i}, v{vRW+12+i}')
    def mfmas(p, s):
        if opt.exp in (5, 7): return
        d = vDT; b = vB + 4 * (s & 1)
        I(f'v_mfma_f32_4x4x4_16b_bf16 {vr(d,4)}, {vr(vAE+2*p,2)}, {vr(b,2)}, 0 cbsz:4 abid:{s}')
        I(f'v_mfma_f32_4x4x4_16b_bf16 {vr(d+4,4)}, {vr(vAE+2*p,2)}, {vr(b+2,2)}, 0 cbsz:4 abid:{8+s}')
    def fmas(p, s):
        if opt.exp in (4, 7): return
        d = vDT
        for h, e in ((0, s), (1, 8 + s)):
            sl = sSA0 + 2 * (s >> 2) + h
            I(f's_set_gpr_idx_on s{sl}, gpr_idx(SRC2,DST)' if h == 0 else f's_set_gpr_idx_idx s{sl}')
            r = vRW + 16 * p + (e & ~1)
            mod = 'op_sel:[0,1,0] op_sel_hi:[1,1,1]' if e & 1 else 'op_sel_hi:[1,0,1]'
            I(f'v_pk_fma_f32 {vr(vACC,2)}, {vr(d+4*h,2)}, {vr(r,2)}, {vr(vACC,2)} {mod}')
            I(f'v_pk_fma_f32 {vr(vACC+2,2)}, {vr(d+4*h+2,2)}, {vr(r,2)}, {vr(vACC+2,2)} {mod}')
    def shift(s):
        sl = sSA0 + 2 * (s >> 2)
        I(f's_lshr_b64 {sr(sl,2)}, {sr(sl,2)}, 8')

    if opt.arb != 6: zero_acc()
    C('operands of batches 0 and 1 that do not need the edge features')
    ae_mfma()
    I(f'v_mov_b32 v{vIC}, v{vIQ}')
    I(f'v_readlane_b32 s{sSA0}, v{vSL}, 0')
    I(f'v_readlane_b32 s{sSB0}, v{vSL+2}, 0')
    I(f's_mov_b32 s{sSA1}, {DUMMY*0x101}')
    I(f's_mov_b32 s{sSB1}, {DUMMY*0x101}')
    I(f's_mov_b32 s{sI}, 0')
    I(f's_mov_b32 s{sKI}, 0')
    ae_cvt()
    stamp(11, VST)
    bar_b(10)
    I(f's_mov_b32 s{sFIRST}, 0')
    if opt.pob == 10: dyn_early()
    if opt.exp == 1: I(f's_mov_b32 s{sX+2}, 0')
    for sig in range(5):
        I(f's_add_u32 m0, s{sRG+(sig>>1)}, {1024*(sig&1)}')
        fetch(sig, sig)
        I(f'buffer_load_dwordx4 v{vAD}, {sr(sX,4)}, 0 offen lds')
    I('s_waitcnt vmcnt(5)')
    I('s_barrier')
    stamp(12, VST)
    I(f's_cmp_eq_u32 s{sNB}, 0')
    I('s_cbranch_scc1 L2_drain')
    ea_reads(0)
    I('s_waitcnt lgkmcnt(0)')
    rw_mfma(0)
    fetch(0, 5)
    I(f's_add_u32 m0, s{sRG+2}, 1024')
    C('inside the loop the register-index mode stays on: M0 alternates between an accumulator index')
    C('and the LDS address of the next row fetch, whose low byte (the index) is zero')
    L('L2_loop')
    for p in range(2):
        C(f'batch parity {p}')
        for s in range(8):
            sig = 8 * p + s
            d = (sig >> 1) % 3
            so = 1024 * (sig & 1)
            b = vB + 4 * (s & 1)
            I('s_waitcnt vmcnt(4) lgkmcnt(0)')
            I(f'buffer_load_dwordx4 v{vAD}, {sr(sX,4)}, 0 offen' + ('', ' sc1', ' sc0')[opt.xfl] + ' lds')
            if opt.exp != 6:
                I(f'ds_read_b64_tr_b16 {vr(b,2)}, v{vRD+d} offset:{so}')
                I(f'ds_read_b64_tr_b16 {vr(b+2,2)}, v{vRD+d} offset:{so+512}')
            if s == 3: ea_reads(p ^ 1)
            fs = (s - 2) % 8
            fmas(p ^ 1 if s < 2 else p, fs)
            if sig == 10:
                I(f's_set_gpr_idx_on s{sKI}, gpr_idx(SRC0)')
                I(f'v_mov_b32 v{vK}, v{vKQ}')
                I(f'v_mov_b32 v{vIC}, v{vIQ}')
                I(f's_set_gpr_idx_idx s{sSI}')
                ae_mfma()
            if sig == 11:
                I(f's_set_gpr_idx_on s{sLN}, gpr_idx(SRC0,SRC1)')
                ae_cvt()
            I(f's_add_u32 m0, s{sRG+d}, {so}')
            if (fs & 3) != 3: shift(fs)
            elif sig == 9: I(f's_add_u32 s{sKI}, s{sKI}, 1')
            elif s == 5 and opt.prio == 2: I(f's_setprio {p}')
            elif s == 5 and opt.prio == 1 and p == 1: I('s_setprio 0')
            else: I('s_nop 0')
            mfmas(p ^ 1 if s == 0 else p, (s - 1) % 8)
            fetch(sig, (sig + 6) % 16)
            if sig == 1: I(f'v_mov_b64 {vr(vAE+2,2)}, {vr(vAE+4,2)}')
            if s == 1:
                I(f'v_readlane_b32 s{sSA1}, v{vSL+1}, s{sI}')
                I(f'v_readlane_b32 s{sSB1}, v{vSL+3}, s{sI}')
                I(f's_add_u32 s{sI}, s{sI}, 1')
            if sig == 9:
                I(f's_and_b32 s{sSI}, s{sKI}, 0xfe')
                I(f's_and_b32 s{sLN}, s{sI}, 2')
            if s == 4 and opt.exp != 8: rw_mfma(p ^ 1)
            if sig == 5 and opt.prio == 1:
                I(f's_cmp_lt_u32 s{sW}, 4')
                I('s_cbranch_scc1 L2_prio')
                I('s_setprio 1')
                L('L2_prio')
            if s == 6:
                I(f'v_readlane_b32 s{sSA0}, v{vSL}, s{sI}')
                I(f'v_readlane_b32 s{sSB0}, v{vSL+2}, s{sI}')
        if p == 1:
            I(f'v_swap_b32 v{vRD}, v{vRD+2}'); I(f'v_swap_b32 v{vRD+1}, v{vRD+2}')
            I(f's_mov_b32 s{sRG+3}, s{sRG+2}'); I(f's_mov_b32 s{sRG+2}, s{sRG+1}'); I(f's_mov_b32 s{sRG+1}, s{sRG}'); I(f's_mov_b32 s{sRG}, s{sRG+3}')
        if opt.stamps == 4 and p == 1:
            I(f's_lshr_b32 s{sA}, s{sI}, 1')
            I(f's_cmp_gt_u32 s{sA}, 11')
            I('s_cbranch_scc1 L2_nost')
            I('s_set_gpr_idx_off')
            I(f's_mov_b32 s{sB}, m0')
            I('s_memrealtime s[100:101]')
            I(f's_mov_b32 m0, s{sA}')
            I('s_waitcnt lgkmcnt(0)')
            I(f'v_writelane_b32 v{VST}, s100, m0')
            I(f'v_writelane_b32 v{VST+1}, s101, m0')
            I(f's_mov_b32 m0, s{sB}')
            L('L2_nost')
        I(f's_cmp_le_i32 s{sI}, s{sK0}')
        I(f's_cbranch_scc1 L2_ev{p}')
        L(f'L2_evdone{p}')
        I(f's_cmp_lt_u32 s{sI}, s{sNB}')
        if p == 0: I('s_cbranch_scc0 L2_tail0')
        else: I('s_cbranch_scc1 L2_loop')
    for p in (1, 0):
        if p == 0: L('L2_tail0')
        I('s_waitcnt lgkmcnt(0)')
        fmas(p, 6)
        I('s_set_gpr_idx_off')
        shift(6)
        mfmas(p, 7)
        I('s_nop 4')
        fmas(p, 7)
        I('s_set_gpr_idx_off')
        I('s_branch L2_drain')
    for p in range(2):
        L(f'L2_ev{p}')
        I(f's_cmp_lg_u32 s{sI}, s{sK0}')
        I(f's_cbranch_scc1 L2_late{p}')
        C('all late features have landed (every wave waited for younger loads since its last pass)')
        I('s_barrier')
        I(f's_branch L2_evdone{p}')
        L(f'L2_late{p}')
        I(f's_mov_b32 s{sB}, m0')
        for k in range(opt.lpb):
            I(f's_cmp_ge_u32 s{sPJ}, s{sNP}')
            I(f's_cbranch_scc1 L2_nolate{p}')
            I(f's_set_gpr_idx_on s{sPJ}, gpr_idx(SRC0)')
            I(f'v_mov_b32 v{vGT}, v{vGA}')
            I(f's_lshl_b32 m0, s{sPJ}, 13')
            I(f's_add_u32 m0, m0, s{sEB}')
            I(f's_add_u32 s{sPJ}, s{sPJ}, 1')
            I(f'buffer_load_dwordx4 v{vGT}, {sr(sEAO,4)}, 0 offen sc1 lds')
        L(f'L2_nolate{p}')
        I(f's_mov_b32 m0, s{sB}')
        I(f's_branch L2_evdone{p}')
    L('L2_drain')
    I('s_waitcnt vmcnt(0) lgkmcnt(0)')
    stamp(13, VST)
    I(f's_add_u32 s{sR0}, s{sR0}, s{sRC}')
    I(f's_cmp_ge_u32 s{sR0}, s{sTOT}')
    I('s_cbranch_scc1 L2_epi')
    L('L2_again')
    I('s_barrier')
    prefill()
    I('s_branch L2_round')

    if opt.epi:
        L('L2_epi')
        C('---- epilogue: out = agg @ w_out, two tiles of 8 slots; the partial sums of a shared node go to')
        C('     its owner (the previous wave), whose tile with the receiving slot is done second')
        vP = 76
        vDN = 92
        vBB = 132
        vD = 184
        vO = 164
        vT = 172
        sF, sS = sSA0, sSB0
        I(f's_sub_u32 s{sA}, s{sON}, 1')
        I(f's_and_b32 s{sA}, s{sA}, 15')
        I(f's_lshl_b32 s{sA}, s{sA}, 2')
        I(f's_and_b32 s{sS}, s{sA}, 32')
        I(f's_xor_b32 s{sF}, s{sS}, 32')
        def t_cvt(i):
            for k in range(4):
                I(f'v_cvt_pk_bf16_f32 v{vP+4*i+k}, v{vACC+8*i+2*k}, v{vACC+8*i+2*k+1}')
            I(f'ds_write_b128 v{vTW}, {vr(vP+4*i,4)} offset:{16*i}')
        def t_reads(ct):
            for s in range(4):
                for i in range(2):
                    I(f'ds_read_b64_tr_b16 {vr(vBB+16*ct+4*s+2*i,2)}, v{vTR} offset:{(16*s+4*i)*TC}')
        def mf(ct, n):
            tile, s = n & 1, n >> 1
            d = vD + 32 * ct + 16 * tile
            I(f'v_mfma_f32_32x32x16_bf16 {vr(d,16)}, {vr(vBB+16*ct+4*s,4)}, {vr(vWA+16*tile+4*s,4)}, {vr(d,16) if s else 0}')
        I(f's_set_gpr_idx_on s{sF}, gpr_idx(SRC0,SRC1)')
        for i in range(4): t_cvt(i)
        t_reads(0)
        I(f's_sub_u32 s{sB}, s{sOF}, 1')
        I(f's_and_b32 s{sB}, s{sB}, 15')
        I(f's_lshl_b32 s{sB}, s{sB}, 2')
        I(f's_set_gpr_idx_on s{sB}, gpr_idx(SRC0)')
        for k in range(4): I(f'v_mov_b32 v{vDN+k}, v{vACC+k}')
        I('s_set_gpr_idx_off')
        I(f'v_and_b32 v{vT}, 63, v0')
        I(f'v_lshl_add_u32 v{vT}, v{vT}, 4, s3')
        I(f'ds_write_b128 v{vT}, {vr(vDN,4)} offset:5120')
        I(f's_cmp_eq_u32 s{sW}, 7')
        I(f's_cselect_b32 s{sA}, {DUMMY}, s{sA}')
        C('the output descriptor covers exactly the nodes this wave owns')
        I(f's_mul_i32 s{sB}, s{sBK}, {NB}')
        I(f's_sub_u32 s{sC}, {N}, s{sB}')
        I(f's_min_u32 s{sC}, s{sC}, s{sON}')
        I(f's_sub_i32 s{sC}, s{sC}, s{sOF}')
        I(f's_max_i32 s{sC}, s{sC}, 0')
        I(f's_lshl_b32 s{sC}, s{sC}, 9')
        I(f's_add_u32 s{sB}, s{sB}, s{sOF}')
        I(f's_lshl_b32 s{sB}, s{sB}, 9')
        stamp(101, VST)
        I('s_waitcnt lgkmcnt(7)')
        mf(0, 0); mf(0, 1)
        srd(sOUT, 20, off_s=sB, size_s=sC)
        I(f's_lshr_b32 s{sB}, s{sF}, 2')
        I(f's_sub_u32 s{sB}, s{sB}, s{sOF}')
        I('s_waitcnt lgkmcnt(5)')
        mf(0, 2)
        I(f'v_bfe_u32 v{vT+1}, v0, 5, 1')
        I(f'v_add_u32 v{vT+1}, s{sB}, v{vT+1}')
        I(f'v_and_b32 v{vT+2}, 31, v0')
        I(f'v_lshlrev_b32 v{vT+2}, 2, v{vT+2}')
        I(f'v_lshl_add_u32 v{vT+1}, v{vT+1}, 9, v{vT+2}')
        mf(0, 3)
        def o_addr(it):
            I(f'v_add_u32 v{vO+it}, {1024*it}, v{vT+1}')
            I(f'v_and_b32 v{vO+it}, 0x1fff, v{vO+it}')
        I('s_waitcnt lgkmcnt(0)')
        for n in range(4, 8):
            mf(0, n)
            o_addr(2 * n - 8); o_addr(2 * n - 7)
        def o_store(ct, r):
            I(f'v_cvt_pk_bf16_f32 v{vD+32*ct+r}, v{vD+32*ct+r}, v{vD+32*ct+16+r}')
            I(f'buffer_store_dword v{vD+32*ct+r}, v{vO+4*ct+(r>>2)}, {sr(sOUT,4)}, 0 offen offset:{128*(r&3)}' + ('', ' sc1', ' nt', ' sc1 nt', ' sc0 sc1')[opt.ofl])
        I('s_nop 7')
        stamp(102, VST)
        for r in range(8): o_store(0, r)
        I('s_barrier')
        I(f'ds_read_b128 {vr(vDN,4)}, v{vT} offset:{6144+5120}')
        for r in range(8, 12): o_store(0, r)
        I('s_waitcnt lgkmcnt(0)')
        I(f's_set_gpr_idx_on s{sA}, gpr_idx(SRC0,DST)')
        for k in range(4): I(f'v_add_f32 v{vACC+k}, v{vACC+k}, v{vDN+k}')
        I(f's_set_gpr_idx_on s{sS}, gpr_idx(SRC0,SRC1)')
        for i in range(4): t_cvt(i)
        I('s_set_gpr_idx_off')
        t_reads(1)
        for r in range(12, 16): o_store(0, r)
        stamp(103, VST)
        for n in range(8):
            if not n & 1: I(f's_waitcnt lgkmcnt({6-n})')
            mf(1, n)
        I('s_nop 11')
        stamp(105, VST)
        for r in range(16): o_store(1, r)
    else:
        L('L2_epi')
        C('---- epilogue: out = agg @ w_out, two tiles of 8 slots; the partial sums of a shared node go to')
        C('     its owner (the previous wave), whose tile with the receiving slot is done second')
        vP = 76
        vDN = 92
        vBB = 132
        vD = 164
        vT = 228
        vLANE = vT + 16
        vBA, vO = vT + 2, vT + 8
        sF, sS = sSA0, sSB0
        I(f'v_and_b32 v{vLANE}, 63, v0')
        I(f's_sub_u32 s{sA}, s{sOF}, 1')
        I(f's_and_b32 s{sA}, s{sA}, 15')
        I(f's_lshl_b32 s{sA}, s{sA}, 2')
        I(f'v_lshl_add_u32 v{vT}, v{vLANE}, 4, s3')
        I(f's_set_gpr_idx_on s{sA}, gpr_idx(SRC0)')
        for k in range(4): I(f'v_mov_b32 v{vDN+k}, v{vACC+k}')
        I('s_set_gpr_idx_off')
        I(f'ds_write_b128 v{vT}, {vr(vDN,4)} offset:5120')
        I(f's_sub_u32 s{sA}, s{sON}, 1')
        I(f's_and_b32 s{sA}, s{sA}, 15')
        I(f's_lshl_b32 s{sA}, s{sA}, 2')
        I(f's_and_b32 s{sS}, s{sA}, 32')
        I(f's_xor_b32 s{sF}, s{sS}, 32')
        I(f's_cmp_eq_u32 s{sW}, 7')
        I(f's_cselect_b32 s{sA}, {DUMMY}, s{sA}')
        I(f'v_mul_u32_u24 v{vT+1}, {TC}, v{vLANE}')
        I(f'v_add_u32 v{vT+1}, s3, v{vT+1}')
        def t_write(sidx, i):
            I(f's_set_gpr_idx_on s{sidx}, gpr_idx(SRC0,SRC1)')
            for k in range(4):
                I(f'v_cvt_pk_bf16_f32 v{vP+4*i+k}, v{vACC+8*i+2*k}, v{vACC+8*i+2*k+1}')
            I('s_set_gpr_idx_off')
            I(f'ds_write_b128 v{vT+1}, {vr(vP+4*i,4)} offset:{16*i}')
        def t_reads(ct):
            for s in range(4):
                for i in range(2):
                    I(f'ds_read_b64_tr_b16 {vr(vBB+16*ct+4*s+2*i,2)}, v{vBA} offset:{(16*s+4*i)*TC}')
        def mf(ct, n):
            tile, s = n & 1, n >> 1
            d = vD + 32 * ct + 16 * tile
            I(f'v_mfma_f32_32x32x16_bf16 {vr(d,16)}, {vr(vBB+16*ct+4*s,4)}, {vr(vWA+16*tile+4*s,4)}, {vr(d,16) if s else 0}')
        for i in range(4): t_write(sF, i)
        I(f'v_bfe_u32 v{vT+5}, v0, 5, 1')
        I(f'v_bfe_u32 v{vT+6}, v0, 2, 2')
        I(f'v_lshl_add_u32 v{vBA}, v{vT+5}, 3, v{vT+6}')
        I(f'v_mul_u32_u24 v{vBA}, {TC}, v{vBA}')
        I(f'v_bfe_u32 v{vT+6}, v0, 4, 1')
        I(f'v_lshl_add_u32 v{vBA}, v{vT+6}, 5, v{vBA}')
        I(f'v_and_b32 v{vT+6}, 3, v0')
        I(f'v_lshl_add_u32 v{vBA}, v{vT+6}, 3, v{vBA}')
        I(f'v_add_u32 v{vBA}, s3, v{vBA}')
        t_reads(0)
        C('the output descriptor covers exactly the nodes this wave owns')
        I(f's_mul_i32 s{sB}, s{sBK}, {NB}')
        I(f's_sub_u32 s{sC}, {N}, s{sB}')
        I(f's_min_u32 s{sC}, s{sC}, s{sON}')
        I(f's_sub_i32 s{sC}, s{sC}, s{sOF}')
        I(f's_max_i32 s{sC}, s{sC}, 0')
        I(f's_lshl_b32 s{sC}, s{sC}, 9')
        I(f's_add_u32 s{sB}, s{sB}, s{sOF}')
        I(f's_lshl_b32 s{sB}, s{sB}, 9')
        srd(sOUT, 20, off_s=sB, size_s=sC)
        I(f's_lshr_b32 s{sB}, s{sF}, 2')
        I(f's_sub_u32 s{sB}, s{sB}, s{sOF}')
        I(f'v_add_u32 v{vT+6}, s{sB}, v{vT+5}')
        I(f'v_and_b32 v{vT+7}, 31, v0')
        I(f'v_lshlrev_b32 v{vT+7}, 2, v{vT+7}')
        I(f'v_lshl_add_u32 v{vT+6}, v{vT+6}, 9, v{vT+7}')
        def o_addr(it):
            I(f'v_add_u32 v{vO+it}, {1024*it}, v{vT+6}')
            I(f'v_and_b32 v{vO+it}, 0x1fff, v{vO+it}')
        stamp(101, VST)
        I('s_waitcnt lgkmcnt(0)')
        for n in range(3): mf(0, n)
        I('s_barrier')
        I(f'ds_read_b128 {vr(vDN,4)}, v{vT} offset:{6144+5120}')
        mf(0, 3)
        for it in range(8): o_addr(it)
        I('s_waitcnt lgkmcnt(0)')
        stamp(102, VST)
        I(f's_set_gpr_idx_on s{sA}, gpr_idx(SRC0,DST)')
        for k in range(4): I(f'v_add_f32 v{vACC+k}, v{vACC+k}, v{vDN+k}')
        I('s_set_gpr_idx_off')
        for n in range(4):
            mf(0, 4 + n)
            t_write(sS, n)
        t_reads(1)
        vPK = 8
        def o_store(ct, r):
            I(f'v_cvt_pk_bf16_f32 v{vPK+16*ct+r}, v{vD+32*ct+r}, v{vD+32*ct+16+r}')
            I(f'buffer_store_dword v{vPK+16*ct+r}, v{vO+4*ct+(r>>2)}, {sr(sOUT,4)}, 0 offen offset:{128*(r&3)}' + ('', ' sc1', ' nt', ' sc1 nt', ' sc0 sc1')[opt.ofl])
        stamp(103, VST)
        for r in range(4): o_store(0, r)
        I('s_waitcnt lgkmcnt(0)')
        for n in range(8):
            mf(1, n)
            if n >= 2: o_store(0, 2 * n); o_store(0, 2 * n + 1)
        I('s_nop 7')
        stamp(105, VST)
        for r in range(16): o_store(1, r)
    stamp(14, VST)
    if opt.stamps: I('s_waitcnt vmcnt(0)')
    stamp(15, VST); stamp_flush(VST, 1)
    if opt.dbg:
        I(f's_cmp_lg_u32 s2, {opt.dbg}')
        I('s_cbranch_scc1 L2_end')
        I(f's_cmp_lg_u32 s{sW}, 0')
        I('s_cbranch_scc1 L2_end')
        I(f'v_readlane_b32 s{sA}, v{VST}, 0')
        if opt.tfirst: I(f's_mov_b32 s{sA}, s94')
        srd(Q0, 22, size=64)
        I(f'v_subrev_u32 v{vAD}, s{sA}, v{VST}')
        I(f'v_lshlrev_b32 v{vGT}, 2, v0')
        I('s_mov_b64 exec, 0xfffe')
        I(f'buffer_store_dword v{vAD}, v{vGT}, {sr(Q0,4)}, 0 offen' + (' sc1' if opt.nodbgst else ''))
        if opt.amp:
            I(f'v_readlane_b32 s{sB}, v{VST}, {opt.amp}')
            I(f's_sub_u32 s{sB}, s{sB}, s{sA}')
            I(f's_mul_i32 s{sB}, s{sB}, {opt.ampk}')
            I(f's_min_u32 s{sB}, s{sB}, 100000')
            I(f's_add_u32 s{sB}, s{sB}, 5000')
            L('L2_amp')
            I('s_memrealtime s[100:101]')
            I('s_waitcnt lgkmcnt(0)')
            I(f's_sub_u32 s100, s100, s{sA}')
            I(f's_cmp_lt_u32 s100, s{sB}')
            I('s_cbranch_scc1 L2_amp')
    L('L2_end')
    I('s_endpgm')

emit1(NAME, gen, 256, 512, K2_LDS, 256, 102)
```
